```python
import torch

def _softmax(x, axis=-1):
    return torch.softmax(x, dim=axis)
def _gelu(x):
    return torch.nn.functional.gelu(x, approximate="tanh")
def _silu(x):
    return torch.nn.functional.silu(x)
def _sigmoid(x):
    return torch.sigmoid(x)
def _layernorm(x, axis=-1, eps=1e-5):
    m = x.mean(dim=axis, keepdim=True)
    v = x.var(dim=axis, keepdim=True, unbiased=False)
    return (x - m) / torch.sqrt(v + eps)
def _scatter_add(tgt, idx, src, axis=0):
    return tgt.clone().index_add_(axis, idx, src)
def _segment_sum(src, seg, n):
    out = torch.zeros((n,) + src.shape[1:], dtype=src.dtype)
    return out.index_add_(0, seg, src)
def _pad(x, pw):
    flat = tuple(v for pair in reversed(pw) for v in pair)
    return torch.nn.functional.pad(x, flat)

kernel_name = 'recurrent_scan__gqa_block_cached__glu_gated_reglu__prompt'

def setup_inputs():

    _w = (lambda a: (lambda t: t.to(torch.bfloat16) if t.is_floating_point() else t)(torch.as_tensor(a)))
    def _A_setup():
        B, Sq, D = 1, 2048, 576
        Hq, Hkv, Sk, Dh = 32, 16, 2048, 128
        assert Hq % Hkv == 0, (Hq, Hkv)
        return {
            "x": _w((lambda *s: torch.randn(*s, dtype=torch.bfloat16) * 0.05)(B, Sq, D)),
            "k_cache": _w((lambda *s: torch.randn(*s, dtype=torch.bfloat16) * 1.6)(B, Hkv, Sk, Dh)),
            "v_cache": _w((lambda *s: torch.randn(*s, dtype=torch.bfloat16) * 1.6)(B, Hkv, Sk, Dh)),
            "wq": _w((lambda *s: torch.randn(*s, dtype=torch.bfloat16) * 1.6)(D, Hq * Dh) * (D ** -0.5)),
            "wo": _w((lambda *s: torch.randn(*s, dtype=torch.bfloat16) * 1.6)(Hq * Dh, D) * ((Hq * Dh) ** -0.5)),
        }
    _A_in = _A_setup()

    def _B_setup():
        B, S, D, F = 1, 2048, 576, 4608
        return {
            "x": _w((lambda *s: torch.randn(*s, dtype=torch.bfloat16) * 0.05)(B, S, D)),
            "W_gate": _w((lambda *s: torch.randn(*s, dtype=torch.bfloat16) * 0.2)(D, F) * (2.0 / D) ** 0.5),
            "W_up": _w((lambda *s: torch.randn(*s, dtype=torch.bfloat16) * 0.2)(D, F) * (2.0 / D) ** 0.5),
            "W_down": _w((lambda *s: torch.randn(*s, dtype=torch.bfloat16) * 0.2)(F, D) * (1.0 / F) ** 0.5),
        }
    _B_in = _B_setup()

    return {
        "A_x": _A_in["x"],
        "A_k_cache": _A_in["k_cache"],
        "A_v_cache": _A_in["v_cache"],
        "A_wq": _A_in["wq"],
        "A_wo": _A_in["wo"],
        "B_x": _B_in["x"],
        "B_W_gate": _B_in["W_gate"],
        "B_W_up": _B_in["W_up"],
        "B_W_down": _B_in["W_down"],
    }

def reference(A_x, A_k_cache, A_v_cache, A_wq, A_wo, B_x, B_W_gate, B_W_up, B_W_down):
    def _A_ref(x, k_cache, v_cache, wq, wo):
        B, Sq, D = x.shape
        Hq, Dh = 32, 128
        Hkv = k_cache.shape[1]
        rep = Hq // Hkv
        q = (lambda x, *d: x.permute(*d))((x @ wq).reshape(B, Sq, Hq, Dh), 0, 2, 1, 3)
        k = (lambda x, n, axis: torch.repeat_interleave(x, n, dim=axis))(k_cache, rep, axis=1)
        v = (lambda x, n, axis: torch.repeat_interleave(x, n, dim=axis))(v_cache, rep, axis=1)
        scores = torch.einsum("bhqd,bhkd->bhqk", q, k) * (Dh ** -0.5)
        p = _softmax(scores, axis=-1)
        o = torch.einsum("bhqk,bhkd->bhqd", p, v)
        return (lambda x, *d: x.permute(*d))(o, 0, 2, 1, 3).reshape(B, Sq, Hq * Dh) @ wo

    def _B_ref(x, W_gate, W_up, W_down):
        gate = torch.einsum("bsd,df->bsf", x, W_gate)
        up = torch.einsum("bsd,df->bsf", x, W_up)
        gate = gate * (lambda x, dt: x.to(dt))(gate > 0, gate.dtype)
        h = gate * up
        return torch.einsum("bsf,fd->bsd", h, W_down)

    x = A_x
    xn = _layernorm(x, axis=-1)
    s = _A_ref(xn, A_k_cache, A_v_cache, A_wq, A_wo)
    g = _silu(_B_ref(xn, B_W_gate, B_W_up, B_W_down))
    return x + s * g
```

```python
def v(i, n=1):
    return f"v{i}" if n == 1 else f"v[{i}:{i+n-1}]"
def a(i, n=1):
    return f"a{i}" if n == 1 else f"a[{i}:{i+n-1}]"
def s(i, n=1):
    return f"s{i}" if n == 1 else f"s[{i}:{i+n-1}]"
def r(i, n=1):
    return v(i, n) if i < 256 else a(i - 256, n)

class Asm:
    def __init__(self):
        self.lines = []
    def __call__(self, text):
        for l in text.split("\n"):
            self.lines.append(l)
        return self
    def e(self, text):
        self.lines.append("    " + text)
    def label(self, name):
        self.lines.append(name + ":")
    def text(self):
        return "\n".join(self.lines) + "\n"

def kernel_head(name):
    return f""".text
.globl {name}
.p2align 8
.type {name},@function
{name}:
"""

def kernel_desc(name, vgpr=512, sgpr=102, accum=256, wgy=False):
    return f""".section .rodata,"a"
.p2align 6
.amdhsa_kernel {name}
  .amdhsa_next_free_vgpr {vgpr}
  .amdhsa_next_free_sgpr {sgpr}
  .amdhsa_accum_offset {accum}
  .amdhsa_group_segment_fixed_size 0
  .amdhsa_kernarg_size 96
  .amdhsa_user_sgpr_count 2
  .amdhsa_user_sgpr_kernarg_segment_ptr 1
  .amdhsa_system_sgpr_workgroup_id_x 1
  .amdhsa_float_denorm_mode_32 3
.end_amdhsa_kernel
.text
"""
```

```python
from asmgen import *

NSUB = 64
THR = 0x4b800000
ORDER = [0, 2, 1, 3]
MSUM = (0, 1)

class Regs:
    def __init__(R, vbase=8):
        n = vbase
        def al(k, align=1):
            nonlocal n
            n = (n + align - 1) // align * align
            r = n; n += k; return r
        R.S = al(64, 4)
        R.P = al(32, 4)
        R.NEGM = al(16, 4)
        R.SD = al(8, 4)
        R.ONES = al(4, 4)
        R.NT = 32
        R.T = al(R.NT)
        R.PS = al(4)
        R.L = al(4)
        R.KADDR = al(4)
        R.VADDR = al(8)
        R.KDMA = 247
        R.VDMA = 251
        R.CHK = al(1)
        R.TMP = al(12, 4)
        R.vend = n
        R.O = 0
        R.Q = 128
        R.F = 192
        R.sK = 36
        R.sV = 40
        R.sKoff = 44
        R.sVoff = 45
        R.sM0K = 46
        R.sM0V = 47
        R.sThr = 48
        R.sLoop = 49
        R.sRet = 50
        R.sTmp = 52
    def s(R, par, qb, kb, r=None):
        b = R.S + par * 32 + qb * 8 + kb * 4
        return v(b, 4) if r is None else v(b + r)
    def p(R, par, qb, j=None):
        b = R.P + par * 16 + qb * 4
        return v(b, 4) if j is None else v(b + j)
    def negm(R, qb, r=None):
        return v(R.NEGM + qb * 4, 4) if r is None else v(R.NEGM + qb * 4 + r)
    def o(R, qb, db, r=None):
        b = R.O + (qb * 8 + db) * 4
        return a(b, 4) if r is None else a(b + r)
    def q(R, qb, ds):
        return a(R.Q + (qb * 4 + ds) * 4, 4)
    def f(R, i, n=4, off=0):
        return a(R.F + i * 4 + off, n)
    def psum(R, qb):
        if qb in MSUM: return v(R.SD + MSUM.index(qb) * 4)
        return v(R.PS + qb)

MF = "v_mfma_f32_16x16x32_bf16"

def kslot(u): return (u + 3) & 7
def vslot(u): return u & 7

class Item:
    def __init__(s, kind, text, lo, hi, tag=""):
        s.kind, s.text, s.lo, s.hi, s.tag = kind, text, lo, hi, tag

S0_AFTER, S1_AFTER = 9, 41
def pos(n):
    return n + (1 if n > S0_AFTER else 0) + (1 if n > S1_AFTER else 0)
NG = 66
POS_S0, POS_S1 = S0_AFTER + 1, S1_AFTER + 2
SHIFT = 4

def gap_types():
    t = [None] * NG
    for n in range(64):
        if n % 2 == 0: t[pos(n)] = "E"
    free = [g for g in range(NG) if t[g] is None]
    vv = CFG["vv"]; dm = CFG["dma"]
    for g in free:
        t[g] = "V" if g in vv else ("M" if g in dm else "D")
    return t

CFG = dict(vv=[pos(15), pos(19), pos(23), pos(57), pos(59), pos(61)], dma=[pos(5), pos(11), pos(27), pos(33)])

class AttnGen:
    def __init__(G, R, opt=None):
        G.R = R
        G.opt = opt or {}
        if 'cfg' in G.opt: CFG.update(G.opt['cfg'])
        G.types = gap_types()
        G.late = []
        G.nD = G.types.count("D")
        assert G.nD >= 24, G.nD

    def mfma_list(G, p, do_pv, do_qk):
        R = G.R; par = p & 1
        L = [None] * NG
        for n in range(32):
            qb = ORDER[n >> 3]; db = n & 7
            L[pos(n)] = (f"{MF} {R.o(qb,db)}, {R.f(db)}, {R.p(par^1,qb)}, {R.o(qb,db)}", ("V", db)) if do_pv else None
        for n in range(32, 64):
            i = (n - 32) >> 2; kb = i >> 2; ds = i & 3; qb = ORDER[n & 3]
            c = R.negm(qb) if ds == 0 else R.s(par^1, qb, kb)
            L[pos(n)] = (f"{MF} {R.s(par^1,qb,kb)}, {R.f(8+i)}, {R.q(qb,ds)}, {c}", ("K", i)) if do_qk else None
        L[POS_S0] = (f"{MF} {v(R.SD,4)}, {v(R.ONES,4)}, {R.p(par,MSUM[0])}, 0", None)
        L[POS_S1] = (f"{MF} {v(R.SD+4,4)}, {v(R.ONES,4)}, {R.p(par,MSUM[1])}, 0", None)
        return L

    def exp_src(G, tile, e):
        qb = ORDER[e >> 3]; kb = (e >> 2) & 1; r = e & 3
        return G.R.s(tile & 1, qb, kb, r)
    def tmp(G, tile, e):
        return v(G.R.T + (tile * 32 + e) % G.R.NT)
    def exp_text(G, tile, e):
        return f"v_exp_f32 {G.tmp(tile,e)}, {G.exp_src(tile,e)}"
    def cvt_text(G, tile, e):
        qb = ORDER[e >> 3]; j = (e & 7) >> 1
        return f"v_cvt_pk_bf16_f32 {G.R.p(tile&1,qb,j)}, {G.tmp(tile,e)}, {G.tmp(tile,e+1)}"
    def exp_time(G, tile, e):
        k = e - SHIFT
        if k < 0: return (tile - 1) * NG + pos(64 + 2 * k)
        return tile * NG + pos(2 * k)

    def valu_items(G, tile):
        R = G.R; it = []; T0 = tile * NG
        nxtI = lambda t: t + 1
        for e in range(0, 32, 2):
            qb = ORDER[e >> 3]
            lo = G.exp_time(tile, e + 1) + 1
            if qb == MSUM[0]: hi = T0 + POS_S0 - 2
            elif qb == MSUM[1]: hi = T0 + POS_S1 - 2
            else: hi = T0 + NG + pos(8 * ORDER.index(qb)) - 2
            hi = min(hi, G.exp_time(tile, e) + 0 + self_reuse(G, tile, e))
            it.append(Item("V", G.cvt_text(tile, e), lo, hi, ("cvt", tile, e)))
        for qb in range(4):
            if qb in MSUM: continue
            b = ORDER.index(qb) * 8
            it.append(Item("V", f"v_add_f32 {R.psum(qb)}, {G.tmp(tile,b)}, {G.tmp(tile,b+1)}", G.exp_time(tile, b + 1) + 1,
                           G.exp_time(tile, b + 1) + 3, ("add", tile, qb, 1)))
            for j in range(2, 8):
                it.append(Item("V", f"v_add_f32 {R.psum(qb)}, {R.psum(qb)}, {G.tmp(tile,b+j)}", G.exp_time(tile, b + j) + 1,
                               G.exp_time(tile, b + j) + 3, ("add", tile, qb, j)))
        vq = [q for q in ORDER if q not in MSUM]
        last = G.exp_time(tile, 31) + 1
        it.append(Item("V", f"v_max3_f32 {v(R.CHK)}, {R.psum(MSUM[0])}, {R.psum(MSUM[1])}, {R.psum(vq[0])}", T0 + POS_S1 + 6, last, ("chk", tile, 0)))
        it.append(Item("V", f"v_max_f32 {v(R.CHK)}, {v(R.CHK)}, {R.psum(vq[1])}", last + 1, last + 2, ("chk", tile, 1)))
        it.append(Item("V", f"v_cmp_lt_f32 vcc, {s(R.sThr)}, {v(R.CHK)}", last + 1, last + 2, ("chk", tile, 2)))
        for qb in range(4):
            if qb == MSUM[0]: hi = T0 + NG + POS_S0 - 1
            elif qb == MSUM[1]: hi = T0 + NG + POS_S1 - 1
            else: hi = G.exp_time(tile + 1, ORDER.index(qb) * 8 + 1)
            it.append(Item("V", f"v_add_f32 {v(R.L+qb)}, {v(R.L+qb)}, {R.psum(qb)}", "afterchk", hi, ("ladd", tile, qb)))
        return it

    def ds_items(G, p):
        R = G.R; it = []
        ks = kslot(p + 1)
        for i in range(8):
            kb, ds = i >> 2, i & 3
            it.append((f"ds_read_b128 {R.f(8+i)}, {v(R.KADDR+ds)} offset:{ks*8192+kb*4096}", ("K", i), p * NG + 1, "K"))
        vs = vslot(p)
        for db in range(8):
            for h in range(2):
                it.append((f"ds_read_b64_tr_b16 {R.f(db,2,2*h)}, {v(R.VADDR+db)} offset:{vs*8192+h*4096}", ("V", db),
                           p * NG + pos(24 + db) + 1, "V"))
        return it

    def dma_items(G, p):
        R = G.R; out = []
        if p % 2 == 0:
            m0 = f"s_add_u32 m0, {s(R.sM0K)}, {(p & 7) * 8192}"
            for n in range(4):
                out.append(f"buffer_load_dwordx4 {v(R.KDMA+n)}, {s(R.sK,4)}, {s(R.sKoff)} offen offset:{n*1024} lds")
            adv = f"s_add_u32 {s(R.sKoff)}, {s(R.sKoff)}, 16384"
        else:
            m0 = f"s_add_u32 m0, {s(R.sM0V)}, {((p + 3) & 7) * 8192}"
            for n in range(4):
                out.append(f"buffer_load_dwordx4 {v(R.VDMA+(n&1))}, {s(R.sV,4)}, {s(R.sVoff)} offen offset:{n*1024} lds")
            adv = f"s_add_u32 {s(R.sVoff)}, {s(R.sVoff)}, 16384"
        return m0, out, adv

    def schedule(G, first=0, last=NSUB - 1):
        R = G.R
        pend = []
        placed = {}
        periods = []
        for t in (first,):
            pend += [x for x in G.valu_items(t) if G.keep_first(x, t)]
        added = first
        G.chk_pos = {}
        for p in range(first, last + 1):
            do_pv = p > 0; do_qk = p < NSUB - 1
            M = G.mfma_list(p, do_pv, do_qk)
            dsq = G.ds_items(p)
            if not do_qk: dsq = [d for d in dsq if d[3] != "K"]
            m0, dmas, adv = G.dma_items(p)
            if p + 1 <= last + 1 and do_qk:
                pend += G.valu_items(p + 1)
            gaps = []
            e_next = {}
            for e in range(32):
                e_next[G.exp_time(p, e)] = (p, e)
                if do_qk: e_next[G.exp_time(p + 1, e)] = (p + 1, e)
            dmi = 0
            for g in range(NG):
                T = p * NG + g
                gap = dict(mfma=M[g], pre=[], body=[], post=[])
                ty = G.types[g]
                if ty == "E":
                    if T in e_next:
                        gap["body"].append(G.exp_text(*e_next[T]))
                else:
                    nv = 2 if ty == "V" else 1
                    if ty == "M" and G.opt.get("dmaalone"): nv = 0
                    if ty == "D":
                        if dsq and dsq[0][2] <= T:
                            d = dsq.pop(0); gap["body"].append(("DS", d[0], d[1]))
                        else:
                            nv = 2
                    elif ty == "M":
                        if dmi == 0: pass
                        if not G.opt.get("nodma"): gap["body"].append(dmas[dmi])
                        dmi += 1
                    for _ in range(nv):
                        ready = [x for x in pend if G.ready(x, T, placed)]
                        if not ready: break
                        ready.sort(key=lambda x: x.hi)
                        x = ready[0]; pend.remove(x); placed[x.tag] = T
                        if x.hi < T: G.late.append((x.tag, T, x.hi))
                        gap["body"].append(x.text)
                        if x.tag[0] == "chk" and x.tag[2] == 2:
                            gap["post"].append(("CHECK", p)); G.chk_pos[p] = T
                gaps.append(gap)
            assert not dsq, (p, dsq)
            assert dmi == 4
            dg = [g for g in range(NG) if G.types[g] == "M"]
            gaps[dg[0] - 1]["pre"].append(m0)
            gaps[dg[-1] + 1]["pre"].append(adv)
            if p % 2 == 0 and not G.opt.get("nobar"):
                if G.opt.get("barpost"):
                    gaps[G.opt.get("barpos", 0)]["body"] += ["s_waitcnt vmcnt(8)", "s_barrier"]
                else:
                    gaps[G.opt.get("barpos", 0)]["pre"] += ["s_waitcnt vmcnt(8)", "s_barrier"]
            periods.append(gaps)
        G.leftover = pend
        return periods
    late = []
    def keep_first(G, x, t):
        return True
    def ready(G, x, T, placed):
        if x.lo == "afterchk":
            k = ("chk", x.tag[1], 2)
            return k in placed and placed[k] + G.opt.get("brdelay", 0) < T
        if x.lo > T: return False
        if x.tag[0] == "add" and x.tag[3] > 1:
            return ("add", x.tag[1], x.tag[2], x.tag[3] - 1) in placed
        if x.tag[0] == "chk" and x.tag[2] > 0:
            if ("chk", x.tag[1], x.tag[2] - 1) not in placed: return False
            vq = [q for q in ORDER if q not in MSUM]
            return ("add", x.tag[1], vq[1], 7) in placed
        if x.tag[0] == "chk" and x.tag[2] == 0:
            vq = [q for q in ORDER if q not in MSUM]
            return ("add", x.tag[1], vq[0], 7) in placed
        return True

def self_reuse(G, tile, e):
    nxt = tile * 32 + e + G.R.NT
    t2, e2 = divmod(nxt, 32)
    return G.exp_time(t2, e2) - G.exp_time(tile, e) - 1


class AttnEmit(AttnGen):
    def linearise(G, periods, first):
        out = []
        fifo = []
        done = set()
        seq = []
        for k, gaps in enumerate(periods):
            for g, gap in enumerate(gaps): seq.append((k, g, gap))
        lists = [[] for _ in periods]
        pendchk = None
        vkeys = {}
        for n, (k, g, gap) in enumerate(seq):
            L = lists[k]
            m = gap["mfma"]
            L.append(m[0] if m else "s_nop 0")
            pre = list(gap["pre"])
            if pendchk is not None:
                if pendchk[1] <= 0:
                    pre.append(("CHECK", pendchk[0])); pendchk = None
                else:
                    pendchk = (pendchk[0], pendchk[1] - 1)
            nxt = seq[n + 1][2]["mfma"] if n + 1 < len(seq) else None
            if nxt and nxt[1] is not None and nxt[1] in fifo:
                last = max(i for i, x in enumerate(fifo) if x == nxt[1])
                cnt = len(fifo) - 1 - last
                if not G.opt.get("nolgkm"): pre.append(f"s_waitcnt lgkmcnt({min(cnt, 15)})")
                fifo = fifo[len(fifo) - min(cnt, 15):] if cnt > 0 else []
            L += pre
            body = gap["body"]
            nval = sum(1 for b in body if isinstance(b, str) and b.startswith("v_"))
            if not pre and nval >= 2 and not (isinstance(body[0], tuple) or body[0].startswith("buffer")):
                L.append("s_nop 0")
            for b in body:
                if isinstance(b, tuple):
                    L.append(b[1]); fifo.append(b[2])
                else:
                    L.append(b)
            for x in gap["post"]:
                pendchk = (x[1], G.opt.get("brdelay", 0))
        G.final_fifo = fifo
        assert pendchk is None
        return lists

    def xlane(G, A, reg, t0, op):
        for sw in ("v_permlane32_swap_b32", "v_permlane16_swap_b32"):
            A.e(f"v_mov_b32 {t0}, {reg}")
            A.e("s_nop 1")
            A.e(f"{sw} {t0}, {reg}")
            A.e("s_nop 1")
            A.e(f"{op} {reg}, {t0}, {reg}")

    def rare(G, A, p, redo, label):
        R = G.R; par = p & 1
        t0, t1, dl, fc = v(R.TMP), v(R.TMP + 1), v(R.TMP + 2), v(R.TMP + 3)
        A.label(label)
        A.e("s_nop 15")
        for qb in range(4):
            S = [R.s(par, qb, kb, r) for kb in range(2) for r in range(4)]
            A.e(f"v_max3_f32 {dl}, {S[0]}, {S[1]}, {S[2]}")
            A.e(f"v_max3_f32 {dl}, {dl}, {S[3]}, {S[4]}")
            A.e(f"v_max3_f32 {dl}, {dl}, {S[5]}, {S[6]}")
            A.e(f"v_max3_f32 {dl}, {dl}, {S[7]}, 0")
            G.xlane(A, dl, t0, "v_max_f32")
            A.e(f"v_sub_f32 {fc}, 0, {dl}")
            A.e(f"v_exp_f32 {fc}, {fc}")
            for r in range(4):
                A.e(f"v_sub_f32 {R.negm(qb,r)}, {R.negm(qb,r)}, {dl}")
            for x in S:
                A.e(f"v_sub_f32 {x}, {x}, {dl}")
            for kb in range(2):
                for r in range(4):
                    x = R.s(par ^ 1, qb, kb, r)
                    A.e(f"v_sub_f32 {x}, {x}, {dl}")
            A.e(f"v_mul_f32 {v(R.L+qb)}, {v(R.L+qb)}, {fc}")
            for db in range(8):
                for r in range(4):
                    A.e(f"v_accvgpr_read_b32 {t1}, {R.o(qb,db,r)}")
                    A.e(f"v_mul_f32 {t1}, {t1}, {fc}")
                    A.e(f"v_accvgpr_write_b32 {R.o(qb,db,r)}, {t1}")
        for b in range(4):
            qb = ORDER[b]
            ps = R.psum(qb)
            for j in range(8):
                e = b * 8 + j
                A.e(G.exp_text(p, e))
                A.e("s_nop 0")
                if j == 1:
                    A.e(f"v_add_f32 {ps}, {G.tmp(p,e-1)}, {G.tmp(p,e)}")
                elif j > 1:
                    A.e(f"v_add_f32 {ps}, {ps}, {G.tmp(p,e)}")
                if j & 1:
                    A.e(G.cvt_text(p, e - 1))
            if qb in MSUM:
                G.xlane(A, ps, t0, "v_add_f32")
        for x in redo:
            A.e(x)
            A.e("s_nop 0")
        A.e("s_nop 3")
        A.e(f"s_setpc_b64 {s(R.sRet,2)}")

    def setup_reads(G, A, lane):
        R = G.R
        t = [v(R.TMP + i) for i in range(8)]
        m, g, i2 = t[0], t[1], t[2]
        A.e(f"v_and_b32 {m}, 15, {lane}")
        A.e(f"v_lshrrev_b32 {g}, 4, {lane}")
        for ds in range(4):
            A.e(f"v_add_u32 {t[4]}, {4*ds}, {g}")
            A.e(f"v_xor_b32 {t[4]}, {t[4]}, {m}")
            A.e(f"v_lshlrev_b32 {t[4]}, 4, {t[4]}")
            A.e(f"v_lshl_add_u32 {v(R.KADDR+ds)}, {m}, 8, {t[4]}")
        A.e(f"v_lshrrev_b32 {i2}, 2, {m}")
        A.e(f"v_lshl_add_u32 {t[4]}, {g}, 2, {i2}")
        A.e(f"v_and_b32 {t[5]}, 7, {t[4]}")
        A.e(f"v_lshlrev_b32 {t[4]}, 8, {t[4]}")
        A.e(f"v_add_u32 {t[4]}, 0x10000, {t[4]}")
        A.e(f"v_bfe_u32 {t[6]}, {m}, 1, 1")
        A.e(f"v_lshl_add_u32 {t[4]}, {t[6]}, 4, {t[4]}")
        A.e(f"v_and_b32 {t[6]}, 1, {m}")
        A.e(f"v_lshl_add_u32 {t[4]}, {t[6]}, 3, {t[4]}")
        for db in range(8):
            A.e(f"v_xor_b32 {t[6]}, {db}, {t[5]}")
            A.e(f"v_lshl_add_u32 {v(R.VADDR+db)}, {t[6]}, 5, {t[4]}")

    def setup_dma(G, A, lane, wave_s, tbase):
        R = G.R
        m, g, t4, t5 = v(tbase), v(tbase + 1), v(tbase + 2), v(tbase + 3)
        A.e(f"v_and_b32 {m}, 15, {lane}")
        A.e(f"v_lshrrev_b32 {g}, 4, {lane}")
        A.e(f"s_lshl_b32 {s(R.sTmp)}, {wave_s}, 12")
        A.e(f"v_lshl_add_u32 {t4}, {g}, 8, {s(R.sTmp)}")
        for n in range(4):
            A.e(f"v_add_u32 {t5}, {4*n}, {g}")
            A.e(f"v_xor_b32 {t5}, {t5}, {m}")
            A.e(f"v_lshl_add_u32 {v(R.KDMA+n)}, {t5}, 4, {t4}")
        for n in range(2):
            A.e(f"v_add_u32 {t5}, {4*n}, {g}")
            A.e(f"v_lshlrev_b32 {t5}, 1, {t5}")
            A.e(f"v_xor_b32 {t5}, {t5}, {m}")
            A.e(f"v_lshl_add_u32 {v(R.VDMA+n)}, {t5}, 4, {t4}")
        A.e(f"s_mov_b32 {s(R.sM0K)}, {s(R.sTmp)}")
        A.e(f"s_add_u32 {s(R.sM0V)}, {s(R.sTmp)}, 0x10000")
        A.e(f"s_mov_b32 {s(R.sThr)}, {THR}")

    def initial_dma_ops(G):
        R = G.R; ops = []
        for pair in range(3):
            base = kslot(2 * pair) * 8192
            for n in range(4):
                pre = [f"s_add_u32 m0, {s(R.sM0K)}, {base}", "s_and_b32 m0, m0, 0xffff", f"s_mov_b32 {s(R.sTmp)}, {pair*16384}"] if n == 0 else []
                ops.append((pre, f"buffer_load_dwordx4 {v(R.KDMA+n)}, {s(R.sK,4)}, {s(R.sTmp)} offen offset:{n*1024} lds"))
        for pair in range(2):
            for n in range(4):
                pre = [f"s_add_u32 m0, {s(R.sM0V)}, {pair*16384}", f"s_mov_b32 {s(R.sTmp)}, {pair*16384}"] if n == 0 else []
                ops.append((pre, f"buffer_load_dwordx4 {v(R.VDMA+(n&1))}, {s(R.sV,4)}, {s(R.sTmp)} offen offset:{n*1024} lds"))
        return ops

    def init_offsets(G, A):
        R = G.R
        A.e(f"s_mov_b32 {s(R.sKoff)}, {5*8192}")
        A.e(f"s_mov_b32 {s(R.sVoff)}, {4*8192}")

    def initial_dma(G, A):
        for pre, ins in G.initial_dma_ops():
            for x in pre: A.e(x)
            A.e(ins)
        G.init_offsets(A)

    def prologue(G, A):
        R = G.R
        A.e("s_waitcnt vmcnt(0)")
        A.e("s_barrier")
        ks = kslot(0)
        for i in range(8):
            kb, ds = i >> 2, i & 3
            A.e(f"ds_read_b128 {R.f(8+i)}, {v(R.KADDR+ds)} offset:{ks*8192+kb*4096}")
        for i in range(4): A.e(f"v_mov_b32 {v(R.ONES+i)}, 0x3f803f80")
        for i in range(4): A.e(f"v_mov_b32 {v(R.L+i)}, 0")
        for i in range(128): A.e(f"v_accvgpr_write_b32 {a(R.O+i)}, 0")
        A.e("s_waitcnt lgkmcnt(0)")
        for i in range(8):
            kb, ds = i >> 2, i & 3
            for qb in range(4):
                c = "0" if ds == 0 else R.s(0, qb, kb)
                A.e(f"{MF} {R.s(0,qb,kb)}, {R.f(8+i)}, {R.q(qb,ds)}, {c}")
        A.e("s_nop 7")
        t0, dl = v(R.TMP), v(R.TMP + 2)
        for qb in range(4):
            S = [R.s(0, qb, kb, r) for kb in range(2) for r in range(4)]
            A.e(f"v_max3_f32 {dl}, {S[0]}, {S[1]}, {S[2]}")
            A.e(f"v_max3_f32 {dl}, {dl}, {S[3]}, {S[4]}")
            A.e(f"v_max3_f32 {dl}, {dl}, {S[5]}, {S[6]}")
            A.e(f"v_max_f32 {dl}, {dl}, {S[7]}")
            G.xlane(A, dl, t0, "v_max_f32")
            for r in range(4): A.e(f"v_sub_f32 {R.negm(qb,r)}, 0, {dl}")
            for x in S: A.e(f"v_sub_f32 {x}, {x}, {dl}")
        for e in range(SHIFT):
            A.e(G.exp_text(0, e))
        A.e("s_nop 1")

    def body(G, A, prefix):
        R = G.R
        G.late = []
        periods = G.schedule()
        lists = G.linearise(periods, 0)
        G.late_report = list(G.late)
        G.lists = lists
        rare = {}
        G.stubs = []
        def emit(p, tagp):
            L = lists[p]
            for k, x in enumerate(L):
                if isinstance(x, tuple):
                    tile = x[1]
                    redo = [y for y in L[:k] if isinstance(y, str) and G.is_next_tile(y, tile)]
                    key = (tile & 1, tuple(redo))
                    if key not in rare: rare[key] = (f"{prefix}_rare{len(rare)}", tile, redo)
                    if G.opt.get("nochk"): continue
                    if G.opt.get("farbranch"):
                        A.e(f"s_cbranch_vccnz {prefix}_stub{tagp}")
                        A.label(f"{prefix}_ok{tagp}")
                        G.stubs.append((f"{prefix}_stub{tagp}", rare[key][0], f"{prefix}_ok{tagp}"))
                        continue
                    A.e(f"s_cbranch_vccz {prefix}_ok{tagp}")
                    A.e(f"s_call_b64 {s(R.sRet,2)}, {rare[key][0]}")
                    A.label(f"{prefix}_ok{tagp}")
                else:
                    A.e(x)
        return lists, rare, emit

    def is_next_tile(G, text, tile):
        for e in range(SHIFT):
            if text == G.exp_text(tile + 1, e): return True
        for e in range(0, SHIFT, 2):
            if text == G.cvt_text(tile + 1, e): return True
        return False


    def emit_all(G, A, prefix):
        R = G.R
        lists, rare, emit = G.body(A, prefix)
        G.rare_paths = rare
        txt = lambda p: [x if isinstance(x, str) else ("CHECK",) for x in lists[p]]
        for p in range(1, 49):
            assert txt(p) == txt(p + 8), p
        emit(0, "p0")
        A.e(f"s_mov_b32 {s(R.sLoop)}, 7")
        A.e(".p2align 6")
        A.label(f"{prefix}_loop")
        for p in range(1, 9): emit(p, f"l{p}")
        A.e(f"s_sub_u32 {s(R.sLoop)}, {s(R.sLoop)}, 1")
        A.e(f"s_cmp_lg_u32 {s(R.sLoop)}, 0")
        A.e(f"s_cbranch_scc1 {prefix}_loop")
        for p in range(57, 64): emit(p, f"t{p}")
        pend = list(G.leftover)
        order = {"cvt": 0, "ladd": 1}
        pend.sort(key=lambda x: order[x.tag[0]])
        for x in pend: A.e(x.text)
        A.e("s_waitcnt lgkmcnt(0)")
        A.e("s_nop 1")
        par = (NSUB - 1) & 1
        for n in range(32):
            qb = ORDER[n >> 3]; db = n & 7
            A.e(f"{MF} {R.o(qb,db)}, {R.f(db)}, {R.p(par,qb)}, {R.o(qb,db)}")

    def emit_rare(G, A):
        for st, tgt, back in G.stubs:
            A.label(st)
            A.e(f"s_call_b64 {s(G.R.sRet,2)}, {tgt}")
            A.e(f"s_branch {back}")
        for key, (label, tile, redo) in G.rare_paths.items():
            G.rare(A, tile, redo, label)

    def trace(G):
        out = []
        for L in G.lists:
            for x in L:
                out.append(x if isinstance(x, str) else "s_cbranch_vccz x")
        return out

    def epilogue(G, A, srd, voff, soff_reg):
        R = G.R
        t0 = v(R.TMP)
        for qb in range(4):
            l = v(R.L + qb)
            if qb not in MSUM: G.xlane(A, l, t0, "v_add_f32")
            A.e(f"v_rcp_f32 {l}, {l}")
        A.e("s_nop 7")
        buf = [R.S, R.S + 8, R.S + 16, R.S + 24]
        k = 0
        for qb in range(4):
            for sx in range(4):
                b = R.S + (k % 8) * 8; k += 1
                for h in range(2):
                    for r in range(4):
                        A.e(f"v_accvgpr_read_b32 {v(b+4*h+r)}, {R.o(qb,2*sx+h,r)}")
                for j in range(8):
                    A.e(f"v_mul_f32 {v(b+j)}, {v(b+j)}, {v(R.L+qb)}")
                for j in range(4):
                    A.e(f"v_cvt_pk_bf16_f32 {v(b+j)}, {v(b+2*j)}, {v(b+2*j+1)}")
                A.e(f"s_add_u32 {s(R.sTmp)}, {soff_reg}, {qb*131072 + sx*1024}")
                A.e(f"buffer_store_dwordx4 {v(b,4)}, {voff}, {srd}, {s(R.sTmp)} offen")
```

```python
import re

TRANS = ("v_exp_f32", "v_log_f32", "v_rcp_f32", "v_rsq_f32", "v_sqrt_f32", "v_sin_f32", "v_cos_f32", "v_rcp_iflag_f32")

def regs_of(tok):
    tok = tok.strip()
    neg = tok.lstrip("-|").rstrip("|")
    m = re.fullmatch(r"([vas])(\d+)", neg)
    if m: return [(m.group(1), int(m.group(2)))]
    m = re.fullmatch(r"([vas])\[(\d+):(\d+)\]", neg)
    if m: return [(m.group(1), i) for i in range(int(m.group(2)), int(m.group(3)) + 1)]
    if neg == "vcc": return [("s", "vcc")]
    if neg == "exec": return [("s", "exec")]
    if neg == "m0": return [("s", "m0")]
    return []

class I:
    __slots__ = ("text", "op", "kind", "dst", "src", "srcC", "n", "lds")

def parse(line):
    t = line.split(";")[0].strip()
    if not t or t.endswith(":") or t.startswith("."):
        return None
    p = t.split(None, 1)
    op = p[0]
    ops = [x.strip() for x in p[1].split(",")] if len(p) > 1 else []
    mods = ""
    if ops:
        q = ops[-1].split()
        ops[-1] = q[0] if q else ""
        mods = " ".join(q[1:])
    i = I(); i.text = t; i.op = op; i.dst = []; i.src = []; i.srcC = []; i.n = 1; i.lds = False
    R = lambda k: regs_of(ops[k]) if k < len(ops) else []
    if op.startswith("v_mfma"):
        i.kind = "mfma"; i.dst = R(0); i.src = R(1) + R(2) + R(3); i.srcC = R(3)
    elif op.startswith("v_cmp"):
        i.kind = "valu"; i.dst = R(0); i.src = R(1) + R(2)
        if op.startswith("v_cmpx"): i.dst += [("s", "exec")]
    elif op.startswith("v_permlane") and "swap" in op:
        i.kind = "permlane"; i.dst = R(0) + R(1); i.src = R(0) + R(1)
    elif op.startswith("v_readfirstlane") or op.startswith("v_readlane"):
        i.kind = "readlane"; i.dst = R(0); i.src = sum((R(k) for k in range(1, len(ops))), [])
    elif op.startswith("v_"):
        i.kind = "trans" if op.replace("_e32", "").replace("_e64", "") in TRANS else "valu"
        i.dst = R(0); i.src = sum((R(k) for k in range(1, len(ops))), [])
        if op.startswith(("v_fmac", "v_dot2c", "v_mac")): i.src += R(0)
        if op.startswith(("v_add_co", "v_sub_co", "v_addc_co", "v_subb_co")):
            i.dst = R(0) + R(1); i.src = sum((R(k) for k in range(2, len(ops))), [])
        if op.startswith("v_cndmask") and len(ops) == 3: i.src += [("s", "vcc")]
        if "dpp" in op or "row_" in mods or "quad_perm" in mods: i.kind = "dpp"
    elif op.startswith("ds_read") or op.startswith("ds_bpermute") or op.startswith("ds_swizzle"):
        i.kind = "dsr"; i.dst = R(0); i.src = sum((R(k) for k in range(1, len(ops))), [])
    elif op.startswith("ds_write"):
        i.kind = "dsw"; i.src = sum((R(k) for k in range(len(ops))), [])
    elif op.startswith(("buffer_load", "global_load")):
        if "lds" in mods.split() or (ops and ops[-1] == "lds"):
            i.kind = "dma"; i.src = sum((R(k) for k in range(len(ops))), []) + [("s", "m0")]
        else:
            i.kind = "vload"; i.dst = R(0); i.src = sum((R(k) for k in range(1, len(ops))), [])
    elif op.startswith("v_writelane"):
        i.kind = "valu"; i.dst = R(0); i.src = R(0) + R(1)
    elif op.startswith(("buffer_store", "global_store")):
        i.kind = "vstore"; i.src = sum((R(k) for k in range(len(ops))), [])
    elif op.startswith(("buffer_atomic", "global_atomic")):
        i.kind = "vstore"; i.src = sum((R(k) for k in range(len(ops))), [])
        if "sc0" in mods: i.kind = "vload"; i.dst = R(0)
    elif op.startswith(("buffer_wbl2", "buffer_inv")):
        i.kind = "vstore"
    elif op == "s_waitcnt":
        i.kind = "wait"
    elif op == "s_nop":
        i.kind = "nop"; i.n = int(ops[0], 0) + 1
    elif op == "s_barrier":
        i.kind = "barrier"
    elif op.startswith("s_load") or op.startswith("s_buffer_load") or op.startswith("s_memtime") or op.startswith("s_memrealtime"):
        i.kind = "smem"; i.dst = R(0); i.src = sum((R(k) for k in range(1, len(ops))), [])
    elif op.startswith(("s_cbranch", "s_branch", "s_endpgm", "s_setpc", "s_call", "s_swappc", "s_setprio", "s_sleep")):
        i.kind = "branch"
        if "vcc" in op: i.src = [("s", "vcc")]
    elif op.startswith("s_cmp") or op.startswith("s_bitcmp"):
        i.kind = "salu"; i.src = sum((R(k) for k in range(len(ops))), [])
    elif op.startswith("s_getpc"):
        i.kind = "salu"; i.dst = R(0)
    elif op.startswith("s_"):
        i.kind = "salu"; i.dst = R(0); i.src = sum((R(k) for k in range(1, len(ops))), [])
        if "saveexec" in op: i.dst += [("s", "exec")]
    else:
        raise ValueError("unknown instruction: " + t)
    return i

VALU_KINDS = ("valu", "trans", "permlane", "dpp", "readlane")
def passes(op):
    if "16x16x32" in op or "16x16x16" in op: return 4
    if "32x32x16" in op or "32x32x8" in op: return 8
    raise ValueError(op)

def check(lines, name="trace", assume_vm=0):
    ins = [x for x in (parse(l) for l in lines) if x is not None]
    errs = []
    def err(k, msg): errs.append(f"{name}: [{k}] {ins[k].text}  <- {msg}")
    pos = []; c = 0
    for x in ins:
        pos.append(c); c += x.n
    last_valu = {}; last_trans = {}; last_mfma = {}; last_mfmaC = {}; last_salu_m0 = None; valu_sgpr = {}
    last_store4 = {}
    lg = []
    vm = []
    pend_lg = {}; pend_vm = {}
    for k, x in enumerate(ins):
        dist = lambda j: pos[k] - pos[j] - ins[j].n
        for r in x.src + x.dst:
            if r in pend_lg: err(k, f"{r} still pending on lgkmcnt (from: {ins[pend_lg[r]].text})")
            if r in pend_vm: err(k, f"{r} still pending on vmcnt (from: {ins[pend_vm[r]].text})")
        if x.kind == "wait":
            m = re.search(r"lgkmcnt\((\d+)\)", x.text)
            if m:
                n = int(m.group(1))
                if n > 0 and any(ins[j].kind == "smem" for j in lg): err(k, "counted lgkmcnt with SMEM outstanding")
                while len(lg) > n:
                    j = lg.pop(0)
                    for r in ins[j].dst:
                        if pend_lg.get(r) == j: del pend_lg[r]
            m = re.search(r"vmcnt\((\d+)\)", x.text)
            if m:
                n = int(m.group(1))
                while len(vm) > n:
                    j = vm.pop(0)
                    for r in ins[j].dst:
                        if pend_vm.get(r) == j: del pend_vm[r]
            continue
        if x.kind == "mfma":
            p = passes(x.op)
            for r in x.src:
                if r in last_valu and dist(last_valu[r]) < 2: err(k, f"VALU write {r} -> MFMA read needs 2")
                if r in last_mfma:
                    j = last_mfma[r]; pj = passes(ins[j].op)
                    if r in x.srcC and r not in (set(x.src[:len(x.src)-len(x.srcC)])):
                        if ins[j].dst == x.srcC and pj == p: pass
                        else:
                            need = {4: 6, 8: 10}[pj]
                            if dist(j) < need: err(k, f"MFMA D {r} -> overlapped SrcC needs {need}")
                    else:
                        need = {4: 8, 8: 12}[pj]
                        if dist(j) < need: err(k, f"MFMA D {r} -> MFMA A/B needs {need}")
            for r in x.dst:
                if r in last_mfma and r not in x.srcC:
                    j = last_mfma[r]; need = {4: 8, 8: 12}[passes(ins[j].op)]
                    if dist(j) < need: err(k, f"MFMA D {r} WAW by MFMA (different C) wants {need}")
        if x.kind in VALU_KINDS or x.kind in ("dsr", "dsw", "vload", "vstore", "dma"):
            for r in x.src + x.dst:
                if r in last_mfma:
                    j = last_mfma[r]; need = {4: 8, 8: 12}[passes(ins[j].op)]
                    if dist(j) < need: err(k, f"MFMA D {r} -> {x.kind} needs {need} (has {dist(j)})")
        if x.kind in VALU_KINDS:
            for r in x.dst:
                if r in last_mfmaC:
                    j = last_mfmaC[r]; need = {4: 3, 8: 7}[passes(ins[j].op)]
                    if dist(j) < need: err(k, f"MFMA SrcC {r} -> VALU write needs {need}")
                if r in last_store4 and dist(last_store4[r]) < 2: err(k, f"wide store data {r} overwritten by VALU within 2")
            for r in x.src:
                if r in last_trans and x.kind != "trans" and dist(last_trans[r]) < 1: err(k, f"trans {r} -> VALU needs 1")
                if r[0] == "s" and r in valu_sgpr and x.kind != "readlane" and dist(valu_sgpr[r]) < 2: err(k, f"VALU sgpr {r} -> VALU const needs 2")
            if x.kind in ("permlane", "dpp"):
                for r in x.src:
                    if r in last_valu and dist(last_valu[r]) < 2: err(k, f"VALU write {r} -> {x.kind} needs 2")
            if x.kind == "readlane":
                for r in x.src:
                    if r in last_valu and dist(last_valu[r]) < 1: err(k, f"VALU write {r} -> readlane needs 1")
        if x.kind in ("vload", "vstore", "dma"):
            for r in x.src:
                if r[0] == "s" and r in valu_sgpr and dist(valu_sgpr[r]) < 5: err(k, f"VALU sgpr {r} -> VMEM needs 5")
            if x.kind == "dma" and last_salu_m0 is not None and dist(last_salu_m0) < 1: err(k, "m0 write -> LDS DMA needs 1")
        if x.kind in ("dsr", "vload"):
            for r in x.dst:
                if r in last_store4 and dist(last_store4[r]) < 1: err(k, f"wide store data {r} overwritten within 1")
        if x.kind in VALU_KINDS:
            for r in x.dst:
                if r[0] == "s": valu_sgpr[r] = k
                else:
                    last_valu[r] = k
                    last_mfma.pop(r, None)
                    if x.kind == "trans": last_trans[r] = k
                    else: last_trans.pop(r, None)
        elif x.kind == "mfma":
            for r in x.dst:
                last_mfma[r] = k; last_valu.pop(r, None); last_trans.pop(r, None)
            for r in x.srcC: last_mfmaC[r] = k
        elif x.kind == "salu":
            for r in x.dst:
                valu_sgpr.pop(r, None)
                if r == ("s", "m0"): last_salu_m0 = k
        elif x.kind in ("dsr", "dsw", "smem"):
            lg.append(k)
            if x.kind == "smem" and ("x2" in x.op or "x4" in x.op or "x8" in x.op or "x16" in x.op or "time" in x.op): lg.append(k)
            for r in x.dst:
                pend_lg[r] = k; last_mfma.pop(r, None); last_valu.pop(r, None)
            if len(lg) > 15 and x.kind != "smem": pass
        elif x.kind in ("vload", "vstore", "dma"):
            vm.append(k)
            if len(vm) > 63: err(k, "more than 63 vm ops outstanding")
            for r in x.dst:
                pend_vm[r] = k; last_mfma.pop(r, None); last_valu.pop(r, None)
            if x.kind == "vstore" and ("x4" in x.op or "x3" in x.op):
                d = x.src[:4] if x.op.startswith("buffer") else x.src[-4:]
                for r in regs_data(x): last_store4[r] = k
    return errs

def regs_data(x):
    t = x.text.split(None, 1)[1]
    ops = [o.strip() for o in t.split(",")]
    if x.op.startswith("buffer"): return regs_of(ops[0])
    return regs_of(ops[1].split()[0])
```

```python
from asmgen import *
from layout import *
import attn, phasea, checker

def gen_k1(name, opt=None, stamps=False, lines_out=None):
    opt = opt or {}
    RA = phasea.RegsA(); PA = phasea.PhaseA(RA)
    R = attn.Regs(vbase=8); G = attn.AttnEmit(R, dict(farbranch=1, brdelay=2, barpos=1, **opt.get("attn", {})))
    assert RA.vend <= R.KDMA and R.vend <= R.KDMA
    A = Asm()
    A(kernel_head(name))
    A.e("s_cmp_ge_u32 s2, 256")
    A.e(f"s_cbranch_scc0 {name}_go")
    A.e("s_endpgm")
    A.label(f"{name}_go")
    A.e("s_load_dwordx4 s[4:7], s[0:1], 8")
    A.e("s_load_dwordx2 s[8:9], s[0:1], 24")
    A.e("s_load_dwordx4 s[20:23], s[0:1], 48")
    A.e("s_load_dwordx2 s[10:11], s[0:1], 88")
    A.e("v_lshrrev_b32 v1, 6, v0")
    A.e("v_and_b32 v2, 63, v0")
    A.e("v_readfirstlane_b32 s12, v1")
    A.e("s_and_b32 s13, s2, 7")
    A.e("s_lshr_b32 s14, s2, 3")
    A.e("s_and_b32 s15, s14, 3")
    A.e("s_lshl_b32 s13, s13, 2")
    A.e("s_add_u32 s13, s13, s15")
    A.e("s_lshr_b32 s14, s14, 2")
    A.e("s_lshr_b32 s15, s13, 1")
    A.e("s_lshl_b32 s15, s15, 19")
    A.e("v_lshlrev_b32 v3, 4, v2")
    A.e("s_waitcnt lgkmcnt(0)")
    A.e(f"s_add_u32 {s(R.sK)}, s4, s15"); A.e(f"s_addc_u32 {s(R.sK+1)}, s5, 0")
    A.e(f"s_mov_b32 {s(R.sK+2)}, 524288"); A.e(f"s_mov_b32 {s(R.sK+3)}, 0x20000")
    A.e(f"s_add_u32 {s(R.sV)}, s6, s15"); A.e(f"s_addc_u32 {s(R.sV+1)}, s7, 0")
    A.e(f"s_mov_b32 {s(R.sV+2)}, 524288"); A.e(f"s_mov_b32 {s(R.sV+3)}, 0x20000")
    A.e("s_mov_b32 s16, s10"); A.e("s_mov_b32 s17, s11"); A.e(f"s_mov_b32 s18, {WS_RANGE}"); A.e("s_mov_b32 s19, 0x20000")
    ptr = {"wq": 8, "Wg": 20, "Wu": 22}
    PA.setup(A, "v2", "s12", "s13", "s14", lambda n: ptr[n])
    G.setup_dma(A, "v2", "s12", 4)
    A.e("s_lshl_b32 s24, s14, 4"); A.e("s_lshl_b32 s25, s12, 2"); A.e("s_add_u32 s24, s24, s25")
    A.e("s_lshl_b32 s24, s24, 17"); A.e("s_lshl_b32 s25, s13, 12"); A.e("s_add_u32 s24, s24, s25")
    A.e(f"s_add_u32 s24, s24, {O_OFF}")
    def stamp(k):
        if stamps:
            A.e(f"s_memtime s[{88+2*k}:{89+2*k}]")
            if k in (0, 5): A.e(f"s_memrealtime s[{26+2*(k//5)}:{27+2*(k//5)}]")
            A.e("s_waitcnt lgkmcnt(0)")
    stamp(0)
    L = phasea.Lin()
    cnt = [0]
    def fine(L):
        L.e("s_memtime s[30:31]"); L.e("s_waitcnt lgkmcnt(0)"); L.ds = []
        L.e("s_sub_u32 s30, s30, s88")
        L.e(f"v_writelane_b32 v253, s30, {cnt[0]}"); cnt[0] += 1
    PA.main(L, "v3", G.initial_dma_ops(), fine if opt.get("fine") else None)
    for x in L.out: A.e(x)
    stamp(1)
    A.e("s_nop 7")
    PA.epilogue_h(A, "v2", RA.A)
    PA.epilogue_q(A, lambda qb, ds: R.Q + (qb * 4 + ds) * 4, RA.A)
    stamp(2)
    G.setup_reads(A, "v2")
    G.init_offsets(A)
    G.prologue(A)
    stamp(3)
    G.emit_all(A, name)
    stamp(4)
    G.epilogue(A, "s[16:19]", "v3", "s24")
    if stamps:
        A.e("s_waitcnt vmcnt(0)")
        stamp(5)
        for k in (5, 4, 3, 2, 1):
            A.e(f"s_sub_u32 s{88+2*k}, s{88+2*k}, s{88+2*(k-1)}")
        A.e("s_sub_u32 s28, s28, s26")
        for k in range(1, 6): A.e(f"v_mov_b32 v{7+k}, s{88+2*k}")
        A.e("v_mov_b32 v13, s28"); A.e("v_mov_b32 v14, s26"); A.e("v_mov_b32 v15, 0")
        A.e("s_lshl_b32 s21, s2, 2"); A.e("s_add_u32 s21, s21, s12"); A.e("s_lshl_b32 s21, s21, 5")
        A.e(f"s_add_u32 s21, s21, {STAMP_OFF}")
        A.e("v_cmp_eq_u32 vcc, 0, v2")
        A.e("s_and_saveexec_b64 s[32:33], vcc")
        A.e("v_mov_b32 v1, s21")
        A.e("buffer_store_dwordx4 v[8:11], v1, s[16:19], 0 offen")
        A.e("buffer_store_dwordx4 v[12:15], v1, s[16:19], 0 offen offset:16")
        A.e("s_mov_b64 exec, s[32:33]")
        if opt.get("fine"):
            A.e("s_lshl_b32 s21, s2, 2"); A.e("s_add_u32 s21, s21, s12"); A.e("s_lshl_b32 s21, s21, 8")
            A.e(f"s_add_u32 s21, s21, {STAMP_OFF + (1 << 20)}")
            A.e("v_lshlrev_b32 v1, 2, v2")
            A.e("buffer_store_dword v253, v1, s[16:19], s21 offen")
    A.e("s_endpgm")
    G.emit_rare(A)
    A(kernel_desc(name, 512, 102, 256))
    errs = checker.check([l for l in A.lines if not l.startswith(";")], name)
    for e in errs[:10]: print(e)
    print(name, "lines", len(A.lines), "hazard errors", len(errs))
    return A
```

```python
from asmgen import *
from layout import *
from phasea import Lin, MF, f32
import checker

SLOT = 4 * 9216
NSLOT = 4

def gen_k2(name, stamps=False, opt=None):
    opt = opt or {}
    A = Asm()
    A(kernel_head(name))
    ACC = 0
    B = 8
    AF = 72
    DV = 88
    LA = 97; RA = 98; T = 100
    acc = lambda t, rb: a(ACC + (t * 4 + rb) * 4, 4)
    bf = lambda k, rb: v(B + (k % 4) * 16 + rb * 4, 4)
    af = lambda gi, h=None: v(AF + (gi % 4) * 4, 4) if h is None else v(AF + (gi % 4) * 4 + 2 * h, 2)
    sW, sWS = 8, 16
    sWoff, sBoff, sRB, sM0, sSlotR, sSlotW, sLoop = 24, 25, 26, 27, 28, 29, 30
    sB = [32, 33, 34, 35]
    A.e("s_cmp_ge_u32 s2, 256")
    A.e(f"s_cbranch_scc0 {name}_go")
    A.e("s_endpgm")
    A.label(f"{name}_go")
    A.e("s_load_dwordx2 s[4:5], s[0:1], 32")
    A.e("s_load_dwordx2 s[6:7], s[0:1], 64")
    A.e("s_load_dwordx2 s[20:21], s[0:1], 88")
    A.e("v_lshrrev_b32 v1, 6, v0")
    A.e("v_and_b32 v2, 63, v0")
    A.e("v_readfirstlane_b32 s12, v1")
    A.e("s_and_b32 s13, s2, 7")
    A.e("s_lshr_b32 s14, s2, 3")
    A.e("s_and_b32 s15, s14, 3")
    A.e("s_lshr_b32 s14, s14, 2")
    A.e("v_lshlrev_b32 v3, 4, v2")
    A.e("s_waitcnt lgkmcnt(0)")
    A.e("s_cmp_lt_u32 s13, 4")
    A.e(f"s_cselect_b32 {s(sW)}, s4, s6"); A.e(f"s_cselect_b32 {s(sW+1)}, s5, s7")
    A.e(f"s_mov_b32 {s(sW+2)}, {4608*1152}"); A.e(f"s_cselect_b32 {s(sW+2)}, {4096*1152}, {s(sW+2)}")
    A.e(f"s_mov_b32 {s(sW+3)}, 0x20000")
    A.e("s_cselect_b32 s36, 32, 36")
    A.e(f"s_mov_b32 s37, {144*1024}"); A.e(f"s_cselect_b32 s37, {128*1024}, s37")
    A.e(f"s_mov_b32 s38, {H_OFF}"); A.e(f"s_cselect_b32 s38, {O_OFF}, s38")
    A.e(f"s_cselect_b32 {s(sLoop)}, 8, 9")
    A.e("s_and_b32 s39, s13, 3")
    A.e("s_mul_i32 s39, s39, s36")
    A.e(f"s_mul_i32 {s(sWoff)}, s39, {32*1152}")
    A.e(f"s_mul_i32 s40, s15, 288"); A.e(f"s_add_u32 {s(sWoff)}, {s(sWoff)}, s40")
    A.e(f"s_mov_b32 {s(sWS)}, s20"); A.e(f"s_mov_b32 {s(sWS+1)}, s21"); A.e(f"s_mov_b32 {s(sWS+2)}, {WS_RANGE}"); A.e(f"s_mov_b32 {s(sWS+3)}, 0x20000")
    A.e("s_lshl_b32 s40, s14, 4"); A.e("s_lshl_b32 s41, s12, 2"); A.e(f"s_add_u32 {s(sRB)}, s40, s41")
    A.e("s_lshl_b32 s41, s39, 10"); A.e("s_add_u32 s41, s41, s38")
    for i in range(4):
        A.e(f"s_add_u32 s40, {s(sRB)}, {i}"); A.e("s_mul_i32 s40, s40, s37"); A.e(f"s_add_u32 {s(sB[i])}, s40, s41")
    A.e("s_mul_i32 s40, s12, 576")
    for n in range(9):
        A.e(f"v_add_u32 v4, s40, v2")
        if n: A.e(f"v_add_u32 v4, {64*n}, v4")
        A.e("v_mul_u32_u24 v5, 3641, v4"); A.e("v_lshrrev_b32 v5, 16, v5")
        A.e("v_mul_u32_u24 v6, 18, v5"); A.e("v_sub_u32 v6, v4, v6")
        A.e("v_mul_u32_u24 v5, 1152, v5")
        A.e(f"v_lshl_add_u32 {v(DV+n)}, v6, 4, v5")
        if n % 4: A.e(f"v_subrev_u32 {v(DV+n)}, {(n%4)*1024}, {v(DV+n)}")
    A.e(f"s_mul_i32 {s(sM0)}, s12, {9*1024}")
    A.e("v_and_b32 v4, 15, v2"); A.e("v_lshrrev_b32 v5, 4, v2")
    A.e("v_lshrrev_b32 v6, 2, v4"); A.e("v_lshl_add_u32 v6, v5, 2, v6")
    A.e("v_mul_u32_u24 v6, 288, v6"); A.e("v_and_b32 v4, 3, v4")
    A.e(f"v_lshl_add_u32 {v(LA)}, v4, 3, v6")

    def dma(slot_expr_setup):
        ops = []
        for n in range(9):
            pre = [f"s_add_u32 m0, {s(sSlotW)}, {(n//4)*4096}"] if n % 4 == 0 else []
            ops.append((pre, f"buffer_load_dwordx4 {v(DV+n)}, {s(sW,4)}, {s(sWoff)} offen offset:{(n%4)*1024} lds"))
        return ops
    adv_w = [f"s_add_u32 {s(sWoff)}, {s(sWoff)}, {128*1152}"]
    def bload(k):
        return [([], f"buffer_load_dwordx4 {bf(k,rb)}, v3, {s(sWS,4)}, {s(sB[rb])} offen offset:{(k%4)*1024}") for rb in range(4)]
    adv_b = [f"s_add_u32 {s(x)}, {s(x)}, 4096" for x in sB]

    def stamp(L, k):
        if stamps:
            L.e(f"s_memtime s[{88+2*k}:{89+2*k}]")
            if k in (0, 3): L.e(f"s_memrealtime s[{96+2*(k//3)}:{97+2*(k//3)}]")
            L.e("s_waitcnt lgkmcnt(0)")
    L = Lin()
    stamp(L, 0)
    def issue(ops, key):
        for pre, ins in ops:
            for x in pre: L.e(x)
            if pre: L.e("s_nop 0")
            L.vm_op(ins, key)
    def next_w_slot():
        return [f"s_add_u32 {s(sWoff)}, {s(sWoff)}, {128*1152}",
                f"s_add_u32 {s(sSlotW)}, {s(sSlotW)}, {SLOT}",
                f"s_cmp_ge_u32 {s(sSlotW)}, {NSLOT*SLOT}",
                f"s_cselect_b32 s41, {NSLOT*SLOT}, 0",
                f"s_sub_u32 {s(sSlotW)}, {s(sSlotW)}, s41"]
    L.e(f"s_mov_b32 {s(sSlotW)}, {s(sM0)}")
    issue(dma(0), ("W", 0))
    issue(bload(0), ("B", 0, 0))
    for st in (1, 2):
        for x in next_w_slot(): L.e(x)
        issue(dma(st), ("W", st))
    for x in next_w_slot(): L.e(x)
    issue(bload(1), ("B", 0, 1))
    issue(bload(2), ("B", 0, 2))
    for i in range(144): L.e(f"v_accvgpr_write_b32 {a(ACC+i)}, 0")
    L.e(f"s_mov_b32 {s(sSlotR)}, 0")
    L.e(f"v_mov_b32 {v(RA)}, {v(LA)}")
    L.need_vm(("W", 0))
    L.e("s_barrier")
    stamp(L, 1)
    def rd(gi):
        k, t = divmod(gi % 36, 9)
        return [f"ds_read_b64_tr_b16 {af(gi,h)}, {v(RA)} offset:{k*9216 + 16*h*288 + 32*t}" for h in range(2)]
    for gi in range(2):
        for x in rd(gi): L.ds_op(x, ("A", 0, gi))
    pro = list(L.out)

    def body(st):
        L.out = []
        vmq = [(p, i, ("B", st, 3)) for p, i in bload(3)] + [(adv_b, None, None)]
        vmq += [(p, i, ("W", st + 3)) for p, i in dma(0)] + [(next_w_slot(), None, None)]
        for gi in range(36):
            k, t = divmod(gi, 9)
            nx = gi + 2
            nkey = ("A", st, nx) if nx < 36 else ("A", st + 1, nx - 36)
            for rb in range(4):
                if rb == 0:
                    L.need_ds(("A", st, gi))
                    if t == 0: L.need_vm(("B", st, k))
                L.e(f"{MF} {acc(t,rb)}, {af(gi)}, {bf(k,rb)}, {acc(t,rb)}")
                if rb == 0 and nx == 36:
                    L.need_vm(("W", st + 1))
                    L.e("s_waitcnt lgkmcnt(0)"); L.ds = []
                    L.e("s_barrier")
                    L.e(f"s_add_u32 {s(sSlotR)}, {s(sSlotR)}, {SLOT}")
                    L.e(f"s_cmp_eq_u32 {s(sSlotR)}, {NSLOT*SLOT}")
                    L.e(f"s_cselect_b32 {s(sSlotR)}, 0, {s(sSlotR)}")
                    L.e(f"v_add_u32 {v(RA)}, {s(sSlotR)}, {v(LA)}")
                if rb == 1: L.ds_op(rd(nx)[0], nkey)
                if rb == 2: L.ds_op(rd(nx)[1], nkey)
                if rb == 3:
                    if t == 8 and k < 3:
                        vmq = [(p, i, ("B", st + 1, k)) for p, i in bload(k)] + vmq
                    while vmq and vmq[0][1] is None:
                        for x in vmq.pop(0)[0]: L.e(x)
                    if vmq and gi < 35:
                        p, i, key = vmq.pop(0)
                        for x in p: L.e(x)
                        if p: L.e("s_nop 0")
                        L.vm_op(i, key)
                        while vmq and vmq[0][1] is None:
                            for x in vmq.pop(0)[0]: L.e(x)
        assert not vmq, vmq
        return list(L.out)
    b0 = body(0); b1 = body(1); b2 = body(2); b3 = body(3)
    assert b2 == b3
    errs = checker.check(pro + b2 + b2 + b2, name + "-steady")
    for e in errs[:10]: print(e)
    for x in pro: A.e(x)
    A.e(".p2align 6")
    A.label(f"{name}_loop")
    for x in b2: A.e(x)
    A.e(f"s_sub_u32 {s(sLoop)}, {s(sLoop)}, 1")
    A.e(f"s_cmp_lg_u32 {s(sLoop)}, 0")
    A.e(f"s_cbranch_scc1 {name}_loop")
    L2 = Lin(); stamp(L2, 2)
    for x in L2.out: A.e(x)
    A.e("s_nop 7")
    A.e(f"s_lshl_b32 s40, s13, 7"); A.e(f"s_add_u32 s40, s40, {s(sRB)}"); A.e("s_mul_i32 s40, s40, 36")
    A.e("s_mul_i32 s41, s15, 9"); A.e("s_add_u32 s40, s40, s41"); A.e("s_lshl_b32 s40, s40, 10")
    A.e(f"s_add_u32 s40, s40, {PART_OFF}")
    for rb in range(4):
        for t in range(9):
            if t % 4 == 0:
                A.e(f"s_add_u32 s41, s40, {rb*36*1024 + t*1024}")
            A.e(f"buffer_store_dwordx4 {acc(t,rb)}, v3, {s(sWS,4)}, s41 offen offset:{(t%4)*1024}")
    if stamps:
        A.e("s_waitcnt vmcnt(0)")
        L3 = Lin(); stamp(L3, 3)
        for x in L3.out: A.e(x)
        for k in (3, 2, 1): A.e(f"s_sub_u32 s{88+2*k}, s{88+2*k}, s{88+2*(k-1)}")
        A.e("s_sub_u32 s98, s98, s96")
        A.e("v_mov_b32 v8, s90"); A.e("v_mov_b32 v9, s92"); A.e("v_mov_b32 v10, s94"); A.e("v_mov_b32 v11, s98")
        A.e("s_lshl_b32 s21, s2, 2"); A.e("s_add_u32 s21, s21, s12"); A.e("s_lshl_b32 s21, s21, 4")
        A.e(f"s_add_u32 s21, s21, {STAMP_OFF + (2 << 20)}")
        A.e("v_cmp_eq_u32 vcc, 0, v2")
        A.e("s_and_saveexec_b64 s[42:43], vcc")
        A.e("v_mov_b32 v1, s21")
        A.e(f"buffer_store_dwordx4 v[8:11], v1, {s(sWS,4)}, 0 offen")
        A.e("s_mov_b64 exec, s[42:43]")
    A.e("s_endpgm")
    A(kernel_desc(name, 272, 102, 128))
    print(name, "lines", len(A.lines), "hazard errors", len(errs))
    return A


def gen_k3(name):
    A = Asm()
    A(kernel_head(name))
    NU = 128 * 36
    A.e("v_lshrrev_b32 v1, 6, v0")
    A.e("v_and_b32 v2, 63, v0")
    A.e("v_readfirstlane_b32 s12, v1")
    A.e("s_lshl_b32 s13, s2, 2"); A.e("s_add_u32 s13, s13, s12")
    A.e(f"s_cmp_ge_u32 s13, {NU}")
    A.e(f"s_cbranch_scc0 {name}_go")
    A.e("s_endpgm")
    A.label(f"{name}_go")
    A.e("s_load_dwordx2 s[4:5], s[0:1], 0")
    A.e("s_load_dwordx2 s[6:7], s[0:1], 72")
    A.e("s_load_dwordx2 s[20:21], s[0:1], 88")
    A.e(f"s_mul_hi_u32 s14, s13, {(2**32 + 35)//36}")
    A.e("s_mul_i32 s15, s14, 36"); A.e("s_sub_u32 s15, s13, s15")
    A.e("v_lshlrev_b32 v3, 4, v2")
    A.e("v_and_b32 v4, 15, v2"); A.e("v_lshrrev_b32 v5, 4, v2")
    A.e("s_lshl_b32 s22, s14, 4"); A.e("v_add_u32 v4, s22, v4")
    A.e("v_mul_u32_u24 v4, 1152, v4")
    A.e("v_lshl_add_u32 v4, v5, 3, v4")
    A.e("s_lshl_b32 s22, s15, 5"); A.e("v_add_u32 v4, s22, v4")
    A.e("s_waitcnt lgkmcnt(0)")
    A.e("s_mov_b32 s8, s4"); A.e("s_mov_b32 s9, s5"); A.e(f"s_mov_b32 s10, {2048*1152}"); A.e("s_mov_b32 s11, 0x20000")
    A.e("s_mov_b32 s24, s6"); A.e("s_mov_b32 s25, s7"); A.e(f"s_mov_b32 s26, {2048*1152}"); A.e("s_mov_b32 s27, 0x20000")
    A.e("s_mov_b32 s16, s20"); A.e("s_mov_b32 s17, s21"); A.e(f"s_mov_b32 s18, {WS_RANGE}"); A.e("s_mov_b32 s19, 0x20000")
    A.e("s_lshl_b32 s22, s13, 10"); A.e(f"s_add_u32 s22, s22, {PART_OFF}")
    for p in range(8):
        A.e(f"buffer_load_dwordx4 {v(8+4*p,4)}, v3, s[16:19], s22 offen")
        if p < 7: A.e(f"s_add_u32 s22, s22, {128*36*1024}")
    A.e("buffer_load_dwordx2 v[40:41], v4, s[8:11], 0 offen")
    A.e("s_waitcnt vmcnt(5)")
    for r in range(4):
        A.e(f"v_add_f32 {v(8+r)}, {v(8+r)}, {v(12+r)}"); A.e(f"v_add_f32 {v(16+r)}, {v(16+r)}, {v(20+r)}")
        A.e(f"v_add_f32 {v(8+r)}, {v(8+r)}, {v(16+r)}")
    A.e("s_waitcnt vmcnt(1)")
    A.e(f"s_mov_b32 s23, {hex(f32(-1.4426950408889634))}")
    for r in range(4):
        A.e(f"v_add_f32 {v(24+r)}, {v(24+r)}, {v(28+r)}"); A.e(f"v_add_f32 {v(32+r)}, {v(32+r)}, {v(36+r)}")
        A.e(f"v_add_f32 {v(24+r)}, {v(24+r)}, {v(32+r)}")
    for r in range(4):
        A.e(f"v_mul_f32 {v(28+r)}, s23, {v(24+r)}")
    for r in range(4):
        A.e(f"v_exp_f32 {v(28+r)}, {v(28+r)}")
    A.e("s_nop 0")
    for r in range(4):
        A.e(f"v_add_f32 {v(28+r)}, 1.0, {v(28+r)}")
    for r in range(4):
        A.e(f"v_rcp_f32 {v(28+r)}, {v(28+r)}")
    A.e("s_nop 0")
    for r in range(4):
        A.e(f"v_mul_f32 {v(24+r)}, {v(24+r)}, {v(28+r)}")
    A.e("s_waitcnt vmcnt(0)")
    A.e("v_lshlrev_b32 v42, 16, v40"); A.e("v_and_b32 v43, 0xffff0000, v40")
    A.e("v_lshlrev_b32 v44, 16, v41"); A.e("v_and_b32 v45, 0xffff0000, v41")
    for r in range(4):
        A.e(f"v_fma_f32 {v(42+r)}, {v(8+r)}, {v(24+r)}, {v(42+r)}")
    A.e("v_cvt_pk_bf16_f32 v46, v42, v43"); A.e("v_cvt_pk_bf16_f32 v47, v44, v45")
    A.e("buffer_store_dwordx2 v[46:47], v4, s[24:27], 0 offen")
    A.e("s_endpgm")
    A(kernel_desc(name, 48, 32, 48))
    errs = checker.check(A.lines, name)
    for e in errs[:10]: print(e)
    print(name, "lines", len(A.lines), "hazard errors", len(errs))
    return A
```

```python
XN_OFF = 0
XN_SIZE = 2048 * 576 * 2
H_OFF = 4 << 20
H_SIZE = 2048 * 4608 * 2
O_OFF = 32 << 20
O_SIZE = 2048 * 4096 * 2
PART_OFF = 48 << 20
import os
SEQ = os.environ.get('TAIL', 'roles') == 'seq'
NPART = 16 if SEQ else 8
PART_UNIT = NPART * 4608
PART_SIZE = 128 * 4 * PART_UNIT
STAMP_OFF = 100 << 20
WS_RANGE = 128 << 20
FLAG_OFF = 96 << 20
```

```python
from asmgen import *
from layout import *

def xlane(A, reg, t0, op):
    for sw in ("v_permlane32_swap_b32", "v_permlane16_swap_b32"):
        A.e(f"v_mov_b32 {t0}, {reg}")
        A.e("s_nop 1")
        A.e(f"{sw} {t0}, {reg}")
        A.e("s_nop 1")
        A.e(f"{op} {reg}, {t0}, {reg}")

def gen_ln(name):
    A = Asm()
    A(kernel_head(name))
    A.e("s_cmp_ge_u32 s2, 128")
    A.e(f"s_cbranch_scc1 {name}_done")
    A.e("s_load_dwordx2 s[4:5], s[0:1], 0")
    A.e("s_load_dwordx2 s[6:7], s[0:1], 88")
    A.e("v_and_b32 v1, 63, v0")
    A.e("v_lshrrev_b32 v2, 6, v0")
    A.e("v_and_b32 v3, 15, v1")
    A.e("v_lshrrev_b32 v4, 4, v1")
    A.e("v_readfirstlane_b32 s12, v2")
    A.e("s_lshl_b32 s13, s2, 4")
    A.e("v_add_u32 v5, s13, v3")
    A.e("v_mul_u32_u24 v5, 1152, v5")
    A.e("v_lshl_add_u32 v5, v4, 3, v5")
    A.e("s_mul_i32 s14, s12, 384")
    A.e("s_waitcnt lgkmcnt(0)")
    A.e("s_mov_b32 s8, s4"); A.e("s_mov_b32 s9, s5"); A.e(f"s_mov_b32 s10, {2048*1152}"); A.e("s_mov_b32 s11, 0x20000")
    A.e("s_mov_b32 s16, s6"); A.e("s_mov_b32 s17, s7"); A.e(f"s_mov_b32 s18, {XN_OFF + XN_SIZE}"); A.e("s_mov_b32 s19, 0x20000")
    RAW = 8
    for k in range(6):
        A.e(f"buffer_load_dwordx2 {v(RAW+4*k,2)}, v5, s[8:11], s14 offen offset:{k*64}")
        A.e(f"buffer_load_dwordx2 {v(RAW+4*k+2,2)}, v5, s[8:11], s14 offen offset:{k*64+32}")
    F = 32
    A.e("v_mov_b32 v6, 0")
    for k in range(24):
        if k % 4 == 0: A.e(f"s_waitcnt vmcnt({10 - 2*(k//4)})")
        A.e(f"v_lshlrev_b32 {v(F+2*k)}, 16, {v(RAW+k)}")
        A.e(f"v_and_b32 {v(F+2*k+1)}, 0xffff0000, {v(RAW+k)}")
        A.e(f"v_add_f32 v6, v6, {v(F+2*k)}")
        A.e(f"v_add_f32 v6, v6, {v(F+2*k+1)}")
    xlane(A, "v6", "v7", "v_add_f32")
    A.e("v_lshlrev_b32 v80, 2, v3")
    A.e("s_lshl_b32 s15, s12, 6")
    A.e("v_add_u32 v81, s15, v80")
    A.e("ds_write_b32 v81, v6")
    A.e("s_waitcnt lgkmcnt(0)")
    A.e("s_barrier")
    A.e("ds_read_b32 v82, v80")
    A.e("ds_read_b32 v83, v80 offset:64")
    A.e("ds_read_b32 v84, v80 offset:128")
    A.e("s_waitcnt lgkmcnt(0)")
    A.e("v_add_f32 v82, v82, v83")
    A.e("v_add_f32 v82, v82, v84")
    A.e(f"v_mul_f32 v82, {hex(f32(1.0/576))}, v82")
    A.e("v_mov_b32 v6, 0")
    for k in range(48):
        A.e(f"v_sub_f32 {v(F+k)}, {v(F+k)}, v82")
        A.e(f"v_fmac_f32 v6, {v(F+k)}, {v(F+k)}")
    xlane(A, "v6", "v7", "v_add_f32")
    A.e("ds_write_b32 v81, v6 offset:256")
    A.e("s_waitcnt lgkmcnt(0)")
    A.e("s_barrier")
    A.e("ds_read_b32 v82, v80 offset:256")
    A.e("ds_read_b32 v83, v80 offset:320")
    A.e("ds_read_b32 v84, v80 offset:384")
    A.e("s_waitcnt lgkmcnt(0)")
    A.e("v_add_f32 v82, v82, v83")
    A.e("v_add_f32 v82, v82, v84")
    A.e(f"v_mov_b32 v83, {hex(f32(1e-5))}")
    A.e(f"v_fmac_f32 v83, {hex(f32(1.0/576))}, v82")
    A.e("v_rsq_f32 v83, v83")
    A.e("s_nop 0")
    for k in range(48):
        A.e(f"v_mul_f32 {v(F+k)}, {v(F+k)}, v83")
    for k in range(24):
        A.e(f"v_cvt_pk_bf16_f32 {v(RAW+k)}, {v(F+2*k)}, {v(F+2*k+1)}")
    A.e("s_lshr_b32 s20, s2, 2"); A.e("s_mul_i32 s20, s20, 18"); A.e("s_mul_i32 s21, s12, 6"); A.e("s_add_u32 s20, s20, s21")
    A.e("s_lshl_b32 s20, s20, 2"); A.e("s_and_b32 s21, s2, 3"); A.e("s_add_u32 s20, s20, s21"); A.e("s_lshl_b32 s20, s20, 10")
    if XN_OFF: A.e(f"s_add_u32 s20, s20, {XN_OFF}")
    A.e("v_lshlrev_b32 v5, 4, v1")
    for k in range(6):
        A.e(f"buffer_store_dwordx4 {v(RAW+4*k,4)}, v5, s[16:19], s20 offen")
        A.e("s_add_u32 s20, s20, 4096")
    A.label(f"{name}_done")
    A.e("s_endpgm")
    A(kernel_desc(name, 96, 32, 96))
    return A

import struct
def f32(x):
    return struct.unpack("<I", struct.pack("<f", x))[0]
```

```python
from asmgen import *
from layout import *
import struct
def f32(x): return struct.unpack("<I", struct.pack("<f", x))[0]

MF = "v_mfma_f32_16x16x32_bf16"
STAGE = 53248
BLK_U = 18432
BLK_Q = 36864
NKS = 18

class RegsA:
    def __init__(R):
        R.QA = 0
        R.GA = 128
        n = 8
        R.U = n; n += 144
        R.GV = n; n += 16
        R.B = n; n += 48
        R.A = n; n += 16
        R.DG = n; n += 4
        R.DX = n; n += 1
        R.DQ = n; n += 4
        R.LG = n; n += 1; R.GA_ADDR = n; n += 1
        R.LQ = n; n += 1; R.QA_ADDR = n; n += 1
        R.QT = n; n += 2
        R.vend = n
        R.sG = 60; R.sU = 64; R.sX = 68; R.sQ = 72
        R.sWS = 16
        R.sM0G = 76; R.sM0X = 77; R.sM0Q = 78
        R.sXoff = 79
        R.sT = 80; R.sT2 = 81; R.sHoff = 82; R.sH8 = 83
    def g(R, t, rb, r=None):
        if t < 8:
            b = R.GA + (t * 4 + rb) * 4
            return a(b, 4) if r is None else a(b + r)
        b = R.GV + rb * 4
        return v(b, 4) if r is None else v(b + r)
    def u(R, t, rb, r=None):
        b = R.U + (t * 4 + rb) * 4
        return v(b, 4) if r is None else v(b + r)
    def qa(R, dt, rb, r=None):
        b = R.QA + (dt * 4 + rb) * 4
        return a(b, 4) if r is None else a(b + r)
    def b(R, ks, rb): return v(R.B + (ks % 3) * 16 + rb * 4, 4)
    def af(R, gi, h=None):
        b = R.A + (gi % 4) * 4
        return v(b, 4) if h is None else v(b + 2 * h, 2)

TILES = [x for t in range(9) for x in (("G", t), ("U", t))] + [("Q", dt) for dt in range(8)]
NT = len(TILES)

class Lin:
    def __init__(L):
        L.out = []; L.ds = []; L.vm = []
    def e(L, t): L.out.append(t)
    def ds_op(L, t, key): L.out.append(t); L.ds.append(key)
    def vm_op(L, t, key): L.out.append(t); L.vm.append(key)
    def need_ds(L, key):
        if key in L.ds:
            last = max(i for i, x in enumerate(L.ds) if x == key)
            cnt = len(L.ds) - 1 - last
            assert cnt <= 15
            L.out.append(f"s_waitcnt lgkmcnt({cnt})")
            L.ds = L.ds[last + 1:]
    def need_vm(L, key):
        if key in L.vm:
            last = max(i for i, x in enumerate(L.vm) if x == key)
            cnt = len(L.vm) - 1 - last
            assert cnt <= 63, cnt
            L.out.append(f"s_waitcnt vmcnt({cnt})")
            L.vm = L.vm[last + 1:]

class PhaseA:
    def __init__(G, R, vm_period=2):
        G.R = R; G.vm_period = vm_period

    def setup(G, A, lane, wave, head, rt, ptr):
        R = G.R
        t = [v(R.B + i) for i in range(12)]
        for srd, nm, size in ((R.sG, "Wg", 576 * 9216), (R.sU, "Wu", 576 * 9216), (R.sQ, "wq", 576 * 8192)):
            p = ptr(nm)
            A.e(f"s_mov_b32 {s(srd)}, {s(p)}"); A.e(f"s_mov_b32 {s(srd+1)}, {s(p+1)}")
            A.e(f"s_mov_b32 {s(srd+2)}, {size}"); A.e(f"s_mov_b32 {s(srd+3)}, 0x20000")
        A.e(f"s_cmp_lt_u32 {wave}, 2")
        A.e(f"s_cselect_b32 {s(R.sX)}, {s(R.sG)}, {s(R.sU)}")
        A.e(f"s_cselect_b32 {s(R.sX+1)}, {s(R.sG+1)}, {s(R.sU+1)}")
        A.e(f"s_mov_b32 {s(R.sX+2)}, {576*9216}"); A.e(f"s_mov_b32 {s(R.sX+3)}, 0x20000")
        A.e(f"s_lshl_b32 {s(R.sM0G)}, {wave}, 12")
        A.e(f"s_and_b32 {s(R.sT)}, {wave}, 1"); A.e(f"s_add_u32 {s(R.sT)}, {s(R.sT)}, 16"); A.e(f"s_lshl_b32 {s(R.sM0X)}, {s(R.sT)}, 10")
        A.e(f"s_cmp_lt_u32 {wave}, 2")
        A.e(f"s_cselect_b32 {s(R.sT2)}, 0, {BLK_U}")
        A.e(f"s_add_u32 {s(R.sM0X)}, {s(R.sM0X)}, {s(R.sT2)}")
        A.e(f"s_lshl_b32 {s(R.sM0Q)}, {wave}, 12"); A.e(f"s_add_u32 {s(R.sM0Q)}, {s(R.sM0Q)}, {BLK_Q}")
        A.e(f"s_mul_i32 {s(R.sT2)}, {head}, 288")
        A.e(f"s_and_b32 s87, {head}, 1"); A.e("s_lshl_b32 s87, s87, 1")
        def gu(dst, idx_s, idx_c, comp):
            A.e(f"s_lshl_b32 s84, {idx_s}, 6")
            A.e(f"v_add_u32 {t[0]}, s84, {lane}")
            if idx_c: A.e(f"v_add_u32 {t[0]}, {64*idx_c}, {t[0]}")
            A.e(f"v_mul_u32_u24 {t[1]}, 3641, {t[0]}")
            A.e(f"v_lshrrev_b32 {t[1]}, 16, {t[1]}")
            A.e(f"v_mul_u32_u24 {t[2]}, 18, {t[1]}")
            A.e(f"v_sub_u32 {t[2]}, {t[0]}, {t[2]}")
            A.e(f"v_add_u32 {t[2]}, s87, {t[2]}")
            A.e(f"v_subrev_u32 {t[5]}, 18, {t[2]}")
            A.e(f"v_min_u32 {t[2]}, {t[2]}, {t[5]}")
            A.e(f"v_mul_u32_u24 {t[1]}, 9216, {t[1]}")
            A.e(f"v_lshl_add_u32 {t[1]}, {t[2]}, 4, {t[1]}")
            A.e(f"v_add_u32 {dst}, {s(R.sT2)}, {t[1]}")
            if comp: A.e(f"v_subrev_u32 {dst}, {comp}, {dst}")
        A.e(f"s_lshl_b32 s85, {wave}, 2")
        for n in range(4): gu(v(R.DG + n), "s85", n, n * 1024)
        gu(v(R.DX), s(R.sT), 0, 0)
        m, g = t[3], t[4]
        A.e(f"v_and_b32 {m}, 15, {lane}"); A.e(f"v_lshrrev_b32 {g}, 4, {lane}")
        A.e(f"s_lshl_b32 s84, {wave}, 4")
        A.e(f"s_lshl_b32 s85, {head}, 8")
        for n in range(4):
            A.e(f"v_add_u32 {t[0]}, {4*n}, {g}")
            A.e(f"v_and_b32 {t[1]}, 7, {t[0]}")
            A.e(f"v_lshlrev_b32 {t[1]}, 1, {t[1]}")
            A.e(f"v_xor_b32 {t[1]}, {t[1]}, {m}")
            A.e(f"v_add_u32 {t[0]}, s84, {t[0]}")
            A.e(f"v_lshlrev_b32 {t[0]}, 13, {t[0]}")
            A.e(f"v_lshl_add_u32 {t[0]}, {t[1]}, 4, {t[0]}")
            A.e(f"v_add_u32 {v(R.DQ+n)}, s85, {t[0]}")
            if n: A.e(f"v_subrev_u32 {v(R.DQ+n)}, {n*1024}, {v(R.DQ+n)}")
        A.e(f"v_lshrrev_b32 {t[0]}, 2, {m}")
        A.e(f"v_lshl_add_u32 {t[0]}, {g}, 2, {t[0]}")
        A.e(f"v_mul_u32_u24 {t[1]}, 288, {t[0]}")
        A.e(f"v_and_b32 {t[2]}, 3, {m}")
        A.e(f"v_lshl_add_u32 {v(R.LG)}, {t[2]}, 3, {t[1]}")
        A.e(f"v_lshlrev_b32 {t[1]}, 8, {t[0]}")
        A.e(f"v_and_b32 {t[2]}, 7, {t[0]}")
        A.e(f"v_lshl_add_u32 {t[1]}, {t[2]}, 5, {t[1]}")
        A.e(f"v_bfe_u32 {t[2]}, {m}, 1, 1")
        A.e(f"v_lshl_add_u32 {t[1]}, {t[2]}, 4, {t[1]}")
        A.e(f"v_and_b32 {t[2]}, 1, {m}")
        A.e(f"v_lshl_add_u32 {t[1]}, {t[2]}, 3, {t[1]}")
        A.e(f"v_add_u32 {v(R.LQ)}, {BLK_Q}, {t[1]}")
        A.e(f"s_lshl_b32 {s(R.sXoff)}, {rt}, 2"); A.e(f"s_add_u32 {s(R.sXoff)}, {s(R.sXoff)}, {wave}")
        A.e(f"s_mul_i32 {s(R.sXoff)}, {s(R.sXoff)}, {18*4096}")
        if XN_OFF: A.e(f"s_add_u32 {s(R.sXoff)}, {s(R.sXoff)}, {XN_OFF}")
        A.e(f"s_lshl_b32 s84, {rt}, 4"); A.e(f"s_lshl_b32 s85, {wave}, 2"); A.e("s_add_u32 s84, s84, s85")
        A.e(f"s_mul_i32 s84, s84, {144*1024}")
        A.e(f"s_lshr_b32 s85, {head}, 1"); A.e(f"s_mul_i32 s85, s85, {9*1024}"); A.e("s_add_u32 s84, s84, s85")
        A.e(f"s_add_u32 s84, s84, {H_OFF}")
        A.e(f"s_and_b32 s85, {head}, 1")
        A.e(f"s_mul_i32 {s(R.sT)}, s85, {5*1024}"); A.e(f"s_add_u32 {s(R.sHoff)}, s84, {s(R.sT)}")
        A.e(f"s_lshl_b32 {s(R.sT)}, s85, 3"); A.e(f"s_add_u32 {s(R.sH8)}, s84, {s(R.sT)}"); A.e(f"s_add_u32 {s(R.sH8)}, {s(R.sH8)}, {4*1024}")

    def dma_ops(G, st):
        R = G.R; slot = (st % 3) * STAGE
        so_g = st * 64 * 9216; so_q = st * 64 * 8192
        ops = []
        for n in range(4):
            pre = [f"s_add_u32 m0, {s(R.sM0G)}, {slot}", f"s_mov_b32 {s(R.sT)}, {so_g}"] if n == 0 else []
            ops.append((pre, f"buffer_load_dwordx4 {v(R.DG+n)}, {s(R.sG,4)}, {s(R.sT)} offen offset:{n*1024} lds"))
        for n in range(4):
            pre = [f"s_add_u32 m0, {s(R.sM0G)}, {slot + BLK_U}"] if n == 0 else []
            ops.append((pre, f"buffer_load_dwordx4 {v(R.DG+n)}, {s(R.sU,4)}, {s(R.sT)} offen offset:{n*1024} lds"))
        ops.append(([f"s_add_u32 m0, {s(R.sM0X)}, {slot}"], f"buffer_load_dwordx4 {v(R.DX)}, {s(R.sX,4)}, {s(R.sT)} offen lds"))
        for n in range(4):
            pre = [f"s_add_u32 m0, {s(R.sM0Q)}, {slot}", f"s_mov_b32 {s(R.sT2)}, {so_q}"] if n == 0 else []
            ops.append((pre, f"buffer_load_dwordx4 {v(R.DQ+n)}, {s(R.sQ,4)}, {s(R.sT2)} offen offset:{n*1024} lds"))
        return ops

    def x_ops(G, ks, lane16):
        R = G.R
        return [([f"s_add_u32 s86, {s(R.sXoff)}, {ks*4096}"] if rb == 0 else [],
                 f"buffer_load_dwordx4 {R.b(ks,rb)}, {lane16}, {s(R.sWS,4)}, s86 offen offset:{rb*1024}") for rb in range(4)]

    def read_ops(G, gi):
        R = G.R; ks, n = divmod(gi, NT); st, kk = divmod(ks, 2)
        kind, t = TILES[n]; pre = []
        if n == 0 and kk == 0:
            pre.append(f"v_add_u32 {v(R.GA_ADDR)}, {(st%3)*STAGE}, {v(R.LG)}")
            pre.append(f"v_add_u32 {v(R.QA_ADDR)}, {(st%3)*STAGE}, {v(R.LQ)}")
        if kind == "Q":
            tmp = v(R.QT + (t & 1))
            pre.append(f"v_xor_b32 {tmp}, {t*32}, {v(R.QA_ADDR)}")
            rd = [f"ds_read_b64_tr_b16 {R.af(gi,h)}, {tmp} offset:{kk*8192 + h*4096}" for h in range(2)]
        else:
            blk = 0 if kind == "G" else BLK_U
            rd = [f"ds_read_b64_tr_b16 {R.af(gi,h)}, {v(R.GA_ADDR)} offset:{blk + (32*kk + 16*h)*288 + 32*t}" for h in range(2)]
        return pre, rd

    def acc(G, n, rb):
        kind, t = TILES[n]; R = G.R
        return R.g(t, rb) if kind == "G" else (R.u(t, rb) if kind == "U" else R.qa(t, rb))

    def main(G, L, lane16, tail_ops=None, stamp=None):
        R = G.R
        def issue(ops, key):
            for pre, ins in ops:
                for x in pre: L.e(x)
                if pre: L.e("s_nop 0")
                L.vm_op(ins, key)
        issue(G.dma_ops(0), ("W", 0))
        issue(G.x_ops(0, lane16), ("X", 0))
        if stamp: stamp(L)
        L.need_vm(("W", 0)); L.need_vm(("X", 0))
        L.e("s_barrier")
        if stamp: stamp(L)
        DIST = 2
        total = NKS * NT
        for gi in range(DIST):
            pre, rd = G.read_ops(gi)
            for x in pre: L.e(x)
            for x in rd: L.ds_op(x, ("A", gi))
        vmq = [(p, i, ("X", 1)) for p, i in G.x_ops(1, lane16)] + [(p, i, ("W", 1)) for p, i in G.dma_ops(1)]
        later = [(p, i, ("W", 2)) for p, i in G.dma_ops(2)]
        for ks in range(NKS):
            st, kk = divmod(ks, 2)
            if stamp and ks > 0: stamp(L)
            if ks + 2 < NKS:
                xo = [(p, i, ("X", ks + 2)) for p, i in G.x_ops(ks + 2, lane16)]
                vmq = (vmq + xo) if ks == 0 else (xo + vmq)
            if ks == 1: vmq += later
            period = 1 if ks < 2 else G.vm_period
            for n in range(NT):
                gi = ks * NT + n
                nx = gi + DIST
                rd = None
                if nx < total:
                    pre, rd = G.read_ops(nx)
                    newstage = (nx % (2 * NT) == 0)
                for rb in range(4):
                    if rb == 0:
                        L.need_ds(("A", gi))
                        if n == 0: L.need_vm(("X", ks))
                    acc = G.acc(n, rb)
                    c = "0" if ks == 0 else acc
                    L.e(f"{MF} {acc}, {R.af(gi)}, {R.b(ks,rb)}, {c}")
                    if rd:
                        if rb == 0:
                            if newstage:
                                ns = nx // (2 * NT)
                                L.need_vm(("W", ns))
                                L.e("s_waitcnt lgkmcnt(0)"); L.ds = []
                                L.e("s_barrier")
                                if ns + 2 <= 8: vmq += [(p, i, ("W", ns + 2)) for p, i in G.dma_ops(ns + 2)]
                                if ns == 8 and tail_ops: vmq += [(p, i, ("T", 0)) for p, i in tail_ops]
                            for x in pre: L.e(x)
                        if rb == 1: L.ds_op(rd[0], ("A", nx))
                        if rb == 2: L.ds_op(rd[1], ("A", nx))
                    if rb == 3 and vmq and (n >= 1 or vmq[0][2][0] != "X") and (n % period == period - 1 or (ks >= NKS - 2)):
                        p, i, key = vmq.pop(0)
                        for x in p: L.e(x)
                        if p: L.e("s_nop 0")
                        L.vm_op(i, key)
            assert not [x for x in vmq if x[2][0] == "X"], ks
        assert not vmq

    def epilogue_h(G, A, lane, tmp):
        R = G.R
        l16 = v(tmp + 8)
        A.e(f"v_lshlrev_b32 {l16}, 4, {lane}")
        k = 0
        def hvals(t, rb, dst):
            for r in range(4):
                x = v(tmp + r)
                if t < 8:
                    A.e(f"v_accvgpr_read_b32 {x}, {R.g(t,rb,r)}")
                    A.e(f"v_max_f32 {x}, 0, {x}")
                else:
                    A.e(f"v_max_f32 {x}, 0, {R.g(t,rb,r)}")
                A.e(f"v_mul_f32 {x}, {x}, {R.u(t,rb,r)}")
            A.e(f"v_cvt_pk_bf16_f32 {v(dst)}, {v(tmp)}, {v(tmp+1)}")
            A.e(f"v_cvt_pk_bf16_f32 {v(dst+1)}, {v(tmp+2)}, {v(tmp+3)}")
        for rb in range(4):
            A.e(f"s_add_u32 {s(R.sT)}, {s(R.sHoff)}, {rb*144*1024}")
            A.e(f"s_add_u32 {s(R.sT2)}, {s(R.sH8)}, {rb*144*1024}")
            for sx in range(4):
                d = R.B + (k % 8) * 4; k += 1
                hvals(2 * sx, rb, d); hvals(2 * sx + 1, rb, d + 2)
                A.e(f"buffer_store_dwordx4 {v(d,4)}, {l16}, {s(R.sWS,4)}, {s(R.sT)} offen offset:{sx*1024}")
            d = R.B + (k % 8) * 4; k += 1
            hvals(8, rb, d)
            A.e(f"buffer_store_dwordx2 {v(d,2)}, {l16}, {s(R.sWS,4)}, {s(R.sT2)} offen")

    def epilogue_q(G, A, qfrag, tmp):
        R = G.R
        c = f32(128 ** -0.5 * 1.4426950408889634)
        A.e(f"s_mov_b32 {s(R.sT)}, {hex(c)}")
        k = 0
        for rb in range(4):
            for sx in range(4):
                b = tmp + (k % 2) * 8; k += 1
                for h in range(2):
                    for r in range(4):
                        A.e(f"v_accvgpr_read_b32 {v(b+4*h+r)}, {R.qa(2*sx+h,rb,r)}")
                for j in range(8): A.e(f"v_mul_f32 {v(b+j)}, {s(R.sT)}, {v(b+j)}")
                for j in range(4): A.e(f"v_cvt_pk_bf16_f32 {v(b+j)}, {v(b+2*j)}, {v(b+2*j+1)}")
                A.e("s_nop 0")
                A.e(f"v_permlane32_swap_b32 {v(b)}, {v(b+2)}")
                A.e(f"v_permlane32_swap_b32 {v(b+1)}, {v(b+3)}")
                A.e("s_nop 0")
                A.e(f"v_permlane16_swap_b32 {v(b)}, {v(b+2)}")
                A.e(f"v_permlane16_swap_b32 {v(b+1)}, {v(b+3)}")
                for j in range(4): A.e(f"v_accvgpr_write_b32 {a(qfrag(rb,sx)+j)}, {v(b+j)}")
```

```python
import sys, ln, k1, k2
opt = eval(sys.argv[2]) if len(sys.argv) > 2 else {}
stamps = opt.get("stamps", False)
a0 = ln.gen_ln("ln_kernel")
a1 = k1.gen_k1("attn_kernel", opt=opt, stamps=stamps)
a2 = k2.gen_k2("proj_kernel", stamps=stamps, opt=opt)
a3 = k2.gen_k3("final_kernel")
hdr = open("header.txt").read()
hdr += "; @launch kernel=ln_kernel grid=(128,1,1) block=(192,1,1) lds=1024\n"
hdr += "; @launch kernel=attn_kernel grid=(256,1,1) block=(256,1,1) lds=163840\n"
hdr += "; @launch kernel=proj_kernel grid=(256,1,1) block=(256,1,1) lds=147456\n"
hdr += "; @launch kernel=final_kernel grid=(1152,1,1) block=(256,1,1) lds=0\n"
txt = hdr + '.amdgcn_target "amdgcn-amd-amdhsa--gfx950"\n' + a0.text() + a1.text() + a2.text() + a3.text()
open(sys.argv[1], "w").write(txt)
print("bytes:", len(txt))
```

```python
from asmgen import *

NSUB = 64
THR = 0x4b800000
ORDER = [0, 2, 1, 3]
MSUM = (0, 1)

class Regs:
    def __init__(R, vbase=8):
        n = vbase
        def al(k, align=1):
            nonlocal n
            n = (n + align - 1) // align * align
            r = n; n += k; return r
        R.S = al(64, 4)
        R.P = al(32, 4)
        R.NEGM = al(16, 4)
        R.SD = al(8, 4)
        R.ONES = al(4, 4)
        R.NT = 32
        R.T = al(R.NT)
        R.PS = al(4)
        R.L = al(4)
        R.KADDR = al(4)
        R.VADDR = al(8)
        R.KDMA = 247
        R.VDMA = 251
        R.CHK = al(1)
        R.TMP = al(12, 4)
        R.vend = n
        R.O = 0
        R.Q = 128
        R.F = 192
        R.sK = 36
        R.sV = 40
        R.sKoff = 44
        R.sVoff = 45
        R.sM0K = 46
        R.sM0V = 47
        R.sThr = 48
        R.sLoop = 49
        R.sRet = 50
        R.sTmp = 52
    def s(R, par, qb, kb, r=None):
        b = R.S + par * 32 + qb * 8 + kb * 4
        return v(b, 4) if r is None else v(b + r)
    def p(R, par, qb, j=None):
        b = R.P + par * 16 + qb * 4
        return v(b, 4) if j is None else v(b + j)
    def negm(R, qb, r=None):
        return v(R.NEGM + qb * 4, 4) if r is None else v(R.NEGM + qb * 4 + r)
    def o(R, qb, db, r=None):
        b = R.O + (qb * 8 + db) * 4
        return a(b, 4) if r is None else a(b + r)
    def q(R, qb, ds):
        return a(R.Q + (qb * 4 + ds) * 4, 4)
    def f(R, i, n=4, off=0):
        return a(R.F + i * 4 + off, n)
    def psum(R, qb):
        if qb in MSUM: return v(R.SD + MSUM.index(qb) * 4)
        return v(R.PS + qb)

MF = "v_mfma_f32_16x16x32_bf16"

def kslot(u): return (u + 3) & 7
def vslot(u): return u & 7

class Item:
    def __init__(s, kind, text, lo, hi, tag=""):
        s.kind, s.text, s.lo, s.hi, s.tag = kind, text, lo, hi, tag

S0_AFTER, S1_AFTER = 9, 41
def pos(n):
    return n + (1 if n > S0_AFTER else 0) + (1 if n > S1_AFTER else 0)
NG = 66
POS_S0, POS_S1 = S0_AFTER + 1, S1_AFTER + 2
SHIFT = 4

def gap_types():
    t = [None] * NG
    for n in range(64):
        if n % 2 == 0: t[pos(n)] = "E"
    free = [g for g in range(NG) if t[g] is None]
    vv = CFG["vv"]; dm = CFG["dma"]
    for g in free:
        t[g] = "V" if g in vv else ("M" if g in dm else "D")
    return t

CFG = dict(vv=[pos(15), pos(19), pos(23), pos(57), pos(59), pos(61)], dma=[pos(5), pos(11), pos(27), pos(33)])

class AttnGen:
    def __init__(G, R, opt=None):
        G.R = R
        G.opt = opt or {}
        if 'cfg' in G.opt: CFG.update(G.opt['cfg'])
        G.types = gap_types()
        G.late = []
        G.extra_vm = {}; G.extra_bar = set(); G.after_bar = {}
        G.vm_init = []
        G.nD = G.types.count("D")
        assert G.nD >= 24, G.nD

    def mfma_list(G, p, do_pv, do_qk):
        R = G.R; par = p & 1
        L = [None] * NG
        for n in range(32):
            qb = ORDER[n >> 3]; db = n & 7
            L[pos(n)] = (f"{MF} {R.o(qb,db)}, {R.f(db)}, {R.p(par^1,qb)}, {R.o(qb,db)}", ("V", db)) if do_pv else None
        for n in range(32, 64):
            i = (n - 32) >> 2; kb = i >> 2; ds = i & 3; qb = ORDER[n & 3]
            c = R.negm(qb) if ds == 0 else R.s(par^1, qb, kb)
            L[pos(n)] = (f"{MF} {R.s(par^1,qb,kb)}, {R.f(8+i)}, {R.q(qb,ds)}, {c}", ("K", i)) if do_qk else None
        L[POS_S0] = (f"{MF} {v(R.SD,4)}, {v(R.ONES,4)}, {R.p(par,MSUM[0])}, 0", None)
        L[POS_S1] = (f"{MF} {v(R.SD+4,4)}, {v(R.ONES,4)}, {R.p(par,MSUM[1])}, 0", None)
        return L

    def exp_src(G, tile, e):
        qb = ORDER[e >> 3]; kb = (e >> 2) & 1; r = e & 3
        return G.R.s(tile & 1, qb, kb, r)
    def tmp(G, tile, e):
        return v(G.R.T + (tile * 32 + e) % G.R.NT)
    def exp_text(G, tile, e):
        return f"v_exp_f32 {G.tmp(tile,e)}, {G.exp_src(tile,e)}"
    def cvt_text(G, tile, e):
        qb = ORDER[e >> 3]; j = (e & 7) >> 1
        return f"v_cvt_pk_bf16_f32 {G.R.p(tile&1,qb,j)}, {G.tmp(tile,e)}, {G.tmp(tile,e+1)}"
    def exp_time(G, tile, e):
        k = e - SHIFT
        if k < 0: return (tile - 1) * NG + pos(64 + 2 * k)
        return tile * NG + pos(2 * k)

    def valu_items(G, tile):
        R = G.R; it = []; T0 = tile * NG
        nxtI = lambda t: t + 1
        for e in range(0, 32, 2):
            qb = ORDER[e >> 3]
            lo = G.exp_time(tile, e + 1) + 1
            if qb == MSUM[0]: hi = T0 + POS_S0 - 2
            elif qb == MSUM[1]: hi = T0 + POS_S1 - 2
            else: hi = T0 + NG + pos(8 * ORDER.index(qb)) - 2
            hi = min(hi, G.exp_time(tile, e) + 0 + self_reuse(G, tile, e))
            it.append(Item("V", G.cvt_text(tile, e), lo, hi, ("cvt", tile, e)))
        for qb in range(4):
            if qb in MSUM: continue
            b = ORDER.index(qb) * 8
            it.append(Item("V", f"v_add_f32 {R.psum(qb)}, {G.tmp(tile,b)}, {G.tmp(tile,b+1)}", G.exp_time(tile, b + 1) + 1,
                           G.exp_time(tile, b + 1) + 3, ("add", tile, qb, 1)))
            for j in range(2, 8):
                it.append(Item("V", f"v_add_f32 {R.psum(qb)}, {R.psum(qb)}, {G.tmp(tile,b+j)}", G.exp_time(tile, b + j) + 1,
                               G.exp_time(tile, b + j) + 3, ("add", tile, qb, j)))
        vq = [q for q in ORDER if q not in MSUM]
        last = G.exp_time(tile, 31) + 1
        it.append(Item("V", f"v_max3_f32 {v(R.CHK)}, {R.psum(MSUM[0])}, {R.psum(MSUM[1])}, {R.psum(vq[0])}", T0 + POS_S1 + 6, last, ("chk", tile, 0)))
        it.append(Item("V", f"v_max_f32 {v(R.CHK)}, {v(R.CHK)}, {R.psum(vq[1])}", last + 1, last + 2, ("chk", tile, 1)))
        it.append(Item("V", f"v_cmp_lt_f32 vcc, {s(R.sThr)}, {v(R.CHK)}", last + 1, last + 2, ("chk", tile, 2)))
        for qb in range(4):
            if qb == MSUM[0]: hi = T0 + NG + POS_S0 - 1
            elif qb == MSUM[1]: hi = T0 + NG + POS_S1 - 1
            else: hi = G.exp_time(tile + 1, ORDER.index(qb) * 8 + 1)
            it.append(Item("V", f"v_add_f32 {v(R.L+qb)}, {v(R.L+qb)}, {R.psum(qb)}", "afterchk", hi, ("ladd", tile, qb)))
        return it

    def ds_items(G, p):
        R = G.R; it = []
        ks = kslot(p + 1)
        for i in range(8):
            kb, ds = i >> 2, i & 3
            it.append((f"ds_read_b128 {R.f(8+i)}, {v(R.KADDR+ds)} offset:{ks*8192+kb*4096}", ("K", i), p * NG + 1, "K"))
        vs = vslot(p)
        for db in range(8):
            for h in range(2):
                it.append((f"ds_read_b64_tr_b16 {R.f(db,2,2*h)}, {v(R.VADDR+db)} offset:{vs*8192+h*4096}", ("V", db),
                           p * NG + pos(24 + db) + 1, "V"))
        return it

    def dma_items(G, p):
        R = G.R; out = []
        if p % 2 == 0 and p + 5 <= NSUB - 1:
            for n in range(4):
                pre = [f"s_add_u32 m0, {s(R.sM0K)}, {(p & 7) * 8192}"] if n == 0 else []
                post = [f"s_add_u32 {s(R.sKoff)}, {s(R.sKoff)}, 16384"] if n == 3 else []
                out.append((pre, f"buffer_load_dwordx4 {v(R.KDMA+n)}, {s(R.sK,4)}, {s(R.sKoff)} offen offset:{n*1024} lds", ("KV", p // 2), post))
        if p % 2 == 1 and p + 3 <= NSUB - 1:
            for n in range(4):
                pre = [f"s_add_u32 m0, {s(R.sM0V)}, {((p + 3) & 7) * 8192}"] if n == 0 else []
                post = [f"s_add_u32 {s(R.sVoff)}, {s(R.sVoff)}, 16384"] if n == 3 else []
                out.append((pre, f"buffer_load_dwordx4 {v(R.VDMA+(n&1))}, {s(R.sV,4)}, {s(R.sVoff)} offen offset:{n*1024} lds", ("KV", p // 2), post))
        if G.opt.get("nodma"): out = []
        return out + list(G.extra_vm.get(p, []))

    def schedule(G, first=0, last=NSUB - 1):
        R = G.R
        pend = []
        placed = {}
        periods = []
        for t in (first,):
            pend += [x for x in G.valu_items(t) if G.keep_first(x, t)]
        added = first
        G.chk_pos = {}
        for p in range(first, last + 1):
            do_pv = p > 0; do_qk = p < NSUB - 1
            M = G.mfma_list(p, do_pv, do_qk)
            dsq = G.ds_items(p)
            if not do_qk: dsq = [d for d in dsq if d[3] != "K"]
            vmq = G.dma_items(p)
            if p + 1 <= last + 1 and do_qk:
                pend += G.valu_items(p + 1)
            gaps = []
            e_next = {}
            for e in range(32):
                e_next[G.exp_time(p, e)] = (p, e)
                if do_qk: e_next[G.exp_time(p + 1, e)] = (p + 1, e)
            for g in range(NG):
                T = p * NG + g
                gap = dict(mfma=M[g], pre=[], body=[], post=[])
                ty = G.types[g]
                if ty == "E":
                    if T in e_next:
                        gap["body"].append(G.exp_text(*e_next[T]))
                else:
                    nv = 2 if ty == "V" else 1
                    if ty == "M" and G.opt.get("dmaalone"): nv = 0
                    if ty == "D":
                        if dsq and dsq[0][2] <= T:
                            d = dsq.pop(0); gap["body"].append(("DS", d[0], d[1]))
                        else:
                            nv = 2
                    n_m_left = sum(1 for gg in range(g, NG) if G.types[gg] == "M")
                    spare = (ty == "V" and g == G.opt.get("xgap", pos(23)) and len(vmq) > n_m_left)
                    if (ty == "M" or spare or (ty == "D" and nv == 2 and G.opt_fill(p))) and vmq:
                        x = vmq.pop(0)
                        if x[0]:
                            if x[2][0] == "KV": gaps[-1]["pre"] += x[0]
                            else: gap["pre"] += x[0] + ["s_nop 0"]
                        gap["body"].append(("VM", x[1], x[2])); nv = 1
                        gap["next_pre"] = list(x[3])
                    elif ty == "M":
                        nv = 2
                    for _ in range(nv):
                        ready = [x for x in pend if G.ready(x, T, placed)]
                        if not ready: break
                        ready.sort(key=lambda x: x.hi)
                        x = ready[0]; pend.remove(x); placed[x.tag] = T
                        if x.hi < T: G.late.append((x.tag, T, x.hi))
                        gap["body"].append(x.text)
                        if x.tag[0] == "chk" and x.tag[2] == 2:
                            gap["post"].append(("CHECK", p)); G.chk_pos[p] = T
                gaps.append(gap)
            assert not dsq, (p, dsq)
            assert not vmq, (p, vmq)
            for g in range(NG - 1):
                if gaps[g].get("next_pre"): gaps[g + 1]["pre"] = gaps[g]["next_pre"] + gaps[g + 1]["pre"]
            if (p % 2 == 0 or p in G.extra_bar) and not G.opt.get("nobar"):
                gaps[G.opt.get("barpos", 0)]["pre"] += [("VMWAIT", ("KV", p // 2 - 2)), "s_barrier"]
            for g, lst in G.after_bar.get(p, {}).items():
                gaps[g]["body"] = [("VM", x, ("X", p)) for x in lst] + gaps[g]["body"]
            periods.append(gaps)
        G.leftover = pend
        return periods
    late = []
    def opt_fill(G, p): return p == NSUB - 1
    def keep_first(G, x, t):
        return True
    def ready(G, x, T, placed):
        if x.lo == "afterchk":
            k = ("chk", x.tag[1], 2)
            return k in placed and placed[k] + G.opt.get("brdelay", 0) < T
        if x.lo > T: return False
        if x.tag[0] == "add" and x.tag[3] > 1:
            return ("add", x.tag[1], x.tag[2], x.tag[3] - 1) in placed
        if x.tag[0] == "chk" and x.tag[2] > 0:
            if ("chk", x.tag[1], x.tag[2] - 1) not in placed: return False
            vq = [q for q in ORDER if q not in MSUM]
            return ("add", x.tag[1], vq[1], 7) in placed
        if x.tag[0] == "chk" and x.tag[2] == 0:
            vq = [q for q in ORDER if q not in MSUM]
            return ("add", x.tag[1], vq[0], 7) in placed
        return True

def self_reuse(G, tile, e):
    nxt = tile * 32 + e + G.R.NT
    t2, e2 = divmod(nxt, 32)
    return G.exp_time(t2, e2) - G.exp_time(tile, e) - 1


class AttnEmit(AttnGen):
    def linearise(G, periods, first):
        out = []
        fifo = []
        vm = list(G.vm_init)
        done = set()
        seq = []
        for k, gaps in enumerate(periods):
            for g, gap in enumerate(gaps): seq.append((k, g, gap))
        lists = [[] for _ in periods]
        pendchk = None
        vkeys = {}
        for n, (k, g, gap) in enumerate(seq):
            L = lists[k]
            m = gap["mfma"]
            L.append(m[0] if m else "s_nop 0")
            pre = []
            for x in gap["pre"]:
                if isinstance(x, tuple) and x[0] == "VMWAIT":
                    if x[1] in vm:
                        lastv = max(i for i, y in enumerate(vm) if y == x[1])
                        pre.append(f"s_waitcnt vmcnt({len(vm) - 1 - lastv})"); vm = vm[lastv + 1:]
                else:
                    pre.append(x)
            if pendchk is not None:
                if pendchk[1] <= 0:
                    pre.append(("CHECK", pendchk[0])); pendchk = None
                else:
                    pendchk = (pendchk[0], pendchk[1] - 1)
            nxt = seq[n + 1][2]["mfma"] if n + 1 < len(seq) else None
            if nxt and nxt[1] is not None and nxt[1] in fifo:
                last = max(i for i, x in enumerate(fifo) if x == nxt[1])
                cnt = len(fifo) - 1 - last
                if not G.opt.get("nolgkm"): pre.append(f"s_waitcnt lgkmcnt({min(cnt, 15)})")
                fifo = fifo[len(fifo) - min(cnt, 15):] if cnt > 0 else []
            L += pre
            body = gap["body"]
            nval = sum(1 for b in body if isinstance(b, str) and b.startswith("v_"))
            if not pre and nval >= 2 and not isinstance(body[0], tuple):
                L.append("s_nop 0")
            for b in body:
                if isinstance(b, tuple) and b[0] == "VM":
                    L.append(b[1]); vm.append(b[2])
                elif isinstance(b, tuple):
                    L.append(b[1]); fifo.append(b[2])
                else:
                    L.append(b)
            for x in gap["post"]:
                pendchk = (x[1], G.opt.get("brdelay", 0))
        G.final_fifo = fifo; G.final_vm = vm
        assert pendchk is None
        return lists

    def xlane(G, A, reg, t0, op):
        for sw in ("v_permlane32_swap_b32", "v_permlane16_swap_b32"):
            A.e(f"v_mov_b32 {t0}, {reg}")
            A.e("s_nop 1")
            A.e(f"{sw} {t0}, {reg}")
            A.e("s_nop 1")
            A.e(f"{op} {reg}, {t0}, {reg}")

    def rare(G, A, p, redo, label):
        R = G.R; par = p & 1
        t0, t1, dl, fc = v(R.TMP), v(R.TMP + 1), v(R.TMP + 2), v(R.TMP + 3)
        A.label(label)
        A.e("s_nop 15")
        for qb in range(4):
            S = [R.s(par, qb, kb, r) for kb in range(2) for r in range(4)]
            A.e(f"v_max3_f32 {dl}, {S[0]}, {S[1]}, {S[2]}")
            A.e(f"v_max3_f32 {dl}, {dl}, {S[3]}, {S[4]}")
            A.e(f"v_max3_f32 {dl}, {dl}, {S[5]}, {S[6]}")
            A.e(f"v_max3_f32 {dl}, {dl}, {S[7]}, 0")
            G.xlane(A, dl, t0, "v_max_f32")
            A.e(f"v_sub_f32 {fc}, 0, {dl}")
            A.e(f"v_exp_f32 {fc}, {fc}")
            for r in range(4):
                A.e(f"v_sub_f32 {R.negm(qb,r)}, {R.negm(qb,r)}, {dl}")
            for x in S:
                A.e(f"v_sub_f32 {x}, {x}, {dl}")
            for kb in range(2):
                for r in range(4):
                    x = R.s(par ^ 1, qb, kb, r)
                    A.e(f"v_sub_f32 {x}, {x}, {dl}")
            A.e(f"v_mul_f32 {v(R.L+qb)}, {v(R.L+qb)}, {fc}")
            for db in range(8):
                for r in range(4):
                    A.e(f"v_accvgpr_read_b32 {t1}, {R.o(qb,db,r)}")
                    A.e(f"v_mul_f32 {t1}, {t1}, {fc}")
                    A.e(f"v_accvgpr_write_b32 {R.o(qb,db,r)}, {t1}")
        for b in range(4):
            qb = ORDER[b]
            ps = R.psum(qb)
            for j in range(8):
                e = b * 8 + j
                A.e(G.exp_text(p, e))
                A.e("s_nop 0")
                if j == 1:
                    A.e(f"v_add_f32 {ps}, {G.tmp(p,e-1)}, {G.tmp(p,e)}")
                elif j > 1:
                    A.e(f"v_add_f32 {ps}, {ps}, {G.tmp(p,e)}")
                if j & 1:
                    A.e(G.cvt_text(p, e - 1))
            if qb in MSUM:
                G.xlane(A, ps, t0, "v_add_f32")
        for x in redo:
            A.e(x)
            A.e("s_nop 0")
        A.e("s_nop 3")
        A.e(f"s_setpc_b64 {s(R.sRet,2)}")

    def setup_reads(G, A, lane):
        R = G.R
        t = [v(R.TMP + i) for i in range(8)]
        m, g, i2 = t[0], t[1], t[2]
        A.e(f"v_and_b32 {m}, 15, {lane}")
        A.e(f"v_lshrrev_b32 {g}, 4, {lane}")
        for ds in range(4):
            A.e(f"v_add_u32 {t[4]}, {4*ds}, {g}")
            A.e(f"v_xor_b32 {t[4]}, {t[4]}, {m}")
            A.e(f"v_lshlrev_b32 {t[4]}, 4, {t[4]}")
            A.e(f"v_lshl_add_u32 {v(R.KADDR+ds)}, {m}, 8, {t[4]}")
        A.e(f"v_lshrrev_b32 {i2}, 2, {m}")
        A.e(f"v_lshl_add_u32 {t[4]}, {g}, 2, {i2}")
        A.e(f"v_and_b32 {t[5]}, 7, {t[4]}")
        A.e(f"v_lshlrev_b32 {t[4]}, 8, {t[4]}")
        A.e(f"v_add_u32 {t[4]}, 0x10000, {t[4]}")
        A.e(f"v_bfe_u32 {t[6]}, {m}, 1, 1")
        A.e(f"v_lshl_add_u32 {t[4]}, {t[6]}, 4, {t[4]}")
        A.e(f"v_and_b32 {t[6]}, 1, {m}")
        A.e(f"v_lshl_add_u32 {t[4]}, {t[6]}, 3, {t[4]}")
        for db in range(8):
            A.e(f"v_xor_b32 {t[6]}, {db}, {t[5]}")
            A.e(f"v_lshl_add_u32 {v(R.VADDR+db)}, {t[6]}, 5, {t[4]}")

    def setup_dma(G, A, lane, wave_s, tbase):
        R = G.R
        m, g, t4, t5 = v(tbase), v(tbase + 1), v(tbase + 2), v(tbase + 3)
        A.e(f"v_and_b32 {m}, 15, {lane}")
        A.e(f"v_lshrrev_b32 {g}, 4, {lane}")
        A.e(f"s_lshl_b32 {s(R.sTmp)}, {wave_s}, 12")
        A.e(f"v_lshl_add_u32 {t4}, {g}, 8, {s(R.sTmp)}")
        for n in range(4):
            A.e(f"v_add_u32 {t5}, {4*n}, {g}")
            A.e(f"v_xor_b32 {t5}, {t5}, {m}")
            A.e(f"v_lshl_add_u32 {v(R.KDMA+n)}, {t5}, 4, {t4}")
        for n in range(2):
            A.e(f"v_add_u32 {t5}, {4*n}, {g}")
            A.e(f"v_lshlrev_b32 {t5}, 1, {t5}")
            A.e(f"v_xor_b32 {t5}, {t5}, {m}")
            A.e(f"v_lshl_add_u32 {v(R.VDMA+n)}, {t5}, 4, {t4}")
        A.e(f"s_mov_b32 {s(R.sM0K)}, {s(R.sTmp)}")
        A.e(f"s_add_u32 {s(R.sM0V)}, {s(R.sTmp)}, 0x10000")
        A.e(f"s_mov_b32 {s(R.sThr)}, {THR}")

    def initial_dma_ops(G):
        R = G.R; ops = []
        for pair in range(3):
            base = kslot(2 * pair) * 8192
            for n in range(4):
                pre = [f"s_add_u32 m0, {s(R.sM0K)}, {base}", "s_and_b32 m0, m0, 0xffff", f"s_mov_b32 {s(R.sTmp)}, {pair*16384}"] if n == 0 else []
                ops.append((pre, f"buffer_load_dwordx4 {v(R.KDMA+n)}, {s(R.sK,4)}, {s(R.sTmp)} offen offset:{n*1024} lds"))
        for pair in range(2):
            for n in range(4):
                pre = [f"s_add_u32 m0, {s(R.sM0V)}, {pair*16384}", f"s_mov_b32 {s(R.sTmp)}, {pair*16384}"] if n == 0 else []
                ops.append((pre, f"buffer_load_dwordx4 {v(R.VDMA+(n&1))}, {s(R.sV,4)}, {s(R.sTmp)} offen offset:{n*1024} lds"))
        return ops

    def init_offsets(G, A):
        R = G.R
        A.e(f"s_mov_b32 {s(R.sKoff)}, {5*8192}")
        A.e(f"s_mov_b32 {s(R.sVoff)}, {4*8192}")

    def initial_dma(G, A):
        for pre, ins in G.initial_dma_ops():
            for x in pre: A.e(x)
            A.e(ins)
        G.init_offsets(A)

    def prologue(G, A, vmcnt=0):
        R = G.R
        A.e(f"s_waitcnt vmcnt({vmcnt})")
        A.e("s_barrier")
        ks = kslot(0)
        for i in range(8):
            kb, ds = i >> 2, i & 3
            A.e(f"ds_read_b128 {R.f(8+i)}, {v(R.KADDR+ds)} offset:{ks*8192+kb*4096}")
        for i in range(4): A.e(f"v_mov_b32 {v(R.ONES+i)}, 0x3f803f80")
        for i in range(4): A.e(f"v_mov_b32 {v(R.L+i)}, 0")
        for i in range(128): A.e(f"v_accvgpr_write_b32 {a(R.O+i)}, 0")
        A.e("s_waitcnt lgkmcnt(0)")
        for i in range(8):
            kb, ds = i >> 2, i & 3
            for qb in range(4):
                c = "0" if ds == 0 else R.s(0, qb, kb)
                A.e(f"{MF} {R.s(0,qb,kb)}, {R.f(8+i)}, {R.q(qb,ds)}, {c}")
        A.e("s_nop 7")
        t0, dl = v(R.TMP), v(R.TMP + 2)
        for qb in range(4):
            S = [R.s(0, qb, kb, r) for kb in range(2) for r in range(4)]
            A.e(f"v_max3_f32 {dl}, {S[0]}, {S[1]}, {S[2]}")
            A.e(f"v_max3_f32 {dl}, {dl}, {S[3]}, {S[4]}")
            A.e(f"v_max3_f32 {dl}, {dl}, {S[5]}, {S[6]}")
            A.e(f"v_max_f32 {dl}, {dl}, {S[7]}")
            G.xlane(A, dl, t0, "v_max_f32")
            for r in range(4): A.e(f"v_sub_f32 {R.negm(qb,r)}, 0, {dl}")
            for x in S: A.e(f"v_sub_f32 {x}, {x}, {dl}")
        for e in range(SHIFT):
            A.e(G.exp_text(0, e))
        A.e("s_nop 1")

    def body(G, A, prefix):
        R = G.R
        G.late = []
        periods = G.schedule()
        lists = G.linearise(periods, 0)
        G.late_report = list(G.late)
        G.lists = lists
        rare = {}
        G.stubs = []
        def emit(p, tagp):
            L = lists[p]
            for k, x in enumerate(L):
                if isinstance(x, tuple):
                    tile = x[1]
                    redo = [y for y in L[:k] if isinstance(y, str) and G.is_next_tile(y, tile)]
                    key = (tile & 1, tuple(redo))
                    if key not in rare: rare[key] = (f"{prefix}_rare{len(rare)}", tile, redo)
                    if G.opt.get("nochk"): continue
                    if G.opt.get("farbranch"):
                        A.e(f"s_cbranch_vccnz {prefix}_stub{tagp}")
                        A.label(f"{prefix}_ok{tagp}")
                        G.stubs.append((f"{prefix}_stub{tagp}", rare[key][0], f"{prefix}_ok{tagp}"))
                        continue
                    A.e(f"s_cbranch_vccz {prefix}_ok{tagp}")
                    A.e(f"s_call_b64 {s(R.sRet,2)}, {rare[key][0]}")
                    A.label(f"{prefix}_ok{tagp}")
                else:
                    A.e(x)
        return lists, rare, emit

    def is_next_tile(G, text, tile):
        for e in range(SHIFT):
            if text == G.exp_text(tile + 1, e): return True
        for e in range(0, SHIFT, 2):
            if text == G.cvt_text(tile + 1, e): return True
        return False


    def emit_all(G, A, prefix):
        R = G.R
        lists, rare, emit = G.body(A, prefix)
        G.rare_paths = rare
        txt = lambda p: [x if isinstance(x, str) else ("CHECK",) for x in lists[p]]
        for p in range(1, 49):
            assert txt(p) == txt(p + 8), p
        emit(0, "p0")
        A.e(f"s_mov_b32 {s(R.sLoop)}, 7")
        A.e(".p2align 6")
        A.label(f"{prefix}_loop")
        for p in range(1, 9): emit(p, f"l{p}")
        A.e(f"s_sub_u32 {s(R.sLoop)}, {s(R.sLoop)}, 1")
        A.e(f"s_cmp_lg_u32 {s(R.sLoop)}, 0")
        A.e(f"s_cbranch_scc1 {prefix}_loop")
        for p in range(57, 64): emit(p, f"t{p}")
        pend = list(G.leftover)
        order = {"cvt": 0, "ladd": 1}
        pend.sort(key=lambda x: order[x.tag[0]])
        for x in pend: A.e(x.text)
        A.e("s_waitcnt lgkmcnt(0)")
        A.e("s_nop 1")
        par = (NSUB - 1) & 1
        for n in range(32):
            qb = ORDER[n >> 3]; db = n & 7
            A.e(f"{MF} {R.o(qb,db)}, {R.f(db)}, {R.p(par,qb)}, {R.o(qb,db)}")

    def emit_rare(G, A):
        for st, tgt, back in G.stubs:
            A.label(st)
            A.e(f"s_call_b64 {s(G.R.sRet,2)}, {tgt}")
            A.e(f"s_branch {back}")
        for key, (label, tile, redo) in G.rare_paths.items():
            G.rare(A, tile, redo, label)

    def trace(G):
        out = []
        for L in G.lists:
            for x in L:
                out.append(x if isinstance(x, str) else "s_cbranch_vccz x")
        return out

    def epilogue(G, A, srd, voff, soff_reg):
        R = G.R
        t0 = v(R.TMP)
        for qb in range(4):
            l = v(R.L + qb)
            if qb not in MSUM: G.xlane(A, l, t0, "v_add_f32")
            A.e(f"v_rcp_f32 {l}, {l}")
        A.e("s_nop 7")
        buf = [R.S, R.S + 8, R.S + 16, R.S + 24]
        k = 0
        for qb in range(4):
            for sx in range(4):
                b = R.S + (k % 8) * 8; k += 1
                for h in range(2):
                    for r in range(4):
                        A.e(f"v_accvgpr_read_b32 {v(b+4*h+r)}, {R.o(qb,2*sx+h,r)}")
                for j in range(8):
                    A.e(f"v_mul_f32 {v(b+j)}, {v(b+j)}, {v(R.L+qb)}")
                for j in range(4):
                    A.e(f"v_cvt_pk_bf16_f32 {v(b+j)}, {v(b+2*j)}, {v(b+2*j+1)}")
                A.e(f"s_add_u32 {s(R.sTmp)}, {soff_reg}, {sx*16384}")
                A.e(f"buffer_store_dwordx4 {v(b,4)}, {voff}, {srd}, {s(R.sTmp)} offen offset:{qb*1024}{G.opt.get('stmod','')}")
```

```python
from asmgen import *
from layout import *
from phasea import Lin, MF, f32
import checker

SLOT = 4 * 9216
NSLOT = 4
NB = 8

class ProjGen:
    def __init__(G, opt=None):
        G.opt = opt or {}
        G.ACC = 0
        G.B = 8
        G.AF = 136
        G.PK = 140
        G.DV = 208
        G.LA = 217; G.RA = 218
        G.sW, G.sAct, G.sWS = 60, 64, 16
        G.sWoff, G.sBoff, G.sM0, G.sSlotR, G.sSlotW, G.sLoop = 68, 69, 70, 71, 72, 73
        G.sT = 74
    def acc(G, t, rb, r=None):
        b = G.ACC + (t * 4 + rb) * 4
        return a(b, 4) if r is None else a(b + r)
    def bf(G, k, rb): return v(G.B + (k % NB) * 16 + rb * 4, 4)
    def af(G, gi, h=None):
        b = G.AF + (gi % 4) * 4
        return v(b, 4) if h is None else v(b + 2 * h, 2)

    def setup(G, A, wave, part, ct, rt, pwo, pwd, pws):
        A.e(f"s_cmp_lt_u32 {part}, 4")
        A.e(f"s_cselect_b32 {s(G.sW)}, {s(pwo)}, {s(pwd)}"); A.e(f"s_cselect_b32 {s(G.sW+1)}, {s(pwo+1)}, {s(pwd+1)}")
        A.e("s_cselect_b32 s74, 32, 36")
        A.e("s_mov_b32 s75, 144"); A.e("s_cselect_b32 s75, 128, s75")
        A.e(f"s_mov_b32 s76, {H_OFF}"); A.e(f"s_cselect_b32 s76, {O_OFF}, s76")
        A.e(f"s_cselect_b32 {s(G.sLoop)}, 8, 9")
        A.e(f"s_and_b32 s77, {part}, 3")
        A.e("s_mul_i32 s77, s77, s74")
        A.e(f"s_mul_i32 s78, s77, {32*1152}")
        A.e(f"s_add_u32 {s(G.sW)}, {s(G.sW)}, s78"); A.e(f"s_addc_u32 {s(G.sW+1)}, {s(G.sW+1)}, 0")
        A.e(f"s_mul_i32 {s(G.sW+2)}, s74, {32*1152}"); A.e(f"s_mov_b32 {s(G.sW+3)}, 0x20000")
        A.e(f"s_mul_i32 {s(G.sWoff)}, {ct}, 288")
        A.e(f"s_mul_i32 s78, {rt}, s75"); A.e("s_add_u32 s78, s78, s77"); A.e("s_lshl_b32 s78, s78, 14")
        A.e("s_add_u32 s78, s78, s76")
        A.e(f"s_add_u32 {s(G.sAct)}, {s(pws)}, s78"); A.e(f"s_addc_u32 {s(G.sAct+1)}, {s(pws+1)}, 0")
        A.e(f"s_lshl_b32 {s(G.sAct+2)}, s74, 14"); A.e(f"s_mov_b32 {s(G.sAct+3)}, 0x20000")
        A.e(f"s_lshl_b32 {s(G.sBoff)}, {wave}, 12")
        A.e(f"s_mul_i32 s78, {wave}, 576")
        for n in range(9):
            A.e(f"v_add_u32 v4, s78, v2")
            if n: A.e(f"v_add_u32 v4, {64*n}, v4")
            A.e("v_mul_u32_u24 v5, 3641, v4"); A.e("v_lshrrev_b32 v5, 16, v5")
            A.e("v_mul_u32_u24 v6, 18, v5"); A.e("v_sub_u32 v6, v4, v6")
            A.e("v_mul_u32_u24 v5, 1152, v5")
            A.e(f"v_lshl_add_u32 {v(G.DV+n)}, v6, 4, v5")
            if n % 4: A.e(f"v_subrev_u32 {v(G.DV+n)}, {(n%4)*1024}, {v(G.DV+n)}")
        A.e(f"s_mul_i32 {s(G.sM0)}, {wave}, {9*1024}")
        A.e("v_and_b32 v4, 15, v2"); A.e("v_lshrrev_b32 v5, 4, v2")
        A.e("v_lshrrev_b32 v6, 2, v4"); A.e("v_lshl_add_u32 v6, v5, 2, v6")
        A.e("v_mul_u32_u24 v6, 288, v6"); A.e("v_and_b32 v4, 3, v4")
        A.e(f"v_lshl_add_u32 {v(G.LA)}, v4, 3, v6")

    def dma(G):
        ops = []
        for n in range(9):
            pre = [f"s_add_u32 m0, {s(G.sSlotW)}, {(n//4)*4096}"] if n % 4 == 0 else []
            ops.append((pre, f"buffer_load_dwordx4 {v(G.DV+n)}, {s(G.sW,4)}, {s(G.sWoff)} offen offset:{(n%4)*1024} lds"))
        return ops
    def next_w(G):
        return [f"s_add_u32 {s(G.sWoff)}, {s(G.sWoff)}, {128*1152}",
                f"s_add_u32 {s(G.sSlotW)}, {s(G.sSlotW)}, {SLOT}",
                f"s_cmp_ge_u32 {s(G.sSlotW)}, {NSLOT*SLOT}",
                f"s_cselect_b32 s79, {NSLOT*SLOT}, 0",
                f"s_sub_u32 {s(G.sSlotW)}, {s(G.sSlotW)}, s79"]
    def bload(G, k):
        m = G.opt.get("ldmod", "")
        ops = [([], f"buffer_load_dwordx4 {G.bf(k,rb)}, v3, {s(G.sAct,4)}, {s(G.sBoff)} offen offset:{rb*1024}{m}") for rb in range(4)]
        return ops, [f"s_add_u32 {s(G.sBoff)}, {s(G.sBoff)}, 16384"]
    def rd(G, gi):
        k, t = divmod(gi % 36, 9)
        return [f"ds_read_b64_tr_b16 {G.af(gi,h)}, {v(G.RA)} offset:{k*9216 + 16*h*288 + 32*t}" for h in range(2)]

    def prologue(G, L, stamp=None, w_done=False):
        def issue(ops, key):
            for pre, ins in ops:
                for x in pre: L.e(x)
                if pre: L.e("s_nop 0")
                L.vm_op(ins, key)
        if not w_done:
            L.e(f"s_mov_b32 {s(G.sSlotW)}, {s(G.sM0)}")
            issue(G.dma(), ("W", 0))
            for x in G.next_w(): L.e(x)
        ops, adv = G.bload(0); issue(ops, ("B", 0))
        for x in adv: L.e(x)
        for i in range(144): L.e(f"v_accvgpr_write_b32 {a(G.ACC+i)}, 0")
        L.e(f"s_mov_b32 {s(G.sSlotR)}, 0")
        L.e(f"v_mov_b32 {v(G.RA)}, {v(G.LA)}")
        if w_done: L.need_vm(("B", 0))
        else: L.need_vm(("W", 0))
        L.e("s_barrier")
        if stamp: stamp(L, 1)
        for gi in range(2):
            for x in G.rd(gi): L.ds_op(x, ("A", 0, gi))
        q = []
        def addb(k):
            ops, adv = G.bload(k)
            q.extend([(p, i, ("B", k)) for p, i in ops]); q.append((adv, None, None))
        def addw(st):
            q.extend([(p, i, ("W", st)) for p, i in G.dma()]); q.append((G.next_w(), None, None))
        if w_done:
            for k in range(1, 7): addb(k)
        else:
            addb(1); addb(2); addw(1); addb(3); addb(4); addw(2); addb(5); addb(6)
        return q

    def stage(G, L, st, vmq, first=False):
        def addb(k):
            ops, adv = G.bload(k)
            return [(p, i, ("B", k)) for p, i in ops] + [(adv, None, None)]
        wq = [(p, i, ("W", st + 3)) for p, i in G.dma()] + [(G.next_w(), None, None)]
        vmq = vmq + addb(4 * st + NB - 1) + wq
        for gi in range(36):
            k, t = divmod(gi, 9); kg = 4 * st + k
            nx = gi + 2
            nkey = ("A", st, nx) if nx < 36 else ("A", st + 1, nx - 36)
            for rb in range(4):
                if rb == 0:
                    L.need_ds(("A", st, gi))
                    if t == 0: L.need_vm(("B", kg))
                L.e(f"{MF} {G.acc(t,rb)}, {G.af(gi)}, {G.bf(kg,rb)}, {G.acc(t,rb)}")
                if rb == 0 and nx == 36:
                    L.need_vm(("W", st + 1))
                    L.e("s_waitcnt lgkmcnt(0)"); L.ds = []
                    if not G.opt.get("nobar"): L.e("s_barrier")
                    L.e(f"s_add_u32 {s(G.sSlotR)}, {s(G.sSlotR)}, {SLOT}")
                    L.e(f"s_cmp_eq_u32 {s(G.sSlotR)}, {NSLOT*SLOT}")
                    L.e(f"s_cselect_b32 {s(G.sSlotR)}, 0, {s(G.sSlotR)}")
                    L.e(f"v_add_u32 {v(G.RA)}, {s(G.sSlotR)}, {v(G.LA)}")
                if not (G.opt.get("nods") and st >= 1):
                    if rb == 1: L.ds_op(G.rd(nx)[0], nkey)
                    if rb == 2: L.ds_op(G.rd(nx)[1], nkey)
                n_vm = (2 if first else 1)
                if rb == 3 or (first and rb == 0 and nx != 36):
                    if rb == 3 and t == 8 and k < 3:
                        vmq = addb(kg + NB) + vmq if not first else vmq + addb(kg + NB)
                    while vmq and vmq[0][1] is None:
                        for x in vmq.pop(0)[0]: L.e(x)
                    if vmq and gi < 35:
                        p, i, key = vmq.pop(0)
                        for x in p: L.e(x)
                        if p: L.e("s_nop 0")
                        skip = (G.opt.get("nob") and key[0] == "B") or (G.opt.get("now") and key[0] == "W")
                        if st < 1 or not skip: L.vm_op(i, key)
                        while vmq and vmq[0][1] is None:
                            for x in vmq.pop(0)[0]: L.e(x)
        assert not vmq, (st, vmq)

    def emit_main(G, A, name, stamp=None, w_done=False):
        L = Lin()
        q = G.prologue(L, stamp, w_done)
        G.stage(L, 0, q, first=True)
        pro = list(L.out)
        bodies = []
        for st in range(1, 9):
            L.out = []; G.stage(L, st, []); bodies.append(list(L.out))
        st0 = 1
        while not (bodies[st0 - 1] == bodies[st0 + 1] and bodies[st0] == bodies[st0 + 2]): st0 += 1
        assert st0 <= 3, "not periodic"
        for st in range(1, st0): pro += bodies[st - 1]
        h0, h1 = bodies[st0 - 1], bodies[st0]
        errs = checker.check(pro + h0 + h1 + h0 + h1, name + "-steady")
        for e in errs[:10]: print(e)
        for x in pro: A.e(x)
        A.e(f"s_sub_u32 {s(G.sLoop)}, {s(G.sLoop)}, {st0}")
        A.e(".p2align 6")
        A.label(f"{name}_loop")
        for x in h0: A.e(x)
        A.e(f"s_sub_u32 {s(G.sLoop)}, {s(G.sLoop)}, 1")
        A.e(f"s_cmp_eq_u32 {s(G.sLoop)}, 0")
        A.e(f"s_cbranch_scc1 {name}_exit")
        for x in h1: A.e(x)
        A.e(f"s_sub_u32 {s(G.sLoop)}, {s(G.sLoop)}, 1")
        A.e(f"s_cmp_lg_u32 {s(G.sLoop)}, 0")
        A.e(f"s_cbranch_scc1 {name}_loop")
        A.label(f"{name}_exit")
        print("peeled stages:", st0)
        return len(errs)

    def store_partials(G, A, wave, part, ct, rt):
        m = G.opt.get("stmod", "")
        A.e(f"s_lshl_b32 s78, {rt}, 4"); A.e(f"s_lshl_b32 s79, {wave}, 2"); A.e("s_add_u32 s78, s78, s79")
        A.e("s_lshl_b32 s78, s78, 2"); A.e(f"s_add_u32 s78, s78, {ct}")
        A.e(f"s_mul_i32 s78, s78, {PART_UNIT}"); A.e(f"s_add_u32 s78, s78, {PART_OFF}")
        A.e(f"s_lshl_b32 s79, {part}, 12"); A.e("s_add_u32 s80, s78, s79")
        A.e(f"s_lshl_b32 s79, {part}, 9"); A.e("s_add_u32 s81, s78, s79"); A.e(f"s_add_u32 s81, s81, {8*4096}")
        A.e("v_lshlrev_b32 v4, 3, v2")
        k = 0
        for rb in range(4):
            for pr in range(5):
                b = G.PK + (k % 8) * 8; k += 1
                n = 8 if pr < 4 else 4
                for j in range(n): A.e(f"v_accvgpr_read_b32 {v(b+j)}, {G.acc(2*pr + j//4, rb, j%4)}")
                for j in range(n // 2): A.e(f"v_cvt_pk_bf16_f32 {v(b+j)}, {v(b+2*j)}, {v(b+2*j+1)}")
                if pr < 4:
                    A.e(f"buffer_store_dwordx4 {v(b,4)}, v3, {s(G.sWS,4)}, s80 offen offset:{pr*1024}{m}")
                else:
                    A.e(f"buffer_store_dwordx2 {v(b,2)}, v4, {s(G.sWS,4)}, s81 offen{m}")
            if rb < 3:
                A.e(f"s_add_u32 s80, s80, {4*PART_UNIT}"); A.e(f"s_add_u32 s81, s81, {4*PART_UNIT}")


def gen_k2(name, stamps=False, opt=None):
    G = ProjGen(opt)
    A = Asm()
    A(kernel_head(name))
    A.e("s_cmp_ge_u32 s2, 256")
    A.e(f"s_cbranch_scc0 {name}_go")
    A.e("s_endpgm")
    A.label(f"{name}_go")
    A.e("s_load_dwordx2 s[4:5], s[0:1], 32")
    A.e("s_load_dwordx2 s[6:7], s[0:1], 64")
    A.e("s_load_dwordx2 s[20:21], s[0:1], 88")
    A.e("v_lshrrev_b32 v1, 6, v0")
    A.e("v_and_b32 v2, 63, v0")
    A.e("v_readfirstlane_b32 s12, v1")
    A.e("s_and_b32 s13, s2, 7")
    A.e("s_lshr_b32 s14, s2, 3")
    A.e("s_and_b32 s15, s14, 3")
    A.e("s_lshr_b32 s14, s14, 2")
    A.e("v_lshlrev_b32 v3, 4, v2")
    A.e("s_waitcnt lgkmcnt(0)")
    A.e(f"s_mov_b32 {s(G.sWS)}, s20"); A.e(f"s_mov_b32 {s(G.sWS+1)}, s21"); A.e(f"s_mov_b32 {s(G.sWS+2)}, {WS_RANGE}"); A.e(f"s_mov_b32 {s(G.sWS+3)}, 0x20000")
    G.setup(A, "s12", "s13", "s15", "s14", 4, 6, 20)
    def stamp(L, k):
        if stamps:
            L.e(f"s_memtime s[{88+2*k}:{89+2*k}]")
            if k in (0, 3): L.e(f"s_memrealtime s[{96+2*(k//3)}:{97+2*(k//3)}]")
            L.e("s_waitcnt lgkmcnt(0)"); L.ds = []
    L = Lin(); stamp(L, 0)
    for x in L.out: A.e(x)
    nerr = G.emit_main(A, name, stamp)
    L = Lin(); stamp(L, 2)
    for x in L.out: A.e(x)
    A.e("s_nop 7")
    G.store_partials(A, "s12", "s13", "s15", "s14")
    if stamps:
        A.e("s_waitcnt vmcnt(0)")
        L3 = Lin(); stamp(L3, 3)
        for x in L3.out: A.e(x)
        for k in (3, 2, 1): A.e(f"s_sub_u32 s{88+2*k}, s{88+2*k}, s{88+2*(k-1)}")
        A.e("s_sub_u32 s98, s98, s96")
        A.e("v_mov_b32 v8, s90"); A.e("v_mov_b32 v9, s92"); A.e("v_mov_b32 v10, s94"); A.e("v_mov_b32 v11, s98")
        A.e("s_lshl_b32 s21, s2, 2"); A.e("s_add_u32 s21, s21, s12"); A.e("s_lshl_b32 s21, s21, 4")
        A.e(f"s_add_u32 s21, s21, {STAMP_OFF + (2 << 20)}")
        A.e("v_cmp_eq_u32 vcc, 0, v2")
        A.e("s_and_saveexec_b64 s[42:43], vcc")
        A.e("v_mov_b32 v1, s21")
        A.e(f"buffer_store_dwordx4 v[8:11], v1, {s(G.sWS,4)}, 0 offen")
        A.e("s_mov_b64 exec, s[42:43]")
    A.e("s_endpgm")
    A(kernel_desc(name, 400, 102, 256))
    print(name, "lines", len(A.lines), "hazard errors", nerr)
    return A


def final_math(A, S, D, X, T, sNeg):
    for r in range(4): A.e(f"v_mul_f32 {v(T+r)}, {sNeg}, {v(D+r)}")
    for r in range(4): A.e(f"v_exp_f32 {v(T+r)}, {v(T+r)}")
    A.e("s_nop 0")
    for r in range(4): A.e(f"v_add_f32 {v(T+r)}, 1.0, {v(T+r)}")
    for r in range(4): A.e(f"v_rcp_f32 {v(T+r)}, {v(T+r)}")
    A.e("s_nop 0")
    for r in range(4): A.e(f"v_mul_f32 {v(D+r)}, {v(D+r)}, {v(T+r)}")
    A.e(f"v_lshlrev_b32 {v(T)}, 16, {v(X)}"); A.e(f"v_and_b32 {v(T+1)}, 0xffff0000, {v(X)}")
    A.e(f"v_lshlrev_b32 {v(T+2)}, 16, {v(X+1)}"); A.e(f"v_and_b32 {v(T+3)}, 0xffff0000, {v(X+1)}")
    for r in range(4): A.e(f"v_fma_f32 {v(T+r)}, {v(S+r)}, {v(D+r)}, {v(T+r)}")
    A.e(f"v_cvt_pk_bf16_f32 {v(X)}, {v(T)}, {v(T+1)}"); A.e(f"v_cvt_pk_bf16_f32 {v(X+1)}, {v(T+2)}, {v(T+3)}")


def gen_k3(name):
    A = Asm()
    A(kernel_head(name))
    NU = 128 * 4 * 5
    A.e("v_lshrrev_b32 v1, 6, v0")
    A.e("v_and_b32 v2, 63, v0")
    A.e("v_readfirstlane_b32 s12, v1")
    A.e("s_lshl_b32 s13, s2, 2"); A.e("s_add_u32 s13, s13, s12")
    A.e(f"s_cmp_ge_u32 s13, {NU}")
    A.e(f"s_cbranch_scc0 {name}_go")
    A.e("s_endpgm")
    A.label(f"{name}_go")
    A.e("s_load_dwordx2 s[4:5], s[0:1], 0")
    A.e("s_load_dwordx2 s[6:7], s[0:1], 72")
    A.e("s_load_dwordx2 s[20:21], s[0:1], 88")
    A.e(f"s_mul_hi_u32 s14, s13, {(2**32 + 4)//5}")
    A.e("s_mul_i32 s15, s14, 5"); A.e("s_sub_u32 s15, s13, s15")
    A.e("s_and_b32 s28, s14, 3"); A.e("s_lshr_b32 s29, s14, 2")
    A.e("v_lshlrev_b32 v3, 4, v2"); A.e("v_lshlrev_b32 v5, 3, v2")
    A.e("v_and_b32 v4, 15, v2"); A.e("v_lshrrev_b32 v6, 4, v2")
    A.e("s_lshl_b32 s22, s29, 4"); A.e("v_add_u32 v4, s22, v4")
    A.e("v_mul_u32_u24 v4, 1152, v4")
    A.e("v_lshl_add_u32 v4, v6, 3, v4")
    A.e("s_mul_i32 s22, s28, 288"); A.e("s_lshl_b32 s23, s15, 6"); A.e("s_add_u32 s22, s22, s23"); A.e("v_add_u32 v4, s22, v4")
    A.e("s_waitcnt lgkmcnt(0)")
    A.e("s_mov_b32 s8, s4"); A.e("s_mov_b32 s9, s5"); A.e(f"s_mov_b32 s10, {2048*1152}"); A.e("s_mov_b32 s11, 0x20000")
    A.e("s_mov_b32 s24, s6"); A.e("s_mov_b32 s25, s7"); A.e(f"s_mov_b32 s26, {2048*1152}"); A.e("s_mov_b32 s27, 0x20000")
    A.e("s_mov_b32 s16, s20"); A.e("s_mov_b32 s17, s21"); A.e(f"s_mov_b32 s18, {WS_RANGE}"); A.e("s_mov_b32 s19, 0x20000")
    A.e(f"s_mul_i32 s22, s14, {PART_UNIT}"); A.e(f"s_add_u32 s22, s22, {PART_OFF}")
    A.e(f"s_mov_b32 s23, {hex(f32(-1.4426950408889634))}")
    A.e("s_cmp_eq_u32 s15, 4")
    A.e(f"s_cbranch_scc1 {name}_single")
    def unpack_sum(dst, srcs, nreg):
        for j in range(nreg):
            for h in range(2):
                d = v(dst + 2 * j + h)
                for n, sr in enumerate(srcs):
                    t = d if n == 0 else "v60"
                    if h == 0: A.e(f"v_lshlrev_b32 {t}, 16, {v(sr+j)}")
                    else: A.e(f"v_and_b32 {t}, 0xffff0000, {v(sr+j)}")
                    if n: A.e(f"v_add_f32 {d}, {d}, v60")
    A.e("s_lshl_b32 s30, s15, 10"); A.e("s_add_u32 s22, s22, s30")
    for p in range(8):
        A.e(f"buffer_load_dwordx4 {v(8+4*p,4)}, v3, s[16:19], s22 offen")
        if p < 7: A.e("s_add_u32 s22, s22, 4096")
    A.e("buffer_load_dwordx2 v[40:41], v4, s[8:11], 0 offen")
    A.e("buffer_load_dwordx2 v[42:43], v4, s[8:11], 0 offen offset:32")
    A.e("s_waitcnt vmcnt(6)")
    unpack_sum(44, [8, 12, 16, 20], 4)
    A.e("s_waitcnt vmcnt(2)")
    unpack_sum(52, [24, 28, 32, 36], 4)
    A.e("s_waitcnt vmcnt(0)")
    final_math(A, 44, 52, 40, 8, "s23")
    final_math(A, 48, 56, 42, 12, "s23")
    A.e("buffer_store_dwordx2 v[40:41], v4, s[24:27], 0 offen")
    A.e("buffer_store_dwordx2 v[42:43], v4, s[24:27], 0 offen offset:32")
    A.e("s_endpgm")
    A.label(f"{name}_single")
    A.e(f"s_add_u32 s22, s22, {8*4096}")
    for p in range(8):
        A.e(f"buffer_load_dwordx2 {v(8+2*p,2)}, v5, s[16:19], s22 offen offset:{p*512}")
    A.e("buffer_load_dwordx2 v[40:41], v4, s[8:11], 0 offen")
    A.e("s_waitcnt vmcnt(0)")
    unpack_sum(44, [8, 10, 12, 14], 2)
    unpack_sum(52, [16, 18, 20, 22], 2)
    final_math(A, 44, 52, 40, 8, "s23")
    A.e("buffer_store_dwordx2 v[40:41], v4, s[24:27], 0 offen")
    A.e("s_endpgm")
    A(kernel_desc(name, 64, 32, 64))
    print(name, "lines", len(A.lines))
    return A
```

```python
from asmgen import *
from layout import *
import attn, phasea, k2, checker
from phasea import Lin, f32

SPIN_LIMIT = 200000

def gen_mega(name, opt=None, stamps=False):
    opt = opt or {}
    SC = " sc1"
    RA = phasea.RegsA(); PA = phasea.PhaseA(RA); PA.stmod = SC
    R = attn.Regs(vbase=8)
    G = attn.AttnEmit(R, dict(farbranch=1, brdelay=2, barpos=1, stmod=SC, **opt.get("attn", {})))
    P = k2.ProjGen(dict(ldmod=SC, stmod=SC, **opt.get("proj", {})))
    assert RA.vend <= R.KDMA and R.vend <= P.DV
    A = Asm()
    A(kernel_head(name))
    sX, sOut, sWo, sDbg, sWd = 26, 28, 30, 32, 96
    sPart, sI, sCt, sHF, sOF, sPF, sPoll = 53, 54, 55, 56, 57, 58, 59
    ONE, ZERO, DBGV, PFV = 254, 255, 246, 240
    nst = [0]
    def stamp(dst=None):
        if not stamps: return
        o = dst or A
        o.e("s_memtime s[88:89]"); o.e("s_waitcnt lgkmcnt(0)")
        if isinstance(o, Lin): o.ds = []
        o.e("s_sub_u32 s88, s88, s90")
        o.e(f"v_writelane_b32 v253, s88, {nst[0]}"); nst[0] += 1

    A.e("s_cmp_ge_u32 s2, 256")
    A.e(f"s_cbranch_scc0 {name}_go")
    A.e("s_endpgm")
    A.label(f"{name}_go")
    A.e("s_load_dwordx4 s[4:7], s[0:1], 8")
    A.e("s_load_dwordx2 s[8:9], s[0:1], 24")
    A.e("s_load_dwordx4 s[20:23], s[0:1], 48")
    A.e("s_load_dwordx2 s[10:11], s[0:1], 88")
    A.e(f"s_load_dwordx2 {s(sX,2)}, s[0:1], 0")
    A.e(f"s_load_dwordx2 {s(sOut,2)}, s[0:1], 72")
    A.e(f"s_load_dwordx2 {s(sWo,2)}, s[0:1], 32")
    A.e(f"s_load_dwordx2 {s(sWd,2)}, s[0:1], 64")
    A.e(f"s_load_dwordx2 {s(sDbg,2)}, s[0:1], 80")
    if stamps:
        A.e("s_memtime s[90:91]"); A.e("s_memrealtime s[92:93]")
    A.e("v_lshrrev_b32 v1, 6, v0")
    A.e("v_and_b32 v2, 63, v0")
    A.e("v_readfirstlane_b32 s12, v1")
    A.e(f"s_and_b32 {s(sPart)}, s2, 7")
    A.e(f"s_lshr_b32 {s(sI)}, s2, 3")
    A.e(f"s_and_b32 {s(sCt)}, {s(sI)}, 3")
    A.e(f"s_lshl_b32 s13, {s(sPart)}, 2")
    A.e(f"s_add_u32 s13, s13, {s(sCt)}")
    A.e(f"s_lshr_b32 s14, {s(sI)}, 2")
    A.e("s_lshr_b32 s15, s13, 1")
    A.e("s_lshl_b32 s15, s15, 19")
    A.e("v_lshlrev_b32 v3, 4, v2")
    A.e(f"v_mov_b32 v{ONE}, 1"); A.e(f"v_mov_b32 v{ZERO}, 0")
    A.e("s_waitcnt lgkmcnt(0)")
    A.e(f"s_add_u32 {s(R.sK)}, s4, s15"); A.e(f"s_addc_u32 {s(R.sK+1)}, s5, 0")
    A.e(f"s_mov_b32 {s(R.sK+2)}, 524288"); A.e(f"s_mov_b32 {s(R.sK+3)}, 0x20000")
    A.e(f"s_add_u32 {s(R.sV)}, s6, s15"); A.e(f"s_addc_u32 {s(R.sV+1)}, s7, 0")
    A.e(f"s_mov_b32 {s(R.sV+2)}, 524288"); A.e(f"s_mov_b32 {s(R.sV+3)}, 0x20000")
    A.e("s_mov_b32 s16, s10"); A.e("s_mov_b32 s17, s11"); A.e(f"s_mov_b32 s18, {WS_RANGE}"); A.e("s_mov_b32 s19, 0x20000")
    A.e(f"s_mov_b32 {s(sDbg+2)}, 256"); A.e(f"s_mov_b32 {s(sDbg+3)}, 0x20000")
    A.e("s_lshl_b32 s24, s14, 2"); A.e("s_lshr_b32 s25, s13, 3"); A.e("s_add_u32 s24, s24, s25"); A.e("s_lshl_b32 s24, s24, 7")
    A.e("s_and_b32 s25, s13, 7"); A.e("s_lshl_b32 s25, s25, 2"); A.e("s_add_u32 s24, s24, s25")
    A.e(f"s_add_u32 {s(sHF)}, s24, {FLAG_OFF}"); A.e(f"s_add_u32 {s(sOF)}, s24, {FLAG_OFF + 4096}")
    A.e(f"s_lshl_b32 s24, {s(sI)}, 7"); A.e(f"s_lshl_b32 s25, {s(sPart)}, 2"); A.e("s_add_u32 s24, s24, s25")
    A.e(f"s_add_u32 {s(sPF)}, s24, {FLAG_OFF + 8192}")
    A.e(f"s_and_b32 s24, {s(sPart)}, 3"); A.e("s_lshl_b32 s25, s14, 2"); A.e("s_add_u32 s24, s24, s25"); A.e("s_lshl_b32 s24, s24, 7")
    A.e(f"s_cmp_lt_u32 {s(sPart)}, 4"); A.e(f"s_cselect_b32 s25, 4096, 0"); A.e("s_add_u32 s24, s24, s25")
    A.e(f"s_add_u32 {s(sPoll)}, s24, {FLAG_OFF}")
    for f in (sHF, sOF, sPF):
        A.e(f"buffer_store_dword v{ZERO}, off, s[16:19], {s(f)}{SC}")
    ptr = {"wq": 8, "Wg": 20, "Wu": 22}
    PA.setup(A, "v2", "s12", "s13", "s14", lambda n: ptr[n])
    G.setup_dma(A, "v2", "s12", 4)
    A.e("s_lshl_b32 s24, s14, 7"); A.e("s_lshl_b32 s25, s13, 2"); A.e("s_add_u32 s24, s24, s25")
    A.e("s_lshl_b32 s24, s24, 14"); A.e("s_lshl_b32 s25, s12, 12"); A.e("s_add_u32 s24, s24, s25")
    A.e(f"s_add_u32 s24, s24, {O_OFF}")

    stamp()
    L = Lin()
    def after_first_barrier(L_):
        L_.e("s_cmp_eq_u32 s12, 0"); L_.e(f"s_cbranch_scc0 {name}_noann")
        L_.e("s_mov_b64 exec, 1")
        L_.e(f"buffer_atomic_add v{ONE}, off, {s(sDbg,4)}, 0")
        L_.e("s_mov_b64 exec, -1")
        L_.e(f"{name}_noann:")
    PA.main(L, "v3", G.initial_dma_ops(), None, after_first_barrier)
    for x in L.out:
        if x.endswith(":"): A.label(x[:-1])
        else: A.e(x)
    stamp()
    A.e(f"buffer_load_dword v{DBGV}, off, {s(sDbg,4)}, 0{SC}")
    A.e("s_nop 7")
    PA.epilogue_h(A, "v2", RA.A)
    PA.epilogue_q(A, lambda qb, ds: R.Q + (qb * 4 + ds) * 4, RA.A)
    stamp()
    G.setup_reads(A, "v2")
    G.init_offsets(A)
    P.setup(A, "s12", s(sPart), s(sCt), "s14", sWo, sWd, 10)
    A.e(f"s_mov_b32 {s(P.sSlotW)}, {s(P.sM0)}")
    A.e(f"s_mul_i32 s85, s74, {32*1152//128}")
    A.e(f"s_lshl_b32 s86, {s(sI)}, 2"); A.e("s_add_u32 s86, s86, s12"); A.e("s_mul_i32 s84, s86, s85")
    NH = 20
    G.vm_init = [("H", 0)] * (NH - 2) + [("KV", -1)] + [("H", 0)] * (0 if opt.get("nopf") else 1)
    A.e(f"s_waitcnt vmcnt({NH})")
    A.e(f"v_readfirstlane_b32 s25, v{DBGV}")
    A.e("s_cmp_ge_u32 s25, 256"); A.e(f"s_cbranch_scc1 {name}_reset_ok")
    A.e("s_mov_b32 s15, 0")
    A.label(f"{name}_reset_spin")
    A.e("s_sleep 4")
    A.e(f"buffer_load_dword v{DBGV}, off, {s(sDbg,4)}, 0{SC}")
    A.e("s_waitcnt vmcnt(0)")
    A.e(f"v_readfirstlane_b32 s25, v{DBGV}")
    A.e("s_add_u32 s15, s15, 1")
    A.e(f"s_cmp_ge_u32 s15, {SPIN_LIMIT}"); A.e(f"s_cbranch_scc1 {name}_reset_ok")
    A.e("s_cmp_ge_u32 s25, 256"); A.e(f"s_cbranch_scc0 {name}_reset_spin")
    A.label(f"{name}_reset_ok")
    G.prologue(A, NH)
    stamp()
    flag_h = f"buffer_store_dword v{ONE}, off, s[16:19], {s(sHF)}{SC}"
    pf = lambda: ([], f"buffer_load_dwordx4 {v(PFV,4)}, v3, {s(P.sW,4)}, s84 offen", ("PF", 0), ["s_add_u32 s84, s84, 1024"])
    G.after_bar = {p: {3: [flag_h]} for p in range(4, 57, 8)}
    if not opt.get("nopf"):
        for p in range(1, 57):
            if p % 4 == 3: G.extra_vm[p] = [pf()]
    w0 = [(pre, ins, ("W", 0), []) for pre, ins in P.dma()]
    w0[-1] = (w0[-1][0], w0[-1][1], w0[-1][2], P.next_w())
    G.extra_vm[63] = w0
    G.extra_bar = {63}
    attn.CFG["dma"] = attn.CFG["dma"][:4]
    G.emit_all(A, name)
    stamp()
    A.e("s_barrier")
    for st in (1, 2):
        for pre, ins in P.dma():
            for x in pre: A.e(x)
            if pre: A.e("s_nop 0")
            A.e(ins)
        for x in P.next_w(): A.e(x)
    G.epilogue(A, "s[16:19]", "v3", "s24")
    stamp()
    def poll(base, lab):
        A.e(f"v_min_u32 v4, 7, v2"); A.e("v_lshlrev_b32 v4, 2, v4")
        A.e("s_mov_b32 s15, 0")
        A.label(f"{name}_{lab}")
        A.e(f"buffer_load_dword v5, v4, s[16:19], {base} offen{SC}")
        A.e("s_waitcnt vmcnt(0)")
        A.e("v_cmp_ne_u32 vcc, 1, v5")
        A.e(f"s_cbranch_vccz {name}_{lab}_ok")
        A.e("s_add_u32 s15, s15, 1")
        A.e(f"s_cmp_ge_u32 s15, {SPIN_LIMIT}"); A.e(f"s_cbranch_scc1 {name}_{lab}_ok")
        A.e("s_sleep 2")
        A.e(f"s_branch {name}_{lab}")
        A.label(f"{name}_{lab}_ok")
    A.e("s_waitcnt vmcnt(0)")
    A.e("s_barrier")
    A.e(f"buffer_store_dword v{ONE}, off, s[16:19], {s(sOF)}{SC}")
    poll(s(sPoll), "pollc")
    stamp()
    nerr = P.emit_main(A, name + "_c", None, True)
    stamp()
    A.e("s_waitcnt vmcnt(16) lgkmcnt(0)")
    A.e("s_nop 7")
    P.store_partials(A, "s12", s(sPart), s(sCt), "s14")
    A.e(f"s_lshl_b32 s78, s14, 4"); A.e(f"s_lshl_b32 s79, {s(sPart)}, 1"); A.e("s_add_u32 s78, s78, s79")
    A.e("s_lshr_b32 s79, s12, 1"); A.e("s_add_u32 s80, s78, s79")
    A.e("s_and_b32 s79, s12, 1"); A.e("s_add_u32 s81, s78, s79")
    A.e("s_lshl_b32 s82, s79, 1")
    A.e("v_and_b32 v4, 15, v2"); A.e("v_lshrrev_b32 v5, 4, v2")
    A.e("v_mul_u32_u24 v4, 1152, v4"); A.e("v_lshl_add_u32 v4, v5, 3, v4")
    A.e(f"s_mul_i32 s74, {s(sCt)}, 288")
    A.e(f"s_mul_i32 s75, s80, {16*1152}"); A.e("s_add_u32 s75, s75, s74"); A.e("s_lshl_b32 s76, s82, 6"); A.e("s_add_u32 s75, s75, s76")
    A.e(f"s_mul_i32 s76, s81, {16*1152}"); A.e("s_add_u32 s76, s76, s74"); A.e("s_add_u32 s76, s76, 256")
    A.e(f"s_mov_b32 s60, {s(sX)}"); A.e(f"s_mov_b32 s61, {s(sX+1)}"); A.e(f"s_mov_b32 s62, {2048*1152}"); A.e("s_mov_b32 s63, 0x20000")
    A.e(f"s_mov_b32 s64, {s(sOut)}"); A.e(f"s_mov_b32 s65, {s(sOut+1)}"); A.e(f"s_mov_b32 s66, {2048*1152}"); A.e("s_mov_b32 s67, 0x20000")
    XR = 220
    for k in range(4): A.e(f"buffer_load_dwordx2 {v(XR+2*k,2)}, v4, s[60:63], s75 offen offset:{32*k}")
    A.e(f"buffer_load_dwordx2 {v(XR+8,2)}, v4, s[60:63], s76 offen")
    A.e("s_waitcnt vmcnt(0)")
    A.e("s_barrier")
    A.e(f"buffer_store_dword v{ONE}, off, s[16:19], {s(sPF)}{SC}")
    A.e(f"s_lshl_b32 s77, {s(sI)}, 7"); A.e(f"s_add_u32 s77, s77, {FLAG_OFF + 8192}")
    A.e("v_mov_b32 v6, v4")
    poll("s77", "polld")
    stamp()
    A.e(f"s_lshl_b32 s78, s80, 2"); A.e(f"s_add_u32 s78, s78, {s(sCt)}"); A.e(f"s_mul_i32 s78, s78, {PART_UNIT}")
    A.e(f"s_add_u32 s78, s78, {PART_OFF}"); A.e("s_lshl_b32 s79, s82, 10"); A.e("s_add_u32 s78, s78, s79")
    A.e(f"s_lshl_b32 s79, s81, 2"); A.e(f"s_add_u32 s79, s79, {s(sCt)}"); A.e(f"s_mul_i32 s79, s79, {PART_UNIT}")
    A.e(f"s_add_u32 s79, s79, {PART_OFF + 8*4096}")
    A.e("v_lshlrev_b32 v7, 3, v2")
    for p in range(8):
        A.e(f"buffer_load_dwordx4 {v(8+4*p,4)}, v3, s[16:19], s78 offen{SC}")
        A.e(f"buffer_load_dwordx4 {v(40+4*p,4)}, v3, s[16:19], s78 offen offset:1024{SC}")
        if p < 7: A.e("s_add_u32 s78, s78, 4096")
    for p in range(8):
        A.e(f"buffer_load_dwordx2 {v(72+2*p,2)}, v7, s[16:19], s79 offen offset:{p*512}{SC}")
    A.e(f"s_mov_b32 s23, {hex(f32(-1.4426950408889634))}")
    def unpack_sum(dst, srcs, nreg, t):
        for j in range(nreg):
            for h in range(2):
                d = v(dst + 2 * j + h)
                for n, sr in enumerate(srcs):
                    tt = d if n == 0 else t
                    if h == 0: A.e(f"v_lshlrev_b32 {tt}, 16, {v(sr+j)}")
                    else: A.e(f"v_and_b32 {tt}, 0xffff0000, {v(sr+j)}")
                    if n: A.e(f"v_add_f32 {d}, {d}, {t}")
    S0, D0, T0 = 100, 120, 140
    A.e("s_waitcnt vmcnt(8)")
    for q in range(2):
        b = 8 + 32 * q
        unpack_sum(S0 + 8 * q, [b, b + 4, b + 8, b + 12], 4, "v160")
        unpack_sum(D0 + 8 * q, [b + 16, b + 20, b + 24, b + 28], 4, "v160")
    for q in range(4):
        k2.final_math(A, S0 + 4 * q, D0 + 4 * q, XR + 2 * q, T0, "s23")
        A.e(f"buffer_store_dwordx2 {v(XR+2*q,2)}, v6, s[64:67], s75 offen offset:{32*q}")
    A.e("s_waitcnt vmcnt(4)")
    unpack_sum(S0 + 16, [72, 74, 76, 78], 2, "v160")
    unpack_sum(D0 + 16, [80, 82, 84, 86], 2, "v160")
    k2.final_math(A, S0 + 16, D0 + 16, XR + 8, T0, "s23")
    A.e(f"buffer_store_dwordx2 {v(XR+8,2)}, v6, s[64:67], s76 offen")
    if stamps:
        A.e("s_waitcnt vmcnt(0)")
        stamp()
        A.e("s_memrealtime s[94:95]"); A.e("s_waitcnt lgkmcnt(0)")
        A.e("s_sub_u32 s94, s94, s92")
        A.e(f"v_writelane_b32 v253, s94, 30"); A.e("v_writelane_b32 v253, s92, 31")
        A.e("s_lshl_b32 s21, s2, 2"); A.e("s_add_u32 s21, s21, s12"); A.e("s_lshl_b32 s21, s21, 8")
        A.e(f"s_add_u32 s21, s21, {STAMP_OFF}")
        A.e("v_lshlrev_b32 v1, 2, v2")
        A.e("buffer_store_dword v253, v1, s[16:19], s21 offen")
    A.e("s_endpgm")
    G.emit_rare(A)
    A(kernel_desc(name, 512, 102, 256))
    errs = checker.check([l for l in A.lines if not l.startswith(";")], name)
    for e in errs[:10]: print(e)
    print(name, "lines", len(A.lines), "hazard errors", len(errs), nerr)
    return A
```

```python
from asmgen import *
from layout import *
import struct
def f32(x): return struct.unpack("<I", struct.pack("<f", x))[0]

MF = "v_mfma_f32_16x16x32_bf16"
STAGE = 53248
BLK_U = 18432
BLK_Q = 36864
NKS = 18

class RegsA:
    def __init__(R):
        R.QA = 0
        R.GA = 128
        n = 8
        R.U = n; n += 144
        R.GV = n; n += 16
        R.B = n; n += 48
        R.A = n; n += 16
        R.DG = n; n += 4
        R.DX = n; n += 1
        R.DQ = n; n += 4
        R.LG = n; n += 1; R.GA_ADDR = n; n += 1
        R.LQ = n; n += 1; R.QA_ADDR = n; n += 1
        R.QT = n; n += 2
        R.vend = n
        R.sG = 60; R.sU = 64; R.sX = 68; R.sQ = 72
        R.sWS = 16
        R.sM0G = 76; R.sM0X = 77; R.sM0Q = 78
        R.sXoff = 79
        R.sT = 80; R.sT2 = 81; R.sHoff = 82; R.sH8 = 83
    def g(R, t, rb, r=None):
        if t < 8:
            b = R.GA + (t * 4 + rb) * 4
            return a(b, 4) if r is None else a(b + r)
        b = R.GV + rb * 4
        return v(b, 4) if r is None else v(b + r)
    def u(R, t, rb, r=None):
        b = R.U + (t * 4 + rb) * 4
        return v(b, 4) if r is None else v(b + r)
    def qa(R, dt, rb, r=None):
        b = R.QA + (dt * 4 + rb) * 4
        return a(b, 4) if r is None else a(b + r)
    def b(R, ks, rb): return v(R.B + (ks % 3) * 16 + rb * 4, 4)
    def af(R, gi, h=None):
        b = R.A + (gi % 4) * 4
        return v(b, 4) if h is None else v(b + 2 * h, 2)

TILES = [x for t in range(9) for x in (("G", t), ("U", t))] + [("Q", dt) for dt in range(8)]
NT = len(TILES)

class Lin:
    def __init__(L):
        L.out = []; L.ds = []; L.vm = []
    def e(L, t): L.out.append(t)
    def ds_op(L, t, key): L.out.append(t); L.ds.append(key)
    def vm_op(L, t, key): L.out.append(t); L.vm.append(key)
    def need_ds(L, key):
        if key in L.ds:
            last = max(i for i, x in enumerate(L.ds) if x == key)
            cnt = len(L.ds) - 1 - last
            assert cnt <= 15
            L.out.append(f"s_waitcnt lgkmcnt({cnt})")
            L.ds = L.ds[last + 1:]
    def need_vm(L, key):
        if key in L.vm:
            last = max(i for i, x in enumerate(L.vm) if x == key)
            cnt = len(L.vm) - 1 - last
            assert cnt <= 63, cnt
            L.out.append(f"s_waitcnt vmcnt({cnt})")
            L.vm = L.vm[last + 1:]

class PhaseA:
    def __init__(G, R, vm_period=2):
        G.R = R; G.vm_period = vm_period; G.stmod = ''

    def setup(G, A, lane, wave, head, rt, ptr):
        R = G.R
        t = [v(R.B + i) for i in range(12)]
        for srd, nm, size in ((R.sG, "Wg", 576 * 9216), (R.sU, "Wu", 576 * 9216), (R.sQ, "wq", 576 * 8192)):
            p = ptr(nm)
            A.e(f"s_mov_b32 {s(srd)}, {s(p)}"); A.e(f"s_mov_b32 {s(srd+1)}, {s(p+1)}")
            A.e(f"s_mov_b32 {s(srd+2)}, {size}"); A.e(f"s_mov_b32 {s(srd+3)}, 0x20000")
        A.e(f"s_cmp_lt_u32 {wave}, 2")
        A.e(f"s_cselect_b32 {s(R.sX)}, {s(R.sG)}, {s(R.sU)}")
        A.e(f"s_cselect_b32 {s(R.sX+1)}, {s(R.sG+1)}, {s(R.sU+1)}")
        A.e(f"s_mov_b32 {s(R.sX+2)}, {576*9216}"); A.e(f"s_mov_b32 {s(R.sX+3)}, 0x20000")
        A.e(f"s_lshl_b32 {s(R.sM0G)}, {wave}, 12")
        A.e(f"s_and_b32 {s(R.sT)}, {wave}, 1"); A.e(f"s_add_u32 {s(R.sT)}, {s(R.sT)}, 16"); A.e(f"s_lshl_b32 {s(R.sM0X)}, {s(R.sT)}, 10")
        A.e(f"s_cmp_lt_u32 {wave}, 2")
        A.e(f"s_cselect_b32 {s(R.sT2)}, 0, {BLK_U}")
        A.e(f"s_add_u32 {s(R.sM0X)}, {s(R.sM0X)}, {s(R.sT2)}")
        A.e(f"s_lshl_b32 {s(R.sM0Q)}, {wave}, 12"); A.e(f"s_add_u32 {s(R.sM0Q)}, {s(R.sM0Q)}, {BLK_Q}")
        A.e(f"s_mul_i32 {s(R.sT2)}, {head}, 288")
        A.e(f"s_and_b32 s87, {head}, 1"); A.e("s_lshl_b32 s87, s87, 1")
        def gu(dst, idx_s, idx_c, comp):
            A.e(f"s_lshl_b32 s84, {idx_s}, 6")
            A.e(f"v_add_u32 {t[0]}, s84, {lane}")
            if idx_c: A.e(f"v_add_u32 {t[0]}, {64*idx_c}, {t[0]}")
            A.e(f"v_mul_u32_u24 {t[1]}, 3641, {t[0]}")
            A.e(f"v_lshrrev_b32 {t[1]}, 16, {t[1]}")
            A.e(f"v_mul_u32_u24 {t[2]}, 18, {t[1]}")
            A.e(f"v_sub_u32 {t[2]}, {t[0]}, {t[2]}")
            A.e(f"v_add_u32 {t[2]}, s87, {t[2]}")
            A.e(f"v_subrev_u32 {t[5]}, 18, {t[2]}")
            A.e(f"v_min_u32 {t[2]}, {t[2]}, {t[5]}")
            A.e(f"v_mul_u32_u24 {t[1]}, 9216, {t[1]}")
            A.e(f"v_lshl_add_u32 {t[1]}, {t[2]}, 4, {t[1]}")
            A.e(f"v_add_u32 {dst}, {s(R.sT2)}, {t[1]}")
            if comp: A.e(f"v_subrev_u32 {dst}, {comp}, {dst}")
        A.e(f"s_lshl_b32 s85, {wave}, 2")
        for n in range(4): gu(v(R.DG + n), "s85", n, n * 1024)
        gu(v(R.DX), s(R.sT), 0, 0)
        m, g = t[3], t[4]
        A.e(f"v_and_b32 {m}, 15, {lane}"); A.e(f"v_lshrrev_b32 {g}, 4, {lane}")
        A.e(f"s_lshl_b32 s84, {wave}, 4")
        A.e(f"s_lshl_b32 s85, {head}, 8")
        for n in range(4):
            A.e(f"v_add_u32 {t[0]}, {4*n}, {g}")
            A.e(f"v_and_b32 {t[1]}, 7, {t[0]}")
            A.e(f"v_lshlrev_b32 {t[1]}, 1, {t[1]}")
            A.e(f"v_xor_b32 {t[1]}, {t[1]}, {m}")
            A.e(f"v_add_u32 {t[0]}, s84, {t[0]}")
            A.e(f"v_lshlrev_b32 {t[0]}, 13, {t[0]}")
            A.e(f"v_lshl_add_u32 {t[0]}, {t[1]}, 4, {t[0]}")
            A.e(f"v_add_u32 {v(R.DQ+n)}, s85, {t[0]}")
            if n: A.e(f"v_subrev_u32 {v(R.DQ+n)}, {n*1024}, {v(R.DQ+n)}")
        A.e(f"v_lshrrev_b32 {t[0]}, 2, {m}")
        A.e(f"v_lshl_add_u32 {t[0]}, {g}, 2, {t[0]}")
        A.e(f"v_mul_u32_u24 {t[1]}, 288, {t[0]}")
        A.e(f"v_and_b32 {t[2]}, 3, {m}")
        A.e(f"v_lshl_add_u32 {v(R.LG)}, {t[2]}, 3, {t[1]}")
        A.e(f"v_lshlrev_b32 {t[1]}, 8, {t[0]}")
        A.e(f"v_and_b32 {t[2]}, 7, {t[0]}")
        A.e(f"v_lshl_add_u32 {t[1]}, {t[2]}, 5, {t[1]}")
        A.e(f"v_bfe_u32 {t[2]}, {m}, 1, 1")
        A.e(f"v_lshl_add_u32 {t[1]}, {t[2]}, 4, {t[1]}")
        A.e(f"v_and_b32 {t[2]}, 1, {m}")
        A.e(f"v_lshl_add_u32 {t[1]}, {t[2]}, 3, {t[1]}")
        A.e(f"v_add_u32 {v(R.LQ)}, {BLK_Q}, {t[1]}")
        A.e(f"s_lshl_b32 {s(R.sXoff)}, {rt}, 2"); A.e(f"s_add_u32 {s(R.sXoff)}, {s(R.sXoff)}, {wave}")
        A.e(f"s_mul_i32 {s(R.sXoff)}, {s(R.sXoff)}, {18*4096}")
        if XN_OFF: A.e(f"s_add_u32 {s(R.sXoff)}, {s(R.sXoff)}, {XN_OFF}")
        A.e(f"s_mul_i32 s84, {rt}, 144")
        A.e(f"s_lshr_b32 s85, {head}, 1"); A.e("s_mul_i32 s85, s85, 9"); A.e("s_add_u32 s84, s84, s85")
        A.e("s_lshl_b32 s84, s84, 14")
        A.e(f"s_lshl_b32 s85, {wave}, 12"); A.e("s_add_u32 s84, s84, s85")
        A.e(f"s_add_u32 s84, s84, {H_OFF}")
        A.e(f"s_and_b32 s85, {head}, 1")
        A.e(f"s_mul_i32 {s(R.sT)}, s85, {5*16384}"); A.e(f"s_add_u32 {s(R.sHoff)}, s84, {s(R.sT)}")
        A.e(f"s_lshl_b32 {s(R.sT)}, s85, 3"); A.e(f"s_add_u32 {s(R.sH8)}, s84, {s(R.sT)}"); A.e(f"s_add_u32 {s(R.sH8)}, {s(R.sH8)}, {4*16384}")

    def dma_ops(G, st):
        R = G.R; slot = (st % 3) * STAGE
        so_g = st * 64 * 9216; so_q = st * 64 * 8192
        ops = []
        for n in range(4):
            pre = [f"s_add_u32 m0, {s(R.sM0G)}, {slot}", f"s_mov_b32 {s(R.sT)}, {so_g}"] if n == 0 else []
            ops.append((pre, f"buffer_load_dwordx4 {v(R.DG+n)}, {s(R.sG,4)}, {s(R.sT)} offen offset:{n*1024} lds"))
        for n in range(4):
            pre = [f"s_add_u32 m0, {s(R.sM0G)}, {slot + BLK_U}"] if n == 0 else []
            ops.append((pre, f"buffer_load_dwordx4 {v(R.DG+n)}, {s(R.sU,4)}, {s(R.sT)} offen offset:{n*1024} lds"))
        ops.append(([f"s_add_u32 m0, {s(R.sM0X)}, {slot}"], f"buffer_load_dwordx4 {v(R.DX)}, {s(R.sX,4)}, {s(R.sT)} offen lds"))
        for n in range(4):
            pre = [f"s_add_u32 m0, {s(R.sM0Q)}, {slot}", f"s_mov_b32 {s(R.sT2)}, {so_q}"] if n == 0 else []
            ops.append((pre, f"buffer_load_dwordx4 {v(R.DQ+n)}, {s(R.sQ,4)}, {s(R.sT2)} offen offset:{n*1024} lds"))
        return ops

    def x_ops(G, ks, lane16):
        R = G.R
        return [([f"s_add_u32 s86, {s(R.sXoff)}, {ks*4096}"] if rb == 0 else [],
                 f"buffer_load_dwordx4 {R.b(ks,rb)}, {lane16}, {s(R.sWS,4)}, s86 offen offset:{rb*1024}") for rb in range(4)]

    def read_ops(G, gi):
        R = G.R; ks, n = divmod(gi, NT); st, kk = divmod(ks, 2)
        kind, t = TILES[n]; pre = []
        if n == 0 and kk == 0:
            pre.append(f"v_add_u32 {v(R.GA_ADDR)}, {(st%3)*STAGE}, {v(R.LG)}")
            pre.append(f"v_add_u32 {v(R.QA_ADDR)}, {(st%3)*STAGE}, {v(R.LQ)}")
        if kind == "Q":
            tmp = v(R.QT + (t & 1))
            pre.append(f"v_xor_b32 {tmp}, {t*32}, {v(R.QA_ADDR)}")
            rd = [f"ds_read_b64_tr_b16 {R.af(gi,h)}, {tmp} offset:{kk*8192 + h*4096}" for h in range(2)]
        else:
            blk = 0 if kind == "G" else BLK_U
            rd = [f"ds_read_b64_tr_b16 {R.af(gi,h)}, {v(R.GA_ADDR)} offset:{blk + (32*kk + 16*h)*288 + 32*t}" for h in range(2)]
        return pre, rd

    def acc(G, n, rb):
        kind, t = TILES[n]; R = G.R
        return R.g(t, rb) if kind == "G" else (R.u(t, rb) if kind == "U" else R.qa(t, rb))

    def main(G, L, lane16, tail_ops=None, stamp=None, hook=None):
        R = G.R
        def issue(ops, key):
            for pre, ins in ops:
                for x in pre: L.e(x)
                if pre: L.e("s_nop 0")
                L.vm_op(ins, key)
        issue(G.dma_ops(0), ("W", 0))
        issue(G.x_ops(0, lane16), ("X", 0))
        if stamp: stamp(L)
        L.need_vm(("W", 0)); L.need_vm(("X", 0))
        L.e("s_barrier")
        if stamp: stamp(L)
        if hook: hook(L)
        DIST = 2
        total = NKS * NT
        for gi in range(DIST):
            pre, rd = G.read_ops(gi)
            for x in pre: L.e(x)
            for x in rd: L.ds_op(x, ("A", gi))
        vmq = [(p, i, ("X", 1)) for p, i in G.x_ops(1, lane16)] + [(p, i, ("W", 1)) for p, i in G.dma_ops(1)]
        later = [(p, i, ("W", 2)) for p, i in G.dma_ops(2)]
        for ks in range(NKS):
            st, kk = divmod(ks, 2)
            if stamp and ks > 0: stamp(L)
            if ks + 2 < NKS:
                xo = [(p, i, ("X", ks + 2)) for p, i in G.x_ops(ks + 2, lane16)]
                vmq = (vmq + xo) if ks == 0 else (xo + vmq)
            if ks == 1: vmq += later
            period = 1 if ks < 2 else G.vm_period
            for n in range(NT):
                gi = ks * NT + n
                nx = gi + DIST
                rd = None
                if nx < total:
                    pre, rd = G.read_ops(nx)
                    newstage = (nx % (2 * NT) == 0)
                for rb in range(4):
                    if rb == 0:
                        L.need_ds(("A", gi))
                        if n == 0: L.need_vm(("X", ks))
                    acc = G.acc(n, rb)
                    c = "0" if ks == 0 else acc
                    L.e(f"{MF} {acc}, {R.af(gi)}, {R.b(ks,rb)}, {c}")
                    if rd:
                        if rb == 0:
                            if newstage:
                                ns = nx // (2 * NT)
                                L.need_vm(("W", ns))
                                L.e("s_waitcnt lgkmcnt(0)"); L.ds = []
                                L.e("s_barrier")
                                if ns + 2 <= 8: vmq += [(p, i, ("W", ns + 2)) for p, i in G.dma_ops(ns + 2)]
                                if ns == 8 and tail_ops: vmq += [(p, i, ("T", 0)) for p, i in tail_ops]
                            for x in pre: L.e(x)
                        if rb == 1: L.ds_op(rd[0], ("A", nx))
                        if rb == 2: L.ds_op(rd[1], ("A", nx))
                    if rb == 3 and vmq and (n >= 1 or vmq[0][2][0] != "X") and (n % period == period - 1 or (ks >= NKS - 2)):
                        p, i, key = vmq.pop(0)
                        for x in p: L.e(x)
                        if p: L.e("s_nop 0")
                        L.vm_op(i, key)
            assert not [x for x in vmq if x[2][0] == "X"], ks
        assert not vmq

    def epilogue_h(G, A, lane, tmp):
        R = G.R
        l16 = v(tmp + 8)
        A.e(f"v_lshlrev_b32 {l16}, 4, {lane}")
        k = 0
        def hvals(t, rb, dst):
            for r in range(4):
                x = v(tmp + r)
                if t < 8:
                    A.e(f"v_accvgpr_read_b32 {x}, {R.g(t,rb,r)}")
                    A.e(f"v_max_f32 {x}, 0, {x}")
                else:
                    A.e(f"v_max_f32 {x}, 0, {R.g(t,rb,r)}")
                A.e(f"v_mul_f32 {x}, {x}, {R.u(t,rb,r)}")
            A.e(f"v_cvt_pk_bf16_f32 {v(dst)}, {v(tmp)}, {v(tmp+1)}")
            A.e(f"v_cvt_pk_bf16_f32 {v(dst+1)}, {v(tmp+2)}, {v(tmp+3)}")
        for sx in range(4):
            A.e(f"s_add_u32 {s(R.sT)}, {s(R.sHoff)}, {sx*16384}")
            for rb in range(4):
                d = R.B + (k % 8) * 4; k += 1
                hvals(2 * sx, rb, d); hvals(2 * sx + 1, rb, d + 2)
                A.e(f"buffer_store_dwordx4 {v(d,4)}, {l16}, {s(R.sWS,4)}, {s(R.sT)} offen offset:{rb*1024}{G.stmod}")
        for rb in range(4):
            d = R.B + (k % 8) * 4; k += 1
            hvals(8, rb, d)
            A.e(f"buffer_store_dwordx2 {v(d,2)}, {l16}, {s(R.sWS,4)}, {s(R.sH8)} offen offset:{rb*1024}{G.stmod}")

    def epilogue_q(G, A, qfrag, tmp):
        R = G.R
        c = f32(128 ** -0.5 * 1.4426950408889634)
        A.e(f"s_mov_b32 {s(R.sT)}, {hex(c)}")
        k = 0
        for rb in range(4):
            for sx in range(4):
                b = tmp + (k % 2) * 8; k += 1
                for h in range(2):
                    for r in range(4):
                        A.e(f"v_accvgpr_read_b32 {v(b+4*h+r)}, {R.qa(2*sx+h,rb,r)}")
                for j in range(8): A.e(f"v_mul_f32 {v(b+j)}, {s(R.sT)}, {v(b+j)}")
                for j in range(4): A.e(f"v_cvt_pk_bf16_f32 {v(b+j)}, {v(b+2*j)}, {v(b+2*j+1)}")
                A.e("s_nop 0")
                A.e(f"v_permlane32_swap_b32 {v(b)}, {v(b+2)}")
                A.e(f"v_permlane32_swap_b32 {v(b+1)}, {v(b+3)}")
                A.e("s_nop 0")
                A.e(f"v_permlane16_swap_b32 {v(b)}, {v(b+2)}")
                A.e(f"v_permlane16_swap_b32 {v(b+1)}, {v(b+3)}")
                for j in range(4): A.e(f"v_accvgpr_write_b32 {a(qfrag(rb,sx)+j)}, {v(b+j)}")
```

```python
import sys, ln, mega
opt = eval(sys.argv[2]) if len(sys.argv) > 2 else {}
a0 = ln.gen_ln("ln_kernel")
a1 = mega.gen_mega("mega_kernel", opt=opt, stamps=opt.get("stamps", False))
hdr = open("header.txt").read()
hdr += "; @launch kernel=ln_kernel grid=(128,1,1) block=(192,1,1) lds=1024\n"
hdr += "; @launch kernel=mega_kernel grid=(256,1,1) block=(256,1,1) lds=163840\n"
txt = hdr + '.amdgcn_target "amdgcn-amd-amdhsa--gfx950"\n' + a0.text() + a1.text()
open(sys.argv[1], "w").write(txt)
print("bytes:", len(txt))
```

```python
from asmgen import *

NSUB = 64
THR = 0x4b800000
ORDER = [0, 2, 1, 3]
MSUM = (0, 1)

class Regs:
    def __init__(R, vbase=8):
        n = vbase
        def al(k, align=1):
            nonlocal n
            n = (n + align - 1) // align * align
            r = n; n += k; return r
        R.S = al(64, 4)
        R.P = al(32, 4)
        R.NEGM = al(16, 4)
        R.SD = al(8, 4)
        R.ONES = al(4, 4)
        R.NT = 32
        R.T = al(R.NT)
        R.PS = al(4)
        R.L = al(4)
        R.KADDR = al(4)
        R.VADDR = al(8)
        R.KDMA = 247
        R.VDMA = 251
        R.CHK = al(1)
        R.TMP = al(12, 4)
        R.vend = n
        R.O = 0
        R.Q = 128
        R.F = 192
        R.sK = 36
        R.sV = 40
        R.sKoff = 44
        R.sVoff = 45
        R.sM0K = 46
        R.sM0V = 47
        R.sThr = 48
        R.sLoop = 49
        R.sRet = 50
        R.sTmp = 52
    def s(R, par, qb, kb, r=None):
        b = R.S + par * 32 + qb * 8 + kb * 4
        return v(b, 4) if r is None else v(b + r)
    def p(R, par, qb, j=None):
        b = R.P + par * 16 + qb * 4
        return v(b, 4) if j is None else v(b + j)
    def negm(R, qb, r=None):
        return v(R.NEGM + qb * 4, 4) if r is None else v(R.NEGM + qb * 4 + r)
    def o(R, qb, db, r=None):
        b = R.O + (qb * 8 + db) * 4
        return a(b, 4) if r is None else a(b + r)
    def q(R, qb, ds):
        return a(R.Q + (qb * 4 + ds) * 4, 4)
    def f(R, i, n=4, off=0):
        return a(R.F + i * 4 + off, n)
    def psum(R, qb):
        if qb in MSUM: return v(R.SD + MSUM.index(qb) * 4)
        return v(R.PS + qb)

MF = "v_mfma_f32_16x16x32_bf16"

def kslot(u): return (u + 3) & 7
def vslot(u): return u & 7

class Item:
    def __init__(s, kind, text, lo, hi, tag=""):
        s.kind, s.text, s.lo, s.hi, s.tag = kind, text, lo, hi, tag

S0_AFTER, S1_AFTER = 9, 41
def pos(n):
    return n + (1 if n > S0_AFTER else 0) + (1 if n > S1_AFTER else 0)
NG = 66
POS_S0, POS_S1 = S0_AFTER + 1, S1_AFTER + 2
SHIFT = 4

def gap_types():
    t = [None] * NG
    for n in range(64):
        if n % 2 == 0: t[pos(n)] = "E"
    free = [g for g in range(NG) if t[g] is None]
    vv = CFG["vv"]; dm = CFG["dma"]
    for g in free:
        t[g] = "V" if g in vv else ("M" if g in dm else "D")
    return t

CFG = dict(vv=[pos(15), pos(19), pos(23), pos(57), pos(59), pos(61)], dma=[pos(5), pos(11), pos(27), pos(33)])

class AttnGen:
    def __init__(G, R, opt=None):
        G.R = R
        G.opt = opt or {}
        if 'cfg' in G.opt: CFG.update(G.opt['cfg'])
        G.types = gap_types()
        G.late = []
        G.extra_vm = {}; G.extra_bar = set(); G.after_bar = {}
        G.vm_init = []
        G.nD = G.types.count("D")
        assert G.nD >= 24, G.nD

    def mfma_list(G, p, do_pv, do_qk):
        R = G.R; par = p & 1
        L = [None] * NG
        for n in range(32):
            qb = ORDER[n >> 3]; db = n & 7
            L[pos(n)] = (f"{MF} {R.o(qb,db)}, {R.f(db)}, {R.p(par^1,qb)}, {R.o(qb,db)}", ("V", db)) if do_pv else None
        for n in range(32, 64):
            i = (n - 32) >> 2; kb = i >> 2; ds = i & 3; qb = ORDER[n & 3]
            c = R.negm(qb) if ds == 0 else R.s(par^1, qb, kb)
            L[pos(n)] = (f"{MF} {R.s(par^1,qb,kb)}, {R.f(8+i)}, {R.q(qb,ds)}, {c}", ("K", i)) if do_qk else None
        L[POS_S0] = (f"{MF} {v(R.SD,4)}, {v(R.ONES,4)}, {R.p(par,MSUM[0])}, 0", None)
        L[POS_S1] = (f"{MF} {v(R.SD+4,4)}, {v(R.ONES,4)}, {R.p(par,MSUM[1])}, 0", None)
        return L

    def exp_src(G, tile, e):
        qb = ORDER[e >> 3]; kb = (e >> 2) & 1; r = e & 3
        return G.R.s(tile & 1, qb, kb, r)
    def tmp(G, tile, e):
        return v(G.R.T + (tile * 32 + e) % G.R.NT)
    def exp_text(G, tile, e):
        return f"v_exp_f32 {G.tmp(tile,e)}, {G.exp_src(tile,e)}"
    def cvt_text(G, tile, e):
        qb = ORDER[e >> 3]; j = (e & 7) >> 1
        return f"v_cvt_pk_bf16_f32 {G.R.p(tile&1,qb,j)}, {G.tmp(tile,e)}, {G.tmp(tile,e+1)}"
    def exp_time(G, tile, e):
        k = e - SHIFT
        if k < 0: return (tile - 1) * NG + pos(64 + 2 * k)
        return tile * NG + pos(2 * k)

    def valu_items(G, tile):
        R = G.R; it = []; T0 = tile * NG
        nxtI = lambda t: t + 1
        for e in range(0, 32, 2):
            qb = ORDER[e >> 3]
            lo = G.exp_time(tile, e + 1) + 1
            if qb == MSUM[0]: hi = T0 + POS_S0 - 2
            elif qb == MSUM[1]: hi = T0 + POS_S1 - 2
            else: hi = T0 + NG + pos(8 * ORDER.index(qb)) - 2
            hi = min(hi, G.exp_time(tile, e) + 0 + self_reuse(G, tile, e))
            it.append(Item("V", G.cvt_text(tile, e), lo, hi, ("cvt", tile, e)))
        for qb in range(4):
            if qb in MSUM: continue
            b = ORDER.index(qb) * 8
            it.append(Item("V", f"v_add_f32 {R.psum(qb)}, {G.tmp(tile,b)}, {G.tmp(tile,b+1)}", G.exp_time(tile, b + 1) + 1,
                           G.exp_time(tile, b + 1) + 3, ("add", tile, qb, 1)))
            for j in range(2, 8):
                it.append(Item("V", f"v_add_f32 {R.psum(qb)}, {R.psum(qb)}, {G.tmp(tile,b+j)}", G.exp_time(tile, b + j) + 1,
                               G.exp_time(tile, b + j) + 3, ("add", tile, qb, j)))
        vq = [q for q in ORDER if q not in MSUM]
        last = G.exp_time(tile, 31) + 1
        it.append(Item("V", f"v_max3_f32 {v(R.CHK)}, {R.psum(MSUM[0])}, {R.psum(MSUM[1])}, {R.psum(vq[0])}", T0 + POS_S1 + 6, last, ("chk", tile, 0)))
        it.append(Item("V", f"v_max_f32 {v(R.CHK)}, {v(R.CHK)}, {R.psum(vq[1])}", last + 1, last + 2, ("chk", tile, 1)))
        it.append(Item("V", f"v_cmp_lt_f32 vcc, {s(R.sThr)}, {v(R.CHK)}", last + 1, last + 2, ("chk", tile, 2)))
        for qb in range(4):
            if qb == MSUM[0]: hi = T0 + NG + POS_S0 - 1
            elif qb == MSUM[1]: hi = T0 + NG + POS_S1 - 1
            else: hi = G.exp_time(tile + 1, ORDER.index(qb) * 8 + 1)
            it.append(Item("V", f"v_add_f32 {v(R.L+qb)}, {v(R.L+qb)}, {R.psum(qb)}", "afterchk", hi, ("ladd", tile, qb)))
        return it

    def ds_items(G, p):
        R = G.R; it = []
        ks = kslot(p + 1)
        for i in range(8):
            kb, ds = i >> 2, i & 3
            it.append((f"ds_read_b128 {R.f(8+i)}, {v(R.KADDR+ds)} offset:{ks*8192+kb*4096}", ("K", i), p * NG + 1, "K"))
        vs = vslot(p)
        for db in range(8):
            for h in range(2):
                it.append((f"ds_read_b64_tr_b16 {R.f(db,2,2*h)}, {v(R.VADDR+db)} offset:{vs*8192+h*4096}", ("V", db),
                           p * NG + pos(24 + db) + 1, "V"))
        return it

    def dma_items(G, p):
        R = G.R; out = []
        if p % 2 == 0 and p + 5 <= NSUB - 1:
            for n in range(4):
                pre = [f"s_add_u32 m0, {s(R.sM0K)}, {(p & 7) * 8192}"] if n == 0 else []
                post = [f"s_add_u32 {s(R.sKoff)}, {s(R.sKoff)}, 16384"] if n == 3 else []
                out.append((pre, f"buffer_load_dwordx4 {v(R.KDMA+n)}, {s(R.sK,4)}, {s(R.sKoff)} offen offset:{n*1024}{G.opt.get('kvmod','')} lds", ("KV", p // 2), post))
        if p % 2 == 1 and p + 3 <= NSUB - 1:
            for n in range(4):
                pre = [f"s_add_u32 m0, {s(R.sM0V)}, {((p + 3) & 7) * 8192}"] if n == 0 else []
                post = [f"s_add_u32 {s(R.sVoff)}, {s(R.sVoff)}, 16384"] if n == 3 else []
                out.append((pre, f"buffer_load_dwordx4 {v(R.VDMA+(n&1))}, {s(R.sV,4)}, {s(R.sVoff)} offen offset:{n*1024}{G.opt.get('kvmod','')} lds", ("KV", p // 2), post))
        if G.opt.get("nodma"): out = []
        return out + list(G.extra_vm.get(p, []))

    def schedule(G, first=0, last=NSUB - 1):
        R = G.R
        pend = []
        placed = {}
        periods = []
        for t in (first,):
            pend += [x for x in G.valu_items(t) if G.keep_first(x, t)]
        added = first
        G.chk_pos = {}
        for p in range(first, last + 1):
            do_pv = p > 0; do_qk = p < NSUB - 1
            M = G.mfma_list(p, do_pv, do_qk)
            dsq = G.ds_items(p)
            if not do_qk: dsq = [d for d in dsq if d[3] != "K"]
            vmq = G.dma_items(p)
            if p + 1 <= last + 1 and do_qk:
                pend += G.valu_items(p + 1)
            gaps = []
            e_next = {}
            for e in range(32):
                e_next[G.exp_time(p, e)] = (p, e)
                if do_qk: e_next[G.exp_time(p + 1, e)] = (p + 1, e)
            for g in range(NG):
                T = p * NG + g
                gap = dict(mfma=M[g], pre=[], body=[], post=[])
                ty = G.types[g]
                if ty == "E":
                    if T in e_next:
                        gap["body"].append(G.exp_text(*e_next[T]))
                else:
                    nv = 2 if ty == "V" else 1
                    if ty == "M" and G.opt.get("dmaalone"): nv = 0
                    if ty == "D":
                        if dsq and dsq[0][2] <= T:
                            d = dsq.pop(0); gap["body"].append(("DS", d[0], d[1]))
                        else:
                            nv = 2
                    n_m_left = sum(1 for gg in range(g, NG) if G.types[gg] == "M")
                    spare = (ty == "V" and g == G.opt.get("xgap", pos(23)) and len(vmq) > n_m_left)
                    if (ty == "M" or spare or (ty == "D" and nv == 2 and G.opt_fill(p))) and vmq:
                        x = vmq.pop(0)
                        if x[0]:
                            if x[2][0] == "KV": gaps[-1]["pre"] += x[0]
                            else: gap["pre"] += x[0] + ["s_nop 0"]
                        gap["body"].append(("VM", x[1], x[2])); nv = 1
                        gap["next_pre"] = list(x[3])
                    elif ty == "M":
                        nv = 2
                    for _ in range(nv):
                        ready = [x for x in pend if G.ready(x, T, placed)]
                        if not ready: break
                        ready.sort(key=lambda x: x.hi)
                        x = ready[0]; pend.remove(x); placed[x.tag] = T
                        if x.hi < T: G.late.append((x.tag, T, x.hi))
                        gap["body"].append(x.text)
                        if x.tag[0] == "chk" and x.tag[2] == 2:
                            gap["post"].append(("CHECK", p)); G.chk_pos[p] = T
                gaps.append(gap)
            assert not dsq, (p, dsq)
            assert not vmq, (p, vmq)
            for g in range(NG - 1):
                if gaps[g].get("next_pre"): gaps[g + 1]["pre"] = gaps[g]["next_pre"] + gaps[g + 1]["pre"]
            if (p % 2 == 0 or p in G.extra_bar) and not G.opt.get("nobar"):
                gaps[G.opt.get("barpos", 0)]["pre"] += [("VMWAIT", ("KV", p // 2 - 2)), "s_barrier"]
            for g, lst in G.after_bar.get(p, {}).items():
                gaps[g]["body"] = [("VM", x, ("X", p)) for x in lst] + gaps[g]["body"]
            periods.append(gaps)
        G.leftover = pend
        return periods
    late = []
    def opt_fill(G, p): return p == NSUB - 1
    def keep_first(G, x, t):
        return True
    def ready(G, x, T, placed):
        if x.lo == "afterchk":
            k = ("chk", x.tag[1], 2)
            return k in placed and placed[k] + G.opt.get("brdelay", 0) < T
        if x.lo > T: return False
        if x.tag[0] == "add" and x.tag[3] > 1:
            return ("add", x.tag[1], x.tag[2], x.tag[3] - 1) in placed
        if x.tag[0] == "chk" and x.tag[2] > 0:
            if ("chk", x.tag[1], x.tag[2] - 1) not in placed: return False
            vq = [q for q in ORDER if q not in MSUM]
            return ("add", x.tag[1], vq[1], 7) in placed
        if x.tag[0] == "chk" and x.tag[2] == 0:
            vq = [q for q in ORDER if q not in MSUM]
            return ("add", x.tag[1], vq[0], 7) in placed
        return True

def self_reuse(G, tile, e):
    nxt = tile * 32 + e + G.R.NT
    t2, e2 = divmod(nxt, 32)
    return G.exp_time(t2, e2) - G.exp_time(tile, e) - 1


class AttnEmit(AttnGen):
    def linearise(G, periods, first):
        out = []
        fifo = []
        vm = list(G.vm_init)
        done = set()
        seq = []
        for k, gaps in enumerate(periods):
            for g, gap in enumerate(gaps): seq.append((k, g, gap))
        lists = [[] for _ in periods]
        pendchk = None
        vkeys = {}
        for n, (k, g, gap) in enumerate(seq):
            L = lists[k]
            m = gap["mfma"]
            L.append(m[0] if m else "s_nop 0")
            pre = []
            for x in gap["pre"]:
                if isinstance(x, tuple) and x[0] == "VMWAIT":
                    if x[1] in vm:
                        lastv = max(i for i, y in enumerate(vm) if y == x[1])
                        pre.append(f"s_waitcnt vmcnt({len(vm) - 1 - lastv})"); vm = vm[lastv + 1:]
                else:
                    pre.append(x)
            if pendchk is not None:
                if pendchk[1] <= 0:
                    pre.append(("CHECK", pendchk[0])); pendchk = None
                else:
                    pendchk = (pendchk[0], pendchk[1] - 1)
            nxt = seq[n + 1][2]["mfma"] if n + 1 < len(seq) else None
            if nxt and nxt[1] is not None and nxt[1] in fifo:
                last = max(i for i, x in enumerate(fifo) if x == nxt[1])
                cnt = len(fifo) - 1 - last
                if not G.opt.get("nolgkm"): pre.append(f"s_waitcnt lgkmcnt({min(cnt, 15)})")
                fifo = fifo[len(fifo) - min(cnt, 15):] if cnt > 0 else []
            L += pre
            body = gap["body"]
            nval = sum(1 for b in body if isinstance(b, str) and b.startswith("v_"))
            if not pre and nval >= 2 and not isinstance(body[0], tuple):
                L.append("s_nop 0")
            for b in body:
                if isinstance(b, tuple) and b[0] == "VM":
                    L.append(b[1]); vm.append(b[2])
                elif isinstance(b, tuple):
                    L.append(b[1]); fifo.append(b[2])
                else:
                    L.append(b)
            for x in gap["post"]:
                pendchk = (x[1], G.opt.get("brdelay", 0))
        G.final_fifo = fifo; G.final_vm = vm
        assert pendchk is None
        return lists

    def xlane(G, A, reg, t0, op):
        for sw in ("v_permlane32_swap_b32", "v_permlane16_swap_b32"):
            A.e(f"v_mov_b32 {t0}, {reg}")
            A.e("s_nop 1")
            A.e(f"{sw} {t0}, {reg}")
            A.e("s_nop 1")
            A.e(f"{op} {reg}, {t0}, {reg}")

    def rare(G, A, p, redo, label):
        R = G.R; par = p & 1
        t0, t1, dl, fc = v(R.TMP), v(R.TMP + 1), v(R.TMP + 2), v(R.TMP + 3)
        A.label(label)
        A.e("s_nop 15")
        for qb in range(4):
            S = [R.s(par, qb, kb, r) for kb in range(2) for r in range(4)]
            A.e(f"v_max3_f32 {dl}, {S[0]}, {S[1]}, {S[2]}")
            A.e(f"v_max3_f32 {dl}, {dl}, {S[3]}, {S[4]}")
            A.e(f"v_max3_f32 {dl}, {dl}, {S[5]}, {S[6]}")
            A.e(f"v_max3_f32 {dl}, {dl}, {S[7]}, 0")
            G.xlane(A, dl, t0, "v_max_f32")
            A.e(f"v_sub_f32 {fc}, 0, {dl}")
            A.e(f"v_exp_f32 {fc}, {fc}")
            for r in range(4):
                A.e(f"v_sub_f32 {R.negm(qb,r)}, {R.negm(qb,r)}, {dl}")
            for x in S:
                A.e(f"v_sub_f32 {x}, {x}, {dl}")
            for kb in range(2):
                for r in range(4):
                    x = R.s(par ^ 1, qb, kb, r)
                    A.e(f"v_sub_f32 {x}, {x}, {dl}")
            A.e(f"v_mul_f32 {v(R.L+qb)}, {v(R.L+qb)}, {fc}")
            for db in range(8):
                for r in range(4):
                    A.e(f"v_accvgpr_read_b32 {t1}, {R.o(qb,db,r)}")
                    A.e(f"v_mul_f32 {t1}, {t1}, {fc}")
                    A.e(f"v_accvgpr_write_b32 {R.o(qb,db,r)}, {t1}")
        for b in range(4):
            qb = ORDER[b]
            ps = R.psum(qb)
            for j in range(8):
                e = b * 8 + j
                A.e(G.exp_text(p, e))
                A.e("s_nop 0")
                if j == 1:
                    A.e(f"v_add_f32 {ps}, {G.tmp(p,e-1)}, {G.tmp(p,e)}")
                elif j > 1:
                    A.e(f"v_add_f32 {ps}, {ps}, {G.tmp(p,e)}")
                if j & 1:
                    A.e(G.cvt_text(p, e - 1))
            if qb in MSUM:
                G.xlane(A, ps, t0, "v_add_f32")
        for x in redo:
            A.e(x)
            A.e("s_nop 0")
        A.e("s_nop 3")
        A.e(f"s_setpc_b64 {s(R.sRet,2)}")

    def setup_reads(G, A, lane):
        R = G.R
        t = [v(R.TMP + i) for i in range(8)]
        m, g, i2 = t[0], t[1], t[2]
        A.e(f"v_and_b32 {m}, 15, {lane}")
        A.e(f"v_lshrrev_b32 {g}, 4, {lane}")
        for ds in range(4):
            A.e(f"v_add_u32 {t[4]}, {4*ds}, {g}")
            A.e(f"v_xor_b32 {t[4]}, {t[4]}, {m}")
            A.e(f"v_lshlrev_b32 {t[4]}, 4, {t[4]}")
            A.e(f"v_lshl_add_u32 {v(R.KADDR+ds)}, {m}, 8, {t[4]}")
        A.e(f"v_lshrrev_b32 {i2}, 2, {m}")
        A.e(f"v_lshl_add_u32 {t[4]}, {g}, 2, {i2}")
        A.e(f"v_and_b32 {t[5]}, 7, {t[4]}")
        A.e(f"v_lshlrev_b32 {t[4]}, 8, {t[4]}")
        A.e(f"v_add_u32 {t[4]}, 0x10000, {t[4]}")
        A.e(f"v_bfe_u32 {t[6]}, {m}, 1, 1")
        A.e(f"v_lshl_add_u32 {t[4]}, {t[6]}, 4, {t[4]}")
        A.e(f"v_and_b32 {t[6]}, 1, {m}")
        A.e(f"v_lshl_add_u32 {t[4]}, {t[6]}, 3, {t[4]}")
        for db in range(8):
            A.e(f"v_xor_b32 {t[6]}, {db}, {t[5]}")
            A.e(f"v_lshl_add_u32 {v(R.VADDR+db)}, {t[6]}, 5, {t[4]}")

    def setup_dma(G, A, lane, wave_s, tbase):
        R = G.R
        m, g, t4, t5 = v(tbase), v(tbase + 1), v(tbase + 2), v(tbase + 3)
        A.e(f"v_and_b32 {m}, 15, {lane}")
        A.e(f"v_lshrrev_b32 {g}, 4, {lane}")
        A.e(f"s_lshl_b32 {s(R.sTmp)}, {wave_s}, 12")
        A.e(f"v_lshl_add_u32 {t4}, {g}, 8, {s(R.sTmp)}")
        for n in range(4):
            A.e(f"v_add_u32 {t5}, {4*n}, {g}")
            A.e(f"v_xor_b32 {t5}, {t5}, {m}")
            A.e(f"v_lshl_add_u32 {v(R.KDMA+n)}, {t5}, 4, {t4}")
        for n in range(2):
            A.e(f"v_add_u32 {t5}, {4*n}, {g}")
            A.e(f"v_lshlrev_b32 {t5}, 1, {t5}")
            A.e(f"v_xor_b32 {t5}, {t5}, {m}")
            A.e(f"v_lshl_add_u32 {v(R.VDMA+n)}, {t5}, 4, {t4}")
        A.e(f"s_mov_b32 {s(R.sM0K)}, {s(R.sTmp)}")
        A.e(f"s_add_u32 {s(R.sM0V)}, {s(R.sTmp)}, 0x10000")
        A.e(f"s_mov_b32 {s(R.sThr)}, {THR}")

    def initial_dma_ops(G):
        R = G.R; ops = []
        for pair in range(3):
            base = kslot(2 * pair) * 8192
            for n in range(4):
                pre = [f"s_add_u32 m0, {s(R.sM0K)}, {base}", "s_and_b32 m0, m0, 0xffff", f"s_mov_b32 {s(R.sTmp)}, {pair*16384}"] if n == 0 else []
                ops.append((pre, f"buffer_load_dwordx4 {v(R.KDMA+n)}, {s(R.sK,4)}, {s(R.sTmp)} offen offset:{n*1024}{G.opt.get('kvmod','')} lds"))
        for pair in range(2):
            for n in range(4):
                pre = [f"s_add_u32 m0, {s(R.sM0V)}, {pair*16384}", f"s_mov_b32 {s(R.sTmp)}, {pair*16384}"] if n == 0 else []
                ops.append((pre, f"buffer_load_dwordx4 {v(R.VDMA+(n&1))}, {s(R.sV,4)}, {s(R.sTmp)} offen offset:{n*1024}{G.opt.get('kvmod','')} lds"))
        return ops

    def init_offsets(G, A):
        R = G.R
        A.e(f"s_mov_b32 {s(R.sKoff)}, {5*8192}")
        A.e(f"s_mov_b32 {s(R.sVoff)}, {4*8192}")

    def initial_dma(G, A):
        for pre, ins in G.initial_dma_ops():
            for x in pre: A.e(x)
            A.e(ins)
        G.init_offsets(A)

    def prologue(G, A, vmcnt=0):
        R = G.R
        A.e(f"s_waitcnt vmcnt({vmcnt})")
        A.e("s_barrier")
        ks = kslot(0)
        for i in range(8):
            kb, ds = i >> 2, i & 3
            A.e(f"ds_read_b128 {R.f(8+i)}, {v(R.KADDR+ds)} offset:{ks*8192+kb*4096}")
        for i in range(4): A.e(f"v_mov_b32 {v(R.ONES+i)}, 0x3f803f80")
        for i in range(4): A.e(f"v_mov_b32 {v(R.L+i)}, 0")
        for i in range(128): A.e(f"v_accvgpr_write_b32 {a(R.O+i)}, 0")
        A.e("s_waitcnt lgkmcnt(0)")
        for i in range(8):
            kb, ds = i >> 2, i & 3
            for qb in range(4):
                c = "0" if ds == 0 else R.s(0, qb, kb)
                A.e(f"{MF} {R.s(0,qb,kb)}, {R.f(8+i)}, {R.q(qb,ds)}, {c}")
        A.e("s_nop 7")
        t0, dl = v(R.TMP), v(R.TMP + 2)
        for qb in range(4):
            S = [R.s(0, qb, kb, r) for kb in range(2) for r in range(4)]
            A.e(f"v_max3_f32 {dl}, {S[0]}, {S[1]}, {S[2]}")
            A.e(f"v_max3_f32 {dl}, {dl}, {S[3]}, {S[4]}")
            A.e(f"v_max3_f32 {dl}, {dl}, {S[5]}, {S[6]}")
            A.e(f"v_max_f32 {dl}, {dl}, {S[7]}")
            G.xlane(A, dl, t0, "v_max_f32")
            for r in range(4): A.e(f"v_sub_f32 {R.negm(qb,r)}, 0, {dl}")
            for x in S: A.e(f"v_sub_f32 {x}, {x}, {dl}")
        for e in range(SHIFT):
            A.e(G.exp_text(0, e))
        A.e("s_nop 1")

    def body(G, A, prefix):
        R = G.R
        G.late = []
        periods = G.schedule()
        lists = G.linearise(periods, 0)
        G.late_report = list(G.late)
        G.lists = lists
        rare = {}
        G.stubs = []
        def emit(p, tagp):
            L = lists[p]
            for k, x in enumerate(L):
                if isinstance(x, tuple):
                    tile = x[1]
                    redo = [y for y in L[:k] if isinstance(y, str) and G.is_next_tile(y, tile)]
                    key = (tile & 1, tuple(redo))
                    if key not in rare: rare[key] = (f"{prefix}_rare{len(rare)}", tile, redo)
                    if G.opt.get("nochk"): continue
                    if G.opt.get("farbranch"):
                        A.e(f"s_cbranch_vccnz {prefix}_stub{tagp}")
                        A.label(f"{prefix}_ok{tagp}")
                        G.stubs.append((f"{prefix}_stub{tagp}", rare[key][0], f"{prefix}_ok{tagp}"))
                        continue
                    A.e(f"s_cbranch_vccz {prefix}_ok{tagp}")
                    A.e(f"s_call_b64 {s(R.sRet,2)}, {rare[key][0]}")
                    A.label(f"{prefix}_ok{tagp}")
                else:
                    A.e(x)
        return lists, rare, emit

    def is_next_tile(G, text, tile):
        for e in range(SHIFT):
            if text == G.exp_text(tile + 1, e): return True
        for e in range(0, SHIFT, 2):
            if text == G.cvt_text(tile + 1, e): return True
        return False


    def emit_all(G, A, prefix):
        R = G.R
        lists, rare, emit = G.body(A, prefix)
        G.rare_paths = rare
        txt = lambda p: [x if isinstance(x, str) else ("CHECK",) for x in lists[p]]
        for p in range(1, 49):
            assert txt(p) == txt(p + 8), p
        emit(0, "p0")
        A.e(f"s_mov_b32 {s(R.sLoop)}, 7")
        A.e(".p2align 6")
        A.label(f"{prefix}_loop")
        for p in range(1, 9): emit(p, f"l{p}")
        A.e(f"s_sub_u32 {s(R.sLoop)}, {s(R.sLoop)}, 1")
        A.e(f"s_cmp_lg_u32 {s(R.sLoop)}, 0")
        A.e(f"s_cbranch_scc1 {prefix}_loop")
        for p in range(57, 64): emit(p, f"t{p}")
        pend = list(G.leftover)
        order = {"cvt": 0, "ladd": 1}
        pend.sort(key=lambda x: order[x.tag[0]])
        for x in pend: A.e(x.text)
        A.e("s_waitcnt lgkmcnt(0)")
        A.e("s_nop 1")
        par = (NSUB - 1) & 1
        for n in range(32):
            qb = ORDER[n >> 3]; db = n & 7
            A.e(f"{MF} {R.o(qb,db)}, {R.f(db)}, {R.p(par,qb)}, {R.o(qb,db)}")

    def emit_rare(G, A):
        for st, tgt, back in G.stubs:
            A.label(st)
            A.e(f"s_call_b64 {s(G.R.sRet,2)}, {tgt}")
            A.e(f"s_branch {back}")
        for key, (label, tile, redo) in G.rare_paths.items():
            G.rare(A, tile, redo, label)

    def trace(G):
        out = []
        for L in G.lists:
            for x in L:
                out.append(x if isinstance(x, str) else "s_cbranch_vccz x")
        return out

    def epilogue(G, A, srd, voff, soff_reg):
        R = G.R
        t0 = v(R.TMP)
        for qb in range(4):
            l = v(R.L + qb)
            if qb not in MSUM: G.xlane(A, l, t0, "v_add_f32")
            A.e(f"v_rcp_f32 {l}, {l}")
        A.e("s_nop 7")
        buf = [R.S, R.S + 8, R.S + 16, R.S + 24]
        k = 0
        for qb in range(4):
            for sx in range(4):
                b = R.S + (k % 8) * 8; k += 1
                for h in range(2):
                    for r in range(4):
                        A.e(f"v_accvgpr_read_b32 {v(b+4*h+r)}, {R.o(qb,2*sx+h,r)}")
                for j in range(8):
                    A.e(f"v_mul_f32 {v(b+j)}, {v(b+j)}, {v(R.L+qb)}")
                for j in range(4):
                    A.e(f"v_cvt_pk_bf16_f32 {v(b+j)}, {v(b+2*j)}, {v(b+2*j+1)}")
                A.e(f"s_add_u32 {s(R.sTmp)}, {soff_reg}, {sx*16384}")
                A.e(f"buffer_store_dwordx4 {v(b,4)}, {voff}, {srd}, {s(R.sTmp)} offen offset:{qb*1024}{G.opt.get('stmod','')}")
```

```python
from asmgen import *
from layout import *
from phasea import Lin, MF, f32
import checker

SLOT = 4 * 9216
NSLOT = 4
NB = 8

class ProjGen:
    def __init__(G, opt=None):
        G.opt = opt or {}
        G.dist = G.opt.get('dist', 3)
        G.ACC = 0
        G.B = 8
        G.AF = 136
        G.PK = 140
        G.DV = 208
        G.LA = 217; G.RA = 218
        G.sW, G.sAct, G.sWS = 60, 64, 16
        G.sWoff, G.sBoff, G.sM0, G.sSlotR, G.sSlotW, G.sLoop = 68, 69, 70, 71, 72, 73
        G.sT = 74
    def acc(G, t, rb, r=None):
        b = G.ACC + (t * 4 + rb) * 4
        return a(b, 4) if r is None else a(b + r)
    def bf(G, k, rb): return v(G.B + (k % NB) * 16 + rb * 4, 4)
    def af(G, gi, h=None):
        b = G.AF + (gi % 4) * 4
        return v(b, 4) if h is None else v(b + 2 * h, 2)

    def setup(G, A, wave, part, ct, rt, pwo, pwd, pws):
        A.e(f"s_cmp_lt_u32 {part}, 4")
        A.e(f"s_cselect_b32 {s(G.sW)}, {s(pwo)}, {s(pwd)}"); A.e(f"s_cselect_b32 {s(G.sW+1)}, {s(pwo+1)}, {s(pwd+1)}")
        A.e("s_cselect_b32 s74, 32, 36")
        A.e("s_mov_b32 s75, 144"); A.e("s_cselect_b32 s75, 128, s75")
        A.e(f"s_mov_b32 s76, {H_OFF}"); A.e(f"s_cselect_b32 s76, {O_OFF}, s76")
        A.e(f"s_cselect_b32 {s(G.sLoop)}, 8, 9")
        A.e(f"s_and_b32 s77, {part}, 3")
        A.e("s_mul_i32 s77, s77, s74")
        A.e(f"s_mul_i32 s78, s77, {32*1152}")
        A.e(f"s_add_u32 {s(G.sW)}, {s(G.sW)}, s78"); A.e(f"s_addc_u32 {s(G.sW+1)}, {s(G.sW+1)}, 0")
        A.e(f"s_mul_i32 {s(G.sW+2)}, s74, {32*1152}"); A.e(f"s_mov_b32 {s(G.sW+3)}, 0x20000")
        A.e(f"s_mul_i32 {s(G.sWoff)}, {ct}, 288")
        A.e(f"s_mul_i32 s78, {rt}, s75"); A.e("s_add_u32 s78, s78, s77"); A.e("s_lshl_b32 s78, s78, 14")
        A.e("s_add_u32 s78, s78, s76")
        A.e(f"s_add_u32 {s(G.sAct)}, {s(pws)}, s78"); A.e(f"s_addc_u32 {s(G.sAct+1)}, {s(pws+1)}, 0")
        A.e(f"s_lshl_b32 {s(G.sAct+2)}, s74, 14"); A.e(f"s_mov_b32 {s(G.sAct+3)}, 0x20000")
        A.e(f"s_lshl_b32 {s(G.sBoff)}, {wave}, 12")
        A.e(f"s_mul_i32 s78, {wave}, 576")
        for n in range(9):
            A.e(f"v_add_u32 v4, s78, v2")
            if n: A.e(f"v_add_u32 v4, {64*n}, v4")
            A.e("v_mul_u32_u24 v5, 3641, v4"); A.e("v_lshrrev_b32 v5, 16, v5")
            A.e("v_mul_u32_u24 v6, 18, v5"); A.e("v_sub_u32 v6, v4, v6")
            A.e("v_mul_u32_u24 v5, 1152, v5")
            A.e(f"v_lshl_add_u32 {v(G.DV+n)}, v6, 4, v5")
            if n % 4: A.e(f"v_subrev_u32 {v(G.DV+n)}, {(n%4)*1024}, {v(G.DV+n)}")
        A.e(f"s_mul_i32 {s(G.sM0)}, {wave}, {9*1024}")
        A.e("v_and_b32 v4, 15, v2"); A.e("v_lshrrev_b32 v5, 4, v2")
        A.e("v_lshrrev_b32 v6, 2, v4"); A.e("v_lshl_add_u32 v6, v5, 2, v6")
        A.e("v_mul_u32_u24 v6, 288, v6"); A.e("v_and_b32 v4, 3, v4")
        A.e(f"v_lshl_add_u32 {v(G.LA)}, v4, 3, v6")

    def dma(G):
        ops = []
        for n in range(9):
            pre = [f"s_add_u32 m0, {s(G.sSlotW)}, {(n//4)*4096}"] if n % 4 == 0 else []
            ops.append((pre, f"buffer_load_dwordx4 {v(G.DV+n)}, {s(G.sW,4)}, {s(G.sWoff)} offen offset:{(n%4)*1024} lds"))
        return ops
    def next_w(G):
        return [f"s_add_u32 {s(G.sWoff)}, {s(G.sWoff)}, {128*1152}",
                f"s_add_u32 {s(G.sSlotW)}, {s(G.sSlotW)}, {SLOT}",
                f"s_cmp_ge_u32 {s(G.sSlotW)}, {NSLOT*SLOT}",
                f"s_cselect_b32 s79, {NSLOT*SLOT}, 0",
                f"s_sub_u32 {s(G.sSlotW)}, {s(G.sSlotW)}, s79"]
    def bload(G, k):
        m = G.opt.get("ldmod", "")
        ops = [([], f"buffer_load_dwordx4 {G.bf(k,rb)}, v3, {s(G.sAct,4)}, {s(G.sBoff)} offen offset:{rb*1024}{m}") for rb in range(4)]
        return ops, [f"s_add_u32 {s(G.sBoff)}, {s(G.sBoff)}, 16384"]
    def rd(G, gi):
        k, t = divmod(gi % 36, 9)
        return [f"ds_read_b64_tr_b16 {G.af(gi,h)}, {v(G.RA)} offset:{k*9216 + 16*h*288 + 32*t}" for h in range(2)]

    def prologue(G, L, stamp=None, w_done=False):
        def issue(ops, key):
            for pre, ins in ops:
                for x in pre: L.e(x)
                if pre: L.e("s_nop 0")
                L.vm_op(ins, key)
        if not w_done:
            L.e(f"s_mov_b32 {s(G.sSlotW)}, {s(G.sM0)}")
            issue(G.dma(), ("W", 0))
            for x in G.next_w(): L.e(x)
        ops, adv = G.bload(0); issue(ops, ("B", 0))
        for x in adv: L.e(x)
        for i in range(144): L.e(f"v_accvgpr_write_b32 {a(G.ACC+i)}, 0")
        L.e(f"s_mov_b32 {s(G.sSlotR)}, 0")
        L.e(f"v_mov_b32 {v(G.RA)}, {v(G.LA)}")
        if w_done: L.need_vm(("B", 0))
        else: L.need_vm(("W", 0))
        L.e("s_barrier")
        if stamp: stamp(L, 1)
        for gi in range(G.dist):
            for x in G.rd(gi): L.ds_op(x, ("A", 0, gi))
        q = []
        def addb(k):
            ops, adv = G.bload(k)
            q.extend([(p, i, ("B", k)) for p, i in ops]); q.append((adv, None, None))
        def addw(st):
            q.extend([(p, i, ("W", st)) for p, i in G.dma()]); q.append((G.next_w(), None, None))
        if w_done:
            for k in range(1, 7): addb(k)
        else:
            addb(1); addb(2); addw(1); addb(3); addb(4); addw(2); addb(5); addb(6)
        return q

    def stage(G, L, st, vmq, first=False):
        def addb(k):
            ops, adv = G.bload(k)
            return [(p, i, ("B", k)) for p, i in ops] + [(adv, None, None)]
        wq = [(p, i, ("W", st + 3)) for p, i in G.dma()] + [(G.next_w(), None, None)]
        vmq = vmq + addb(4 * st + NB - 1) + wq
        for gi in range(36):
            k, t = divmod(gi, 9); kg = 4 * st + k
            nx = gi + G.dist
            nkey = ("A", st, nx) if nx < 36 else ("A", st + 1, nx - 36)
            for rb in range(4):
                if rb == 0:
                    L.need_ds(("A", st, gi))
                    if t == 0: L.need_vm(("B", kg))
                L.e(f"{MF} {G.acc(t,rb)}, {G.af(gi)}, {G.bf(kg,rb)}, {G.acc(t,rb)}")
                if rb == 0 and nx == 36:
                    L.need_vm(("W", st + 1))
                    L.e("s_waitcnt lgkmcnt(0)"); L.ds = []
                    if not G.opt.get("nobar"): L.e("s_barrier")
                    L.e(f"s_add_u32 {s(G.sSlotR)}, {s(G.sSlotR)}, {SLOT}")
                    L.e(f"s_cmp_eq_u32 {s(G.sSlotR)}, {NSLOT*SLOT}")
                    L.e(f"s_cselect_b32 {s(G.sSlotR)}, 0, {s(G.sSlotR)}")
                    L.e(f"v_add_u32 {v(G.RA)}, {s(G.sSlotR)}, {v(G.LA)}")
                if not (G.opt.get("nods") and st >= 1):
                    if rb == 1: L.ds_op(G.rd(nx)[0], nkey)
                    if rb == 2: L.ds_op(G.rd(nx)[1], nkey)
                n_vm = (2 if first else 1)
                if rb == 3 or (first and rb == 0 and nx != 36):
                    if rb == 3 and t == 8 and k < 3:
                        vmq = addb(kg + NB) + vmq if not first else vmq + addb(kg + NB)
                    while vmq and vmq[0][1] is None:
                        for x in vmq.pop(0)[0]: L.e(x)
                    if vmq and gi < 35:
                        p, i, key = vmq.pop(0)
                        for x in p: L.e(x)
                        if p: L.e("s_nop 0")
                        skip = (G.opt.get("nob") and key[0] == "B") or (G.opt.get("now") and key[0] == "W")
                        if st < 1 or not skip: L.vm_op(i, key)
                        while vmq and vmq[0][1] is None:
                            for x in vmq.pop(0)[0]: L.e(x)
        assert not vmq, (st, vmq)

    def emit_main(G, A, name, stamp=None, w_done=False, stage_stamp=None):
        L = Lin()
        q = G.prologue(L, stamp, w_done)
        G.stage(L, 0, q, first=True)
        pro = list(L.out)
        bodies = []
        for st in range(1, 9):
            L.out = []; G.stage(L, st, []); bodies.append(list(L.out))
        st0 = 1
        while not (bodies[st0 - 1] == bodies[st0 + 1] and bodies[st0] == bodies[st0 + 2]): st0 += 1
        assert st0 <= 3, "not periodic"
        for st in range(1, st0): pro += bodies[st - 1]
        h0, h1 = bodies[st0 - 1], bodies[st0]
        errs = checker.check(pro + h0 + h1 + h0 + h1, name + "-steady")
        for e in errs[:10]: print(e)
        marks = [len(pro)]
        for x in pro: A.e(x)
        if stage_stamp: stage_stamp()
        A.e(f"s_sub_u32 {s(G.sLoop)}, {s(G.sLoop)}, {st0}")
        A.e(".p2align 6")
        A.label(f"{name}_loop")
        for x in h0: A.e(x)
        A.e(f"s_sub_u32 {s(G.sLoop)}, {s(G.sLoop)}, 1")
        A.e(f"s_cmp_eq_u32 {s(G.sLoop)}, 0")
        A.e(f"s_cbranch_scc1 {name}_exit")
        for x in h1: A.e(x)
        A.e(f"s_sub_u32 {s(G.sLoop)}, {s(G.sLoop)}, 1")
        A.e(f"s_cmp_lg_u32 {s(G.sLoop)}, 0")
        A.e(f"s_cbranch_scc1 {name}_loop")
        A.label(f"{name}_exit")
        print("peeled stages:", st0)
        return len(errs)

    def store_partials(G, A, wave, part, ct, rt):
        m = G.opt.get("stmod", "")
        A.e(f"s_lshl_b32 s78, {rt}, 4"); A.e(f"s_lshl_b32 s79, {wave}, 2"); A.e("s_add_u32 s78, s78, s79")
        A.e("s_lshl_b32 s78, s78, 2"); A.e(f"s_add_u32 s78, s78, {ct}")
        A.e(f"s_mul_i32 s78, s78, {PART_UNIT}"); A.e(f"s_add_u32 s78, s78, {PART_OFF}")
        A.e(f"s_lshl_b32 s79, {part}, 12"); A.e("s_add_u32 s80, s78, s79")
        A.e(f"s_lshl_b32 s79, {part}, 9"); A.e("s_add_u32 s81, s78, s79"); A.e(f"s_add_u32 s81, s81, {8*4096}")
        A.e("v_lshlrev_b32 v4, 3, v2")
        k = 0
        for rb in range(4):
            for pr in range(5):
                b = G.PK + (k % 8) * 8; k += 1
                n = 8 if pr < 4 else 4
                for j in range(n): A.e(f"v_accvgpr_read_b32 {v(b+j)}, {G.acc(2*pr + j//4, rb, j%4)}")
                for j in range(n // 2): A.e(f"v_cvt_pk_bf16_f32 {v(b+j)}, {v(b+2*j)}, {v(b+2*j+1)}")
                if pr < 4:
                    A.e(f"buffer_store_dwordx4 {v(b,4)}, v3, {s(G.sWS,4)}, s80 offen offset:{pr*1024}{m}")
                else:
                    A.e(f"buffer_store_dwordx2 {v(b,2)}, v4, {s(G.sWS,4)}, s81 offen{m}")
            if rb < 3:
                A.e(f"s_add_u32 s80, s80, {4*PART_UNIT}"); A.e(f"s_add_u32 s81, s81, {4*PART_UNIT}")


def gen_k2(name, stamps=False, opt=None):
    G = ProjGen(opt)
    A = Asm()
    A(kernel_head(name))
    A.e("s_cmp_ge_u32 s2, 256")
    A.e(f"s_cbranch_scc0 {name}_go")
    A.e("s_endpgm")
    A.label(f"{name}_go")
    A.e("s_load_dwordx2 s[4:5], s[0:1], 32")
    A.e("s_load_dwordx2 s[6:7], s[0:1], 64")
    A.e("s_load_dwordx2 s[20:21], s[0:1], 88")
    A.e("v_lshrrev_b32 v1, 6, v0")
    A.e("v_and_b32 v2, 63, v0")
    A.e("v_readfirstlane_b32 s12, v1")
    A.e("s_and_b32 s13, s2, 7")
    A.e("s_lshr_b32 s14, s2, 3")
    A.e("s_and_b32 s15, s14, 3")
    A.e("s_lshr_b32 s14, s14, 2")
    A.e("v_lshlrev_b32 v3, 4, v2")
    A.e("s_waitcnt lgkmcnt(0)")
    A.e(f"s_mov_b32 {s(G.sWS)}, s20"); A.e(f"s_mov_b32 {s(G.sWS+1)}, s21"); A.e(f"s_mov_b32 {s(G.sWS+2)}, {WS_RANGE}"); A.e(f"s_mov_b32 {s(G.sWS+3)}, 0x20000")
    G.setup(A, "s12", "s13", "s15", "s14", 4, 6, 20)
    def stamp(L, k):
        if stamps:
            L.e(f"s_memtime s[{88+2*k}:{89+2*k}]")
            if k in (0, 3): L.e(f"s_memrealtime s[{96+2*(k//3)}:{97+2*(k//3)}]")
            L.e("s_waitcnt lgkmcnt(0)"); L.ds = []
    L = Lin(); stamp(L, 0)
    for x in L.out: A.e(x)
    nerr = G.emit_main(A, name, stamp)
    L = Lin(); stamp(L, 2)
    for x in L.out: A.e(x)
    A.e("s_nop 7")
    G.store_partials(A, "s12", "s13", "s15", "s14")
    if stamps:
        A.e("s_waitcnt vmcnt(0)")
        L3 = Lin(); stamp(L3, 3)
        for x in L3.out: A.e(x)
        for k in (3, 2, 1): A.e(f"s_sub_u32 s{88+2*k}, s{88+2*k}, s{88+2*(k-1)}")
        A.e("s_sub_u32 s98, s98, s96")
        A.e("v_mov_b32 v8, s90"); A.e("v_mov_b32 v9, s92"); A.e("v_mov_b32 v10, s94"); A.e("v_mov_b32 v11, s98")
        A.e("s_lshl_b32 s21, s2, 2"); A.e("s_add_u32 s21, s21, s12"); A.e("s_lshl_b32 s21, s21, 4")
        A.e(f"s_add_u32 s21, s21, {STAMP_OFF + (2 << 20)}")
        A.e("v_cmp_eq_u32 vcc, 0, v2")
        A.e("s_and_saveexec_b64 s[42:43], vcc")
        A.e("v_mov_b32 v1, s21")
        A.e(f"buffer_store_dwordx4 v[8:11], v1, {s(G.sWS,4)}, 0 offen")
        A.e("s_mov_b64 exec, s[42:43]")
    A.e("s_endpgm")
    A(kernel_desc(name, 400, 102, 256))
    print(name, "lines", len(A.lines), "hazard errors", nerr)
    return A


def final_math(A, S, D, X, T, sNeg):
    for r in range(4): A.e(f"v_mul_f32 {v(T+r)}, {sNeg}, {v(D+r)}")
    for r in range(4): A.e(f"v_exp_f32 {v(T+r)}, {v(T+r)}")
    A.e("s_nop 0")
    for r in range(4): A.e(f"v_add_f32 {v(T+r)}, 1.0, {v(T+r)}")
    for r in range(4): A.e(f"v_rcp_f32 {v(T+r)}, {v(T+r)}")
    A.e("s_nop 0")
    for r in range(4): A.e(f"v_mul_f32 {v(D+r)}, {v(D+r)}, {v(T+r)}")
    A.e(f"v_lshlrev_b32 {v(T)}, 16, {v(X)}"); A.e(f"v_and_b32 {v(T+1)}, 0xffff0000, {v(X)}")
    A.e(f"v_lshlrev_b32 {v(T+2)}, 16, {v(X+1)}"); A.e(f"v_and_b32 {v(T+3)}, 0xffff0000, {v(X+1)}")
    for r in range(4): A.e(f"v_fma_f32 {v(T+r)}, {v(S+r)}, {v(D+r)}, {v(T+r)}")
    A.e(f"v_cvt_pk_bf16_f32 {v(X)}, {v(T)}, {v(T+1)}"); A.e(f"v_cvt_pk_bf16_f32 {v(X+1)}, {v(T+2)}, {v(T+3)}")


def gen_k3(name):
    A = Asm()
    A(kernel_head(name))
    NU = 128 * 4 * 5
    A.e("v_lshrrev_b32 v1, 6, v0")
    A.e("v_and_b32 v2, 63, v0")
    A.e("v_readfirstlane_b32 s12, v1")
    A.e("s_lshl_b32 s13, s2, 2"); A.e("s_add_u32 s13, s13, s12")
    A.e(f"s_cmp_ge_u32 s13, {NU}")
    A.e(f"s_cbranch_scc0 {name}_go")
    A.e("s_endpgm")
    A.label(f"{name}_go")
    A.e("s_load_dwordx2 s[4:5], s[0:1], 0")
    A.e("s_load_dwordx2 s[6:7], s[0:1], 72")
    A.e("s_load_dwordx2 s[20:21], s[0:1], 88")
    A.e(f"s_mul_hi_u32 s14, s13, {(2**32 + 4)//5}")
    A.e("s_mul_i32 s15, s14, 5"); A.e("s_sub_u32 s15, s13, s15")
    A.e("s_and_b32 s28, s14, 3"); A.e("s_lshr_b32 s29, s14, 2")
    A.e("v_lshlrev_b32 v3, 4, v2"); A.e("v_lshlrev_b32 v5, 3, v2")
    A.e("v_and_b32 v4, 15, v2"); A.e("v_lshrrev_b32 v6, 4, v2")
    A.e("s_lshl_b32 s22, s29, 4"); A.e("v_add_u32 v4, s22, v4")
    A.e("v_mul_u32_u24 v4, 1152, v4")
    A.e("v_lshl_add_u32 v4, v6, 3, v4")
    A.e("s_mul_i32 s22, s28, 288"); A.e("s_lshl_b32 s23, s15, 6"); A.e("s_add_u32 s22, s22, s23"); A.e("v_add_u32 v4, s22, v4")
    A.e("s_waitcnt lgkmcnt(0)")
    A.e("s_mov_b32 s8, s4"); A.e("s_mov_b32 s9, s5"); A.e(f"s_mov_b32 s10, {2048*1152}"); A.e("s_mov_b32 s11, 0x20000")
    A.e("s_mov_b32 s24, s6"); A.e("s_mov_b32 s25, s7"); A.e(f"s_mov_b32 s26, {2048*1152}"); A.e("s_mov_b32 s27, 0x20000")
    A.e("s_mov_b32 s16, s20"); A.e("s_mov_b32 s17, s21"); A.e(f"s_mov_b32 s18, {WS_RANGE}"); A.e("s_mov_b32 s19, 0x20000")
    A.e(f"s_mul_i32 s22, s14, {PART_UNIT}"); A.e(f"s_add_u32 s22, s22, {PART_OFF}")
    A.e(f"s_mov_b32 s23, {hex(f32(-1.4426950408889634))}")
    A.e("s_cmp_eq_u32 s15, 4")
    A.e(f"s_cbranch_scc1 {name}_single")
    def unpack_sum(dst, srcs, nreg):
        for j in range(nreg):
            for h in range(2):
                d = v(dst + 2 * j + h)
                for n, sr in enumerate(srcs):
                    t = d if n == 0 else "v60"
                    if h == 0: A.e(f"v_lshlrev_b32 {t}, 16, {v(sr+j)}")
                    else: A.e(f"v_and_b32 {t}, 0xffff0000, {v(sr+j)}")
                    if n: A.e(f"v_add_f32 {d}, {d}, v60")
    A.e("s_lshl_b32 s30, s15, 10"); A.e("s_add_u32 s22, s22, s30")
    for p in range(8):
        A.e(f"buffer_load_dwordx4 {v(8+4*p,4)}, v3, s[16:19], s22 offen")
        if p < 7: A.e("s_add_u32 s22, s22, 4096")
    A.e("buffer_load_dwordx2 v[40:41], v4, s[8:11], 0 offen")
    A.e("buffer_load_dwordx2 v[42:43], v4, s[8:11], 0 offen offset:32")
    A.e("s_waitcnt vmcnt(6)")
    unpack_sum(44, [8, 12, 16, 20], 4)
    A.e("s_waitcnt vmcnt(2)")
    unpack_sum(52, [24, 28, 32, 36], 4)
    A.e("s_waitcnt vmcnt(0)")
    final_math(A, 44, 52, 40, 8, "s23")
    final_math(A, 48, 56, 42, 12, "s23")
    A.e("buffer_store_dwordx2 v[40:41], v4, s[24:27], 0 offen")
    A.e("buffer_store_dwordx2 v[42:43], v4, s[24:27], 0 offen offset:32")
    A.e("s_endpgm")
    A.label(f"{name}_single")
    A.e(f"s_add_u32 s22, s22, {8*4096}")
    for p in range(8):
        A.e(f"buffer_load_dwordx2 {v(8+2*p,2)}, v5, s[16:19], s22 offen offset:{p*512}")
    A.e("buffer_load_dwordx2 v[40:41], v4, s[8:11], 0 offen")
    A.e("s_waitcnt vmcnt(0)")
    unpack_sum(44, [8, 10, 12, 14], 2)
    unpack_sum(52, [16, 18, 20, 22], 2)
    final_math(A, 44, 52, 40, 8, "s23")
    A.e("buffer_store_dwordx2 v[40:41], v4, s[24:27], 0 offen")
    A.e("s_endpgm")
    A(kernel_desc(name, 64, 32, 64))
    print(name, "lines", len(A.lines))
    return A
```

```python
from asmgen import *
from layout import *
import attn, phasea, k2, checker
from phasea import Lin, f32

SPIN_LIMIT = 200000

def gen_mega(name, opt=None, stamps=False):
    opt = opt or {}
    SC = " sc1"
    RA = phasea.RegsA(); PA = phasea.PhaseA(RA); PA.stmod = opt.get('hst', SC); PA.dist = opt.get('distA', 3); PA.ldmod = opt.get('wld', '')
    R = attn.Regs(vbase=8)
    G = attn.AttnEmit(R, dict(farbranch=1, brdelay=2, barpos=1, stmod=SC, kvmod=opt.get('kvld', ''), **opt.get("attn", {})))
    P = k2.ProjGen(dict(ldmod=SC, stmod=SC, dist=opt.get('distC', 3), **opt.get("proj", {})))
    assert RA.vend <= R.KDMA and R.vend <= P.DV
    A = Asm()
    A(kernel_head(name))
    sX, sOut, sWo, sDbg, sWd = 26, 28, 30, 32, 96
    sPart, sI, sCt, sHF, sOF, sPF, sPoll = 53, 54, 55, 56, 57, 58, 59
    ONE, ZERO, DBGV, PFV = 254, 255, 246, 240
    nst = [0]
    def stamp(dst=None):
        if not stamps: return
        o = dst or A
        o.e("s_memtime s[88:89]"); o.e("s_waitcnt lgkmcnt(0)")
        if isinstance(o, Lin): o.ds = []
        o.e("s_sub_u32 s88, s88, s90")
        o.e(f"v_writelane_b32 v253, s88, {nst[0]}"); nst[0] += 1

    A.e("s_cmp_ge_u32 s2, 256")
    A.e(f"s_cbranch_scc0 {name}_go")
    A.e("s_endpgm")
    A.label(f"{name}_go")
    A.e("s_load_dwordx4 s[4:7], s[0:1], 8")
    A.e("s_load_dwordx2 s[8:9], s[0:1], 24")
    A.e("s_load_dwordx4 s[20:23], s[0:1], 48")
    A.e("s_load_dwordx2 s[10:11], s[0:1], 88")
    A.e(f"s_load_dwordx2 {s(sX,2)}, s[0:1], 0")
    A.e(f"s_load_dwordx2 {s(sOut,2)}, s[0:1], 72")
    A.e(f"s_load_dwordx2 {s(sWo,2)}, s[0:1], 32")
    A.e(f"s_load_dwordx2 {s(sWd,2)}, s[0:1], 64")
    A.e(f"s_load_dwordx2 {s(sDbg,2)}, s[0:1], 80")
    if stamps:
        A.e("s_memtime s[90:91]"); A.e("s_memrealtime s[92:93]")
    A.e("v_lshrrev_b32 v1, 6, v0")
    A.e("v_and_b32 v2, 63, v0")
    A.e("v_readfirstlane_b32 s12, v1")
    A.e(f"s_and_b32 {s(sPart)}, s2, 7")
    A.e(f"s_lshr_b32 {s(sI)}, s2, 3")
    A.e(f"s_and_b32 {s(sCt)}, {s(sI)}, 3")
    A.e(f"s_lshl_b32 s13, {s(sPart)}, 2")
    A.e(f"s_add_u32 s13, s13, {s(sCt)}")
    A.e(f"s_lshr_b32 s14, {s(sI)}, 2")
    A.e("s_lshr_b32 s15, s13, 1")
    A.e("s_lshl_b32 s15, s15, 19")
    A.e("v_lshlrev_b32 v3, 4, v2")
    A.e(f"v_mov_b32 v{ONE}, 1"); A.e(f"v_mov_b32 v{ZERO}, 0")
    A.e("s_waitcnt lgkmcnt(0)")
    A.e(f"s_add_u32 {s(R.sK)}, s4, s15"); A.e(f"s_addc_u32 {s(R.sK+1)}, s5, 0")
    A.e(f"s_mov_b32 {s(R.sK+2)}, 524288"); A.e(f"s_mov_b32 {s(R.sK+3)}, 0x20000")
    A.e(f"s_add_u32 {s(R.sV)}, s6, s15"); A.e(f"s_addc_u32 {s(R.sV+1)}, s7, 0")
    A.e(f"s_mov_b32 {s(R.sV+2)}, 524288"); A.e(f"s_mov_b32 {s(R.sV+3)}, 0x20000")
    A.e("s_mov_b32 s16, s10"); A.e("s_mov_b32 s17, s11"); A.e(f"s_mov_b32 s18, {WS_RANGE}"); A.e("s_mov_b32 s19, 0x20000")
    A.e(f"s_mov_b32 {s(sDbg+2)}, 256"); A.e(f"s_mov_b32 {s(sDbg+3)}, 0x20000")
    A.e("s_lshl_b32 s24, s14, 2"); A.e("s_lshr_b32 s25, s13, 3"); A.e("s_add_u32 s24, s24, s25"); A.e("s_lshl_b32 s24, s24, 7")
    A.e("s_and_b32 s25, s13, 7"); A.e("s_lshl_b32 s25, s25, 2"); A.e("s_add_u32 s24, s24, s25")
    A.e(f"s_add_u32 {s(sHF)}, s24, {FLAG_OFF}"); A.e(f"s_add_u32 {s(sOF)}, s24, {FLAG_OFF + 4096}")
    A.e(f"s_lshl_b32 s24, {s(sI)}, 7"); A.e(f"s_lshl_b32 s25, {s(sPart)}, 2"); A.e("s_add_u32 s24, s24, s25")
    A.e(f"s_add_u32 {s(sPF)}, s24, {FLAG_OFF + 8192}")
    A.e(f"s_and_b32 s24, {s(sPart)}, 3"); A.e("s_lshl_b32 s25, s14, 2"); A.e("s_add_u32 s24, s24, s25"); A.e("s_lshl_b32 s24, s24, 7")
    A.e(f"s_cmp_lt_u32 {s(sPart)}, 4"); A.e(f"s_cselect_b32 s25, 4096, 0"); A.e("s_add_u32 s24, s24, s25")
    A.e(f"s_add_u32 {s(sPoll)}, s24, {FLAG_OFF}")
    for f in (sHF, sOF, sPF):
        A.e(f"buffer_store_dword v{ZERO}, off, s[16:19], {s(f)}{SC}")
    ptr = {"wq": 8, "Wg": 20, "Wu": 22}
    PA.setup(A, "v2", "s12", "s13", "s14", lambda n: ptr[n])
    G.setup_dma(A, "v2", "s12", 4)
    A.e("s_lshl_b32 s24, s14, 7"); A.e("s_lshl_b32 s25, s13, 2"); A.e("s_add_u32 s24, s24, s25")
    A.e("s_lshl_b32 s24, s24, 14"); A.e("s_lshl_b32 s25, s12, 12"); A.e("s_add_u32 s24, s24, s25")
    A.e(f"s_add_u32 s24, s24, {O_OFF}")

    stamp()
    L = Lin()
    def after_first_barrier(L_):
        L_.e("s_cmp_eq_u32 s12, 0"); L_.e(f"s_cbranch_scc0 {name}_noann")
        L_.e("s_mov_b64 exec, 1")
        L_.e(f"buffer_atomic_add v{ONE}, off, {s(sDbg,4)}, 0")
        L_.e("s_mov_b64 exec, -1")
        L_.e(f"{name}_noann:")
    PA.main(L, "v3", G.initial_dma_ops(), (lambda L_: stamp(L_)) if opt.get('afine') else None, after_first_barrier)
    for x in L.out:
        if x.endswith(":"): A.label(x[:-1])
        else: A.e(x)
    stamp()
    A.e(f"buffer_load_dword v{DBGV}, off, {s(sDbg,4)}, 0{SC}")
    A.e("s_nop 7")
    PA.epilogue_h(A, "v2", RA.A)
    PA.epilogue_q(A, lambda qb, ds: R.Q + (qb * 4 + ds) * 4, RA.A)
    stamp()
    G.setup_reads(A, "v2")
    G.init_offsets(A)
    P.setup(A, "s12", s(sPart), s(sCt), "s14", sWo, sWd, 10)
    A.e(f"s_mov_b32 {s(P.sSlotW)}, {s(P.sM0)}")
    A.e(f"s_mul_i32 s85, s74, {32*1152//128}")
    A.e(f"s_lshl_b32 s86, {s(sI)}, 2"); A.e("s_add_u32 s86, s86, s12"); A.e("s_mul_i32 s84, s86, s85")
    NH = 20
    G.vm_init = [("H", 0)] * (NH - 2) + [("KV", -1)] + [("H", 0)] * (0 if opt.get("nopf") else 1)
    A.e(f"s_waitcnt vmcnt({NH})")
    A.e(f"v_readfirstlane_b32 s25, v{DBGV}")
    A.e("s_cmp_ge_u32 s25, 256"); A.e(f"s_cbranch_scc1 {name}_reset_ok")
    A.e("s_mov_b32 s15, 0")
    A.label(f"{name}_reset_spin")
    A.e("s_sleep 4")
    A.e(f"buffer_load_dword v{DBGV}, off, {s(sDbg,4)}, 0{SC}")
    A.e("s_waitcnt vmcnt(0)")
    A.e(f"v_readfirstlane_b32 s25, v{DBGV}")
    A.e("s_add_u32 s15, s15, 1")
    A.e(f"s_cmp_ge_u32 s15, {SPIN_LIMIT}"); A.e(f"s_cbranch_scc1 {name}_reset_ok")
    A.e("s_cmp_ge_u32 s25, 256"); A.e(f"s_cbranch_scc0 {name}_reset_spin")
    A.label(f"{name}_reset_ok")
    G.prologue(A, NH)
    stamp()
    flag_h = f"buffer_store_dword v{ONE}, off, s[16:19], {s(sHF)}{SC}"
    pf = lambda: ([], f"buffer_load_dwordx4 {v(PFV,4)}, v3, {s(P.sW,4)}, s84 offen{opt.get('pfld','')}", ("PF", 0), ["s_add_u32 s84, s84, 1024"])
    G.after_bar = {p: {3: [flag_h]} for p in range(4, 57, 8)}
    if not opt.get("nopf"):
        for p in range(1, 57):
            if p % 4 == 3: G.extra_vm[p] = [pf()]
    w0 = [(pre, ins, ("W", 0), []) for pre, ins in P.dma()]
    w0[-1] = (w0[-1][0], w0[-1][1], w0[-1][2], P.next_w())
    G.extra_vm[63] = w0
    G.extra_bar = {63}
    attn.CFG["dma"] = attn.CFG["dma"][:4]
    G.emit_all(A, name)
    stamp()
    A.e("s_barrier")
    for st in (1, 2):
        for pre, ins in P.dma():
            for x in pre: A.e(x)
            if pre: A.e("s_nop 0")
            A.e(ins)
        for x in P.next_w(): A.e(x)
    G.epilogue(A, "s[16:19]", "v3", "s24")
    stamp()
    def poll(base, lab):
        A.e(f"v_min_u32 v4, 7, v2"); A.e("v_lshlrev_b32 v4, 2, v4")
        A.e("s_mov_b32 s15, 0")
        A.label(f"{name}_{lab}")
        A.e(f"buffer_load_dword v5, v4, s[16:19], {base} offen{SC}")
        A.e("s_waitcnt vmcnt(0)")
        A.e("v_cmp_ne_u32 vcc, 1, v5")
        A.e(f"s_cbranch_vccz {name}_{lab}_ok")
        A.e("s_add_u32 s15, s15, 1")
        A.e(f"s_cmp_ge_u32 s15, {SPIN_LIMIT}"); A.e(f"s_cbranch_scc1 {name}_{lab}_ok")
        A.e("s_sleep 2")
        A.e(f"s_branch {name}_{lab}")
        A.label(f"{name}_{lab}_ok")
    A.e("s_waitcnt vmcnt(0)")
    A.e("s_barrier")
    A.e(f"buffer_store_dword v{ONE}, off, s[16:19], {s(sOF)}{SC}")
    poll(s(sPoll), "pollc")
    stamp()
    nerr = P.emit_main(A, name + "_c", None, True, stamp if opt.get('cstamp') else None)
    stamp()
    A.e("s_waitcnt vmcnt(16) lgkmcnt(0)")
    A.e("s_nop 7")
    P.store_partials(A, "s12", s(sPart), s(sCt), "s14")
    A.e(f"s_lshl_b32 s78, s14, 4"); A.e(f"s_lshl_b32 s79, {s(sPart)}, 1"); A.e("s_add_u32 s78, s78, s79")
    A.e("s_lshr_b32 s79, s12, 1"); A.e("s_add_u32 s80, s78, s79")
    A.e("s_and_b32 s79, s12, 1"); A.e("s_add_u32 s81, s78, s79")
    A.e("s_lshl_b32 s82, s79, 1")
    A.e("v_and_b32 v4, 15, v2"); A.e("v_lshrrev_b32 v5, 4, v2")
    A.e("v_mul_u32_u24 v4, 1152, v4"); A.e("v_lshl_add_u32 v4, v5, 3, v4")
    A.e(f"s_mul_i32 s74, {s(sCt)}, 288")
    A.e(f"s_mul_i32 s75, s80, {16*1152}"); A.e("s_add_u32 s75, s75, s74"); A.e("s_lshl_b32 s76, s82, 6"); A.e("s_add_u32 s75, s75, s76")
    A.e(f"s_mul_i32 s76, s81, {16*1152}"); A.e("s_add_u32 s76, s76, s74"); A.e("s_add_u32 s76, s76, 256")
    A.e(f"s_mov_b32 s60, {s(sX)}"); A.e(f"s_mov_b32 s61, {s(sX+1)}"); A.e(f"s_mov_b32 s62, {2048*1152}"); A.e("s_mov_b32 s63, 0x20000")
    A.e(f"s_mov_b32 s64, {s(sOut)}"); A.e(f"s_mov_b32 s65, {s(sOut+1)}"); A.e(f"s_mov_b32 s66, {2048*1152}"); A.e("s_mov_b32 s67, 0x20000")
    XR = 220
    for k in range(4): A.e(f"buffer_load_dwordx2 {v(XR+2*k,2)}, v4, s[60:63], s75 offen offset:{32*k}")
    A.e(f"buffer_load_dwordx2 {v(XR+8,2)}, v4, s[60:63], s76 offen")
    A.e("s_waitcnt vmcnt(0)")
    A.e("s_barrier")
    A.e(f"buffer_store_dword v{ONE}, off, s[16:19], {s(sPF)}{SC}")
    A.e(f"s_lshl_b32 s77, {s(sI)}, 7"); A.e(f"s_add_u32 s77, s77, {FLAG_OFF + 8192}")
    A.e("v_mov_b32 v6, v4")
    poll("s77", "polld")
    stamp()
    A.e(f"s_lshl_b32 s78, s80, 2"); A.e(f"s_add_u32 s78, s78, {s(sCt)}"); A.e(f"s_mul_i32 s78, s78, {PART_UNIT}")
    A.e(f"s_add_u32 s78, s78, {PART_OFF}"); A.e("s_lshl_b32 s79, s82, 10"); A.e("s_add_u32 s78, s78, s79")
    A.e(f"s_lshl_b32 s79, s81, 2"); A.e(f"s_add_u32 s79, s79, {s(sCt)}"); A.e(f"s_mul_i32 s79, s79, {PART_UNIT}")
    A.e(f"s_add_u32 s79, s79, {PART_OFF + 8*4096}")
    A.e("v_lshlrev_b32 v7, 3, v2")
    for p in range(8):
        A.e(f"buffer_load_dwordx4 {v(8+4*p,4)}, v3, s[16:19], s78 offen{SC}")
        A.e(f"buffer_load_dwordx4 {v(40+4*p,4)}, v3, s[16:19], s78 offen offset:1024{SC}")
        if p < 7: A.e("s_add_u32 s78, s78, 4096")
    for p in range(8):
        A.e(f"buffer_load_dwordx2 {v(72+2*p,2)}, v7, s[16:19], s79 offen offset:{p*512}{SC}")
    A.e(f"s_mov_b32 s23, {hex(f32(-1.4426950408889634))}")
    def unpack_sum(dst, srcs, nreg, t):
        for j in range(nreg):
            for h in range(2):
                d = v(dst + 2 * j + h)
                for n, sr in enumerate(srcs):
                    tt = d if n == 0 else t
                    if h == 0: A.e(f"v_lshlrev_b32 {tt}, 16, {v(sr+j)}")
                    else: A.e(f"v_and_b32 {tt}, 0xffff0000, {v(sr+j)}")
                    if n: A.e(f"v_add_f32 {d}, {d}, {t}")
    S0, D0, T0 = 100, 120, 140
    A.e("s_waitcnt vmcnt(8)")
    for q in range(2):
        b = 8 + 32 * q
        unpack_sum(S0 + 8 * q, [b, b + 4, b + 8, b + 12], 4, "v160")
        unpack_sum(D0 + 8 * q, [b + 16, b + 20, b + 24, b + 28], 4, "v160")
    for q in range(4):
        k2.final_math(A, S0 + 4 * q, D0 + 4 * q, XR + 2 * q, T0, "s23")
        A.e(f"buffer_store_dwordx2 {v(XR+2*q,2)}, v6, s[64:67], s75 offen offset:{32*q}")
    A.e("s_waitcnt vmcnt(4)")
    unpack_sum(S0 + 16, [72, 74, 76, 78], 2, "v160")
    unpack_sum(D0 + 16, [80, 82, 84, 86], 2, "v160")
    k2.final_math(A, S0 + 16, D0 + 16, XR + 8, T0, "s23")
    A.e(f"buffer_store_dwordx2 {v(XR+8,2)}, v6, s[64:67], s76 offen")
    if stamps:
        A.e("s_waitcnt vmcnt(0)")
        stamp()
        A.e("s_memrealtime s[94:95]"); A.e("s_waitcnt lgkmcnt(0)")
        A.e("s_sub_u32 s94, s94, s92")
        A.e(f"v_writelane_b32 v253, s94, 30"); A.e("v_writelane_b32 v253, s92, 31")
        A.e("s_lshl_b32 s21, s2, 2"); A.e("s_add_u32 s21, s21, s12"); A.e("s_lshl_b32 s21, s21, 8")
        A.e(f"s_add_u32 s21, s21, {STAMP_OFF}")
        A.e("v_lshlrev_b32 v1, 2, v2")
        A.e("buffer_store_dword v253, v1, s[16:19], s21 offen")
    A.e("s_endpgm")
    G.emit_rare(A)
    A(kernel_desc(name, 512, 102, 256))
    errs = checker.check([l for l in A.lines if not l.startswith(";")], name)
    for e in errs[:10]: print(e)
    print(name, "lines", len(A.lines), "hazard errors", len(errs), nerr)
    return A
```

```python
from asmgen import *
from layout import *
import struct
def f32(x): return struct.unpack("<I", struct.pack("<f", x))[0]

MF = "v_mfma_f32_16x16x32_bf16"
STAGE = 53248
BLK_U = 18432
BLK_Q = 36864
NKS = 18

class RegsA:
    def __init__(R):
        R.QA = 0
        R.GA = 128
        n = 8
        R.U = n; n += 144
        R.GV = n; n += 16
        R.B = n; n += 48
        R.A = n; n += 16
        R.DG = n; n += 4
        R.DX = n; n += 1
        R.DQ = n; n += 4
        R.LG = n; n += 1; R.GA_ADDR = n; n += 1
        R.LQ = n; n += 1; R.QA_ADDR = n; n += 1
        R.QT = n; n += 2
        R.vend = n
        R.sG = 60; R.sU = 64; R.sX = 68; R.sQ = 72
        R.sWS = 16
        R.sM0G = 76; R.sM0X = 77; R.sM0Q = 78
        R.sXoff = 79
        R.sT = 80; R.sT2 = 81; R.sHoff = 82; R.sH8 = 83
    def g(R, t, rb, r=None):
        if t < 8:
            b = R.GA + (t * 4 + rb) * 4
            return a(b, 4) if r is None else a(b + r)
        b = R.GV + rb * 4
        return v(b, 4) if r is None else v(b + r)
    def u(R, t, rb, r=None):
        b = R.U + (t * 4 + rb) * 4
        return v(b, 4) if r is None else v(b + r)
    def qa(R, dt, rb, r=None):
        b = R.QA + (dt * 4 + rb) * 4
        return a(b, 4) if r is None else a(b + r)
    def b(R, ks, rb): return v(R.B + (ks % 3) * 16 + rb * 4, 4)
    def af(R, gi, h=None):
        b = R.A + (gi % 4) * 4
        return v(b, 4) if h is None else v(b + 2 * h, 2)

TILES = [x for t in range(9) for x in (("G", t), ("U", t))] + [("Q", dt) for dt in range(8)]
NT = len(TILES)

class Lin:
    def __init__(L):
        L.out = []; L.ds = []; L.vm = []
    def e(L, t): L.out.append(t)
    def ds_op(L, t, key): L.out.append(t); L.ds.append(key)
    def vm_op(L, t, key): L.out.append(t); L.vm.append(key)
    def need_ds(L, key):
        if key in L.ds:
            last = max(i for i, x in enumerate(L.ds) if x == key)
            cnt = len(L.ds) - 1 - last
            assert cnt <= 15
            L.out.append(f"s_waitcnt lgkmcnt({cnt})")
            L.ds = L.ds[last + 1:]
    def need_vm(L, key):
        if key in L.vm:
            last = max(i for i, x in enumerate(L.vm) if x == key)
            cnt = len(L.vm) - 1 - last
            assert cnt <= 63, cnt
            L.out.append(f"s_waitcnt vmcnt({cnt})")
            L.vm = L.vm[last + 1:]

class PhaseA:
    def __init__(G, R, vm_period=2):
        G.R = R; G.vm_period = vm_period; G.stmod = ''; G.dist = 3; G.ldmod = ''

    def setup(G, A, lane, wave, head, rt, ptr):
        R = G.R
        t = [v(R.B + i) for i in range(12)]
        for srd, nm, size in ((R.sG, "Wg", 576 * 9216), (R.sU, "Wu", 576 * 9216), (R.sQ, "wq", 576 * 8192)):
            p = ptr(nm)
            A.e(f"s_mov_b32 {s(srd)}, {s(p)}"); A.e(f"s_mov_b32 {s(srd+1)}, {s(p+1)}")
            A.e(f"s_mov_b32 {s(srd+2)}, {size}"); A.e(f"s_mov_b32 {s(srd+3)}, 0x20000")
        A.e(f"s_cmp_lt_u32 {wave}, 2")
        A.e(f"s_cselect_b32 {s(R.sX)}, {s(R.sG)}, {s(R.sU)}")
        A.e(f"s_cselect_b32 {s(R.sX+1)}, {s(R.sG+1)}, {s(R.sU+1)}")
        A.e(f"s_mov_b32 {s(R.sX+2)}, {576*9216}"); A.e(f"s_mov_b32 {s(R.sX+3)}, 0x20000")
        A.e(f"s_lshl_b32 {s(R.sM0G)}, {wave}, 12")
        A.e(f"s_and_b32 {s(R.sT)}, {wave}, 1"); A.e(f"s_add_u32 {s(R.sT)}, {s(R.sT)}, 16"); A.e(f"s_lshl_b32 {s(R.sM0X)}, {s(R.sT)}, 10")
        A.e(f"s_cmp_lt_u32 {wave}, 2")
        A.e(f"s_cselect_b32 {s(R.sT2)}, 0, {BLK_U}")
        A.e(f"s_add_u32 {s(R.sM0X)}, {s(R.sM0X)}, {s(R.sT2)}")
        A.e(f"s_lshl_b32 {s(R.sM0Q)}, {wave}, 12"); A.e(f"s_add_u32 {s(R.sM0Q)}, {s(R.sM0Q)}, {BLK_Q}")
        A.e(f"s_mul_i32 {s(R.sT2)}, {head}, 288")
        A.e(f"s_and_b32 s87, {head}, 1"); A.e("s_lshl_b32 s87, s87, 1")
        def gu(dst, idx_s, idx_c, comp):
            A.e(f"s_lshl_b32 s84, {idx_s}, 6")
            A.e(f"v_add_u32 {t[0]}, s84, {lane}")
            if idx_c: A.e(f"v_add_u32 {t[0]}, {64*idx_c}, {t[0]}")
            A.e(f"v_mul_u32_u24 {t[1]}, 3641, {t[0]}")
            A.e(f"v_lshrrev_b32 {t[1]}, 16, {t[1]}")
            A.e(f"v_mul_u32_u24 {t[2]}, 18, {t[1]}")
            A.e(f"v_sub_u32 {t[2]}, {t[0]}, {t[2]}")
            A.e(f"v_add_u32 {t[2]}, s87, {t[2]}")
            A.e(f"v_subrev_u32 {t[5]}, 18, {t[2]}")
            A.e(f"v_min_u32 {t[2]}, {t[2]}, {t[5]}")
            A.e(f"v_mul_u32_u24 {t[1]}, 9216, {t[1]}")
            A.e(f"v_lshl_add_u32 {t[1]}, {t[2]}, 4, {t[1]}")
            A.e(f"v_add_u32 {dst}, {s(R.sT2)}, {t[1]}")
            if comp: A.e(f"v_subrev_u32 {dst}, {comp}, {dst}")
        A.e(f"s_lshl_b32 s85, {wave}, 2")
        for n in range(4): gu(v(R.DG + n), "s85", n, n * 1024)
        gu(v(R.DX), s(R.sT), 0, 0)
        m, g = t[3], t[4]
        A.e(f"v_and_b32 {m}, 15, {lane}"); A.e(f"v_lshrrev_b32 {g}, 4, {lane}")
        A.e(f"s_lshl_b32 s84, {wave}, 4")
        A.e(f"s_lshl_b32 s85, {head}, 8")
        for n in range(4):
            A.e(f"v_add_u32 {t[0]}, {4*n}, {g}")
            A.e(f"v_and_b32 {t[1]}, 7, {t[0]}")
            A.e(f"v_lshlrev_b32 {t[1]}, 1, {t[1]}")
            A.e(f"v_xor_b32 {t[1]}, {t[1]}, {m}")
            A.e(f"v_add_u32 {t[0]}, s84, {t[0]}")
            A.e(f"v_lshlrev_b32 {t[0]}, 13, {t[0]}")
            A.e(f"v_lshl_add_u32 {t[0]}, {t[1]}, 4, {t[0]}")
            A.e(f"v_add_u32 {v(R.DQ+n)}, s85, {t[0]}")
            if n: A.e(f"v_subrev_u32 {v(R.DQ+n)}, {n*1024}, {v(R.DQ+n)}")
        A.e(f"v_lshrrev_b32 {t[0]}, 2, {m}")
        A.e(f"v_lshl_add_u32 {t[0]}, {g}, 2, {t[0]}")
        A.e(f"v_mul_u32_u24 {t[1]}, 288, {t[0]}")
        A.e(f"v_and_b32 {t[2]}, 3, {m}")
        A.e(f"v_lshl_add_u32 {v(R.LG)}, {t[2]}, 3, {t[1]}")
        A.e(f"v_lshlrev_b32 {t[1]}, 8, {t[0]}")
        A.e(f"v_and_b32 {t[2]}, 7, {t[0]}")
        A.e(f"v_lshl_add_u32 {t[1]}, {t[2]}, 5, {t[1]}")
        A.e(f"v_bfe_u32 {t[2]}, {m}, 1, 1")
        A.e(f"v_lshl_add_u32 {t[1]}, {t[2]}, 4, {t[1]}")
        A.e(f"v_and_b32 {t[2]}, 1, {m}")
        A.e(f"v_lshl_add_u32 {t[1]}, {t[2]}, 3, {t[1]}")
        A.e(f"v_add_u32 {v(R.LQ)}, {BLK_Q}, {t[1]}")
        A.e(f"s_lshl_b32 {s(R.sXoff)}, {rt}, 2"); A.e(f"s_add_u32 {s(R.sXoff)}, {s(R.sXoff)}, {wave}")
        A.e(f"s_mul_i32 {s(R.sXoff)}, {s(R.sXoff)}, {18*4096}")
        if XN_OFF: A.e(f"s_add_u32 {s(R.sXoff)}, {s(R.sXoff)}, {XN_OFF}")
        A.e(f"s_mul_i32 s84, {rt}, 144")
        A.e(f"s_lshr_b32 s85, {head}, 1"); A.e("s_mul_i32 s85, s85, 9"); A.e("s_add_u32 s84, s84, s85")
        A.e("s_lshl_b32 s84, s84, 14")
        A.e(f"s_lshl_b32 s85, {wave}, 12"); A.e("s_add_u32 s84, s84, s85")
        A.e(f"s_add_u32 s84, s84, {H_OFF}")
        A.e(f"s_and_b32 s85, {head}, 1")
        A.e(f"s_mul_i32 {s(R.sT)}, s85, {5*16384}"); A.e(f"s_add_u32 {s(R.sHoff)}, s84, {s(R.sT)}")
        A.e(f"s_lshl_b32 {s(R.sT)}, s85, 3"); A.e(f"s_add_u32 {s(R.sH8)}, s84, {s(R.sT)}"); A.e(f"s_add_u32 {s(R.sH8)}, {s(R.sH8)}, {4*16384}")

    def dma_ops(G, st):
        R = G.R; slot = (st % 3) * STAGE
        so_g = st * 64 * 9216; so_q = st * 64 * 8192
        ops = []
        for n in range(4):
            pre = [f"s_add_u32 m0, {s(R.sM0G)}, {slot}", f"s_mov_b32 {s(R.sT)}, {so_g}"] if n == 0 else []
            ops.append((pre, f"buffer_load_dwordx4 {v(R.DG+n)}, {s(R.sG,4)}, {s(R.sT)} offen offset:{n*1024}{G.ldmod} lds"))
        for n in range(4):
            pre = [f"s_add_u32 m0, {s(R.sM0G)}, {slot + BLK_U}"] if n == 0 else []
            ops.append((pre, f"buffer_load_dwordx4 {v(R.DG+n)}, {s(R.sU,4)}, {s(R.sT)} offen offset:{n*1024}{G.ldmod} lds"))
        ops.append(([f"s_add_u32 m0, {s(R.sM0X)}, {slot}"], f"buffer_load_dwordx4 {v(R.DX)}, {s(R.sX,4)}, {s(R.sT)} offen{G.ldmod} lds"))
        for n in range(4):
            pre = [f"s_add_u32 m0, {s(R.sM0Q)}, {slot}", f"s_mov_b32 {s(R.sT2)}, {so_q}"] if n == 0 else []
            ops.append((pre, f"buffer_load_dwordx4 {v(R.DQ+n)}, {s(R.sQ,4)}, {s(R.sT2)} offen offset:{n*1024}{G.ldmod} lds"))
        return ops

    def x_ops(G, ks, lane16):
        R = G.R
        return [([f"s_add_u32 s86, {s(R.sXoff)}, {ks*4096}"] if rb == 0 else [],
                 f"buffer_load_dwordx4 {R.b(ks,rb)}, {lane16}, {s(R.sWS,4)}, s86 offen offset:{rb*1024}") for rb in range(4)]

    def read_ops(G, gi):
        R = G.R; ks, n = divmod(gi, NT); st, kk = divmod(ks, 2)
        kind, t = TILES[n]; pre = []
        if n == 0 and kk == 0:
            pre.append(f"v_add_u32 {v(R.GA_ADDR)}, {(st%3)*STAGE}, {v(R.LG)}")
            pre.append(f"v_add_u32 {v(R.QA_ADDR)}, {(st%3)*STAGE}, {v(R.LQ)}")
        if kind == "Q":
            tmp = v(R.QT + (t & 1))
            pre.append(f"v_xor_b32 {tmp}, {t*32}, {v(R.QA_ADDR)}")
            rd = [f"ds_read_b64_tr_b16 {R.af(gi,h)}, {tmp} offset:{kk*8192 + h*4096}" for h in range(2)]
        else:
            blk = 0 if kind == "G" else BLK_U
            rd = [f"ds_read_b64_tr_b16 {R.af(gi,h)}, {v(R.GA_ADDR)} offset:{blk + (32*kk + 16*h)*288 + 32*t}" for h in range(2)]
        return pre, rd

    def acc(G, n, rb):
        kind, t = TILES[n]; R = G.R
        return R.g(t, rb) if kind == "G" else (R.u(t, rb) if kind == "U" else R.qa(t, rb))

    def main(G, L, lane16, tail_ops=None, stamp=None, hook=None):
        R = G.R
        def issue(ops, key):
            for pre, ins in ops:
                for x in pre: L.e(x)
                if pre: L.e("s_nop 0")
                L.vm_op(ins, key)
        issue(G.dma_ops(0), ("W", 0))
        issue(G.x_ops(0, lane16), ("X", 0))
        if stamp: stamp(L)
        L.need_vm(("W", 0)); L.need_vm(("X", 0))
        L.e("s_barrier")
        if stamp: stamp(L)
        if hook: hook(L)
        DIST = G.dist
        total = NKS * NT
        for gi in range(DIST):
            pre, rd = G.read_ops(gi)
            for x in pre: L.e(x)
            for x in rd: L.ds_op(x, ("A", gi))
        vmq = [(p, i, ("X", 1)) for p, i in G.x_ops(1, lane16)] + [(p, i, ("W", 1)) for p, i in G.dma_ops(1)]
        later = [(p, i, ("W", 2)) for p, i in G.dma_ops(2)]
        for ks in range(NKS):
            st, kk = divmod(ks, 2)
            if stamp and ks > 0: stamp(L)
            if ks + 2 < NKS:
                xo = [(p, i, ("X", ks + 2)) for p, i in G.x_ops(ks + 2, lane16)]
                vmq = (vmq + xo) if ks == 0 else (xo + vmq)
            if ks == 1: vmq += later
            period = 1 if ks < 2 else G.vm_period
            for n in range(NT):
                gi = ks * NT + n
                nx = gi + DIST
                rd = None
                if nx < total:
                    pre, rd = G.read_ops(nx)
                    newstage = (nx % (2 * NT) == 0)
                for rb in range(4):
                    if rb == 0:
                        L.need_ds(("A", gi))
                        if n == 0: L.need_vm(("X", ks))
                    acc = G.acc(n, rb)
                    c = "0" if ks == 0 else acc
                    L.e(f"{MF} {acc}, {R.af(gi)}, {R.b(ks,rb)}, {c}")
                    if rd:
                        if rb == 0:
                            if newstage:
                                ns = nx // (2 * NT)
                                L.need_vm(("W", ns))
                                L.e("s_waitcnt lgkmcnt(0)"); L.ds = []
                                L.e("s_barrier")
                                if ns + 2 <= 8: vmq += [(p, i, ("W", ns + 2)) for p, i in G.dma_ops(ns + 2)]
                                if ns == 8 and tail_ops: vmq += [(p, i, ("T", 0)) for p, i in tail_ops]
                            for x in pre: L.e(x)
                        if rb == 1: L.ds_op(rd[0], ("A", nx))
                        if rb == 2: L.ds_op(rd[1], ("A", nx))
                    if rb == 3 and vmq and (n >= 1 or vmq[0][2][0] != "X") and (n % period == period - 1 or (ks >= NKS - 2)):
                        p, i, key = vmq.pop(0)
                        for x in p: L.e(x)
                        if p: L.e("s_nop 0")
                        L.vm_op(i, key)
            assert not [x for x in vmq if x[2][0] == "X"], ks
        assert not vmq

    def epilogue_h(G, A, lane, tmp):
        R = G.R
        l16 = v(tmp + 8)
        A.e(f"v_lshlrev_b32 {l16}, 4, {lane}")
        k = 0
        def hvals(t, rb, dst):
            for r in range(4):
                x = v(tmp + r)
                if t < 8:
                    A.e(f"v_accvgpr_read_b32 {x}, {R.g(t,rb,r)}")
                    A.e(f"v_max_f32 {x}, 0, {x}")
                else:
                    A.e(f"v_max_f32 {x}, 0, {R.g(t,rb,r)}")
                A.e(f"v_mul_f32 {x}, {x}, {R.u(t,rb,r)}")
            A.e(f"v_cvt_pk_bf16_f32 {v(dst)}, {v(tmp)}, {v(tmp+1)}")
            A.e(f"v_cvt_pk_bf16_f32 {v(dst+1)}, {v(tmp+2)}, {v(tmp+3)}")
        for sx in range(4):
            A.e(f"s_add_u32 {s(R.sT)}, {s(R.sHoff)}, {sx*16384}")
            for rb in range(4):
                d = R.B + (k % 8) * 4; k += 1
                hvals(2 * sx, rb, d); hvals(2 * sx + 1, rb, d + 2)
                A.e(f"buffer_store_dwordx4 {v(d,4)}, {l16}, {s(R.sWS,4)}, {s(R.sT)} offen offset:{rb*1024}{G.stmod}")
        for rb in range(4):
            d = R.B + (k % 8) * 4; k += 1
            hvals(8, rb, d)
            A.e(f"buffer_store_dwordx2 {v(d,2)}, {l16}, {s(R.sWS,4)}, {s(R.sH8)} offen offset:{rb*1024}{G.stmod}")

    def epilogue_q(G, A, qfrag, tmp):
        R = G.R
        c = f32(128 ** -0.5 * 1.4426950408889634)
        A.e(f"s_mov_b32 {s(R.sT)}, {hex(c)}")
        k = 0
        for rb in range(4):
            for sx in range(4):
                b = tmp + (k % 2) * 8; k += 1
                for h in range(2):
                    for r in range(4):
                        A.e(f"v_accvgpr_read_b32 {v(b+4*h+r)}, {R.qa(2*sx+h,rb,r)}")
                for j in range(8): A.e(f"v_mul_f32 {v(b+j)}, {s(R.sT)}, {v(b+j)}")
                for j in range(4): A.e(f"v_cvt_pk_bf16_f32 {v(b+j)}, {v(b+2*j)}, {v(b+2*j+1)}")
                A.e("s_nop 0")
                A.e(f"v_permlane32_swap_b32 {v(b)}, {v(b+2)}")
                A.e(f"v_permlane32_swap_b32 {v(b+1)}, {v(b+3)}")
                A.e("s_nop 0")
                A.e(f"v_permlane16_swap_b32 {v(b)}, {v(b+2)}")
                A.e(f"v_permlane16_swap_b32 {v(b+1)}, {v(b+3)}")
                for j in range(4): A.e(f"v_accvgpr_write_b32 {a(qfrag(rb,sx)+j)}, {v(b+j)}")
```

```python
import sys, ln, mega
opt = eval(sys.argv[2]) if len(sys.argv) > 2 else {}
a1 = mega.gen_mega("mega_kernel", opt=opt, stamps=opt.get("stamps", False))
hdr = open("header.txt").read()
extra = ""
if opt.get("noop"):
    hdr += "; @launch kernel=noop_kernel grid=(1,1,1) block=(64,1,1) lds=0\n" * int(opt["noop"])
    from asmgen import *
    extra = kernel_head("noop_kernel") + "    s_endpgm\n" + kernel_desc("noop_kernel", 8, 16, 8)
hdr += "; @launch kernel=mega_kernel grid=(256,1,1) block=(256,1,1) lds=163840\n"
txt = hdr + '.amdgcn_target "amdgcn-amd-amdhsa--gfx950"\n' + extra + a1.text()
open(sys.argv[1], "w").write(txt)
print("bytes:", len(txt))
```

```python
from asmgen import *
from layout import *
from phasea import f32

LN_LDS = 159744

def xl(A, reg, t0, op):
    for sw in ("v_permlane32_swap_b32", "v_permlane16_swap_b32"):
        A.e(f"v_mov_b32 {t0}, {reg}")
        A.e("s_nop 1")
        A.e(f"{sw} {t0}, {reg}")
        A.e("s_nop 1")
        A.e(f"{op} {reg}, {t0}, {reg}")
    A.e("s_nop 1")
    A.e(f"v_add_f32_dpp {reg}, {reg}, {reg} row_ror:8 row_mask:0xf bank_mask:0xf")

def ln_loads(A, lane, wave, head, rt, sx_srd, RAW, T, sT):
    vs, vd, t2, t3 = v(T), v(T + 1), v(T + 2), v(T + 3)
    A.e(f"v_and_b32 {t2}, 7, {lane}")
    A.e(f"v_bfe_u32 {t3}, {lane}, 3, 2")
    A.e(f"v_mul_u32_u24 {vs}, 1152, {t2}")
    A.e(f"v_lshl_add_u32 {vs}, {t3}, 3, {vs}")
    A.e(f"v_lshlrev_b32 {vd}, 4, {t2}")
    A.e(f"v_lshl_add_u32 {vd}, {t3}, 8, {vd}")
    A.e(f"v_lshrrev_b32 {t3}, 5, {lane}")
    A.e(f"v_lshl_add_u32 {vs}, {t3}, 6, {vs}")
    A.e(f"v_lshl_add_u32 {vd}, {t3}, 12, {vd}")
    A.e(f"s_lshl_b32 {s(sT)}, {rt}, 5"); A.e(f"s_add_u32 {s(sT)}, {s(sT)}, {head}"); A.e(f"s_mul_i32 {s(sT)}, {s(sT)}, {8*1152}")
    A.e(f"s_lshl_b32 {s(sT+1)}, {wave}, 7"); A.e(f"s_add_u32 {s(sT)}, {s(sT)}, {s(sT+1)}")
    A.e(f"s_cmp_eq_u32 {wave}, 0")
    A.e(f"s_cselect_b32 {s(sT+1)}, 0, 0x10000000")
    A.e(f"s_add_u32 {s(sT+2)}, {s(sT)}, {s(sT+1)}")
    for q in range(3):
        so = s(sT) if q < 2 else s(sT + 2)
        for h in range(2):
            A.e(f"buffer_load_dwordx2 {v(RAW+4*q+2*h,2)}, {vs}, {sx_srd}, {so} offen offset:{512*q + 32*h}")

def ln_compute(A, lane, wave, head, rt, ws_srd, RAW, T, F, sT, nvm_after):
    vs, vd, acc, t0, la, lb = v(T), v(T + 1), v(T + 2), v(T + 3), v(T + 4), v(T + 5)
    A.e(f"s_cmp_eq_u32 {wave}, 0")
    A.e(f"s_cselect_b32 {s(sT+3)}, 1.0, 0")
    A.e(f"v_and_b32 {la}, 7, {lane}"); A.e(f"v_lshlrev_b32 {la}, 2, {la}")
    A.e(f"v_add_u32 {la}, {LN_LDS}, {la}")
    A.e(f"s_lshl_b32 {s(sT+1)}, {wave}, 5"); A.e(f"v_add_u32 {lb}, {s(sT+1)}, {la}")
    A.e(f"s_waitcnt vmcnt({nvm_after})")
    A.e(f"v_mov_b32 {acc}, 0")
    for k in range(12):
        A.e(f"v_lshlrev_b32 {v(F+2*k)}, 16, {v(RAW+k)}")
        A.e(f"v_and_b32 {v(F+2*k+1)}, 0xffff0000, {v(RAW+k)}")
        A.e(f"v_add_f32 {acc}, {acc}, {v(F+2*k)}")
        A.e(f"v_add_f32 {acc}, {acc}, {v(F+2*k+1)}")
    def exchange(off):
        xl(A, acc, t0, "v_add_f32")
        A.e(f"ds_write_b32 {lb}, {acc} offset:{off}")
        A.e("s_waitcnt lgkmcnt(0)")
        A.e("s_barrier")
        for w in range(4): A.e(f"ds_read_b32 {v(F+24+w)}, {la} offset:{off + 32*w}")
        A.e("s_waitcnt lgkmcnt(0)")
        A.e(f"v_add_f32 {v(F+24)}, {v(F+24)}, {v(F+25)}"); A.e(f"v_add_f32 {v(F+26)}, {v(F+26)}, {v(F+27)}")
        A.e(f"v_add_f32 {acc}, {v(F+24)}, {v(F+26)}")
    exchange(0)
    A.e(f"v_mul_f32 {acc}, {hex(f32(1.0/576))}, {acc}")
    for k in range(24): A.e(f"v_sub_f32 {v(F+k)}, {v(F+k)}, {acc}")
    A.e(f"v_mov_b32 {v(F+28)}, 0"); A.e(f"v_mov_b32 {acc}, 0")
    for k in range(16): A.e(f"v_fmac_f32 {acc}, {v(F+k)}, {v(F+k)}")
    for k in range(16, 24): A.e(f"v_fmac_f32 {v(F+28)}, {v(F+k)}, {v(F+k)}")
    A.e(f"v_fmac_f32 {acc}, {s(sT+3)}, {v(F+28)}")
    exchange(256)
    A.e(f"v_mov_b32 {t0}, {hex(f32(1e-5))}")
    A.e(f"v_fmac_f32 {t0}, {hex(f32(1.0/576))}, {acc}")
    A.e(f"v_rsq_f32 {t0}, {t0}")
    A.e("s_nop 0")
    for k in range(24): A.e(f"v_mul_f32 {v(F+k)}, {v(F+k)}, {t0}")
    for k in range(12): A.e(f"v_cvt_pk_bf16_f32 {v(RAW+k)}, {v(F+2*k)}, {v(F+2*k+1)}")
    a0, a1 = s(sT), s(sT + 1)
    A.e(f"s_lshl_b32 {a0}, {rt}, 2"); A.e(f"s_lshr_b32 {a1}, {head}, 3"); A.e(f"s_add_u32 {a0}, {a0}, {a1}")
    A.e(f"s_mul_i32 {a0}, {a0}, 18"); A.e(f"s_lshl_b32 {a1}, {wave}, 1"); A.e(f"s_add_u32 {a0}, {a0}, {a1}")
    A.e(f"s_lshl_b32 {a0}, {a0}, 2"); A.e(f"s_bfe_u32 {a1}, {head}, 0x20001"); A.e(f"s_add_u32 {a0}, {a0}, {a1}")
    A.e(f"s_lshl_b32 {a0}, {a0}, 10"); A.e(f"s_and_b32 {a1}, {head}, 1"); A.e(f"s_lshl_b32 {a1}, {a1}, 7"); A.e(f"s_add_u32 {a0}, {a0}, {a1}")
    if XN_OFF: A.e(f"s_add_u32 {a0}, {a0}, {XN_OFF}")
    A.e(f"s_cmp_eq_u32 {wave}, 0")
    A.e(f"s_cselect_b32 {a1}, 0, 0x10000000")
    for q in range(3):
        so = s(sT + 2)
        A.e(f"s_add_u32 {so}, {a0}, {q*32768}")
        if q == 2: A.e(f"s_add_u32 {so}, {so}, {a1}")
        A.e(f"buffer_store_dwordx4 {v(RAW+4*q,4)}, {vd}, {ws_srd}, {so} offen sc1")
```

```python
from asmgen import *
from layout import *
import attn, phasea, k2, checker, lnfuse
from phasea import Lin, f32

SPIN_LIMIT = 200000

def gen_mega(name, opt=None, stamps=False):
    opt = opt or {}
    SC = " sc1"
    RA = phasea.RegsA(); PA = phasea.PhaseA(RA); PA.stmod = opt.get('hst', SC); PA.dist = opt.get('distA', 3); PA.ldmod = opt.get('wld', '')
    R = attn.Regs(vbase=8)
    G = attn.AttnEmit(R, dict(farbranch=1, brdelay=2, barpos=1, stmod=SC, kvmod=opt.get('kvld', ''), **opt.get("attn", {})))
    P = k2.ProjGen(dict(ldmod=SC, stmod=SC, dist=opt.get('distC', 3), **opt.get("proj", {})))
    assert RA.vend <= R.KDMA and R.vend <= P.DV
    A = Asm()
    A(kernel_head(name))
    sX, sOut, sWo, sDbg, sWd = 26, 28, 30, 32, 96
    sPart, sI, sCt, sHF, sOF, sPF, sPoll = 53, 54, 55, 56, 57, 58, 59
    ONE, ZERO, DBGV, PFV = 254, 255, 246, 240
    nst = [0]
    def stamp(dst=None):
        if not stamps: return
        o = dst or A
        o.e("s_memtime s[88:89]"); o.e("s_waitcnt lgkmcnt(0)")
        if isinstance(o, Lin): o.ds = []
        o.e("s_sub_u32 s88, s88, s90")
        o.e(f"v_writelane_b32 v253, s88, {nst[0]}"); nst[0] += 1

    A.e("s_cmp_ge_u32 s2, 256")
    A.e(f"s_cbranch_scc0 {name}_go")
    A.e("s_endpgm")
    A.label(f"{name}_go")
    A.e("s_load_dwordx4 s[4:7], s[0:1], 8")
    A.e("s_load_dwordx2 s[8:9], s[0:1], 24")
    A.e("s_load_dwordx4 s[20:23], s[0:1], 48")
    A.e("s_load_dwordx2 s[10:11], s[0:1], 88")
    A.e(f"s_load_dwordx2 {s(sX,2)}, s[0:1], 0")
    A.e(f"s_load_dwordx2 {s(sOut,2)}, s[0:1], 72")
    A.e(f"s_load_dwordx2 {s(sWo,2)}, s[0:1], 32")
    A.e(f"s_load_dwordx2 {s(sWd,2)}, s[0:1], 64")
    A.e(f"s_load_dwordx2 {s(sDbg,2)}, s[0:1], 80")
    if stamps:
        A.e("s_memtime s[90:91]"); A.e("s_memrealtime s[92:93]")
    A.e("v_lshrrev_b32 v1, 6, v0")
    A.e("v_and_b32 v2, 63, v0")
    A.e("v_readfirstlane_b32 s12, v1")
    A.e(f"s_and_b32 {s(sPart)}, s2, 7")
    A.e(f"s_lshr_b32 {s(sI)}, s2, 3")
    A.e(f"s_and_b32 {s(sCt)}, {s(sI)}, 3")
    A.e(f"s_lshl_b32 s13, {s(sPart)}, 2")
    A.e(f"s_add_u32 s13, s13, {s(sCt)}")
    A.e(f"s_lshr_b32 s14, {s(sI)}, 2")
    A.e("s_lshr_b32 s15, s13, 1")
    A.e("s_lshl_b32 s15, s15, 19")
    A.e("v_lshlrev_b32 v3, 4, v2")
    A.e(f"v_mov_b32 v{ONE}, 1"); A.e(f"v_mov_b32 v{ZERO}, 0")
    A.e("s_waitcnt lgkmcnt(0)")
    A.e(f"s_add_u32 {s(R.sK)}, s4, s15"); A.e(f"s_addc_u32 {s(R.sK+1)}, s5, 0")
    A.e(f"s_mov_b32 {s(R.sK+2)}, 524288"); A.e(f"s_mov_b32 {s(R.sK+3)}, 0x20000")
    A.e(f"s_add_u32 {s(R.sV)}, s6, s15"); A.e(f"s_addc_u32 {s(R.sV+1)}, s7, 0")
    A.e(f"s_mov_b32 {s(R.sV+2)}, 524288"); A.e(f"s_mov_b32 {s(R.sV+3)}, 0x20000")
    A.e("s_mov_b32 s16, s10"); A.e("s_mov_b32 s17, s11"); A.e(f"s_mov_b32 s18, {WS_RANGE}"); A.e("s_mov_b32 s19, 0x20000")
    A.e(f"s_mov_b32 {s(sDbg+2)}, 256"); A.e(f"s_mov_b32 {s(sDbg+3)}, 0x20000")
    A.e("s_lshl_b32 s24, s14, 2"); A.e("s_lshr_b32 s25, s13, 3"); A.e("s_add_u32 s24, s24, s25"); A.e("s_lshl_b32 s24, s24, 7")
    A.e("s_and_b32 s25, s13, 7"); A.e("s_lshl_b32 s25, s25, 2"); A.e("s_add_u32 s24, s24, s25")
    A.e(f"s_add_u32 {s(sHF)}, s24, {FLAG_OFF}"); A.e(f"s_add_u32 {s(sOF)}, s24, {FLAG_OFF + 4096}")
    A.e(f"s_lshl_b32 s24, {s(sI)}, 7"); A.e(f"s_lshl_b32 s25, {s(sPart)}, 2"); A.e("s_add_u32 s24, s24, s25")
    A.e(f"s_add_u32 {s(sPF)}, s24, {FLAG_OFF + 8192}")
    A.e(f"s_and_b32 s24, {s(sPart)}, 3"); A.e("s_lshl_b32 s25, s14, 2"); A.e("s_add_u32 s24, s24, s25"); A.e("s_lshl_b32 s24, s24, 7")
    A.e(f"s_cmp_lt_u32 {s(sPart)}, 4"); A.e(f"s_cselect_b32 s25, 4096, 0"); A.e("s_add_u32 s24, s24, s25")
    A.e(f"s_add_u32 {s(sPoll)}, s24, {FLAG_OFF}")
    for f in (sHF, sOF, sPF):
        A.e(f"buffer_store_dword v{ZERO}, off, s[16:19], {s(f)}{SC}")
    A.e("s_lshl_b32 s98, s14, 5")
    RAW, LT, LF = 8, 20, 28
    A.e(f"s_mov_b32 s84, {s(sX)}"); A.e(f"s_mov_b32 s85, {s(sX+1)}"); A.e(f"s_mov_b32 s86, {2048*1152}"); A.e("s_mov_b32 s87, 0x20000")
    lnfuse.ln_loads(A, "v2", "s12", "s13", "s14", "s[84:87]", RAW, LT, 4)
    ptr = {"wq": 8, "Wg": 20, "Wu": 22}
    PA.setup(A, "v2", "s12", "s13", "s14", lambda n: ptr[n])
    G.setup_dma(A, "v2", "s12", 4)
    A.e("s_lshl_b32 s24, s14, 7"); A.e("s_lshl_b32 s25, s13, 2"); A.e("s_add_u32 s24, s24, s25")
    A.e("s_lshl_b32 s24, s24, 14"); A.e("s_lshl_b32 s25, s12, 12"); A.e("s_add_u32 s24, s24, s25")
    A.e(f"s_add_u32 s24, s24, {O_OFF}")

    stamp()
    L = Lin()
    def after_w0(L_):
        T_ = Asm()
        lnfuse.ln_compute(T_, "v2", "s12", "s13", "s14", "s[16:19]", RAW, LT, LF, 4, 13)
        for x in T_.lines: L_.e(x.strip())
        L_.e("s_waitcnt vmcnt(0)")
        L_.e("s_barrier")
        L_.e("s_cmp_eq_u32 s12, 0"); L_.e(f"s_cbranch_scc0 {name}_noann")
        L_.e("s_mov_b64 exec, 1")
        L_.e(f"buffer_atomic_add v{ONE}, off, {s(sDbg,4)}, s98")
        L_.e("s_mov_b64 exec, -1")
        L_.e(f"{name}_noann:")
        if stamps: stamp(L_)
    def wait_xn(L_):
        L_.e("s_mov_b32 s15, 0")
        L_.e(f"{name}_xn_spin:")
        L_.e(f"buffer_load_dword v{DBGV}, off, {s(sDbg,4)}, s98{SC}")
        L_.e("s_waitcnt vmcnt(0)")
        L_.e(f"v_readfirstlane_b32 s25, v{DBGV}")
        L_.e("s_add_u32 s15, s15, 1")
        L_.e(f"s_cmp_ge_u32 s15, {SPIN_LIMIT}"); L_.e(f"s_cbranch_scc1 {name}_xn_ok")
        L_.e("s_cmp_ge_u32 s25, 32"); L_.e(f"s_cbranch_scc0 {name}_xn_spin")
        L_.e(f"{name}_xn_ok:")
        if stamps: stamp(L_)
    PA.xmod = SC
    PA.main(L, "v3", G.initial_dma_ops(), (lambda L_: stamp(L_)) if opt.get('afine') else None, None, (after_w0, wait_xn))
    for x in L.out:
        if x.endswith(":"): A.label(x[:-1])
        else: A.e(x)
    stamp()
    A.e("s_nop 7")
    PA.epilogue_h(A, "v2", RA.A)
    PA.epilogue_q(A, lambda qb, ds: R.Q + (qb * 4 + ds) * 4, RA.A)
    stamp()
    G.setup_reads(A, "v2")
    G.init_offsets(A)
    P.setup(A, "s12", s(sPart), s(sCt), "s14", sWo, sWd, 10)
    A.e(f"s_mov_b32 {s(P.sSlotW)}, {s(P.sM0)}")
    A.e(f"s_mul_i32 s85, s74, {32*1152//128}")
    A.e(f"s_lshl_b32 s86, {s(sI)}, 2"); A.e("s_add_u32 s86, s86, s12"); A.e("s_mul_i32 s84, s86, s85")
    NH = 20
    G.vm_init = [("H", 0)] * (NH - 2) + [("KV", -1)] + [("H", 0)] * (0 if opt.get("nopf") else 1)
    G.prologue(A, NH)
    stamp()
    flag_h = f"buffer_store_dword v{ONE}, off, s[16:19], {s(sHF)}{SC}"
    pf = lambda: ([], f"buffer_load_dwordx4 {v(PFV,4)}, v3, {s(P.sW,4)}, s84 offen{opt.get('pfld','')}", ("PF", 0), ["s_add_u32 s84, s84, 1024"])
    G.after_bar = {p: {3: [flag_h]} for p in range(4, 57, 8)}
    if not opt.get("nopf"):
        for p in range(1, 57):
            if p % 4 == 3: G.extra_vm[p] = [pf()]
    w0 = [(pre, ins, ("W", 0), []) for pre, ins in P.dma()]
    w0[-1] = (w0[-1][0], w0[-1][1], w0[-1][2], P.next_w())
    G.extra_vm[63] = w0
    G.extra_bar = {63}
    attn.CFG["dma"] = attn.CFG["dma"][:4]
    G.emit_all(A, name)
    stamp()
    A.e("s_barrier")
    for st in (1, 2):
        for pre, ins in P.dma():
            for x in pre: A.e(x)
            if pre: A.e("s_nop 0")
            A.e(ins)
        for x in P.next_w(): A.e(x)
    G.epilogue(A, "s[16:19]", "v3", "s24")
    stamp()
    def poll(base, lab):
        A.e(f"v_min_u32 v4, 7, v2"); A.e("v_lshlrev_b32 v4, 2, v4")
        A.e("s_mov_b32 s15, 0")
        A.label(f"{name}_{lab}")
        A.e(f"buffer_load_dword v5, v4, s[16:19], {base} offen{SC}")
        A.e("s_waitcnt vmcnt(0)")
        A.e("v_cmp_ne_u32 vcc, 1, v5")
        A.e(f"s_cbranch_vccz {name}_{lab}_ok")
        A.e("s_add_u32 s15, s15, 1")
        A.e(f"s_cmp_ge_u32 s15, {SPIN_LIMIT}"); A.e(f"s_cbranch_scc1 {name}_{lab}_ok")
        A.e("s_sleep 2")
        A.e(f"s_branch {name}_{lab}")
        A.label(f"{name}_{lab}_ok")
    A.e("s_waitcnt vmcnt(0)")
    A.e("s_barrier")
    A.e(f"buffer_store_dword v{ONE}, off, s[16:19], {s(sOF)}{SC}")
    poll(s(sPoll), "pollc")
    stamp()
    nerr = P.emit_main(A, name + "_c", None, True, stamp if opt.get('cstamp') else None)
    stamp()
    A.e("s_waitcnt vmcnt(16) lgkmcnt(0)")
    A.e("s_nop 7")
    P.store_partials(A, "s12", s(sPart), s(sCt), "s14")
    A.e(f"s_lshl_b32 s78, s14, 4"); A.e(f"s_lshl_b32 s79, {s(sPart)}, 1"); A.e("s_add_u32 s78, s78, s79")
    A.e("s_lshr_b32 s79, s12, 1"); A.e("s_add_u32 s80, s78, s79")
    A.e("s_and_b32 s79, s12, 1"); A.e("s_add_u32 s81, s78, s79")
    A.e("s_lshl_b32 s82, s79, 1")
    A.e("v_and_b32 v4, 15, v2"); A.e("v_lshrrev_b32 v5, 4, v2")
    A.e("v_mul_u32_u24 v4, 1152, v4"); A.e("v_lshl_add_u32 v4, v5, 3, v4")
    A.e(f"s_mul_i32 s74, {s(sCt)}, 288")
    A.e(f"s_mul_i32 s75, s80, {16*1152}"); A.e("s_add_u32 s75, s75, s74"); A.e("s_lshl_b32 s76, s82, 6"); A.e("s_add_u32 s75, s75, s76")
    A.e(f"s_mul_i32 s76, s81, {16*1152}"); A.e("s_add_u32 s76, s76, s74"); A.e("s_add_u32 s76, s76, 256")
    A.e(f"s_mov_b32 s60, {s(sX)}"); A.e(f"s_mov_b32 s61, {s(sX+1)}"); A.e(f"s_mov_b32 s62, {2048*1152}"); A.e("s_mov_b32 s63, 0x20000")
    A.e(f"s_mov_b32 s64, {s(sOut)}"); A.e(f"s_mov_b32 s65, {s(sOut+1)}"); A.e(f"s_mov_b32 s66, {2048*1152}"); A.e("s_mov_b32 s67, 0x20000")
    XR = 220
    for k in range(4): A.e(f"buffer_load_dwordx2 {v(XR+2*k,2)}, v4, s[60:63], s75 offen offset:{32*k}")
    A.e(f"buffer_load_dwordx2 {v(XR+8,2)}, v4, s[60:63], s76 offen")
    A.e("s_waitcnt vmcnt(0)")
    A.e("s_barrier")
    A.e(f"buffer_store_dword v{ONE}, off, s[16:19], {s(sPF)}{SC}")
    A.e(f"s_lshl_b32 s77, {s(sI)}, 7"); A.e(f"s_add_u32 s77, s77, {FLAG_OFF + 8192}")
    A.e("v_mov_b32 v6, v4")
    poll("s77", "polld")
    stamp()
    A.e(f"s_lshl_b32 s78, s80, 2"); A.e(f"s_add_u32 s78, s78, {s(sCt)}"); A.e(f"s_mul_i32 s78, s78, {PART_UNIT}")
    A.e(f"s_add_u32 s78, s78, {PART_OFF}"); A.e("s_lshl_b32 s79, s82, 10"); A.e("s_add_u32 s78, s78, s79")
    A.e(f"s_lshl_b32 s79, s81, 2"); A.e(f"s_add_u32 s79, s79, {s(sCt)}"); A.e(f"s_mul_i32 s79, s79, {PART_UNIT}")
    A.e(f"s_add_u32 s79, s79, {PART_OFF + 8*4096}")
    A.e("v_lshlrev_b32 v7, 3, v2")
    for p in range(8):
        A.e(f"buffer_load_dwordx4 {v(8+4*p,4)}, v3, s[16:19], s78 offen{SC}")
        A.e(f"buffer_load_dwordx4 {v(40+4*p,4)}, v3, s[16:19], s78 offen offset:1024{SC}")
        if p < 7: A.e("s_add_u32 s78, s78, 4096")
    for p in range(8):
        A.e(f"buffer_load_dwordx2 {v(72+2*p,2)}, v7, s[16:19], s79 offen offset:{p*512}{SC}")
    A.e(f"s_mov_b32 s23, {hex(f32(-1.4426950408889634))}")
    def unpack_sum(dst, srcs, nreg, t):
        for j in range(nreg):
            for h in range(2):
                d = v(dst + 2 * j + h)
                for n, sr in enumerate(srcs):
                    tt = d if n == 0 else t
                    if h == 0: A.e(f"v_lshlrev_b32 {tt}, 16, {v(sr+j)}")
                    else: A.e(f"v_and_b32 {tt}, 0xffff0000, {v(sr+j)}")
                    if n: A.e(f"v_add_f32 {d}, {d}, {t}")
    S0, D0, T0 = 100, 120, 140
    A.e("s_waitcnt vmcnt(8)")
    for q in range(2):
        b = 8 + 32 * q
        unpack_sum(S0 + 8 * q, [b, b + 4, b + 8, b + 12], 4, "v160")
        unpack_sum(D0 + 8 * q, [b + 16, b + 20, b + 24, b + 28], 4, "v160")
    for q in range(4):
        k2.final_math(A, S0 + 4 * q, D0 + 4 * q, XR + 2 * q, T0, "s23")
        A.e(f"buffer_store_dwordx2 {v(XR+2*q,2)}, v6, s[64:67], s75 offen offset:{32*q}")
    A.e("s_waitcnt vmcnt(4)")
    unpack_sum(S0 + 16, [72, 74, 76, 78], 2, "v160")
    unpack_sum(D0 + 16, [80, 82, 84, 86], 2, "v160")
    k2.final_math(A, S0 + 16, D0 + 16, XR + 8, T0, "s23")
    A.e(f"buffer_store_dwordx2 {v(XR+8,2)}, v6, s[64:67], s76 offen")
    if stamps:
        A.e("s_waitcnt vmcnt(0)")
        stamp()
        A.e("s_memrealtime s[94:95]"); A.e("s_waitcnt lgkmcnt(0)")
        A.e("s_sub_u32 s94, s94, s92")
        A.e(f"v_writelane_b32 v253, s94, 30"); A.e("v_writelane_b32 v253, s92, 31")
        A.e("s_lshl_b32 s21, s2, 2"); A.e("s_add_u32 s21, s21, s12"); A.e("s_lshl_b32 s21, s21, 8")
        A.e(f"s_add_u32 s21, s21, {STAMP_OFF}")
        A.e("v_lshlrev_b32 v1, 2, v2")
        A.e("buffer_store_dword v253, v1, s[16:19], s21 offen")
    A.e("s_endpgm")
    G.emit_rare(A)
    A(kernel_desc(name, 512, 102, 256))
    errs = checker.check([l for l in A.lines if not l.startswith(";")], name)
    for e in errs[:10]: print(e)
    print(name, "lines", len(A.lines), "hazard errors", len(errs), nerr)
    return A
```

```python
from asmgen import *
from layout import *
import struct
def f32(x): return struct.unpack("<I", struct.pack("<f", x))[0]

MF = "v_mfma_f32_16x16x32_bf16"
STAGE = 53248
BLK_U = 18432
BLK_Q = 36864
NKS = 18

class RegsA:
    def __init__(R):
        R.QA = 0
        R.GA = 128
        n = 8
        R.U = n; n += 144
        R.GV = n; n += 16
        R.B = n; n += 48
        R.A = n; n += 16
        R.DG = n; n += 4
        R.DX = n; n += 1
        R.DQ = n; n += 4
        R.LG = n; n += 1; R.GA_ADDR = n; n += 1
        R.LQ = n; n += 1; R.QA_ADDR = n; n += 1
        R.QT = n; n += 2
        R.vend = n
        R.sG = 60; R.sU = 64; R.sX = 68; R.sQ = 72
        R.sWS = 16
        R.sM0G = 76; R.sM0X = 77; R.sM0Q = 78
        R.sXoff = 79
        R.sT = 80; R.sT2 = 81; R.sHoff = 82; R.sH8 = 83
    def g(R, t, rb, r=None):
        if t < 8:
            b = R.GA + (t * 4 + rb) * 4
            return a(b, 4) if r is None else a(b + r)
        b = R.GV + rb * 4
        return v(b, 4) if r is None else v(b + r)
    def u(R, t, rb, r=None):
        b = R.U + (t * 4 + rb) * 4
        return v(b, 4) if r is None else v(b + r)
    def qa(R, dt, rb, r=None):
        b = R.QA + (dt * 4 + rb) * 4
        return a(b, 4) if r is None else a(b + r)
    def b(R, ks, rb): return v(R.B + (ks % 3) * 16 + rb * 4, 4)
    def af(R, gi, h=None):
        b = R.A + (gi % 4) * 4
        return v(b, 4) if h is None else v(b + 2 * h, 2)

TILES = [x for t in range(9) for x in (("G", t), ("U", t))] + [("Q", dt) for dt in range(8)]
NT = len(TILES)

class Lin:
    def __init__(L):
        L.out = []; L.ds = []; L.vm = []
    def e(L, t): L.out.append(t)
    def ds_op(L, t, key): L.out.append(t); L.ds.append(key)
    def vm_op(L, t, key): L.out.append(t); L.vm.append(key)
    def need_ds(L, key):
        if key in L.ds:
            last = max(i for i, x in enumerate(L.ds) if x == key)
            cnt = len(L.ds) - 1 - last
            assert cnt <= 15
            L.out.append(f"s_waitcnt lgkmcnt({cnt})")
            L.ds = L.ds[last + 1:]
    def need_vm(L, key):
        if key in L.vm:
            last = max(i for i, x in enumerate(L.vm) if x == key)
            cnt = len(L.vm) - 1 - last
            assert cnt <= 63, cnt
            L.out.append(f"s_waitcnt vmcnt({cnt})")
            L.vm = L.vm[last + 1:]

class PhaseA:
    def __init__(G, R, vm_period=2):
        G.R = R; G.vm_period = vm_period; G.stmod = ''; G.dist = 3; G.ldmod = ''; G.xmod = ''

    def setup(G, A, lane, wave, head, rt, ptr):
        R = G.R
        t = [v(R.B + i) for i in range(12)]
        for srd, nm, size in ((R.sG, "Wg", 576 * 9216), (R.sU, "Wu", 576 * 9216), (R.sQ, "wq", 576 * 8192)):
            p = ptr(nm)
            A.e(f"s_mov_b32 {s(srd)}, {s(p)}"); A.e(f"s_mov_b32 {s(srd+1)}, {s(p+1)}")
            A.e(f"s_mov_b32 {s(srd+2)}, {size}"); A.e(f"s_mov_b32 {s(srd+3)}, 0x20000")
        A.e(f"s_cmp_lt_u32 {wave}, 2")
        A.e(f"s_cselect_b32 {s(R.sX)}, {s(R.sG)}, {s(R.sU)}")
        A.e(f"s_cselect_b32 {s(R.sX+1)}, {s(R.sG+1)}, {s(R.sU+1)}")
        A.e(f"s_mov_b32 {s(R.sX+2)}, {576*9216}"); A.e(f"s_mov_b32 {s(R.sX+3)}, 0x20000")
        A.e(f"s_lshl_b32 {s(R.sM0G)}, {wave}, 12")
        A.e(f"s_and_b32 {s(R.sT)}, {wave}, 1"); A.e(f"s_add_u32 {s(R.sT)}, {s(R.sT)}, 16"); A.e(f"s_lshl_b32 {s(R.sM0X)}, {s(R.sT)}, 10")
        A.e(f"s_cmp_lt_u32 {wave}, 2")
        A.e(f"s_cselect_b32 {s(R.sT2)}, 0, {BLK_U}")
        A.e(f"s_add_u32 {s(R.sM0X)}, {s(R.sM0X)}, {s(R.sT2)}")
        A.e(f"s_lshl_b32 {s(R.sM0Q)}, {wave}, 12"); A.e(f"s_add_u32 {s(R.sM0Q)}, {s(R.sM0Q)}, {BLK_Q}")
        A.e(f"s_mul_i32 {s(R.sT2)}, {head}, 288")
        A.e(f"s_and_b32 s87, {head}, 1"); A.e("s_lshl_b32 s87, s87, 1")
        def gu(dst, idx_s, idx_c, comp):
            A.e(f"s_lshl_b32 s84, {idx_s}, 6")
            A.e(f"v_add_u32 {t[0]}, s84, {lane}")
            if idx_c: A.e(f"v_add_u32 {t[0]}, {64*idx_c}, {t[0]}")
            A.e(f"v_mul_u32_u24 {t[1]}, 3641, {t[0]}")
            A.e(f"v_lshrrev_b32 {t[1]}, 16, {t[1]}")
            A.e(f"v_mul_u32_u24 {t[2]}, 18, {t[1]}")
            A.e(f"v_sub_u32 {t[2]}, {t[0]}, {t[2]}")
            A.e(f"v_add_u32 {t[2]}, s87, {t[2]}")
            A.e(f"v_subrev_u32 {t[5]}, 18, {t[2]}")
            A.e(f"v_min_u32 {t[2]}, {t[2]}, {t[5]}")
            A.e(f"v_mul_u32_u24 {t[1]}, 9216, {t[1]}")
            A.e(f"v_lshl_add_u32 {t[1]}, {t[2]}, 4, {t[1]}")
            A.e(f"v_add_u32 {dst}, {s(R.sT2)}, {t[1]}")
            if comp: A.e(f"v_subrev_u32 {dst}, {comp}, {dst}")
        A.e(f"s_lshl_b32 s85, {wave}, 2")
        for n in range(4): gu(v(R.DG + n), "s85", n, n * 1024)
        gu(v(R.DX), s(R.sT), 0, 0)
        m, g = t[3], t[4]
        A.e(f"v_and_b32 {m}, 15, {lane}"); A.e(f"v_lshrrev_b32 {g}, 4, {lane}")
        A.e(f"s_lshl_b32 s84, {wave}, 4")
        A.e(f"s_lshl_b32 s85, {head}, 8")
        for n in range(4):
            A.e(f"v_add_u32 {t[0]}, {4*n}, {g}")
            A.e(f"v_and_b32 {t[1]}, 7, {t[0]}")
            A.e(f"v_lshlrev_b32 {t[1]}, 1, {t[1]}")
            A.e(f"v_xor_b32 {t[1]}, {t[1]}, {m}")
            A.e(f"v_add_u32 {t[0]}, s84, {t[0]}")
            A.e(f"v_lshlrev_b32 {t[0]}, 13, {t[0]}")
            A.e(f"v_lshl_add_u32 {t[0]}, {t[1]}, 4, {t[0]}")
            A.e(f"v_add_u32 {v(R.DQ+n)}, s85, {t[0]}")
            if n: A.e(f"v_subrev_u32 {v(R.DQ+n)}, {n*1024}, {v(R.DQ+n)}")
        A.e(f"v_lshrrev_b32 {t[0]}, 2, {m}")
        A.e(f"v_lshl_add_u32 {t[0]}, {g}, 2, {t[0]}")
        A.e(f"v_mul_u32_u24 {t[1]}, 288, {t[0]}")
        A.e(f"v_and_b32 {t[2]}, 3, {m}")
        A.e(f"v_lshl_add_u32 {v(R.LG)}, {t[2]}, 3, {t[1]}")
        A.e(f"v_lshlrev_b32 {t[1]}, 8, {t[0]}")
        A.e(f"v_and_b32 {t[2]}, 7, {t[0]}")
        A.e(f"v_lshl_add_u32 {t[1]}, {t[2]}, 5, {t[1]}")
        A.e(f"v_bfe_u32 {t[2]}, {m}, 1, 1")
        A.e(f"v_lshl_add_u32 {t[1]}, {t[2]}, 4, {t[1]}")
        A.e(f"v_and_b32 {t[2]}, 1, {m}")
        A.e(f"v_lshl_add_u32 {t[1]}, {t[2]}, 3, {t[1]}")
        A.e(f"v_add_u32 {v(R.LQ)}, {BLK_Q}, {t[1]}")
        A.e(f"s_lshl_b32 {s(R.sXoff)}, {rt}, 2"); A.e(f"s_add_u32 {s(R.sXoff)}, {s(R.sXoff)}, {wave}")
        A.e(f"s_mul_i32 {s(R.sXoff)}, {s(R.sXoff)}, {18*4096}")
        if XN_OFF: A.e(f"s_add_u32 {s(R.sXoff)}, {s(R.sXoff)}, {XN_OFF}")
        A.e(f"s_mul_i32 s84, {rt}, 144")
        A.e(f"s_lshr_b32 s85, {head}, 1"); A.e("s_mul_i32 s85, s85, 9"); A.e("s_add_u32 s84, s84, s85")
        A.e("s_lshl_b32 s84, s84, 14")
        A.e(f"s_lshl_b32 s85, {wave}, 12"); A.e("s_add_u32 s84, s84, s85")
        A.e(f"s_add_u32 s84, s84, {H_OFF}")
        A.e(f"s_and_b32 s85, {head}, 1")
        A.e(f"s_mul_i32 {s(R.sT)}, s85, {5*16384}"); A.e(f"s_add_u32 {s(R.sHoff)}, s84, {s(R.sT)}")
        A.e(f"s_lshl_b32 {s(R.sT)}, s85, 3"); A.e(f"s_add_u32 {s(R.sH8)}, s84, {s(R.sT)}"); A.e(f"s_add_u32 {s(R.sH8)}, {s(R.sH8)}, {4*16384}")

    def dma_ops(G, st):
        R = G.R; slot = (st % 3) * STAGE
        so_g = st * 64 * 9216; so_q = st * 64 * 8192
        ops = []
        for n in range(4):
            pre = [f"s_add_u32 m0, {s(R.sM0G)}, {slot}", f"s_mov_b32 {s(R.sT)}, {so_g}"] if n == 0 else []
            ops.append((pre, f"buffer_load_dwordx4 {v(R.DG+n)}, {s(R.sG,4)}, {s(R.sT)} offen offset:{n*1024}{G.ldmod} lds"))
        for n in range(4):
            pre = [f"s_add_u32 m0, {s(R.sM0G)}, {slot + BLK_U}"] if n == 0 else []
            ops.append((pre, f"buffer_load_dwordx4 {v(R.DG+n)}, {s(R.sU,4)}, {s(R.sT)} offen offset:{n*1024}{G.ldmod} lds"))
        ops.append(([f"s_add_u32 m0, {s(R.sM0X)}, {slot}"], f"buffer_load_dwordx4 {v(R.DX)}, {s(R.sX,4)}, {s(R.sT)} offen{G.ldmod} lds"))
        for n in range(4):
            pre = [f"s_add_u32 m0, {s(R.sM0Q)}, {slot}", f"s_mov_b32 {s(R.sT2)}, {so_q}"] if n == 0 else []
            ops.append((pre, f"buffer_load_dwordx4 {v(R.DQ+n)}, {s(R.sQ,4)}, {s(R.sT2)} offen offset:{n*1024}{G.ldmod} lds"))
        return ops

    def x_ops(G, ks, lane16):
        R = G.R
        return [([f"s_add_u32 s86, {s(R.sXoff)}, {ks*4096}"] if rb == 0 else [],
                 f"buffer_load_dwordx4 {R.b(ks,rb)}, {lane16}, {s(R.sWS,4)}, s86 offen offset:{rb*1024}{G.xmod}") for rb in range(4)]

    def read_ops(G, gi):
        R = G.R; ks, n = divmod(gi, NT); st, kk = divmod(ks, 2)
        kind, t = TILES[n]; pre = []
        if n == 0 and kk == 0:
            pre.append(f"v_add_u32 {v(R.GA_ADDR)}, {(st%3)*STAGE}, {v(R.LG)}")
            pre.append(f"v_add_u32 {v(R.QA_ADDR)}, {(st%3)*STAGE}, {v(R.LQ)}")
        if kind == "Q":
            tmp = v(R.QT + (t & 1))
            pre.append(f"v_xor_b32 {tmp}, {t*32}, {v(R.QA_ADDR)}")
            rd = [f"ds_read_b64_tr_b16 {R.af(gi,h)}, {tmp} offset:{kk*8192 + h*4096}" for h in range(2)]
        else:
            blk = 0 if kind == "G" else BLK_U
            rd = [f"ds_read_b64_tr_b16 {R.af(gi,h)}, {v(R.GA_ADDR)} offset:{blk + (32*kk + 16*h)*288 + 32*t}" for h in range(2)]
        return pre, rd

    def acc(G, n, rb):
        kind, t = TILES[n]; R = G.R
        return R.g(t, rb) if kind == "G" else (R.u(t, rb) if kind == "U" else R.qa(t, rb))

    def main(G, L, lane16, tail_ops=None, stamp=None, hook=None, fused=None):
        R = G.R
        def issue(ops, key):
            for pre, ins in ops:
                for x in pre: L.e(x)
                if pre: L.e("s_nop 0")
                L.vm_op(ins, key)
        issue(G.dma_ops(0), ("W", 0))
        if fused:
            fused[0](L)
            L.vm = []
            issue(G.dma_ops(1), ("W", 1))
            issue(G.dma_ops(2), ("W", 2))
            fused[1](L)
            L.vm = []
            issue(G.x_ops(0, lane16), ("X", 0))
            issue(G.x_ops(1, lane16), ("X", 1))
            if stamp: stamp(L)
            L.need_vm(("X", 0))
            if stamp: stamp(L)
        else:
            issue(G.x_ops(0, lane16), ("X", 0))
            if stamp: stamp(L)
            L.need_vm(("W", 0)); L.need_vm(("X", 0))
            L.e("s_barrier")
            if stamp: stamp(L)
            if hook: hook(L)
        DIST = G.dist
        total = NKS * NT
        for gi in range(DIST):
            pre, rd = G.read_ops(gi)
            for x in pre: L.e(x)
            for x in rd: L.ds_op(x, ("A", gi))
        vmq = [(p, i, ("X", 1)) for p, i in G.x_ops(1, lane16)] + [(p, i, ("W", 1)) for p, i in G.dma_ops(1)]
        later = [(p, i, ("W", 2)) for p, i in G.dma_ops(2)]
        if fused: vmq = []; later = []
        for ks in range(NKS):
            st, kk = divmod(ks, 2)
            if stamp and ks > 0: stamp(L)
            if ks + 2 < NKS:
                xo = [(p, i, ("X", ks + 2)) for p, i in G.x_ops(ks + 2, lane16)]
                vmq = (vmq + xo) if ks == 0 else (xo + vmq)
            if ks == 1: vmq += later
            period = 1 if ks < 2 else G.vm_period
            for n in range(NT):
                gi = ks * NT + n
                nx = gi + DIST
                rd = None
                if nx < total:
                    pre, rd = G.read_ops(nx)
                    newstage = (nx % (2 * NT) == 0)
                for rb in range(4):
                    if rb == 0:
                        L.need_ds(("A", gi))
                        if n == 0: L.need_vm(("X", ks))
                    acc = G.acc(n, rb)
                    c = "0" if ks == 0 else acc
                    L.e(f"{MF} {acc}, {R.af(gi)}, {R.b(ks,rb)}, {c}")
                    if rd:
                        if rb == 0:
                            if newstage:
                                ns = nx // (2 * NT)
                                L.need_vm(("W", ns))
                                L.e("s_waitcnt lgkmcnt(0)"); L.ds = []
                                L.e("s_barrier")
                                if ns + 2 <= 8: vmq += [(p, i, ("W", ns + 2)) for p, i in G.dma_ops(ns + 2)]
                                if ns == 8 and tail_ops: vmq += [(p, i, ("T", 0)) for p, i in tail_ops]
                            for x in pre: L.e(x)
                        if rb == 1: L.ds_op(rd[0], ("A", nx))
                        if rb == 2: L.ds_op(rd[1], ("A", nx))
                    if rb == 3 and vmq and (n >= 1 or vmq[0][2][0] != "X") and (n % period == period - 1 or (ks >= NKS - 2)):
                        p, i, key = vmq.pop(0)
                        for x in p: L.e(x)
                        if p: L.e("s_nop 0")
                        L.vm_op(i, key)
            assert not [x for x in vmq if x[2][0] == "X"], ks
        assert not vmq

    def epilogue_h(G, A, lane, tmp):
        R = G.R
        l16 = v(tmp + 8)
        A.e(f"v_lshlrev_b32 {l16}, 4, {lane}")
        k = 0
        def hvals(t, rb, dst):
            for r in range(4):
                x = v(tmp + r)
                if t < 8:
                    A.e(f"v_accvgpr_read_b32 {x}, {R.g(t,rb,r)}")
                    A.e(f"v_max_f32 {x}, 0, {x}")
                else:
                    A.e(f"v_max_f32 {x}, 0, {R.g(t,rb,r)}")
                A.e(f"v_mul_f32 {x}, {x}, {R.u(t,rb,r)}")
            A.e(f"v_cvt_pk_bf16_f32 {v(dst)}, {v(tmp)}, {v(tmp+1)}")
            A.e(f"v_cvt_pk_bf16_f32 {v(dst+1)}, {v(tmp+2)}, {v(tmp+3)}")
        for sx in range(4):
            A.e(f"s_add_u32 {s(R.sT)}, {s(R.sHoff)}, {sx*16384}")
            for rb in range(4):
                d = R.B + (k % 8) * 4; k += 1
                hvals(2 * sx, rb, d); hvals(2 * sx + 1, rb, d + 2)
                A.e(f"buffer_store_dwordx4 {v(d,4)}, {l16}, {s(R.sWS,4)}, {s(R.sT)} offen offset:{rb*1024}{G.stmod}")
        for rb in range(4):
            d = R.B + (k % 8) * 4; k += 1
            hvals(8, rb, d)
            A.e(f"buffer_store_dwordx2 {v(d,2)}, {l16}, {s(R.sWS,4)}, {s(R.sH8)} offen offset:{rb*1024}{G.stmod}")

    def epilogue_q(G, A, qfrag, tmp):
        R = G.R
        c = f32(128 ** -0.5 * 1.4426950408889634)
        A.e(f"s_mov_b32 {s(R.sT)}, {hex(c)}")
        k = 0
        for rb in range(4):
            for sx in range(4):
                b = tmp + (k % 2) * 8; k += 1
                for h in range(2):
                    for r in range(4):
                        A.e(f"v_accvgpr_read_b32 {v(b+4*h+r)}, {R.qa(2*sx+h,rb,r)}")
                for j in range(8): A.e(f"v_mul_f32 {v(b+j)}, {s(R.sT)}, {v(b+j)}")
                for j in range(4): A.e(f"v_cvt_pk_bf16_f32 {v(b+j)}, {v(b+2*j)}, {v(b+2*j+1)}")
                A.e("s_nop 0")
                A.e(f"v_permlane32_swap_b32 {v(b)}, {v(b+2)}")
                A.e(f"v_permlane32_swap_b32 {v(b+1)}, {v(b+3)}")
                A.e("s_nop 0")
                A.e(f"v_permlane16_swap_b32 {v(b)}, {v(b+2)}")
                A.e(f"v_permlane16_swap_b32 {v(b+1)}, {v(b+3)}")
                for j in range(4): A.e(f"v_accvgpr_write_b32 {a(qfrag(rb,sx)+j)}, {v(b+j)}")
```

```python
from asmgen import *
from layout import *
import attn, phasea, k2, checker, lnfuse
from phasea import Lin, f32

SPIN_LIMIT = 200000

def gen_mega(name, opt=None, stamps=False):
    opt = opt or {}
    SC = " sc1"
    RA = phasea.RegsA(); PA = phasea.PhaseA(RA); PA.stmod = opt.get('hst', SC); PA.dist = opt.get('distA', 3); PA.ldmod = opt.get('wld', '')
    R = attn.Regs(vbase=8)
    G = attn.AttnEmit(R, dict(farbranch=1, brdelay=2, barpos=1, stmod=SC, kvmod=opt.get('kvld', ''), **opt.get("attn", {})))
    P = k2.ProjGen(dict(ldmod=SC, stmod=SC, dist=opt.get('distC', 3), **opt.get("proj", {})))
    assert RA.vend <= R.KDMA and R.vend <= P.DV
    A = Asm()
    A(kernel_head(name))
    sX, sOut, sWo, sDbg, sWd = 26, 28, 30, 32, 96
    sPart, sI, sCt, sHF, sOF, sPF, sPoll = 53, 54, 55, 56, 57, 58, 59
    ONE, ZERO, DBGV, PFV = 254, 255, 246, 240
    nst = [0]
    def stamp(dst=None):
        if not stamps: return
        o = dst or A
        o.e("s_memtime s[88:89]"); o.e("s_waitcnt lgkmcnt(0)")
        if isinstance(o, Lin): o.ds = []
        o.e("s_sub_u32 s88, s88, s90")
        o.e(f"v_writelane_b32 v253, s88, {nst[0]}"); nst[0] += 1

    A.e("s_cmp_ge_u32 s2, 256")
    A.e(f"s_cbranch_scc0 {name}_go")
    A.e("s_endpgm")
    A.label(f"{name}_go")
    A.e("s_load_dwordx4 s[4:7], s[0:1], 8")
    A.e("s_load_dwordx2 s[8:9], s[0:1], 24")
    A.e("s_load_dwordx4 s[20:23], s[0:1], 48")
    A.e("s_load_dwordx2 s[10:11], s[0:1], 88")
    A.e(f"s_load_dwordx2 {s(sX,2)}, s[0:1], 0")
    A.e(f"s_load_dwordx2 {s(sOut,2)}, s[0:1], 72")
    A.e(f"s_load_dwordx2 {s(sWo,2)}, s[0:1], 32")
    A.e(f"s_load_dwordx2 {s(sWd,2)}, s[0:1], 64")
    A.e(f"s_load_dwordx2 {s(sDbg,2)}, s[0:1], 80")
    if stamps:
        A.e("s_memtime s[90:91]"); A.e("s_memrealtime s[92:93]")
    A.e("v_lshrrev_b32 v1, 6, v0")
    A.e("v_and_b32 v2, 63, v0")
    A.e("v_readfirstlane_b32 s12, v1")
    A.e(f"s_and_b32 {s(sPart)}, s2, 7")
    A.e(f"s_lshr_b32 {s(sI)}, s2, 3")
    A.e(f"s_and_b32 {s(sCt)}, {s(sI)}, 3")
    A.e(f"s_lshl_b32 s13, {s(sPart)}, 2")
    A.e(f"s_add_u32 s13, s13, {s(sCt)}")
    A.e(f"s_lshr_b32 s14, {s(sI)}, 2")
    A.e("s_lshr_b32 s15, s13, 1")
    A.e("s_lshl_b32 s15, s15, 19")
    A.e("v_lshlrev_b32 v3, 4, v2")
    A.e(f"v_mov_b32 v{ONE}, 1"); A.e(f"v_mov_b32 v{ZERO}, 0")
    A.e("s_waitcnt lgkmcnt(0)")
    A.e(f"s_add_u32 {s(R.sK)}, s4, s15"); A.e(f"s_addc_u32 {s(R.sK+1)}, s5, 0")
    A.e(f"s_mov_b32 {s(R.sK+2)}, 524288"); A.e(f"s_mov_b32 {s(R.sK+3)}, 0x20000")
    A.e(f"s_add_u32 {s(R.sV)}, s6, s15"); A.e(f"s_addc_u32 {s(R.sV+1)}, s7, 0")
    A.e(f"s_mov_b32 {s(R.sV+2)}, 524288"); A.e(f"s_mov_b32 {s(R.sV+3)}, 0x20000")
    A.e("s_mov_b32 s16, s10"); A.e("s_mov_b32 s17, s11"); A.e(f"s_mov_b32 s18, {WS_RANGE}"); A.e("s_mov_b32 s19, 0x20000")
    A.e(f"s_mov_b32 {s(sDbg+2)}, 256"); A.e(f"s_mov_b32 {s(sDbg+3)}, 0x20000")
    A.e("s_lshl_b32 s24, s14, 2"); A.e("s_lshr_b32 s25, s13, 3"); A.e("s_add_u32 s24, s24, s25"); A.e("s_lshl_b32 s24, s24, 7")
    A.e("s_and_b32 s25, s13, 7"); A.e("s_lshl_b32 s25, s25, 2"); A.e("s_add_u32 s24, s24, s25")
    A.e(f"s_add_u32 {s(sHF)}, s24, {FLAG_OFF}"); A.e(f"s_add_u32 {s(sOF)}, s24, {FLAG_OFF + 4096}")
    A.e(f"s_lshl_b32 s24, {s(sI)}, 7"); A.e(f"s_lshl_b32 s25, {s(sPart)}, 2"); A.e("s_add_u32 s24, s24, s25")
    A.e(f"s_add_u32 {s(sPF)}, s24, {FLAG_OFF + 8192}")
    A.e(f"s_and_b32 s24, {s(sPart)}, 3"); A.e("s_lshl_b32 s25, s14, 2"); A.e("s_add_u32 s24, s24, s25"); A.e("s_lshl_b32 s24, s24, 7")
    A.e(f"s_cmp_lt_u32 {s(sPart)}, 4"); A.e(f"s_cselect_b32 s25, 4096, 0"); A.e("s_add_u32 s24, s24, s25")
    A.e(f"s_add_u32 {s(sPoll)}, s24, {FLAG_OFF}")
    for f in (sHF, sOF, sPF):
        A.e(f"buffer_store_dword v{ZERO}, off, s[16:19], {s(f)}{SC}")
    A.e("s_lshl_b32 s98, s14, 5")
    RAW, LT, LF = 8, 20, 28
    A.e(f"s_mov_b32 s84, {s(sX)}"); A.e(f"s_mov_b32 s85, {s(sX+1)}"); A.e(f"s_mov_b32 s86, {2048*1152}"); A.e("s_mov_b32 s87, 0x20000")
    lnfuse.ln_loads(A, "v2", "s12", "s13", "s14", "s[84:87]", RAW, LT, 4)
    ptr = {"wq": 8, "Wg": 20, "Wu": 22}
    PA.setup(A, "v2", "s12", "s13", "s14", lambda n: ptr[n])
    G.setup_dma(A, "v2", "s12", 4)
    A.e("s_lshl_b32 s24, s14, 7"); A.e("s_lshl_b32 s25, s13, 2"); A.e("s_add_u32 s24, s24, s25")
    A.e("s_lshl_b32 s24, s24, 14"); A.e("s_lshl_b32 s25, s12, 12"); A.e("s_add_u32 s24, s24, s25")
    A.e(f"s_add_u32 s24, s24, {O_OFF}")

    stamp()
    L = Lin()
    def after_w0(L_):
        T_ = Asm()
        lnfuse.ln_compute(T_, "v2", "s12", "s13", "s14", "s[16:19]", RAW, LT, LF, 4, 13)
        for x in T_.lines: L_.e(x.strip())
        L_.e("s_waitcnt vmcnt(0)")
        L_.e("s_barrier")
        L_.e("s_cmp_eq_u32 s12, 0"); L_.e(f"s_cbranch_scc0 {name}_noann")
        L_.e("s_mov_b64 exec, 1")
        L_.e(f"buffer_atomic_add v{ONE}, off, {s(sDbg,4)}, s98")
        L_.e("s_mov_b64 exec, -1")
        L_.e(f"{name}_noann:")
        if stamps: stamp(L_)
    def wait_xn(L_):
        L_.e("s_mov_b32 s15, 0")
        L_.e(f"{name}_xn_spin:")
        L_.e(f"buffer_load_dword v{DBGV}, off, {s(sDbg,4)}, s98{SC}")
        L_.e("s_waitcnt vmcnt(0)")
        L_.e(f"v_readfirstlane_b32 s25, v{DBGV}")
        L_.e("s_add_u32 s15, s15, 1")
        L_.e(f"s_cmp_ge_u32 s15, {SPIN_LIMIT}"); L_.e(f"s_cbranch_scc1 {name}_xn_ok")
        L_.e("s_cmp_ge_u32 s25, 32"); L_.e(f"s_cbranch_scc0 {name}_xn_spin")
        L_.e(f"{name}_xn_ok:")
        if stamps: stamp(L_)
    PA.xmod = SC
    PA.main(L, "v3", G.initial_dma_ops(), (lambda L_: stamp(L_)) if opt.get('afine') else None, None, (after_w0, wait_xn))
    for x in L.out:
        if x.endswith(":"): A.label(x[:-1])
        else: A.e(x)
    stamp()
    A.e("s_nop 7")
    PA.epilogue_h(A, "v2", RA.A)
    PA.epilogue_q(A, lambda qb, ds: R.Q + (qb * 4 + ds) * 4, RA.A)
    stamp()
    G.setup_reads(A, "v2")
    G.init_offsets(A)
    P.setup(A, "s12", s(sPart), s(sCt), "s14", sWo, sWd, 10)
    A.e(f"s_mov_b32 {s(P.sSlotW)}, {s(P.sM0)}")
    A.e(f"s_mul_i32 s85, s74, {32*1152//128}")
    A.e(f"s_lshl_b32 s86, {s(sI)}, 2"); A.e("s_add_u32 s86, s86, s12"); A.e("s_mul_i32 s84, s86, s85")
    NH = 20
    G.vm_init = [("H", 0)] * (NH - 2) + [("KV", -1)] + [("H", 0)] * (0 if opt.get("nopf") else 1)
    G.prologue(A, NH)
    stamp()
    flag_h = f"buffer_store_dword v{ONE}, off, s[16:19], {s(sHF)}{SC}"
    pf = lambda: ([], f"buffer_load_dwordx4 {v(PFV,4)}, v3, {s(P.sW,4)}, s84 offen{opt.get('pfld','')}", ("PF", 0), ["s_add_u32 s84, s84, 1024"])
    G.after_bar = {p: {3: [flag_h]} for p in range(4, 57, 8)}
    if not opt.get("nopf"):
        for p in range(1, 57):
            if p % 4 == 3: G.extra_vm[p] = [pf()]
    w0 = [(pre, ins, ("W", 0), []) for pre, ins in P.dma()]
    w0[-1] = (w0[-1][0], w0[-1][1], w0[-1][2], P.next_w())
    G.extra_vm[63] = w0
    G.extra_bar = {63}
    attn.CFG["dma"] = attn.CFG["dma"][:4]
    G.emit_all(A, name)
    stamp()
    A.e("s_barrier")
    for st in (1, 2):
        for pre, ins in P.dma():
            for x in pre: A.e(x)
            if pre: A.e("s_nop 0")
            A.e(ins)
        for x in P.next_w(): A.e(x)
    G.epilogue(A, "s[16:19]", "v3", "s24")
    stamp()
    def poll(base, lab):
        A.e(f"v_min_u32 v4, 7, v2"); A.e("v_lshlrev_b32 v4, 2, v4")
        A.e("s_mov_b32 s15, 0")
        A.label(f"{name}_{lab}")
        A.e(f"buffer_load_dword v5, v4, s[16:19], {base} offen{SC}")
        A.e("s_waitcnt vmcnt(0)")
        A.e("v_cmp_ne_u32 vcc, 1, v5")
        A.e(f"s_cbranch_vccz {name}_{lab}_ok")
        A.e("s_add_u32 s15, s15, 1")
        A.e(f"s_cmp_ge_u32 s15, {SPIN_LIMIT}"); A.e(f"s_cbranch_scc1 {name}_{lab}_ok")
        A.e("s_sleep 2")
        A.e(f"s_branch {name}_{lab}")
        A.label(f"{name}_{lab}_ok")
    A.e("s_waitcnt vmcnt(0)")
    A.e("s_barrier")
    A.e(f"buffer_store_dword v{ONE}, off, s[16:19], {s(sOF)}{SC}")
    poll(s(sPoll), "pollc")
    stamp()
    nerr = P.emit_main(A, name + "_c", None, True, stamp if opt.get('cstamp') else None)
    stamp()
    A.e("s_waitcnt vmcnt(16) lgkmcnt(0)")
    A.e("s_nop 7")
    P.store_partials(A, "s12", s(sPart), s(sCt), "s14")
    A.e(f"s_lshl_b32 s78, s14, 4"); A.e(f"s_lshl_b32 s79, {s(sPart)}, 1"); A.e("s_add_u32 s78, s78, s79")
    A.e("s_lshr_b32 s79, s12, 1"); A.e("s_add_u32 s80, s78, s79")
    A.e("s_and_b32 s79, s12, 1"); A.e("s_add_u32 s81, s78, s79")
    A.e("s_lshl_b32 s82, s79, 1")
    A.e("v_and_b32 v4, 15, v2"); A.e("v_lshrrev_b32 v5, 4, v2")
    A.e("v_mul_u32_u24 v4, 1152, v4"); A.e("v_lshl_add_u32 v4, v5, 3, v4")
    A.e(f"s_mul_i32 s74, {s(sCt)}, 288")
    A.e(f"s_mul_i32 s75, s80, {16*1152}"); A.e("s_add_u32 s75, s75, s74"); A.e("s_lshl_b32 s76, s82, 6"); A.e("s_add_u32 s75, s75, s76")
    A.e(f"s_mul_i32 s76, s81, {16*1152}"); A.e("s_add_u32 s76, s76, s74"); A.e("s_add_u32 s76, s76, 256")
    A.e(f"s_mov_b32 s60, {s(sX)}"); A.e(f"s_mov_b32 s61, {s(sX+1)}"); A.e(f"s_mov_b32 s62, {2048*1152}"); A.e("s_mov_b32 s63, 0x20000")
    A.e(f"s_mov_b32 s64, {s(sOut)}"); A.e(f"s_mov_b32 s65, {s(sOut+1)}"); A.e(f"s_mov_b32 s66, {2048*1152}"); A.e("s_mov_b32 s67, 0x20000")
    XR = 220
    for k in range(4): A.e(f"buffer_load_dwordx2 {v(XR+2*k,2)}, v4, s[60:63], s75 offen offset:{32*k}")
    A.e(f"buffer_load_dwordx2 {v(XR+8,2)}, v4, s[60:63], s76 offen")
    A.e("s_waitcnt vmcnt(0)")
    A.e("s_barrier")
    A.e(f"buffer_store_dword v{ONE}, off, s[16:19], {s(sPF)}{SC}")
    A.e(f"s_lshl_b32 s77, {s(sI)}, 7"); A.e(f"s_add_u32 s77, s77, {FLAG_OFF + 8192}")
    A.e("v_mov_b32 v6, v4")
    poll("s77", "polld")
    stamp()
    A.e(f"s_lshl_b32 s78, s80, 2"); A.e(f"s_add_u32 s78, s78, {s(sCt)}"); A.e(f"s_mul_i32 s78, s78, {PART_UNIT}")
    A.e(f"s_add_u32 s78, s78, {PART_OFF}"); A.e("s_lshl_b32 s79, s82, 10"); A.e("s_add_u32 s78, s78, s79")
    A.e(f"s_lshl_b32 s79, s81, 2"); A.e(f"s_add_u32 s79, s79, {s(sCt)}"); A.e(f"s_mul_i32 s79, s79, {PART_UNIT}")
    A.e(f"s_add_u32 s79, s79, {PART_OFF + 8*4096}")
    A.e("v_lshlrev_b32 v7, 3, v2")
    for p in range(8):
        A.e(f"buffer_load_dwordx4 {v(8+4*p,4)}, v3, s[16:19], s78 offen{SC}")
        A.e(f"buffer_load_dwordx4 {v(40+4*p,4)}, v3, s[16:19], s78 offen offset:1024{SC}")
        if p < 7: A.e("s_add_u32 s78, s78, 4096")
    for p in range(8):
        A.e(f"buffer_load_dwordx2 {v(72+2*p,2)}, v7, s[16:19], s79 offen offset:{p*512}{SC}")
    A.e(f"s_mov_b32 s23, {hex(f32(-1.4426950408889634))}")
    def unpack_sum(dst, srcs, nreg, t):
        for j in range(nreg):
            for h in range(2):
                d = v(dst + 2 * j + h)
                for n, sr in enumerate(srcs):
                    tt = d if n == 0 else t
                    if h == 0: A.e(f"v_lshlrev_b32 {tt}, 16, {v(sr+j)}")
                    else: A.e(f"v_and_b32 {tt}, 0xffff0000, {v(sr+j)}")
                    if n: A.e(f"v_add_f32 {d}, {d}, {t}")
    S0, D0, T0 = 100, 120, 140
    A.e("s_waitcnt vmcnt(8)")
    for q in range(2):
        b = 8 + 32 * q
        unpack_sum(S0 + 8 * q, [b, b + 4, b + 8, b + 12], 4, "v160")
        unpack_sum(D0 + 8 * q, [b + 16, b + 20, b + 24, b + 28], 4, "v160")
    for q in range(4):
        k2.final_math(A, S0 + 4 * q, D0 + 4 * q, XR + 2 * q, T0, "s23")
        A.e(f"buffer_store_dwordx2 {v(XR+2*q,2)}, v6, s[64:67], s75 offen offset:{32*q}")
    A.e("s_waitcnt vmcnt(4)")
    unpack_sum(S0 + 16, [72, 74, 76, 78], 2, "v160")
    unpack_sum(D0 + 16, [80, 82, 84, 86], 2, "v160")
    k2.final_math(A, S0 + 16, D0 + 16, XR + 8, T0, "s23")
    A.e(f"buffer_store_dwordx2 {v(XR+8,2)}, v6, s[64:67], s76 offen")
    if stamps:
        A.e("s_waitcnt vmcnt(0)")
        stamp()
        A.e("s_memrealtime s[94:95]"); A.e("s_waitcnt lgkmcnt(0)")
        A.e("s_sub_u32 s94, s94, s92")
        A.e(f"v_writelane_b32 v253, s94, 30"); A.e("v_writelane_b32 v253, s92, 31")
        A.e("s_lshl_b32 s21, s2, 2"); A.e("s_add_u32 s21, s21, s12"); A.e("s_lshl_b32 s21, s21, 8")
        A.e(f"s_add_u32 s21, s21, {STAMP_OFF}")
        A.e("v_lshlrev_b32 v1, 2, v2")
        A.e("buffer_store_dword v253, v1, s[16:19], s21 offen")
        if opt.get("dbgout"):
            A.e("s_cmp_eq_u32 s2, 0"); A.e(f"s_cbranch_scc0 {name}_nodbg")
            A.e("s_cmp_eq_u32 s12, 0"); A.e(f"s_cbranch_scc0 {name}_nodbg")
            lanes = [30, 1, 2, 3, 5, 6, 8, 9, 10, 11, 30, 30, 30, 30]
            words = [1, 2, 3, 4, 5, 6, 7, 9, 10, 11]
            A.e("s_mov_b64 exec, 1")
            for ln_, wd in zip(lanes, words):
                A.e(f"v_readlane_b32 s25, v253, {ln_}")
                A.e("s_nop 3")
                A.e("v_mov_b32 v4, s25")
                A.e(f"buffer_store_dword v4, off, {s(sDbg,4)}, 0 offset:{wd*4}")
            A.e("s_mov_b64 exec, -1")
            A.label(f"{name}_nodbg")
    A.e("s_endpgm")
    G.emit_rare(A)
    A(kernel_desc(name, 512, 102, 256))
    errs = checker.check([l for l in A.lines if not l.startswith(";")], name)
    for e in errs[:10]: print(e)
    print(name, "lines", len(A.lines), "hazard errors", len(errs), nerr)
    return A
```

```python
from asmgen import *

NSUB = 64
THR = 0x4b800000
ORDER = [0, 2, 1, 3]
MSUM = (0, 1)

class Regs:
    def __init__(R, vbase=8):
        n = vbase
        def al(k, align=1):
            nonlocal n
            n = (n + align - 1) // align * align
            r = n; n += k; return r
        R.S = al(64, 4)
        R.P = al(32, 4)
        R.NEGM = al(16, 4)
        R.SD = al(8, 4)
        R.ONES = al(4, 4)
        R.NT = 32
        R.T = al(R.NT)
        R.PS = al(4)
        R.L = al(4)
        R.KADDR = al(4)
        R.VADDR = al(8)
        R.KDMA = 247
        R.VDMA = 251
        R.CHK = al(1)
        R.TMP = al(12, 4)
        R.vend = n
        R.O = 128
        R.sK = 36
        R.sV = 40
        R.sKoff = 44
        R.sVoff = 45
        R.sM0K = 46
        R.sM0V = 47
        R.sThr = 48
        R.sLoop = 49
        R.sRet = 50
        R.sTmp = 52
    def s(R, par, qb, kb, r=None):
        b = R.S + par * 32 + qb * 8 + kb * 4
        return v(b, 4) if r is None else v(b + r)
    def p(R, par, qb, j=None):
        b = R.P + par * 16 + qb * 4
        return v(b, 4) if j is None else v(b + j)
    def negm(R, qb, r=None):
        return v(R.NEGM + qb * 4, 4) if r is None else v(R.NEGM + qb * 4 + r)
    def o(R, qb, db, r=None):
        b = R.O + (qb * 8 + db) * 4
        return a(b, 4) if r is None else a(b + r)
    def qi(R, qb, ds): return (8 * ds + qb) * 4
    def q(R, qb, ds):
        return a(R.qi(qb, ds), 4)
    def f(R, i, n=4, off=0):
        return a((8 * (i >> 2) + 4 + (i & 3)) * 4 + off, n)
    def psum(R, qb):
        if qb in MSUM: return v(R.SD + MSUM.index(qb) * 4)
        return v(R.PS + qb)

MF = "v_mfma_f32_16x16x32_bf16"

def kslot(u): return (u + 3) & 7
def vslot(u): return u & 7

class Item:
    def __init__(s, kind, text, lo, hi, tag=""):
        s.kind, s.text, s.lo, s.hi, s.tag = kind, text, lo, hi, tag

S0_AFTER, S1_AFTER = 9, 41
def pos(n):
    return n + (1 if n > S0_AFTER else 0) + (1 if n > S1_AFTER else 0)
NG = 66
POS_S0, POS_S1 = S0_AFTER + 1, S1_AFTER + 2
SHIFT = 4

def gap_types():
    t = [None] * NG
    for n in range(64):
        if n % 2 == 0: t[pos(n)] = "E"
    free = [g for g in range(NG) if t[g] is None]
    vv = CFG["vv"]; dm = CFG["dma"]
    for g in free:
        t[g] = "V" if g in vv else ("M" if g in dm else "D")
    return t

CFG = dict(vv=[pos(15), pos(19), pos(23), pos(57), pos(59), pos(61)], dma=[pos(5), pos(11), pos(27), pos(33)])

class AttnGen:
    def __init__(G, R, opt=None):
        G.R = R
        G.opt = opt or {}
        if 'cfg' in G.opt: CFG.update(G.opt['cfg'])
        G.types = gap_types()
        G.late = []
        G.extra_vm = {}; G.extra_bar = set(); G.after_bar = {}
        G.vm_init = []
        G.nD = G.types.count("D")
        assert G.nD >= 24, G.nD

    def mfma_list(G, p, do_pv, do_qk):
        R = G.R; par = p & 1
        L = [None] * NG
        for n in range(32):
            qb = ORDER[n >> 3]; db = n & 7
            L[pos(n)] = (f"{MF} {R.o(qb,db)}, {R.f(db)}, {R.p(par^1,qb)}, {R.o(qb,db)}", ("V", db)) if do_pv else None
        for n in range(32, 64):
            i = (n - 32) >> 2; kb = i >> 2; ds = i & 3; qb = ORDER[n & 3]
            c = R.negm(qb) if ds == 0 else R.s(par^1, qb, kb)
            L[pos(n)] = (f"{MF} {R.s(par^1,qb,kb)}, {R.f(8+i)}, {R.q(qb,ds)}, {c}", ("K", i)) if do_qk else None
        L[POS_S0] = (f"{MF} {v(R.SD,4)}, {v(R.ONES,4)}, {R.p(par,MSUM[0])}, 0", None)
        L[POS_S1] = (f"{MF} {v(R.SD+4,4)}, {v(R.ONES,4)}, {R.p(par,MSUM[1])}, 0", None)
        return L

    def exp_src(G, tile, e):
        qb = ORDER[e >> 3]; kb = (e >> 2) & 1; r = e & 3
        return G.R.s(tile & 1, qb, kb, r)
    def tmp(G, tile, e):
        return v(G.R.T + (tile * 32 + e) % G.R.NT)
    def exp_text(G, tile, e):
        return f"v_exp_f32 {G.tmp(tile,e)}, {G.exp_src(tile,e)}"
    def cvt_text(G, tile, e):
        qb = ORDER[e >> 3]; j = (e & 7) >> 1
        return f"v_cvt_pk_bf16_f32 {G.R.p(tile&1,qb,j)}, {G.tmp(tile,e)}, {G.tmp(tile,e+1)}"
    def exp_time(G, tile, e):
        k = e - SHIFT
        if k < 0: return (tile - 1) * NG + pos(64 + 2 * k)
        return tile * NG + pos(2 * k)

    def valu_items(G, tile):
        R = G.R; it = []; T0 = tile * NG
        nxtI = lambda t: t + 1
        for e in range(0, 32, 2):
            qb = ORDER[e >> 3]
            lo = G.exp_time(tile, e + 1) + 1
            if qb == MSUM[0]: hi = T0 + POS_S0 - 2
            elif qb == MSUM[1]: hi = T0 + POS_S1 - 2
            else: hi = T0 + NG + pos(8 * ORDER.index(qb)) - 2
            hi = min(hi, G.exp_time(tile, e) + 0 + self_reuse(G, tile, e))
            it.append(Item("V", G.cvt_text(tile, e), lo, hi, ("cvt", tile, e)))
        for qb in range(4):
            if qb in MSUM: continue
            b = ORDER.index(qb) * 8
            it.append(Item("V", f"v_add_f32 {R.psum(qb)}, {G.tmp(tile,b)}, {G.tmp(tile,b+1)}", G.exp_time(tile, b + 1) + 1,
                           G.exp_time(tile, b + 1) + 3, ("add", tile, qb, 1)))
            for j in range(2, 8):
                it.append(Item("V", f"v_add_f32 {R.psum(qb)}, {R.psum(qb)}, {G.tmp(tile,b+j)}", G.exp_time(tile, b + j) + 1,
                               G.exp_time(tile, b + j) + 3, ("add", tile, qb, j)))
        vq = [q for q in ORDER if q not in MSUM]
        last = G.exp_time(tile, 31) + 1
        it.append(Item("V", f"v_max3_f32 {v(R.CHK)}, {R.psum(MSUM[0])}, {R.psum(MSUM[1])}, {R.psum(vq[0])}", T0 + POS_S1 + 6, last, ("chk", tile, 0)))
        it.append(Item("V", f"v_max_f32 {v(R.CHK)}, {v(R.CHK)}, {R.psum(vq[1])}", last + 1, last + 2, ("chk", tile, 1)))
        it.append(Item("V", f"v_cmp_lt_f32 vcc, {s(R.sThr)}, {v(R.CHK)}", last + 1, last + 2, ("chk", tile, 2)))
        for qb in range(4):
            if qb == MSUM[0]: hi = T0 + NG + POS_S0 - 1
            elif qb == MSUM[1]: hi = T0 + NG + POS_S1 - 1
            else: hi = G.exp_time(tile + 1, ORDER.index(qb) * 8 + 1)
            it.append(Item("V", f"v_add_f32 {v(R.L+qb)}, {v(R.L+qb)}, {R.psum(qb)}", "afterchk", hi, ("ladd", tile, qb)))
        return it

    def ds_items(G, p):
        R = G.R; it = []
        ks = kslot(p + 1)
        for i in range(8):
            kb, ds = i >> 2, i & 3
            it.append((f"ds_read_b128 {R.f(8+i)}, {v(R.KADDR+ds)} offset:{ks*8192+kb*4096}", ("K", i), p * NG + 1, "K"))
        vs = vslot(p)
        for db in range(8):
            for h in range(2):
                it.append((f"ds_read_b64_tr_b16 {R.f(db,2,2*h)}, {v(R.VADDR+db)} offset:{vs*8192+h*4096}", ("V", db),
                           p * NG + pos(24 + db) + 1, "V"))
        return it

    def dma_items(G, p):
        R = G.R; out = []
        if p % 2 == 0 and p + 5 <= NSUB - 1:
            for n in range(4):
                pre = [f"s_add_u32 m0, {s(R.sM0K)}, {(p & 7) * 8192}"] if n == 0 else []
                post = [f"s_add_u32 {s(R.sKoff)}, {s(R.sKoff)}, 16384"] if n == 3 else []
                out.append((pre, f"buffer_load_dwordx4 {v(R.KDMA+n)}, {s(R.sK,4)}, {s(R.sKoff)} offen offset:{n*1024}{G.opt.get('kvmod','')} lds", ("KV", p // 2), post))
        if p % 2 == 1 and p + 3 <= NSUB - 1:
            for n in range(4):
                pre = [f"s_add_u32 m0, {s(R.sM0V)}, {((p + 3) & 7) * 8192}"] if n == 0 else []
                post = [f"s_add_u32 {s(R.sVoff)}, {s(R.sVoff)}, 16384"] if n == 3 else []
                out.append((pre, f"buffer_load_dwordx4 {v(R.VDMA+(n&1))}, {s(R.sV,4)}, {s(R.sVoff)} offen offset:{n*1024}{G.opt.get('kvmod','')} lds", ("KV", p // 2), post))
        if G.opt.get("nodma"): out = []
        return out + list(G.extra_vm.get(p, []))

    def schedule(G, first=0, last=NSUB - 1):
        R = G.R
        pend = []
        placed = {}
        periods = []
        for t in (first,):
            pend += [x for x in G.valu_items(t) if G.keep_first(x, t)]
        added = first
        G.chk_pos = {}
        for p in range(first, last + 1):
            do_pv = p > 0; do_qk = p < NSUB - 1
            M = G.mfma_list(p, do_pv, do_qk)
            dsq = G.ds_items(p)
            if not do_qk: dsq = [d for d in dsq if d[3] != "K"]
            vmq = G.dma_items(p)
            if p + 1 <= last + 1 and do_qk:
                pend += G.valu_items(p + 1)
            gaps = []
            e_next = {}
            for e in range(32):
                e_next[G.exp_time(p, e)] = (p, e)
                if do_qk: e_next[G.exp_time(p + 1, e)] = (p + 1, e)
            for g in range(NG):
                T = p * NG + g
                gap = dict(mfma=M[g], pre=[], body=[], post=[])
                ty = G.types[g]
                if ty == "E":
                    if T in e_next:
                        gap["body"].append(G.exp_text(*e_next[T]))
                else:
                    nv = 2 if ty == "V" else 1
                    if ty == "M" and G.opt.get("dmaalone"): nv = 0
                    if ty == "D":
                        if dsq and dsq[0][2] <= T:
                            d = dsq.pop(0); gap["body"].append(("DS", d[0], d[1]))
                        else:
                            nv = 2
                    n_m_left = sum(1 for gg in range(g, NG) if G.types[gg] == "M")
                    spare = (ty == "V" and g == G.opt.get("xgap", pos(23)) and len(vmq) > n_m_left)
                    if (ty == "M" or spare or (ty == "D" and nv == 2 and G.opt_fill(p))) and vmq:
                        x = vmq.pop(0)
                        if x[0]:
                            if x[2][0] == "KV": gaps[-1]["pre"] += x[0]
                            else: gap["pre"] += x[0] + ["s_nop 0"]
                        gap["body"].append(("VM", x[1], x[2])); nv = 1
                        gap["next_pre"] = list(x[3])
                    elif ty == "M":
                        nv = 2
                    for _ in range(nv):
                        ready = [x for x in pend if G.ready(x, T, placed)]
                        if not ready: break
                        ready.sort(key=lambda x: x.hi)
                        x = ready[0]; pend.remove(x); placed[x.tag] = T
                        if x.hi < T: G.late.append((x.tag, T, x.hi))
                        gap["body"].append(x.text)
                        if x.tag[0] == "chk" and x.tag[2] == 2:
                            gap["post"].append(("CHECK", p)); G.chk_pos[p] = T
                gaps.append(gap)
            assert not dsq, (p, dsq)
            assert not vmq, (p, vmq)
            for g in range(NG - 1):
                if gaps[g].get("next_pre"): gaps[g + 1]["pre"] = gaps[g]["next_pre"] + gaps[g + 1]["pre"]
            if (p % 2 == 0 or p in G.extra_bar) and not G.opt.get("nobar"):
                gaps[G.opt.get("barpos", 0)]["pre"] += [("VMWAIT", ("KV", p // 2 - 2)), "s_barrier"]
            for g, lst in G.after_bar.get(p, {}).items():
                gaps[g]["body"] = [("VM", x, ("X", p)) for x in lst] + gaps[g]["body"]
            periods.append(gaps)
        G.leftover = pend
        return periods
    late = []
    def opt_fill(G, p): return p == NSUB - 1
    def keep_first(G, x, t):
        return True
    def ready(G, x, T, placed):
        if x.lo == "afterchk":
            k = ("chk", x.tag[1], 2)
            return k in placed and placed[k] + G.opt.get("brdelay", 0) < T
        if x.lo > T: return False
        if x.tag[0] == "add" and x.tag[3] > 1:
            return ("add", x.tag[1], x.tag[2], x.tag[3] - 1) in placed
        if x.tag[0] == "chk" and x.tag[2] > 0:
            if ("chk", x.tag[1], x.tag[2] - 1) not in placed: return False
            vq = [q for q in ORDER if q not in MSUM]
            return ("add", x.tag[1], vq[1], 7) in placed
        if x.tag[0] == "chk" and x.tag[2] == 0:
            vq = [q for q in ORDER if q not in MSUM]
            return ("add", x.tag[1], vq[0], 7) in placed
        return True

def self_reuse(G, tile, e):
    nxt = tile * 32 + e + G.R.NT
    t2, e2 = divmod(nxt, 32)
    return G.exp_time(t2, e2) - G.exp_time(tile, e) - 1


class AttnEmit(AttnGen):
    def linearise(G, periods, first):
        out = []
        fifo = []
        vm = list(G.vm_init)
        done = set()
        seq = []
        for k, gaps in enumerate(periods):
            for g, gap in enumerate(gaps): seq.append((k, g, gap))
        lists = [[] for _ in periods]
        pendchk = None
        vkeys = {}
        for n, (k, g, gap) in enumerate(seq):
            L = lists[k]
            m = gap["mfma"]
            L.append(m[0] if m else "s_nop 0")
            pre = []
            for x in gap["pre"]:
                if isinstance(x, tuple) and x[0] == "VMWAIT":
                    if x[1] in vm:
                        lastv = max(i for i, y in enumerate(vm) if y == x[1])
                        pre.append(f"s_waitcnt vmcnt({len(vm) - 1 - lastv})"); vm = vm[lastv + 1:]
                else:
                    pre.append(x)
            if pendchk is not None:
                if pendchk[1] <= 0:
                    pre.append(("CHECK", pendchk[0])); pendchk = None
                else:
                    pendchk = (pendchk[0], pendchk[1] - 1)
            nxt = seq[n + 1][2]["mfma"] if n + 1 < len(seq) else None
            if nxt and nxt[1] is not None and nxt[1] in fifo:
                last = max(i for i, x in enumerate(fifo) if x == nxt[1])
                cnt = len(fifo) - 1 - last
                if not G.opt.get("nolgkm"): pre.append(f"s_waitcnt lgkmcnt({min(cnt, 15)})")
                fifo = fifo[len(fifo) - min(cnt, 15):] if cnt > 0 else []
            L += pre
            body = gap["body"]
            nval = sum(1 for b in body if isinstance(b, str) and b.startswith("v_"))
            if not pre and nval >= 2 and not isinstance(body[0], tuple):
                L.append("s_nop 0")
            for b in body:
                if isinstance(b, tuple) and b[0] == "VM":
                    L.append(b[1]); vm.append(b[2])
                elif isinstance(b, tuple):
                    L.append(b[1]); fifo.append(b[2])
                else:
                    L.append(b)
            for x in gap["post"]:
                pendchk = (x[1], G.opt.get("brdelay", 0))
        G.final_fifo = fifo; G.final_vm = vm
        assert pendchk is None
        return lists

    def xlane(G, A, reg, t0, op):
        for sw in ("v_permlane32_swap_b32", "v_permlane16_swap_b32"):
            A.e(f"v_mov_b32 {t0}, {reg}")
            A.e("s_nop 1")
            A.e(f"{sw} {t0}, {reg}")
            A.e("s_nop 1")
            A.e(f"{op} {reg}, {t0}, {reg}")

    def rare(G, A, p, redo, label):
        R = G.R; par = p & 1
        t0, t1, dl, fc = v(R.TMP), v(R.TMP + 1), v(R.TMP + 2), v(R.TMP + 3)
        A.label(label)
        A.e("s_nop 15")
        for qb in range(4):
            S = [R.s(par, qb, kb, r) for kb in range(2) for r in range(4)]
            A.e(f"v_max3_f32 {dl}, {S[0]}, {S[1]}, {S[2]}")
            A.e(f"v_max3_f32 {dl}, {dl}, {S[3]}, {S[4]}")
            A.e(f"v_max3_f32 {dl}, {dl}, {S[5]}, {S[6]}")
            A.e(f"v_max3_f32 {dl}, {dl}, {S[7]}, 0")
            G.xlane(A, dl, t0, "v_max_f32")
            A.e(f"v_sub_f32 {fc}, 0, {dl}")
            A.e(f"v_exp_f32 {fc}, {fc}")
            for r in range(4):
                A.e(f"v_sub_f32 {R.negm(qb,r)}, {R.negm(qb,r)}, {dl}")
            for x in S:
                A.e(f"v_sub_f32 {x}, {x}, {dl}")
            for kb in range(2):
                for r in range(4):
                    x = R.s(par ^ 1, qb, kb, r)
                    A.e(f"v_sub_f32 {x}, {x}, {dl}")
            A.e(f"v_mul_f32 {v(R.L+qb)}, {v(R.L+qb)}, {fc}")
            for db in range(8):
                for r in range(4):
                    A.e(f"v_accvgpr_read_b32 {t1}, {R.o(qb,db,r)}")
                    A.e(f"v_mul_f32 {t1}, {t1}, {fc}")
                    A.e(f"v_accvgpr_write_b32 {R.o(qb,db,r)}, {t1}")
        for b in range(4):
            qb = ORDER[b]
            ps = R.psum(qb)
            for j in range(8):
                e = b * 8 + j
                A.e(G.exp_text(p, e))
                A.e("s_nop 0")
                if j == 1:
                    A.e(f"v_add_f32 {ps}, {G.tmp(p,e-1)}, {G.tmp(p,e)}")
                elif j > 1:
                    A.e(f"v_add_f32 {ps}, {ps}, {G.tmp(p,e)}")
                if j & 1:
                    A.e(G.cvt_text(p, e - 1))
            if qb in MSUM:
                G.xlane(A, ps, t0, "v_add_f32")
        for x in redo:
            A.e(x)
            A.e("s_nop 0")
        A.e("s_nop 3")
        A.e(f"s_setpc_b64 {s(R.sRet,2)}")

    def setup_reads(G, A, lane):
        R = G.R
        t = [v(R.TMP + i) for i in range(8)]
        m, g, i2 = t[0], t[1], t[2]
        A.e(f"v_and_b32 {m}, 15, {lane}")
        A.e(f"v_lshrrev_b32 {g}, 4, {lane}")
        for ds in range(4):
            A.e(f"v_add_u32 {t[4]}, {4*ds}, {g}")
            A.e(f"v_xor_b32 {t[4]}, {t[4]}, {m}")
            A.e(f"v_lshlrev_b32 {t[4]}, 4, {t[4]}")
            A.e(f"v_lshl_add_u32 {v(R.KADDR+ds)}, {m}, 8, {t[4]}")
        A.e(f"v_lshrrev_b32 {i2}, 2, {m}")
        A.e(f"v_lshl_add_u32 {t[4]}, {g}, 2, {i2}")
        A.e(f"v_and_b32 {t[5]}, 7, {t[4]}")
        A.e(f"v_lshlrev_b32 {t[4]}, 8, {t[4]}")
        A.e(f"v_add_u32 {t[4]}, 0x10000, {t[4]}")
        A.e(f"v_bfe_u32 {t[6]}, {m}, 1, 1")
        A.e(f"v_lshl_add_u32 {t[4]}, {t[6]}, 4, {t[4]}")
        A.e(f"v_and_b32 {t[6]}, 1, {m}")
        A.e(f"v_lshl_add_u32 {t[4]}, {t[6]}, 3, {t[4]}")
        for db in range(8):
            A.e(f"v_xor_b32 {t[6]}, {db}, {t[5]}")
            A.e(f"v_lshl_add_u32 {v(R.VADDR+db)}, {t[6]}, 5, {t[4]}")

    def setup_dma(G, A, lane, wave_s, tbase):
        R = G.R
        m, g, t4, t5 = v(tbase), v(tbase + 1), v(tbase + 2), v(tbase + 3)
        A.e(f"v_and_b32 {m}, 15, {lane}")
        A.e(f"v_lshrrev_b32 {g}, 4, {lane}")
        A.e(f"s_lshl_b32 {s(R.sTmp)}, {wave_s}, 12")
        A.e(f"v_lshl_add_u32 {t4}, {g}, 8, {s(R.sTmp)}")
        for n in range(4):
            A.e(f"v_add_u32 {t5}, {4*n}, {g}")
            A.e(f"v_xor_b32 {t5}, {t5}, {m}")
            A.e(f"v_lshl_add_u32 {v(R.KDMA+n)}, {t5}, 4, {t4}")
        for n in range(2):
            A.e(f"v_add_u32 {t5}, {4*n}, {g}")
            A.e(f"v_lshlrev_b32 {t5}, 1, {t5}")
            A.e(f"v_xor_b32 {t5}, {t5}, {m}")
            A.e(f"v_lshl_add_u32 {v(R.VDMA+n)}, {t5}, 4, {t4}")
        A.e(f"s_mov_b32 {s(R.sM0K)}, {s(R.sTmp)}")
        A.e(f"s_add_u32 {s(R.sM0V)}, {s(R.sTmp)}, 0x10000")
        A.e(f"s_mov_b32 {s(R.sThr)}, {THR}")

    def initial_dma_ops(G):
        R = G.R; ops = []
        for pair in range(3):
            base = kslot(2 * pair) * 8192
            for n in range(4):
                pre = [f"s_add_u32 m0, {s(R.sM0K)}, {base}", "s_and_b32 m0, m0, 0xffff", f"s_mov_b32 {s(R.sTmp)}, {pair*16384}"] if n == 0 else []
                ops.append((pre, f"buffer_load_dwordx4 {v(R.KDMA+n)}, {s(R.sK,4)}, {s(R.sTmp)} offen offset:{n*1024}{G.opt.get('kvmod','')} lds"))
        for pair in range(2):
            for n in range(4):
                pre = [f"s_add_u32 m0, {s(R.sM0V)}, {pair*16384}", f"s_mov_b32 {s(R.sTmp)}, {pair*16384}"] if n == 0 else []
                ops.append((pre, f"buffer_load_dwordx4 {v(R.VDMA+(n&1))}, {s(R.sV,4)}, {s(R.sTmp)} offen offset:{n*1024}{G.opt.get('kvmod','')} lds"))
        return ops

    def init_offsets(G, A):
        R = G.R
        A.e(f"s_mov_b32 {s(R.sKoff)}, {5*8192}")
        A.e(f"s_mov_b32 {s(R.sVoff)}, {4*8192}")

    def initial_dma(G, A):
        for pre, ins in G.initial_dma_ops():
            for x in pre: A.e(x)
            A.e(ins)
        G.init_offsets(A)

    def prologue(G, A, vmcnt=0):
        R = G.R
        A.e(f"s_waitcnt vmcnt({vmcnt})")
        A.e("s_barrier")
        ks = kslot(0)
        for i in range(8):
            kb, ds = i >> 2, i & 3
            A.e(f"ds_read_b128 {R.f(8+i)}, {v(R.KADDR+ds)} offset:{ks*8192+kb*4096}")
        for i in range(4): A.e(f"v_mov_b32 {v(R.ONES+i)}, 0x3f803f80")
        for i in range(4): A.e(f"v_mov_b32 {v(R.L+i)}, 0")
        for i in range(128): A.e(f"v_accvgpr_write_b32 {a(R.O+i)}, 0")
        A.e("s_waitcnt lgkmcnt(0)")
        for i in range(8):
            kb, ds = i >> 2, i & 3
            for qb in range(4):
                c = "0" if ds == 0 else R.s(0, qb, kb)
                A.e(f"{MF} {R.s(0,qb,kb)}, {R.f(8+i)}, {R.q(qb,ds)}, {c}")
        A.e("s_nop 7")
        t0, dl = v(R.TMP), v(R.TMP + 2)
        for qb in range(4):
            S = [R.s(0, qb, kb, r) for kb in range(2) for r in range(4)]
            A.e(f"v_max3_f32 {dl}, {S[0]}, {S[1]}, {S[2]}")
            A.e(f"v_max3_f32 {dl}, {dl}, {S[3]}, {S[4]}")
            A.e(f"v_max3_f32 {dl}, {dl}, {S[5]}, {S[6]}")
            A.e(f"v_max_f32 {dl}, {dl}, {S[7]}")
            G.xlane(A, dl, t0, "v_max_f32")
            for r in range(4): A.e(f"v_sub_f32 {R.negm(qb,r)}, 0, {dl}")
            for x in S: A.e(f"v_sub_f32 {x}, {x}, {dl}")
        for e in range(SHIFT):
            A.e(G.exp_text(0, e))
        A.e("s_nop 1")

    def body(G, A, prefix):
        R = G.R
        G.late = []
        periods = G.schedule()
        lists = G.linearise(periods, 0)
        G.late_report = list(G.late)
        G.lists = lists
        rare = {}
        G.stubs = []
        def emit(p, tagp):
            L = lists[p]
            for k, x in enumerate(L):
                if isinstance(x, tuple):
                    tile = x[1]
                    redo = [y for y in L[:k] if isinstance(y, str) and G.is_next_tile(y, tile)]
                    key = (tile & 1, tuple(redo))
                    if key not in rare: rare[key] = (f"{prefix}_rare{len(rare)}", tile, redo)
                    if G.opt.get("nochk"): continue
                    if G.opt.get("farbranch"):
                        A.e(f"s_cbranch_vccnz {prefix}_stub{tagp}")
                        A.label(f"{prefix}_ok{tagp}")
                        G.stubs.append((f"{prefix}_stub{tagp}", rare[key][0], f"{prefix}_ok{tagp}"))
                        continue
                    A.e(f"s_cbranch_vccz {prefix}_ok{tagp}")
                    A.e(f"s_call_b64 {s(R.sRet,2)}, {rare[key][0]}")
                    A.label(f"{prefix}_ok{tagp}")
                else:
                    A.e(x)
        return lists, rare, emit

    def is_next_tile(G, text, tile):
        for e in range(SHIFT):
            if text == G.exp_text(tile + 1, e): return True
        for e in range(0, SHIFT, 2):
            if text == G.cvt_text(tile + 1, e): return True
        return False


    def emit_all(G, A, prefix, pv_fill=None, gate=None):
        R = G.R
        lists, rare, emit = G.body(A, prefix)
        G.rare_paths = rare
        txt = lambda p: [x if isinstance(x, str) else ("CHECK",) for x in lists[p]]
        for p in range(1, 49):
            assert txt(p) == txt(p + 8), p
        emit(0, "p0")
        A.e(f"s_mov_b32 {s(R.sLoop)}, 7")
        A.e(".p2align 6")
        A.label(f"{prefix}_loop")
        for p in range(1, 9): emit(p, f"l{p}")
        A.e(f"s_sub_u32 {s(R.sLoop)}, {s(R.sLoop)}, 1")
        A.e(f"s_cmp_lg_u32 {s(R.sLoop)}, 0")
        A.e(f"s_cbranch_scc1 {prefix}_loop")
        for p in range(57, 64): emit(p, f"t{p}")
        pend = list(G.leftover)
        order = {"cvt": 0, "ladd": 1}
        pend.sort(key=lambda x: order[x.tag[0]])
        for x in pend: A.e(x.text)
        A.e("s_waitcnt lgkmcnt(0)")
        A.e("s_nop 1")
        if gate: gate(A)
        par = (NSUB - 1) & 1
        for n in range(32):
            qb = ORDER[n >> 3]; db = n & 7
            A.e(f"{MF} {R.o(qb,db)}, {R.f(db)}, {R.p(par,qb)}, {R.o(qb,db)}")
            if pv_fill and n % 2 == 1 and pv_fill:
                for x in pv_fill.pop(0): A.e(x)

    def emit_rare(G, A):
        for st, tgt, back in G.stubs:
            A.label(st)
            A.e(f"s_call_b64 {s(G.R.sRet,2)}, {tgt}")
            A.e(f"s_branch {back}")
        for key, (label, tile, redo) in G.rare_paths.items():
            G.rare(A, tile, redo, label)

    def trace(G):
        out = []
        for L in G.lists:
            for x in L:
                out.append(x if isinstance(x, str) else "s_cbranch_vccz x")
        return out

    def epilogue(G, A, srd, voff, soff_reg):
        R = G.R
        t0 = v(R.TMP)
        for qb in range(4):
            l = v(R.L + qb)
            if qb not in MSUM: G.xlane(A, l, t0, "v_add_f32")
            A.e(f"v_rcp_f32 {l}, {l}")
        A.e("s_nop 7")
        buf = [R.S, R.S + 8, R.S + 16, R.S + 24]
        k = 0
        for qb in range(4):
            for sx in range(4):
                b = R.S + (k % 8) * 8; k += 1
                for h in range(2):
                    for r in range(4):
                        A.e(f"v_accvgpr_read_b32 {v(b+4*h+r)}, {R.o(qb,2*sx+h,r)}")
                for j in range(8):
                    A.e(f"v_mul_f32 {v(b+j)}, {v(b+j)}, {v(R.L+qb)}")
                for j in range(4):
                    A.e(f"v_cvt_pk_bf16_f32 {v(b+j)}, {v(b+2*j)}, {v(b+2*j+1)}")
                A.e(f"s_add_u32 {s(R.sTmp)}, {soff_reg}, {sx*16384}")
                A.e(f"buffer_store_dwordx4 {v(b,4)}, {voff}, {srd}, {s(R.sTmp)} offen offset:{qb*1024}{G.opt.get('stmod','')}")

    def epilogue_pack(G, A, dst, tmp, linv, fill, store=None):
        R = G.R
        t0 = v(R.TMP)
        for qb in range(4):
            l = v(R.L + qb)
            if qb not in MSUM: G.xlane(A, l, t0, "v_add_f32")
            A.e(f"v_rcp_f32 {v(linv+qb)}, {l}")
        A.e("s_nop 7")
        k = 0
        for qb in ORDER:
            for sx in range(4):
                b = tmp + (k % 2) * 8; k += 1
                d = dst + 4 * (4 * sx + qb)
                for h in range(2):
                    for r in range(4):
                        A.e(f"v_accvgpr_read_b32 {v(b+4*h+r)}, {R.o(qb,2*sx+h,r)}")
                for j in range(0, 8, 2):
                    A.e(f"v_pk_mul_f32 {v(b+j,2)}, {v(b+j,2)}, {v(linv+qb)} op_sel_hi:[1,0]") if False else None
                for j in range(8):
                    A.e(f"v_mul_f32 {v(b+j)}, {v(b+j)}, {v(linv+qb)}")
                for j in range(4):
                    A.e(f"v_cvt_pk_bf16_f32 {v(d+j)}, {v(b+2*j)}, {v(b+2*j+1)}")
                if store: store(sx, qb, d)
                if fill:
                    for x in fill.pop(0): A.e(x)
        while fill:
            for x in fill.pop(0): A.e(x)
```

```python
from asmgen import *
from layout import *
import attn, phasea, k2, checker, lnfuse, tail
from phasea import Lin, f32

SPIN_LIMIT = 200000

def gen_mega(name, opt=None, stamps=False):
    opt = opt or {}
    SC = " sc1"
    RA = phasea.RegsA(); PA = phasea.PhaseA(RA); PA.stmod = opt.get('hst', SC); PA.dist = opt.get('distA', 3); PA.ldmod = opt.get('wld', '')
    R = attn.Regs(vbase=8)
    G = attn.AttnEmit(R, dict(farbranch=1, brdelay=2, barpos=1, stmod=SC, kvmod=opt.get('kvld', ''), **opt.get("attn", {})))
    P = tail.Tail(opt.get("tail", {}))
    assert RA.vend <= R.KDMA and R.vend <= P.DV and R.L >= 152
    A = Asm()
    A(kernel_head(name))
    sX, sOut, sWo, sDbg, sWd = 26, 28, 30, 32, 96
    sPart, sI, sCt, sHF, sOF, sPF, sPoll = 53, 54, 55, 56, 57, 58, 59
    ONE, ZERO, DBGV, PFV = 254, 255, 246, 240
    nst = [0]
    def stamp(dst=None):
        if not stamps: return
        o = dst or A
        o.e("s_memrealtime s[88:89]" if opt.get("rt") else "s_memtime s[88:89]"); o.e("s_waitcnt lgkmcnt(0)")
        if isinstance(o, Lin): o.ds = []
        o.e("s_sub_u32 s88, s88, s92" if opt.get("rt") else "s_sub_u32 s88, s88, s90")
        o.e(f"v_writelane_b32 v253, s88, {nst[0]}"); nst[0] += 1

    A.e("s_cmp_ge_u32 s2, 256")
    A.e(f"s_cbranch_scc0 {name}_go")
    A.e("s_endpgm")
    A.label(f"{name}_go")
    A.e("s_load_dwordx4 s[4:7], s[0:1], 8")
    A.e("s_load_dwordx2 s[8:9], s[0:1], 24")
    A.e("s_load_dwordx4 s[20:23], s[0:1], 48")
    A.e("s_load_dwordx2 s[10:11], s[0:1], 88")
    A.e(f"s_load_dwordx2 {s(sX,2)}, s[0:1], 0")
    A.e(f"s_load_dwordx2 {s(sOut,2)}, s[0:1], 72")
    A.e(f"s_load_dwordx2 {s(sWo,2)}, s[0:1], 32")
    A.e(f"s_load_dwordx2 {s(sWd,2)}, s[0:1], 64")
    A.e(f"s_load_dwordx2 {s(sDbg,2)}, s[0:1], 80")
    if stamps:
        A.e("s_memtime s[90:91]"); A.e("s_memrealtime s[92:93]")
    A.e("v_lshrrev_b32 v1, 6, v0")
    A.e("v_and_b32 v2, 63, v0")
    A.e("v_readfirstlane_b32 s12, v1")
    A.e(f"s_and_b32 {s(sPart)}, s2, 7")
    A.e(f"s_lshr_b32 {s(sI)}, s2, 3")
    A.e(f"s_and_b32 {s(sCt)}, {s(sI)}, 3")
    A.e(f"s_lshl_b32 s13, {s(sPart)}, 2")
    A.e(f"s_add_u32 s13, s13, {s(sCt)}")
    A.e(f"s_lshr_b32 s14, {s(sI)}, 2")
    A.e("s_lshr_b32 s15, s13, 1")
    A.e("s_lshl_b32 s15, s15, 19")
    A.e("v_lshlrev_b32 v3, 4, v2")
    A.e(f"v_mov_b32 v{ONE}, 1"); A.e(f"v_mov_b32 v{ZERO}, 0")
    A.e("s_waitcnt lgkmcnt(0)")
    A.e(f"s_add_u32 {s(R.sK)}, s4, s15"); A.e(f"s_addc_u32 {s(R.sK+1)}, s5, 0")
    A.e(f"s_mov_b32 {s(R.sK+2)}, 524288"); A.e(f"s_mov_b32 {s(R.sK+3)}, 0x20000")
    A.e(f"s_add_u32 {s(R.sV)}, s6, s15"); A.e(f"s_addc_u32 {s(R.sV+1)}, s7, 0")
    A.e(f"s_mov_b32 {s(R.sV+2)}, 524288"); A.e(f"s_mov_b32 {s(R.sV+3)}, 0x20000")
    A.e("s_mov_b32 s16, s10"); A.e("s_mov_b32 s17, s11"); A.e(f"s_mov_b32 s18, {WS_RANGE}"); A.e("s_mov_b32 s19, 0x20000")
    A.e(f"s_mov_b32 {s(sDbg+2)}, 256"); A.e(f"s_mov_b32 {s(sDbg+3)}, 0x20000")
    A.e("s_lshl_b32 s24, s14, 2"); A.e("s_lshr_b32 s25, s13, 3"); A.e("s_add_u32 s24, s24, s25"); A.e("s_lshl_b32 s24, s24, 7")
    A.e("s_and_b32 s25, s13, 7"); A.e("s_lshl_b32 s25, s25, 2"); A.e("s_add_u32 s24, s24, s25")
    A.e(f"s_add_u32 {s(sHF)}, s24, {FLAG_OFF}"); A.e(f"s_add_u32 {s(sOF)}, {s(sHF)}, 8192")
    A.e(f"s_and_b32 s24, {s(sPart)}, 3"); A.e("s_lshl_b32 s25, s14, 2"); A.e("s_add_u32 s24, s24, s25"); A.e("s_lshl_b32 s24, s24, 7")
    A.e(f"s_cmp_lt_u32 {s(sPart)}, 4"); A.e("s_cselect_b32 s25, 8192, 0"); A.e("s_add_u32 s24, s24, s25")
    A.e(f"s_add_u32 {s(sPoll)}, s24, {FLAG_OFF}")
    A.e(f"s_lshl_b32 s24, {s(sI)}, 7"); A.e(f"s_lshl_b32 s25, {s(sPart)}, 2"); A.e("s_add_u32 s24, s24, s25")
    A.e(f"s_add_u32 {s(sPF)}, s24, {FLAG_OFF + 16384}")
    def code_prefetch(dst, nk):
        lab = f"{name}_pc{dst}"
        A.e("s_getpc_b64 s[24:25]")
        A.label(lab)
        A.e(f"s_lshl_b32 s15, {s(sI)}, 2"); A.e("s_add_u32 s15, s15, s12"); A.e("s_lshl_b32 s15, s15, 10")
        for k in range(nk):
            A.e(f"v_add_u32 v4, s15, v3")
            if k: A.e(f"v_add_u32 v4, {k*131072}, v4")
            A.e(f"v_min_u32 v4, {name}_end-{lab}-16, v4")
            A.e("v_mov_b32 v5, s25")
            A.e("v_add_co_u32 v4, vcc, s24, v4")
            A.e("s_nop 1")
            A.e("v_addc_co_u32 v5, vcc, 0, v5, vcc")
            A.e(f"global_load_dwordx4 {v(dst+4*k,4)}, v[4:5], off")
    if not opt.get("nocpf"): code_prefetch(60, 1)
    for f in (sHF, sOF, sPF):
        A.e(f"buffer_store_dword v{ZERO}, off, s[16:19], {s(f)}{SC}")
    A.e("s_lshl_b32 s98, s14, 5")
    RAW, LT, LF = 8, 20, 28
    A.e(f"s_mov_b32 s84, {s(sX)}"); A.e(f"s_mov_b32 s85, {s(sX+1)}"); A.e(f"s_mov_b32 s86, {2048*1152}"); A.e("s_mov_b32 s87, 0x20000")
    lnfuse.ln_loads(A, "v2", "s12", "s13", "s14", "s[84:87]", RAW, LT, 4)
    ptr = {"wq": 8, "Wg": 20, "Wu": 22}
    PA.setup(A, "v2", "s12", "s13", "s14", lambda n: ptr[n])
    G.setup_dma(A, "v2", "s12", 4)
    A.e("s_lshl_b32 s24, s14, 7"); A.e("s_lshl_b32 s25, s13, 2"); A.e("s_add_u32 s24, s24, s25")
    A.e("s_lshl_b32 s24, s24, 14"); A.e("s_lshl_b32 s25, s12, 12"); A.e("s_add_u32 s24, s24, s25")
    A.e(f"s_add_u32 s24, s24, {O_OFF}")

    stamp()
    L = Lin()
    def after_w0(L_):
        T_ = Asm()
        lnfuse.ln_compute(T_, "v2", "s12", "s13", "s14", "s[16:19]", RAW, LT, LF, 4, 13)
        for x in T_.lines: L_.e(x.strip())
        L_.e("s_waitcnt vmcnt(0)")
        L_.e("s_barrier")
        L_.e("s_cmp_eq_u32 s12, 0"); L_.e(f"s_cbranch_scc0 {name}_noann")
        L_.e("s_mov_b64 exec, 1")
        L_.e(f"buffer_atomic_add v{ONE}, off, {s(sDbg,4)}, s98")
        L_.e("s_mov_b64 exec, -1")
        L_.e(f"{name}_noann:")
        if stamps: stamp(L_)
    def wait_xn(L_):
        L_.e("s_mov_b32 s15, 0")
        L_.e(f"{name}_xn_spin:")
        L_.e(f"buffer_load_dword v{DBGV}, off, {s(sDbg,4)}, s98{SC}")
        L_.e("s_waitcnt vmcnt(0)")
        L_.e(f"v_readfirstlane_b32 s25, v{DBGV}")
        L_.e("s_add_u32 s15, s15, 1")
        L_.e(f"s_cmp_ge_u32 s15, {SPIN_LIMIT}"); L_.e(f"s_cbranch_scc1 {name}_xn_ok")
        L_.e("s_cmp_ge_u32 s25, 32"); L_.e(f"s_cbranch_scc0 {name}_xn_spin")
        L_.e(f"{name}_xn_ok:")
        if stamps: stamp(L_)
    PA.xmod = SC
    kvpf = None
    if not opt.get("nokvpf"):
        kvpf = {opt.get("kvpf_ks", 8): [
            (["s_lshl_b32 s25, s14, 1", "s_and_b32 s15, s13, 1", "s_add_u32 s25, s25, s15", "s_mul_i32 s15, s25, 3072",
              "s_lshl_b32 s3, s12, 10", "s_add_u32 s15, s15, s3"],
             f"buffer_load_dwordx4 v[4:7], v3, {s(R.sK,4)}, s15 offen", ("PF", 0)),
            (["s_lshl_b32 s25, s25, 11", "s_and_b32 s3, s12, 1", "s_lshl_b32 s3, s3, 10", "s_add_u32 s25, s25, s3"],
             f"buffer_load_dwordx4 v[4:7], v3, {s(R.sV,4)}, s25 offen", ("PF", 1))]}
    PA.main(L, "v3", (after_w0, wait_xn), (lambda L_: stamp(L_)) if opt.get('afine') else None, kvpf, G.initial_dma_ops())
    for x in L.out:
        if x.endswith(":"): A.label(x[:-1])
        else: A.e(x)
    stamp()
    A.e("v_lshlrev_b32 v1, 3, v2")
    A.e("s_nop 7")
    for sx in (0, 1):
        for rb in range(4):
            d = PA.h_unit(A, sx, rb); PA.h_store(A, sx, rb, d)
    if opt.get("estamp"): stamp()
    HB3 = 208
    h2 = []
    for sx in (2, 3):
        for rb in range(4):
            h2.append((sx, rb, PA.h_unit(A, sx, rb)))
    h3 = [(4, rb, PA.h_unit(A, 4, rb, HB3 + 2 * rb)) for rb in range(4)]
    if opt.get("estamp"): stamp()
    PA.epilogue_q(A, R.qi, RA.A)
    if opt.get("estamp"): stamp()
    for sx, rb, d in h2: PA.h_store(A, sx, rb, d)
    stamp()
    G.setup_reads(A, "v2")
    G.init_offsets(A)
    P.setup(A, "s12", s(sPart), s(sCt), "s14", sWo, sWd, 10)
    A.e(f"s_lshl_b32 s22, {s(sI)}, 2"); A.e("s_add_u32 s22, s22, s12")
    A.e(f"s_mul_i32 s20, {s(P.sNk)}, {32*1152//128}"); A.e("s_mul_i32 s20, s20, s22")
    NH = 16
    G.vm_init = [("H", 0)] * 18 + [("KV", -1)] + [("H", 0)] * (0 if opt.get("nopf") else 1)
    if opt.get("estamp"):
        stamp(); A.e(f"s_waitcnt vmcnt({NH})"); stamp(); A.e("s_barrier"); stamp()
    G.prologue(A, NH)
    if opt.get("estamp"): stamp()
    for sx, rb, d in h3: PA.h_store(A, sx, rb, d)
    stamp()
    flag_h = f"buffer_store_dword v{ONE}, off, s[16:19], {s(sHF)}{SC}"
    def pf(srd, off):
        return ([], f"buffer_load_dwordx4 {v(PFV,4)}, v3, {s(srd,4)}, {off} offen{opt.get('pfld','')}", ("PF", 0), [f"s_add_u32 {off}, {off}, 1024"])
    G.after_bar = {p: {3: [flag_h]} for p in range(4, 57, 8)}
    if not opt.get("nopf"):
        for p in range(1, 57):
            if p % 4 == 3: G.extra_vm[p] = [pf(P.sW, "s20")]
    w0 = [(pre, ins, ("W", 0), []) for pre, ins in P.dma(0)]
    G.extra_vm[63] = w0
    G.extra_bar = {63}
    vlane = "v231"
    G.extra_vm[61] = [([f"v_min_u32 {vlane}, 7, v2", f"v_lshlrev_b32 {vlane}, 2, {vlane}"],
                       f"buffer_load_dword {v(P.FL)}, {vlane}, s[16:19], {s(sPoll)} offen{SC}", ("X", 0), [])]
    grp = lambda ops: [pre + (["s_nop 0"] if pre else []) + [ins] for pre, ins in ops]
    def spin(load, test, lab):
        A.e("s_mov_b32 s15, 0")
        A.label(f"{name}_{lab}")
        A.e(load)
        A.e("s_waitcnt vmcnt(0)")
        for x in test: A.e(x)
        A.e("s_add_u32 s15, s15, 1")
        A.e(f"s_cmp_ge_u32 s15, {SPIN_LIMIT}"); A.e(f"s_cbranch_scc1 {name}_{lab}_ok")
        A.e("s_sleep 2")
        A.e(f"s_branch {name}_{lab}")
    G.emit_all(A, name)
    stamp()
    A.e("s_barrier")
    def ostore(sx, qb, d):
        if opt.get("noostore"):
            A.e("s_nop 0"); A.e(f"buffer_load_dword v5, off, {s(sDbg,4)}, 0"); return
        A.e(f"s_add_u32 s25, s24, {sx*16384}")
        A.e(f"buffer_store_dwordx4 {v(d,4)}, v3, s[16:19], s25 offen offset:{qb*1024}{SC}")
    oflag = f"buffer_store_dword v{ONE}, off, s[16:19], {s(sOF)}{SC}"
    def emit(L_):
        for x in L_.out:
            if x.endswith(":"): A.label(x[:-1])
            else: A.e(x)
    def issue(ops):
        for g_ in grp(ops):
            for x in g_: A.e(x)
    cst = (lambda L_: stamp(L_)) if opt.get("cstamp") else None
    G.epilogue_pack(A, P.OS, P.AF, 4, [], ostore)
    issue(P.dma(1)); issue(P.dma(2))
    A.e(f"s_cmp_lt_u32 {s(sPart)}, 4"); A.e(f"s_cbranch_scc1 {name}_role_s")
    A.e("s_waitcnt vmcnt(43)")
    A.e(f"v_cmp_ne_u32 vcc, 1, {v(P.FL)}")
    A.e("s_nop 0")
    A.e(f"s_cbranch_vccnz {name}_slowh")
    A.label(f"{name}_h_ok")
    NPRE = 4
    for k in range(NPRE): issue(P.bload(k))
    A.e(f"s_waitcnt vmcnt({18 + 4*NPRE})")
    A.e("s_barrier")
    A.e(oflag)
    n0 = nst[0]
    stamp()
    L = Lin()
    L.vm = [("W", 1)] * 9 + [("W", 2)] * 9 + [("B", k) for k in range(NPRE) for _ in range(4)] + [("F", 0)]
    P.main(L, "d", NPRE, None, 0, cst)
    L.e("s_nop 7")
    emit(L)
    A.e(f"s_branch {name}_join")
    n1 = nst[0]; nst[0] = n0
    A.label(f"{name}_role_s")
    A.e("s_waitcnt vmcnt(18)")
    A.e("s_barrier")
    A.e(oflag)
    A.e("s_mov_b32 s15, 0")
    A.label(f"{name}_pollo")
    A.e(f"buffer_load_dword {v(P.FL)}, {vlane}, s[16:19], {s(sPoll)} offen{SC}")
    A.e("s_waitcnt vmcnt(0)")
    A.e(f"v_cmp_ne_u32 vcc, 1, {v(P.FL)}")
    A.e("s_nop 0")
    A.e(f"s_cbranch_vccz {name}_pollo_ok")
    A.e("s_add_u32 s15, s15, 1")
    A.e(f"s_cmp_ge_u32 s15, {SPIN_LIMIT}"); A.e(f"s_cbranch_scc1 {name}_pollo_ok")
    A.e("s_sleep 1")
    A.e(f"s_branch {name}_pollo")
    A.label(f"{name}_pollo_ok")
    stamp()
    L = Lin()
    for k in range(4):
        for pre, ins in P.bload(k):
            for x in pre: L.e(x)
            L.vm_op(ins, ("B", k))
    P.main(L, "s", 4, None, 0, cst)
    L.e("s_nop 7")
    emit(L)
    if opt.get("cstamp"):
        assert nst[0] == n1 - 1
        stamp()
    nst[0] = max(nst[0], n1)
    A.label(f"{name}_join")
    stamp()
    L = Lin()
    L.e("s_waitcnt vmcnt(20) lgkmcnt(0)")
    P.store_partials(L)
    emit(L)
    nerr = 0
    def poll(base, lab, last):
        A.e(f"v_min_u32 v4, {last}, v2"); A.e("v_lshlrev_b32 v4, 2, v4")
        A.e("s_mov_b32 s15, 0")
        A.label(f"{name}_{lab}")
        A.e(f"buffer_load_dword v5, v4, s[16:19], {base} offen{SC}")
        A.e("s_waitcnt vmcnt(0)")
        A.e("v_cmp_ne_u32 vcc, 1, v5")
        A.e(f"s_cbranch_vccz {name}_{lab}_ok")
        A.e("s_add_u32 s15, s15, 1")
        A.e(f"s_cmp_ge_u32 s15, {SPIN_LIMIT}"); A.e(f"s_cbranch_scc1 {name}_{lab}_ok")
        A.e("s_sleep 2")
        A.e(f"s_branch {name}_{lab}")
        A.label(f"{name}_{lab}_ok")
    A.e(f"s_lshl_b32 s78, s14, 4"); A.e(f"s_lshl_b32 s79, {s(sPart)}, 1"); A.e("s_add_u32 s78, s78, s79")
    A.e("s_lshr_b32 s79, s12, 1"); A.e("s_add_u32 s80, s78, s79")
    A.e("s_and_b32 s79, s12, 1"); A.e("s_add_u32 s81, s78, s79")
    A.e("s_lshl_b32 s82, s79, 1")
    A.e("v_and_b32 v4, 15, v2"); A.e("v_lshrrev_b32 v5, 4, v2")
    A.e("v_mul_u32_u24 v4, 1152, v4"); A.e("v_lshl_add_u32 v4, v5, 3, v4")
    A.e(f"s_mul_i32 s74, {s(sCt)}, 288")
    A.e(f"s_mul_i32 s75, s80, {16*1152}"); A.e("s_add_u32 s75, s75, s74"); A.e("s_lshl_b32 s76, s82, 6"); A.e("s_add_u32 s75, s75, s76")
    A.e(f"s_mul_i32 s76, s81, {16*1152}"); A.e("s_add_u32 s76, s76, s74"); A.e("s_add_u32 s76, s76, 256")
    A.e(f"s_mov_b32 s60, {s(sX)}"); A.e(f"s_mov_b32 s61, {s(sX+1)}"); A.e(f"s_mov_b32 s62, {2048*1152}"); A.e("s_mov_b32 s63, 0x20000")
    A.e(f"s_mov_b32 s64, {s(sOut)}"); A.e(f"s_mov_b32 s65, {s(sOut+1)}"); A.e(f"s_mov_b32 s66, {2048*1152}"); A.e("s_mov_b32 s67, 0x20000")
    XR = 220
    for k in range(4): A.e(f"buffer_load_dwordx2 {v(XR+2*k,2)}, v4, s[60:63], s75 offen offset:{32*k}")
    A.e(f"buffer_load_dwordx2 {v(XR+8,2)}, v4, s[60:63], s76 offen")
    A.e("s_waitcnt vmcnt(0)")
    A.e("s_barrier")
    A.e(f"buffer_store_dword v{ONE}, off, s[16:19], {s(sPF)}{SC}")
    A.e("v_mov_b32 v6, v4")
    A.e(f"s_lshl_b32 s77, {s(sI)}, 7"); A.e(f"s_add_u32 s77, s77, {FLAG_OFF + 16384}")
    poll("s77", "polld", 7)
    stamp()
    A.e(f"s_lshl_b32 s78, s80, 2"); A.e(f"s_add_u32 s78, s78, {s(sCt)}"); A.e(f"s_mul_i32 s78, s78, {PART_UNIT}")
    A.e(f"s_add_u32 s78, s78, {PART_OFF}"); A.e("s_lshl_b32 s79, s82, 10"); A.e("s_add_u32 s78, s78, s79")
    A.e(f"s_lshl_b32 s79, s81, 2"); A.e(f"s_add_u32 s79, s79, {s(sCt)}"); A.e(f"s_mul_i32 s79, s79, {PART_UNIT}")
    A.e(f"s_add_u32 s79, s79, {PART_OFF + NPART*4096}")
    A.e("v_lshlrev_b32 v7, 3, v2")
    PA_, PB_, PS_ = 8, 72, 136
    for p in range(NPART):
        A.e(f"buffer_load_dwordx4 {v(PA_+4*p,4)}, v3, s[16:19], s78 offen{SC}")
        A.e(f"buffer_load_dwordx4 {v(PB_+4*p,4)}, v3, s[16:19], s78 offen offset:1024{SC}")
        if p < NPART - 1: A.e("s_add_u32 s78, s78, 4096")
    for p in range(NPART):
        A.e(f"buffer_load_dwordx2 {v(PS_+2*p,2)}, v7, s[16:19], s79 offen offset:{p*512}{SC}")
    A.e(f"s_mov_b32 s23, {hex(f32(-1.4426950408889634))}")
    def unpack_sum(dst, srcs, nreg, t, waits=None):
        for n, sr in enumerate(srcs):
            if waits: A.e(f"s_waitcnt vmcnt({waits[n]})")
            for j in range(nreg):
                lo, hi = v(dst + 2 * j), v(dst + 2 * j + 1)
                if n == 0:
                    A.e(f"v_lshlrev_b32 {lo}, 16, {v(sr+j)}"); A.e(f"v_and_b32 {hi}, 0xffff0000, {v(sr+j)}")
                else:
                    A.e(f"v_lshlrev_b32 {v(t)}, 16, {v(sr+j)}"); A.e(f"v_and_b32 {v(t+1)}, 0xffff0000, {v(sr+j)}")
                    A.e(f"v_pk_add_f32 {v(dst+2*j,2)}, {v(dst+2*j,2)}, {v(t,2)}")
    S0, D0, T0 = 170, 190, 210
    tot = 2 * NPART + NPART
    for half, dst in ((0, S0), (1, D0)):
        for p in range(4):
            pp = 4 * half + p
            A.e(f"s_waitcnt vmcnt({tot - 2*(pp+1)})")
            for q, base in ((0, PA_), (1, PB_)):
                for j in range(4):
                    sr = base + 4 * pp + j
                    d2 = dst + 8 * q + 2 * j
                    if p == 0:
                        A.e(f"v_lshlrev_b32 {v(d2)}, 16, {v(sr)}"); A.e(f"v_and_b32 {v(d2+1)}, 0xffff0000, {v(sr)}")
                    else:
                        tt = 216 + 2 * (j & 1)
                        A.e(f"v_lshlrev_b32 {v(tt)}, 16, {v(sr)}"); A.e(f"v_and_b32 {v(tt+1)}, 0xffff0000, {v(sr)}")
                        A.e(f"v_pk_add_f32 {v(d2,2)}, {v(d2,2)}, {v(tt,2)}")
    for q in range(4):
        k2.final_math(A, S0 + 4 * q, D0 + 4 * q, XR + 2 * q, T0, "s23")
        A.e(f"buffer_store_dwordx2 {v(XR+2*q,2)}, v6, s[64:67], s75 offen offset:{32*q}")
    A.e("s_waitcnt vmcnt(4)")
    unpack_sum(S0 + 16, [PS_ + 2 * p for p in range(4)], 2, 216)
    unpack_sum(D0 + 16, [PS_ + 8 + 2 * p for p in range(4)], 2, 216)
    k2.final_math(A, S0 + 16, D0 + 16, XR + 8, T0, "s23")
    A.e(f"buffer_store_dwordx2 {v(XR+8,2)}, v6, s[64:67], s76 offen")
    if stamps:
        A.e("s_waitcnt vmcnt(0)")
        stamp()
        A.e("s_memrealtime s[94:95]"); A.e("s_waitcnt lgkmcnt(0)")
        A.e("s_sub_u32 s94, s94, s92")
        A.e(f"v_writelane_b32 v253, s94, 30"); A.e("v_writelane_b32 v253, s92, 31")
        A.e("s_lshl_b32 s21, s2, 2"); A.e("s_add_u32 s21, s21, s12"); A.e("s_lshl_b32 s21, s21, 8")
        A.e(f"s_add_u32 s21, s21, {STAMP_OFF}")
        A.e("v_lshlrev_b32 v1, 2, v2")
        A.e("buffer_store_dword v253, v1, s[16:19], s21 offen")
        if opt.get("dbgout"):
            A.e("s_cmp_eq_u32 s2, 0"); A.e(f"s_cbranch_scc0 {name}_nodbg")
            A.e("s_cmp_eq_u32 s12, 0"); A.e(f"s_cbranch_scc0 {name}_nodbg")
            lanes = [30, 1, 2, 3, 5, 6, 8, 9, 10, 11, 30, 30, 30, 30]
            words = [1, 2, 3, 4, 5, 6, 7, 9, 10, 11]
            A.e("s_mov_b64 exec, 1")
            for ln_, wd in zip(lanes, words):
                A.e(f"v_readlane_b32 s25, v253, {ln_}")
                A.e("s_nop 3")
                A.e("v_mov_b32 v4, s25")
                A.e(f"buffer_store_dword v4, off, {s(sDbg,4)}, 0 offset:{wd*4}")
            A.e("s_mov_b64 exec, -1")
            A.label(f"{name}_nodbg")
    A.e("s_endpgm")
    A.label(f"{name}_slowh")
    spin(f"buffer_load_dword {v(P.FL)}, {vlane}, s[16:19], {s(sPoll)} offen{SC}",
         [f"v_cmp_ne_u32 vcc, 1, {v(P.FL)}", "s_nop 0", f"s_cbranch_vccz {name}_slowh2_ok"], "slowh2")
    A.label(f"{name}_slowh2_ok")
    A.e(f"s_branch {name}_h_ok")
    G.emit_rare(A)
    A.label(f"{name}_end")
    A.e("s_endpgm")
    A(kernel_desc(name, 512, 102, 256))
    errs = checker.check([l for l in A.lines if not l.startswith(";")], name)
    for e in errs[:10]: print(e)
    print(name, "lines", len(A.lines), "hazard errors", len(errs), nerr)
    return A
```

```python
from asmgen import *
from layout import *
import struct
def f32(x): return struct.unpack("<I", struct.pack("<f", x))[0]

MF = "v_mfma_f32_16x16x32_bf16"
STAGE = 53248
BLK_U = 18432
BLK_Q = 36864
NKS = 18

class RegsA:
    def __init__(R):
        R.QA = 0
        R.GA = 128
        n = 8
        R.U = n; n += 144
        R.GV = n; n += 16
        R.B = n; n += 48
        R.A = n; n += 16
        R.DG = n; n += 4
        R.DX = n; n += 1
        R.DQ = n; n += 4
        R.LG = n; n += 1; R.GA_ADDR = n; n += 1
        R.LQ = n; n += 1; R.QA_ADDR = n; n += 1
        R.QT = n; n += 2
        R.vend = n
        R.sG = 60; R.sU = 64; R.sX = 68; R.sQ = 72
        R.sWS = 16
        R.sM0G = 76; R.sM0X = 77; R.sM0Q = 78
        R.sXoff = 79
        R.sT = 80; R.sT2 = 81; R.sHoff = 82; R.sH8 = 83
    def g(R, t, rb, r=None):
        if t < 8:
            b = R.GA + (t * 4 + rb) * 4
            return a(b, 4) if r is None else a(b + r)
        b = R.GV + rb * 4
        return v(b, 4) if r is None else v(b + r)
    def u(R, t, rb, r=None):
        b = R.U + (t * 4 + rb) * 4
        return v(b, 4) if r is None else v(b + r)
    def qa(R, dt, rb, r=None):
        b = R.QA + (dt * 4 + rb) * 4
        return a(b, 4) if r is None else a(b + r)
    def b(R, ks, rb): return v(R.B + (ks % 3) * 16 + rb * 4, 4)
    def af(R, gi, h=None):
        b = R.A + (gi % 4) * 4
        return v(b, 4) if h is None else v(b + 2 * h, 2)

TILES = [x for t in range(9) for x in (("G", t), ("U", t))] + [("Q", dt) for dt in range(8)]
NT = len(TILES)

class Lin:
    def __init__(L):
        L.out = []; L.ds = []; L.vm = []
    def e(L, t): L.out.append(t)
    def ds_op(L, t, key): L.out.append(t); L.ds.append(key)
    def vm_op(L, t, key): L.out.append(t); L.vm.append(key)
    def need_ds(L, key):
        if key in L.ds:
            last = max(i for i, x in enumerate(L.ds) if x == key)
            cnt = len(L.ds) - 1 - last
            assert cnt <= 15
            L.out.append(f"s_waitcnt lgkmcnt({cnt})")
            L.ds = L.ds[last + 1:]
    def need_vm(L, key):
        if key in L.vm:
            last = max(i for i, x in enumerate(L.vm) if x == key)
            cnt = len(L.vm) - 1 - last
            assert cnt <= 63, cnt
            L.out.append(f"s_waitcnt vmcnt({cnt})")
            L.vm = L.vm[last + 1:]

class PhaseA:
    def __init__(G, R, vm_period=2):
        G.R = R; G.vm_period = vm_period; G.stmod = ''; G.dist = 3; G.ldmod = ''; G.xmod = ''; G.noq = False

    def setup(G, A, lane, wave, head, rt, ptr):
        R = G.R
        t = [v(R.B + i) for i in range(12)]
        for srd, nm, size in ((R.sG, "Wg", 576 * 9216), (R.sU, "Wu", 576 * 9216), (R.sQ, "wq", 576 * 8192)):
            p = ptr(nm)
            A.e(f"s_mov_b32 {s(srd)}, {s(p)}"); A.e(f"s_mov_b32 {s(srd+1)}, {s(p+1)}")
            A.e(f"s_mov_b32 {s(srd+2)}, {size}"); A.e(f"s_mov_b32 {s(srd+3)}, 0x20000")
        A.e(f"s_cmp_lt_u32 {wave}, 2")
        A.e(f"s_cselect_b32 {s(R.sX)}, {s(R.sG)}, {s(R.sU)}")
        A.e(f"s_cselect_b32 {s(R.sX+1)}, {s(R.sG+1)}, {s(R.sU+1)}")
        A.e(f"s_mov_b32 {s(R.sX+2)}, {576*9216}"); A.e(f"s_mov_b32 {s(R.sX+3)}, 0x20000")
        A.e(f"s_lshl_b32 {s(R.sM0G)}, {wave}, 12")
        A.e(f"s_and_b32 {s(R.sT)}, {wave}, 1"); A.e(f"s_add_u32 {s(R.sT)}, {s(R.sT)}, 16"); A.e(f"s_lshl_b32 {s(R.sM0X)}, {s(R.sT)}, 10")
        A.e(f"s_cmp_lt_u32 {wave}, 2")
        A.e(f"s_cselect_b32 {s(R.sT2)}, 0, {BLK_U}")
        A.e(f"s_add_u32 {s(R.sM0X)}, {s(R.sM0X)}, {s(R.sT2)}")
        A.e(f"s_lshl_b32 {s(R.sM0Q)}, {wave}, 12"); A.e(f"s_add_u32 {s(R.sM0Q)}, {s(R.sM0Q)}, {BLK_Q}")
        A.e(f"s_mul_i32 {s(R.sT2)}, {head}, 288")
        A.e(f"s_and_b32 s87, {head}, 1"); A.e("s_lshl_b32 s87, s87, 1")
        def gu(dst, idx_s, idx_c, comp):
            A.e(f"s_lshl_b32 s84, {idx_s}, 6")
            A.e(f"v_add_u32 {t[0]}, s84, {lane}")
            if idx_c: A.e(f"v_add_u32 {t[0]}, {64*idx_c}, {t[0]}")
            A.e(f"v_mul_u32_u24 {t[1]}, 3641, {t[0]}")
            A.e(f"v_lshrrev_b32 {t[1]}, 16, {t[1]}")
            A.e(f"v_mul_u32_u24 {t[2]}, 18, {t[1]}")
            A.e(f"v_sub_u32 {t[2]}, {t[0]}, {t[2]}")
            A.e(f"v_add_u32 {t[2]}, s87, {t[2]}")
            A.e(f"v_subrev_u32 {t[5]}, 18, {t[2]}")
            A.e(f"v_min_u32 {t[2]}, {t[2]}, {t[5]}")
            A.e(f"v_mul_u32_u24 {t[1]}, 9216, {t[1]}")
            A.e(f"v_lshl_add_u32 {t[1]}, {t[2]}, 4, {t[1]}")
            A.e(f"v_add_u32 {dst}, {s(R.sT2)}, {t[1]}")
            if comp: A.e(f"v_subrev_u32 {dst}, {comp}, {dst}")
        A.e(f"s_lshl_b32 s85, {wave}, 2")
        for n in range(4): gu(v(R.DG + n), "s85", n, n * 1024)
        gu(v(R.DX), s(R.sT), 0, 0)
        m, g = t[3], t[4]
        A.e(f"v_and_b32 {m}, 15, {lane}"); A.e(f"v_lshrrev_b32 {g}, 4, {lane}")
        A.e(f"s_lshl_b32 s84, {wave}, 4")
        A.e(f"s_lshl_b32 s85, {head}, 8")
        for n in range(4):
            A.e(f"v_add_u32 {t[0]}, {4*n}, {g}")
            A.e(f"v_and_b32 {t[1]}, 7, {t[0]}")
            A.e(f"v_lshlrev_b32 {t[1]}, 1, {t[1]}")
            A.e(f"v_xor_b32 {t[1]}, {t[1]}, {m}")
            A.e(f"v_add_u32 {t[0]}, s84, {t[0]}")
            A.e(f"v_lshlrev_b32 {t[0]}, 13, {t[0]}")
            A.e(f"v_lshl_add_u32 {t[0]}, {t[1]}, 4, {t[0]}")
            A.e(f"v_add_u32 {v(R.DQ+n)}, s85, {t[0]}")
            if n: A.e(f"v_subrev_u32 {v(R.DQ+n)}, {n*1024}, {v(R.DQ+n)}")
        A.e(f"v_lshrrev_b32 {t[0]}, 2, {m}")
        A.e(f"v_lshl_add_u32 {t[0]}, {g}, 2, {t[0]}")
        A.e(f"v_mul_u32_u24 {t[1]}, 288, {t[0]}")
        A.e(f"v_and_b32 {t[2]}, 3, {m}")
        A.e(f"v_lshl_add_u32 {v(R.LG)}, {t[2]}, 3, {t[1]}")
        A.e(f"v_lshlrev_b32 {t[1]}, 8, {t[0]}")
        A.e(f"v_and_b32 {t[2]}, 7, {t[0]}")
        A.e(f"v_lshl_add_u32 {t[1]}, {t[2]}, 5, {t[1]}")
        A.e(f"v_bfe_u32 {t[2]}, {m}, 1, 1")
        A.e(f"v_lshl_add_u32 {t[1]}, {t[2]}, 4, {t[1]}")
        A.e(f"v_and_b32 {t[2]}, 1, {m}")
        A.e(f"v_lshl_add_u32 {t[1]}, {t[2]}, 3, {t[1]}")
        A.e(f"v_add_u32 {v(R.LQ)}, {BLK_Q}, {t[1]}")
        A.e(f"s_lshl_b32 {s(R.sXoff)}, {rt}, 2"); A.e(f"s_add_u32 {s(R.sXoff)}, {s(R.sXoff)}, {wave}")
        A.e(f"s_mul_i32 {s(R.sXoff)}, {s(R.sXoff)}, {18*4096}")
        if XN_OFF: A.e(f"s_add_u32 {s(R.sXoff)}, {s(R.sXoff)}, {XN_OFF}")
        A.e(f"s_mul_i32 s84, {rt}, 144")
        A.e(f"s_lshr_b32 s85, {head}, 1"); A.e("s_mul_i32 s85, s85, 9"); A.e("s_add_u32 s84, s84, s85")
        A.e("s_lshl_b32 s84, s84, 14")
        A.e(f"s_lshl_b32 s85, {wave}, 12"); A.e("s_add_u32 s84, s84, s85")
        A.e(f"s_add_u32 s84, s84, {H_OFF}")
        A.e(f"s_and_b32 s85, {head}, 1")
        A.e(f"s_mul_i32 {s(R.sT)}, s85, {5*16384}"); A.e(f"s_add_u32 {s(R.sHoff)}, s84, {s(R.sT)}")
        A.e(f"s_lshl_b32 {s(R.sT)}, s85, 9"); A.e(f"s_add_u32 {s(R.sH8)}, s84, {s(R.sT)}"); A.e(f"s_add_u32 {s(R.sH8)}, {s(R.sH8)}, {4*16384}")

    def dma_ops(G, st):
        R = G.R; slot = (st % 3) * STAGE
        so_g = st * 64 * 9216; so_q = st * 64 * 8192
        ops = []
        for n in range(4):
            pre = [f"s_add_u32 m0, {s(R.sM0G)}, {slot}", f"s_mov_b32 {s(R.sT)}, {so_g}"] if n == 0 else []
            ops.append((pre, f"buffer_load_dwordx4 {v(R.DG+n)}, {s(R.sG,4)}, {s(R.sT)} offen offset:{n*1024}{G.ldmod} lds"))
        for n in range(4):
            pre = [f"s_add_u32 m0, {s(R.sM0G)}, {slot + BLK_U}"] if n == 0 else []
            ops.append((pre, f"buffer_load_dwordx4 {v(R.DG+n)}, {s(R.sU,4)}, {s(R.sT)} offen offset:{n*1024}{G.ldmod} lds"))
        ops.append(([f"s_add_u32 m0, {s(R.sM0X)}, {slot}"], f"buffer_load_dwordx4 {v(R.DX)}, {s(R.sX,4)}, {s(R.sT)} offen{G.ldmod} lds"))
        for n in range(4):
            pre = [f"s_add_u32 m0, {s(R.sM0Q)}, {slot}", f"s_mov_b32 {s(R.sT2)}, {so_q}"] if n == 0 else []
            ops.append((pre, f"buffer_load_dwordx4 {v(R.DQ+n)}, {s(R.sQ,4)}, {s(R.sT2)} offen offset:{n*1024}{G.ldmod} lds"))
        return ops

    def x_ops(G, ks, lane16):
        R = G.R
        return [([f"s_add_u32 s86, {s(R.sXoff)}, {ks*4096}"],
                 f"buffer_load_dwordx4 {R.b(ks,rb)}, {lane16}, {s(R.sWS,4)}, s86 offen offset:{rb*1024}{G.xmod}") for rb in range(4)]

    def read_ops(G, gi):
        R = G.R; ks, n = divmod(gi, NT); st, kk = divmod(ks, 2)
        kind, t = TILES[n]; pre = []
        if n == 0 and kk == 0:
            pre.append(f"v_add_u32 {v(R.GA_ADDR)}, {(st%3)*STAGE}, {v(R.LG)}")
            pre.append(f"v_add_u32 {v(R.QA_ADDR)}, {(st%3)*STAGE}, {v(R.LQ)}")
        if kind == "Q":
            tmp = v(R.QT + (t & 1))
            pre.append(f"v_xor_b32 {tmp}, {t*32}, {v(R.QA_ADDR)}")
            rd = [f"ds_read_b64_tr_b16 {R.af(gi,h)}, {tmp} offset:{kk*8192 + h*4096}" for h in range(2)]
        else:
            blk = 0 if kind == "G" else BLK_U
            rd = [f"ds_read_b64_tr_b16 {R.af(gi,h)}, {v(R.GA_ADDR)} offset:{blk + (32*kk + 16*h)*288 + 32*t}" for h in range(2)]
        return pre, rd

    def main(G, L, lane16, fused, stamp=None, extra=None, tail_ops=None):
        R = G.R
        def issue(ops, key):
            for pre, ins in ops:
                for x in pre: L.e(x)
                if pre: L.e("s_nop 0")
                L.vm_op(ins, key)
        issue(G.dma_ops(0), ("W", 0))
        fused[0](L)
        L.vm = []
        issue(G.dma_ops(1), ("W", 1))
        issue(G.dma_ops(2), ("W", 2))
        fused[1](L)
        L.vm = []
        issue(G.x_ops(0, lane16), ("X", 0))
        issue(G.x_ops(1, lane16), ("X", 1))
        if stamp: stamp(L)
        L.need_vm(("X", 0))
        DIST = G.dist
        total = NKS * NT
        for gi in range(DIST):
            pre, rd = G.read_ops(gi)
            for x in pre: L.e(x)
            for x in rd: L.ds_op(x, ("A", gi))
        vmq = []; staged = None
        for ks in range(NKS):
            if stamp and ks > 0: stamp(L)
            if ks + 2 < NKS: vmq = [(p, i, ("X", ks + 2)) for p, i in G.x_ops(ks + 2, lane16)] + vmq
            if extra and ks in extra: vmq += extra[ks]
            for n in range(NT):
                gi = ks * NT + n
                nx = gi + DIST
                rd = None
                if nx < total:
                    pre, rd = G.read_ops(nx)
                    newstage = (nx % (2 * NT) == 0)
                kind, t = TILES[n]
                for rb in range(4):
                    if rb == 0:
                        L.need_ds(("A", gi))
                        if n == 0: L.need_vm(("X", ks))
                    acc = R.g(t, rb) if kind == "G" else (R.u(t, rb) if kind == "U" else R.qa(t, rb))
                    c = "0" if ks == 0 else acc
                    L.e(f"{MF} {acc}, {R.af(gi)}, {R.b(ks,rb)}, {c}")
                    if rd:
                        if rb == 0:
                            if newstage:
                                ns = nx // (2 * NT)
                                L.need_vm(("W", ns))
                                L.e("s_waitcnt lgkmcnt(0)"); L.ds = []
                                L.e("s_barrier")
                                if ns + 2 <= 8: vmq += [(p, i, ("W", ns + 2)) for p, i in G.dma_ops(ns + 2)]
                                if ns == 8 and tail_ops: vmq += [(p, i, ("T", 0)) for p, i in tail_ops]
                            for x in pre: L.e(x)
                        if rb == 1: L.ds_op(rd[0], ("A", nx))
                        if rb == 2: L.ds_op(rd[1], ("A", nx))
                    if rb == 0 and staged is not None:
                        L.vm_op(*staged); staged = None
                    period = G.vm_period
                    if rb == 3 and vmq and (n >= 1 or vmq[0][2][0] != "X") and (n % period == period - 1 or ks >= NKS - 2) and gi + 1 < total:
                        p, i, key = vmq.pop(0)
                        for x in p: L.e(x)
                        staged = (i, key)
            assert not [x for x in vmq if x[2][0] == "X" and x[2][1] <= ks + 1], ks
        assert not vmq and staged is None

    def h_unit(G, A, sx, rb, dst=None):
        R = G.R
        def hvals(t, d):
            for r in range(4):
                x = v(R.DG + (r & 1))
                if t < 8:
                    A.e(f"v_accvgpr_read_b32 {x}, {R.g(t,rb,r)}")
                    A.e(f"v_max_f32 {x}, 0, {x}")
                else:
                    A.e(f"v_max_f32 {x}, 0, {R.g(t,rb,r)}")
                A.e(f"v_mul_f32 {R.u(t,rb,r)}, {x}, {R.u(t,rb,r)}")
            A.e(f"v_cvt_pk_bf16_f32 {v(d)}, {R.u(t,rb,0)}, {R.u(t,rb,1)}")
            A.e(f"v_cvt_pk_bf16_f32 {v(d+1)}, {R.u(t,rb,2)}, {R.u(t,rb,3)}")
        d = dst if dst is not None else R.U + (2 * sx * 4 + rb) * 4
        hvals(2 * sx, d)
        if sx < 4: hvals(2 * sx + 1, d + 2)
        return d
    def h_store(G, A, sx, rb, d):
        R = G.R
        if sx < 4:
            A.e(f"s_add_u32 {s(R.sT)}, {s(R.sHoff)}, {sx*16384}")
            A.e(f"buffer_store_dwordx4 {v(d,4)}, v3, {s(R.sWS,4)}, {s(R.sT)} offen offset:{rb*1024}{G.stmod}")
        else:
            A.e(f"buffer_store_dwordx2 {v(d,2)}, v1, {s(R.sWS,4)}, {s(R.sH8)} offen offset:{rb*1024}{G.stmod}")

    def epilogue_q(G, A, qfrag, tmp):
        R = G.R
        c = f32(128 ** -0.5 * 1.4426950408889634)
        A.e(f"s_mov_b32 s86, {hex(c)}")
        for sx in range(4):
            for rb in range(4):
                b = tmp
                for h in range(2):
                    for r in range(4):
                        A.e(f"v_accvgpr_read_b32 {v(b+4*h+r)}, {R.qa(2*sx+h,rb,r)}")
                for j in range(8): A.e(f"v_mul_f32 {v(b+j)}, s86, {v(b+j)}")
                for j in range(4): A.e(f"v_cvt_pk_bf16_f32 {v(b+8+j)}, {v(b+2*j)}, {v(b+2*j+1)}")
                b += 8
                A.e("s_nop 0")
                A.e(f"v_permlane32_swap_b32 {v(b)}, {v(b+2)}")
                A.e(f"v_permlane32_swap_b32 {v(b+1)}, {v(b+3)}")
                A.e("s_nop 0")
                A.e(f"v_permlane16_swap_b32 {v(b)}, {v(b+2)}")
                A.e(f"v_permlane16_swap_b32 {v(b+1)}, {v(b+3)}")
                for j in range(4): A.e(f"v_accvgpr_write_b32 {a(qfrag(rb,sx)+j)}, {v(b+j)}")
```

```python
from asmgen import *
from layout import *
from phasea import Lin, MF

SLOT = 4 * 9216
NSLOT = 4
NB = 8
NKJ = {"s": 32, "d": 36}

class Tail:
    def __init__(G, opt=None):
        G.opt = opt or {}
        G.dist = G.opt.get("dist", 3)
        G.B = 8
        G.AF = 136
        G.OS = 152
        G.PK = 152
        G.DV = 219
        G.LA = 228; G.RA = 229
        G.FL = 230
        G.L8 = 232
        G.sW, G.sAct = 60, 64
        G.sWoff, G.sBoff, G.sM0, G.sP4, G.sP2 = 68, 69, 70, 71, 72
        G.sNk = 73
        G.sT = 74
        G.sWS = 16
    def acc(G, t, rb, r=None):
        b = (t * 4 + rb) * 4
        return a(b, 4) if r is None else a(b + r)
    def bf(G, k, rb): return v(G.B + (k % NB) * 16 + rb * 4, 4)
    def af(G, gi, h=None):
        b = G.AF + (gi % 4) * 4
        return v(b, 4) if h is None else v(b + 2 * h, 2)

    def setup(G, A, wave, part, ct, rt, pwo, pwd, pws):
        T = G.sT
        A.e(f"s_cmp_lt_u32 {part}, 4")
        A.e(f"s_cselect_b32 {s(G.sW)}, {s(pwo)}, {s(pwd)}"); A.e(f"s_cselect_b32 {s(G.sW+1)}, {s(pwo+1)}, {s(pwd+1)}")
        A.e(f"s_cselect_b32 {s(G.sNk)}, 32, 36")
        A.e(f"s_mov_b32 {s(T+1)}, 144"); A.e(f"s_cselect_b32 {s(T+1)}, 128, {s(T+1)}")
        A.e(f"s_mov_b32 {s(T+2)}, {G.opt.get('dsrc', H_OFF)}"); A.e(f"s_cselect_b32 {s(T+2)}, {G.opt.get('ssrc', O_OFF)}, {s(T+2)}")
        A.e(f"s_and_b32 {s(T+3)}, {part}, 3"); A.e(f"s_mul_i32 {s(T+3)}, {s(T+3)}, {s(G.sNk)}")
        A.e(f"s_mul_i32 {s(T)}, {s(T+3)}, {32*1152}")
        A.e(f"s_add_u32 {s(G.sW)}, {s(G.sW)}, {s(T)}"); A.e(f"s_addc_u32 {s(G.sW+1)}, {s(G.sW+1)}, 0")
        A.e(f"s_mul_i32 {s(G.sW+2)}, {s(G.sNk)}, {32*1152}"); A.e(f"s_mov_b32 {s(G.sW+3)}, 0x20000")
        A.e(f"s_mul_i32 {s(T)}, {rt}, {s(T+1)}"); A.e(f"s_add_u32 {s(T)}, {s(T)}, {s(T+3)}"); A.e(f"s_lshl_b32 {s(T)}, {s(T)}, 14")
        A.e(f"s_add_u32 {s(T)}, {s(T)}, {s(T+2)}")
        A.e(f"s_add_u32 {s(G.sAct)}, {s(pws)}, {s(T)}"); A.e(f"s_addc_u32 {s(G.sAct+1)}, {s(pws+1)}, 0")
        A.e(f"s_lshl_b32 {s(G.sAct+2)}, {s(G.sNk)}, 14"); A.e(f"s_mov_b32 {s(G.sAct+3)}, 0x20000")
        A.e(f"s_lshl_b32 {s(G.sBoff)}, {wave}, 12")
        A.e(f"s_mul_i32 {s(G.sWoff)}, {ct}, 288"); A.e(f"s_mul_i32 {s(T)}, {wave}, {32*1152}")
        A.e(f"s_add_u32 {s(G.sWoff)}, {s(G.sWoff)}, {s(T)}")
        for n in range(9):
            A.e(f"v_add_u32 v4, {64*n}, v2")
            A.e("v_mul_u32_u24 v5, 3641, v4"); A.e("v_lshrrev_b32 v5, 16, v5")
            A.e("v_mul_u32_u24 v6, 18, v5"); A.e("v_sub_u32 v6, v4, v6")
            A.e("v_mul_u32_u24 v5, 1152, v5")
            A.e(f"v_lshl_add_u32 {v(G.DV+n)}, v6, 4, v5")
            if n % 4: A.e(f"v_subrev_u32 {v(G.DV+n)}, {(n%4)*1024}, {v(G.DV+n)}")
        A.e(f"s_mul_i32 {s(G.sM0)}, {wave}, {9*1024}")
        A.e(f"v_lshlrev_b32 {v(G.L8)}, 3, v2")
        A.e("v_and_b32 v4, 15, v2"); A.e("v_lshrrev_b32 v5, 4, v2")
        A.e("v_lshrrev_b32 v6, 2, v4"); A.e("v_lshl_add_u32 v6, v5, 2, v6")
        A.e("v_mul_u32_u24 v6, 288, v6"); A.e("v_and_b32 v4, 3, v4")
        A.e(f"v_lshl_add_u32 {v(G.LA)}, v4, 3, v6")
        A.e(f"s_lshl_b32 {s(T)}, {rt}, 4"); A.e(f"s_lshl_b32 {s(T+1)}, {wave}, 2"); A.e(f"s_add_u32 {s(T)}, {s(T)}, {s(T+1)}")
        A.e(f"s_lshl_b32 {s(T)}, {s(T)}, 2"); A.e(f"s_add_u32 {s(T)}, {s(T)}, {ct}")
        A.e(f"s_mul_i32 {s(T)}, {s(T)}, {PART_UNIT}"); A.e(f"s_add_u32 {s(T)}, {s(T)}, {PART_OFF}")
        A.e(f"s_lshl_b32 {s(T+1)}, {part}, 12"); A.e(f"s_add_u32 {s(G.sP4)}, {s(T)}, {s(T+1)}")
        A.e(f"s_lshl_b32 {s(T+1)}, {part}, 9"); A.e(f"s_add_u32 {s(G.sP2)}, {s(T)}, {s(T+1)}"); A.e(f"s_add_u32 {s(G.sP2)}, {s(G.sP2)}, {NPART*4096}")

    def dma(G, st):
        ops = []
        for n in range(9):
            pre = [f"s_add_u32 s99, {s(G.sWoff)}, {st*128*1152}"] if n == 0 else []
            if n % 4 == 0: pre.append(f"s_add_u32 m0, {s(G.sM0)}, {(st % NSLOT) * SLOT + (n//4)*4096}")
            ops.append((pre, f"buffer_load_dwordx4 {v(G.DV+n)}, {s(G.sW,4)}, s99 offen offset:{(n%4)*1024} lds"))
        return ops
    def bload(G, k, job="s"):
        m = G.opt.get('bmod', ' sc1')
        pre = [f"s_add_u32 s100, {s(G.sBoff)}, {k*16384}"]
        if job == "d" and k % 9 == 4:
            return [(pre, f"buffer_load_dwordx2 {v(G.B + (k % NB) * 16 + rb * 4 + 2*h, 2)}, {v(G.L8)}, {s(G.sAct,4)}, s100 offen offset:{rb*1024 + h*512}{m}")
                    for rb in range(4) for h in range(2)]
        return [(pre, f"buffer_load_dwordx4 {G.bf(k,rb)}, v3, {s(G.sAct,4)}, s100 offen offset:{rb*1024}{m}") for rb in range(4)]
    def rd(G, gi):
        st, r = divmod(gi, 36); k, t = divmod(r, 9)
        return [f"ds_read_b64_tr_b16 {G.af(gi,h)}, {v(G.RA)} offset:{k*9216 + 16*h*288 + 32*t}" for h in range(2)]

    def store_partials(G, L):
        k = 0
        for rb in range(4):
            for pr in range(5):
                b = G.PK + (k % 8) * 8; k += 1
                n = 8 if pr < 4 else 4
                for j in range(n): L.e(f"v_accvgpr_read_b32 {v(b+j)}, {G.acc(2*pr + j//4, rb, j%4)}")
                for j in range(n // 2): L.e(f"v_cvt_pk_bf16_f32 {v(b+j)}, {v(b+2*j)}, {v(b+2*j+1)}")
                if pr < 4:
                    L.e(f"s_add_u32 s101, {s(G.sP4)}, {rb*4*PART_UNIT}")
                    L.vm_op(f"buffer_store_dwordx4 {v(b,4)}, v3, {s(G.sWS,4)}, s101 offen offset:{pr*1024} sc1", ("P", 0))
                else:
                    L.e(f"s_add_u32 s101, {s(G.sP2)}, {rb*4*PART_UNIT}")
                    L.vm_op(f"buffer_store_dwordx2 {v(b,2)}, v4, {s(G.sWS,4)}, s101 offen sc1", ("P", 0))

    def main(G, L, job, nb_pre, oflag=None, k_flag=1, stamp=None):
        NK = NKJ[job]; NST = NK // 4
        total = NK * 9
        def addb(k): return [(p, i, ("B", k)) for p, i in G.bload(k, job)]
        def addw(st): return [(p, i, ("W", st)) for p, i in G.dma(st)]
        L.e(f"v_mov_b32 {v(G.RA)}, {v(G.LA)}")
        L.e("v_lshlrev_b32 v4, 3, v2")
        L.e("s_barrier")
        for gi in range(G.dist):
            for x in G.rd(gi): L.ds_op(x, ("A", gi))
        vmq = []
        for k in range(nb_pre, NB): vmq += addb(k)
        vmq += addw(3)
        staged = None
        for kg in range(NK):
            for t in range(9):
                gi = kg * 9 + t
                nx = gi + G.dist
                rd = G.rd(nx) if nx < total else None
                for rb in range(4):
                    if rb == 0:
                        L.need_ds(("A", gi))
                        if t == 0: L.need_vm(("B", kg))
                    ac = G.acc(t, rb)
                    L.e(f"{MF} {ac}, {G.af(gi)}, {G.bf(kg,rb)}, {'0' if kg == 0 else ac}")
                    used = False
                    if rb == 0 and rd and nx % 36 == 0:
                        ns = nx // 36
                        L.need_vm(("W", ns))
                        if oflag and ns == k_flag: L.need_vm(("O", 0))
                        L.e("s_waitcnt lgkmcnt(0)"); L.ds = []
                        if not G.opt.get("nobar"): L.e("s_barrier")
                        L.e(f"v_add_u32 {v(G.RA)}, {(ns % NSLOT) * SLOT}, {v(G.LA)}")
                        if G.opt.get("skew"):
                            lab = f"skew{G.opt['skew']}_{job}_{ns}_{id(L)%100000}"
                            for wv in (1, 2, 3):
                                L.e(f"s_cmp_lt_u32 s12, {wv}"); L.e(f"s_cbranch_scc1 {lab}"); L.e(f"s_nop {G.opt['skew']}")
                            L.e(lab + ":")
                        if oflag and ns == k_flag: L.vm_op(oflag, ("F", 0))
                        if 4 <= ns + 3 < NST: vmq += addw(ns + 3)
                        if stamp: stamp(L)
                        used = True
                    if not G.opt.get("nods"):
                        if rd and rb == 1: L.ds_op(rd[0], ("A", nx))
                        if rd and rb == 2: L.ds_op(rd[1], ("A", nx))
                    if rb == 3 and t == 8 and kg + NB < NK:
                        vmq = addb(kg + NB) + vmq
                    if rb == 0 and staged is not None:
                        i, key = staged; staged = None
                        if not ((G.opt.get("nob") and key[0] == "B") or (G.opt.get("now") and key[0] == "W")): L.vm_op(i, key)
                    if rb == 3 and vmq and len(L.vm) < 60:
                        p, i, key = vmq.pop(0)
                        for x in p: L.e(x)
                        staged = (i, key)
        assert staged is None
        assert not vmq, vmq
```

```python
import sys, mega
opt = eval(sys.argv[2]) if len(sys.argv) > 2 else {}
NAME = "recurrent_scan__gqa_block_cached__glu_gated_reglu__prompt_kernel"
short = opt.get("aslist")
kname = "mega_kernel" if short else NAME
a1 = mega.gen_mega("mk", opt=opt, stamps=opt.get("stamps", False))
body = a1.text()
body = body.replace(".globl mk\n", f".globl {kname}\n").replace(".type mk,@function\nmk:\n", f".type {kname},@function\n{kname}:\n")
body = body.replace(".amdhsa_kernel mk\n", f".amdhsa_kernel {kname}\n")
hdr = open("header.txt").read()
hdr += """;
"""
if short: hdr += "; @launch kernel=mega_kernel grid=(256,1,1) block=(256,1,1) lds=163840\n"
else: hdr += "; @launch grid=(256,1,1) block=(256,1,1) lds=163840\n"
txt = hdr + '.amdgcn_target "amdgcn-amd-amdhsa--gfx950"\n' + body
open(sys.argv[1], "w").write(txt)
print("bytes:", len(txt))
```

```python
from asmgen import *
from layout import *
import attn, phasea, k2, checker, lnfuse
import tail as tail_roles, tail_seq
tail = tail_seq if SEQ else tail_roles
from phasea import Lin, f32

SPIN_LIMIT = 200000

def gen_mega(name, opt=None, stamps=False):
    opt = opt or {}
    SC = " sc1"
    RA = phasea.RegsA(); PA = phasea.PhaseA(RA); PA.stmod = opt.get('hst', SC); PA.dist = opt.get('distA', 3); PA.ldmod = opt.get('wld', '')
    R = attn.Regs(vbase=8)
    G = attn.AttnEmit(R, dict(farbranch=1, brdelay=2, barpos=1, stmod=SC, kvmod=opt.get('kvld', ''), **opt.get("attn", {})))
    P = tail.Tail(opt.get("tail", {}))
    assert RA.vend <= R.KDMA and R.vend <= P.DV and R.L >= 152
    A = Asm()
    A(kernel_head(name))
    sX, sOut, sWo, sDbg, sWd = 26, 28, 30, 32, 96
    sPart, sI, sCt, sHF, sOF, sPF, sPoll = 53, 54, 55, 56, 57, 58, 59
    ONE, ZERO, DBGV, PFV = 254, 255, 246, 240
    nst = [0]
    def stamp(dst=None):
        if not stamps: return
        o = dst or A
        o.e("s_memrealtime s[88:89]" if opt.get("rt") else "s_memtime s[88:89]"); o.e("s_waitcnt lgkmcnt(0)")
        if isinstance(o, Lin): o.ds = []
        o.e("s_sub_u32 s88, s88, s92" if opt.get("rt") else "s_sub_u32 s88, s88, s90")
        o.e(f"v_writelane_b32 v253, s88, {nst[0]}"); nst[0] += 1

    A.e("s_cmp_ge_u32 s2, 256")
    A.e(f"s_cbranch_scc0 {name}_go")
    A.e("s_endpgm")
    A.label(f"{name}_go")
    A.e("s_load_dwordx4 s[4:7], s[0:1], 8")
    A.e("s_load_dwordx2 s[8:9], s[0:1], 24")
    A.e("s_load_dwordx4 s[20:23], s[0:1], 48")
    A.e("s_load_dwordx2 s[10:11], s[0:1], 88")
    A.e(f"s_load_dwordx2 {s(sX,2)}, s[0:1], 0")
    A.e(f"s_load_dwordx2 {s(sOut,2)}, s[0:1], 72")
    A.e(f"s_load_dwordx2 {s(sWo,2)}, s[0:1], 32")
    A.e(f"s_load_dwordx2 {s(sWd,2)}, s[0:1], 64")
    A.e(f"s_load_dwordx2 {s(sDbg,2)}, s[0:1], 80")
    if stamps or opt.get("span"):
        A.e("s_memtime s[90:91]"); A.e("s_memrealtime s[92:93]")
    A.e("v_lshrrev_b32 v1, 6, v0")
    A.e("v_and_b32 v2, 63, v0")
    A.e("v_readfirstlane_b32 s12, v1")
    A.e(f"s_and_b32 {s(sPart)}, s2, 7")
    A.e(f"s_lshr_b32 {s(sI)}, s2, 3")
    A.e(f"s_and_b32 {s(sCt)}, {s(sI)}, 3")
    A.e(f"s_lshl_b32 s13, {s(sPart)}, 2")
    A.e(f"s_add_u32 s13, s13, {s(sCt)}")
    A.e(f"s_lshr_b32 s14, {s(sI)}, 2")
    A.e("s_lshr_b32 s15, s13, 1")
    A.e("s_lshl_b32 s15, s15, 19")
    A.e("v_lshlrev_b32 v3, 4, v2")
    A.e(f"v_mov_b32 v{ONE}, 1"); A.e(f"v_mov_b32 v{ZERO}, 0")
    A.e("s_waitcnt lgkmcnt(0)")
    A.e(f"s_add_u32 {s(R.sK)}, s4, s15"); A.e(f"s_addc_u32 {s(R.sK+1)}, s5, 0")
    A.e(f"s_mov_b32 {s(R.sK+2)}, 524288"); A.e(f"s_mov_b32 {s(R.sK+3)}, 0x20000")
    A.e(f"s_add_u32 {s(R.sV)}, s6, s15"); A.e(f"s_addc_u32 {s(R.sV+1)}, s7, 0")
    A.e(f"s_mov_b32 {s(R.sV+2)}, 524288"); A.e(f"s_mov_b32 {s(R.sV+3)}, 0x20000")
    A.e("s_mov_b32 s16, s10"); A.e("s_mov_b32 s17, s11"); A.e(f"s_mov_b32 s18, {WS_RANGE}"); A.e("s_mov_b32 s19, 0x20000")
    A.e(f"s_mov_b32 {s(sDbg+2)}, 256"); A.e(f"s_mov_b32 {s(sDbg+3)}, 0x20000")
    A.e("s_lshl_b32 s24, s14, 2"); A.e("s_lshr_b32 s25, s13, 3"); A.e("s_add_u32 s24, s24, s25")
    A.e("s_lshl_b32 s24, s24, 2"); A.e("s_add_u32 s24, s24, s12"); A.e("s_lshl_b32 s24, s24, 7")
    A.e("s_and_b32 s25, s13, 7"); A.e("s_lshl_b32 s25, s25, 2"); A.e("s_add_u32 s24, s24, s25")
    A.e(f"s_add_u32 {s(sHF)}, s24, {FLAG_OFF}"); A.e(f"s_add_u32 {s(sOF)}, {s(sHF)}, 16384")
    A.e(f"s_and_b32 s24, {s(sPart)}, 3"); A.e("s_lshl_b32 s25, s14, 2"); A.e("s_add_u32 s24, s24, s25")
    A.e("s_lshl_b32 s24, s24, 2"); A.e("s_add_u32 s24, s24, s12"); A.e("s_lshl_b32 s24, s24, 7")
    A.e(f"s_cmp_lt_u32 {s(sPart)}, 4"); A.e("s_cselect_b32 s25, 16384, 0"); A.e("s_add_u32 s24, s24, s25")
    A.e(f"s_add_u32 {s(sPoll)}, s24, {FLAG_OFF}")
    A.e(f"s_lshl_b32 s24, {s(sI)}, 2"); A.e("s_add_u32 s24, s24, s12"); A.e("s_lshl_b32 s24, s24, 7")
    A.e(f"s_lshl_b32 s25, {s(sPart)}, 2"); A.e("s_add_u32 s24, s24, s25")
    A.e(f"s_add_u32 {s(sPF)}, s24, {FLAG_OFF + 32768}")
    def code_prefetch(dst, nk):
        lab = f"{name}_pc{dst}"
        A.e("s_getpc_b64 s[24:25]")
        A.label(lab)
        A.e(f"s_lshl_b32 s15, {s(sI)}, 2"); A.e("s_add_u32 s15, s15, s12"); A.e("s_lshl_b32 s15, s15, 10")
        for k in range(nk):
            A.e(f"v_add_u32 v4, s15, v3")
            if k: A.e(f"v_add_u32 v4, {k*131072}, v4")
            A.e(f"v_min_u32 v4, {name}_end-{lab}-16, v4")
            A.e("v_mov_b32 v5, s25")
            A.e("v_add_co_u32 v4, vcc, s24, v4")
            A.e("s_nop 1")
            A.e("v_addc_co_u32 v5, vcc, 0, v5, vcc")
            A.e(f"global_load_dwordx4 {v(dst+4*k,4)}, v[4:5], off")
    if not opt.get("nocpf"): code_prefetch(60, 1)
    for f in (sHF, sOF, sPF):
        A.e(f"buffer_store_dword v{ZERO}, off, s[16:19], {s(f)}{SC}")
    A.e("s_lshl_b32 s98, s14, 5")
    RAW, LT, LF = 8, 20, 28
    A.e(f"s_mov_b32 s84, {s(sX)}"); A.e(f"s_mov_b32 s85, {s(sX+1)}"); A.e(f"s_mov_b32 s86, {2048*1152}"); A.e("s_mov_b32 s87, 0x20000")
    lnfuse.ln_loads(A, "v2", "s12", "s13", "s14", "s[84:87]", RAW, LT, 4)
    ptr = {"wq": 8, "Wg": 20, "Wu": 22}
    PA.setup(A, "v2", "s12", "s13", "s14", lambda n: ptr[n])
    G.setup_dma(A, "v2", "s12", 4)
    A.e("s_lshl_b32 s24, s14, 7"); A.e("s_lshl_b32 s25, s13, 2"); A.e("s_add_u32 s24, s24, s25")
    A.e("s_lshl_b32 s24, s24, 14"); A.e("s_lshl_b32 s25, s12, 12"); A.e("s_add_u32 s24, s24, s25")
    A.e(f"s_add_u32 s24, s24, {O_OFF}")

    stamp()
    L = Lin()
    def after_w0(L_):
        T_ = Asm()
        lnfuse.ln_compute(T_, "v2", "s12", "s13", "s14", "s[16:19]", RAW, LT, LF, 4, 13)
        for x in T_.lines: L_.e(x.strip())
        L_.e("s_waitcnt vmcnt(0)")
        L_.e("s_barrier")
        L_.e("s_cmp_eq_u32 s12, 0"); L_.e(f"s_cbranch_scc0 {name}_noann")
        L_.e("s_mov_b64 exec, 1")
        L_.e(f"buffer_atomic_add v{ONE}, off, {s(sDbg,4)}, s98")
        L_.e("s_mov_b64 exec, -1")
        L_.e(f"{name}_noann:")
        if stamps: stamp(L_)
    def wait_xn(L_):
        L_.e("s_mov_b32 s15, 0")
        L_.e(f"{name}_xn_spin:")
        L_.e(f"buffer_load_dword v{DBGV}, off, {s(sDbg,4)}, s98{SC}")
        L_.e("s_waitcnt vmcnt(0)")
        L_.e(f"v_readfirstlane_b32 s25, v{DBGV}")
        L_.e("s_add_u32 s15, s15, 1")
        L_.e(f"s_cmp_ge_u32 s15, {SPIN_LIMIT}"); L_.e(f"s_cbranch_scc1 {name}_xn_ok")
        L_.e("s_cmp_ge_u32 s25, 32"); L_.e(f"s_cbranch_scc0 {name}_xn_spin")
        L_.e(f"{name}_xn_ok:")
        if stamps: stamp(L_)
    PA.xmod = SC
    kvpf = None
    if not opt.get("nokvpf"):
        kvpf = {opt.get("kvpf_ks", 8): [
            (["s_lshl_b32 s25, s14, 1", "s_and_b32 s15, s13, 1", "s_add_u32 s25, s25, s15", "s_mul_i32 s15, s25, 3072",
              "s_lshl_b32 s3, s12, 10", "s_add_u32 s15, s15, s3"],
             f"buffer_load_dwordx4 v[4:7], v3, {s(R.sK,4)}, s15 offen", ("PF", 0)),
            (["s_lshl_b32 s25, s25, 11", "s_and_b32 s3, s12, 1", "s_lshl_b32 s3, s3, 10", "s_add_u32 s25, s25, s3"],
             f"buffer_load_dwordx4 v[4:7], v3, {s(R.sV,4)}, s25 offen", ("PF", 1))]}
    PA.main(L, "v3", (after_w0, wait_xn), (lambda L_: stamp(L_)) if opt.get('afine') else None, kvpf, G.initial_dma_ops())
    for x in L.out:
        if x.endswith(":"): A.label(x[:-1])
        else: A.e(x)
    stamp()
    A.e("v_lshlrev_b32 v1, 3, v2")
    A.e("s_nop 7")
    for sx in (0, 1):
        for rb in range(4):
            d = PA.h_unit(A, sx, rb); PA.h_store(A, sx, rb, d)
    if opt.get("estamp"): stamp()
    HB3 = 208
    h2 = []
    for sx in (2, 3):
        for rb in range(4):
            h2.append((sx, rb, PA.h_unit(A, sx, rb)))
    h3 = [(4, rb, PA.h_unit(A, 4, rb, HB3 + 2 * rb)) for rb in range(4)]
    if opt.get("estamp"): stamp()
    PA.epilogue_q(A, R.qi, RA.A)
    if opt.get("estamp"): stamp()
    for sx, rb, d in h2: PA.h_store(A, sx, rb, d)
    stamp()
    G.setup_reads(A, "v2")
    G.init_offsets(A)
    P.setup(A, "s12", s(sPart), s(sCt), "s14", sWo, sWd, 10)
    A.e(f"s_lshl_b32 s22, {s(sI)}, 2"); A.e("s_add_u32 s22, s22, s12")
    if SEQ:
        A.e(f"s_mul_i32 s20, s22, {tail.ND*32*1152//128}"); A.e(f"s_mul_i32 s21, s22, {tail.NS*32*1152//128}")
    else:
        A.e(f"s_mul_i32 s20, {s(P.sNk)}, {32*1152//128}"); A.e("s_mul_i32 s20, s20, s22")
    NH = 16
    G.vm_init = [("H", 0)] * 18 + [("KV", -1)] + [("H", 0)] * (0 if opt.get("nopf") else 1)
    if opt.get("estamp"):
        stamp(); A.e(f"s_waitcnt vmcnt({NH})"); stamp(); A.e("s_barrier"); stamp()
    G.prologue(A, NH)
    if opt.get("estamp"): stamp()
    for sx, rb, d in h3: PA.h_store(A, sx, rb, d)
    stamp()
    flag_h = f"buffer_store_dword v{ONE}, off, s[16:19], {s(sHF)}{SC}"
    def pf(srd, off):
        return ([], f"buffer_load_dwordx4 {v(PFV,4)}, v3, {s(srd,4)}, {off} offen{opt.get('pfld','')}", ("PF", 0), [f"s_add_u32 {off}, {off}, 1024"])
    G.after_bar = {p: {3: [flag_h]} for p in range(4, 57, 8)}
    if not opt.get("nopf"):
        for p in range(1, 57):
            if SEQ:
                if p % 8 == 3: G.extra_vm[p] = [pf(P.sWd, "s20")]
                if p % 8 == 7: G.extra_vm[p] = [pf(P.sWo, "s21")]
            elif p % 4 == 3: G.extra_vm[p] = [pf(P.sW, "s20")]
    w0 = [(pre, ins, ("W", 0), []) for pre, ins in (P.dma(0, "s12") if SEQ else P.dma(0))]
    G.extra_vm[63] = w0
    G.extra_bar = {63}
    vlane = "v231"
    G.extra_vm[61] = [([f"v_min_u32 {vlane}, {3 if SEQ else 7}, v2", f"v_lshlrev_b32 {vlane}, 2, {vlane}"],
                       f"buffer_load_dword {v(P.FL)}, {vlane}, s[16:19], {s(sPoll)} offen{SC}", ("X", 0), [])]
    grp = lambda ops: [pre + (["s_nop 0"] if pre else []) + [ins] for pre, ins in ops]
    def spin(load, test, lab):
        A.e("s_mov_b32 s15, 0")
        A.label(f"{name}_{lab}")
        A.e(load)
        A.e("s_waitcnt vmcnt(0)")
        for x in test: A.e(x)
        A.e("s_add_u32 s15, s15, 1")
        A.e(f"s_cmp_ge_u32 s15, {SPIN_LIMIT}"); A.e(f"s_cbranch_scc1 {name}_{lab}_ok")
        A.e("s_sleep 2")
        A.e(f"s_branch {name}_{lab}")
    def tail_roles_code():
        G.emit_all(A, name)
        stamp()
        A.e("s_barrier")
        def ostore(sx, qb, d):
            if opt.get("noostore"):
                A.e("s_nop 0"); A.e(f"buffer_load_dword v5, off, {s(sDbg,4)}, 0"); return
            A.e(f"s_add_u32 s25, s24, {sx*16384}")
            A.e(f"buffer_store_dwordx4 {v(d,4)}, v3, s[16:19], s25 offen offset:{qb*1024}{SC}")
        oflag = f"buffer_store_dword v{ONE}, off, s[16:19], {s(sOF)}{SC}"
        def emit(L_):
            for x in L_.out:
                if x.endswith(":"): A.label(x[:-1])
                else: A.e(x)
        def issue(ops):
            for g_ in grp(ops):
                for x in g_: A.e(x)
        cst = (lambda L_: stamp(L_)) if opt.get("cstamp") else None
        G.epilogue_pack(A, P.OS, P.AF, 4, [], ostore)
        issue(P.dma(1)); issue(P.dma(2))
        A.e(f"s_cmp_lt_u32 {s(sPart)}, 4"); A.e(f"s_cbranch_scc1 {name}_role_s")
        A.e("s_waitcnt vmcnt(43)")
        A.e(f"v_cmp_ne_u32 vcc, 1, {v(P.FL)}")
        A.e("s_nop 0")
        A.e(f"s_cbranch_vccnz {name}_slowh")
        A.label(f"{name}_h_ok")
        NPRE = 4
        for k in range(NPRE): issue(P.bload(k))
        A.e(f"s_waitcnt vmcnt({18 + 4*NPRE})")
        A.e(oflag)
        n0 = nst[0]
        stamp()
        L = Lin()
        L.vm = [("W", 1)] * 9 + [("W", 2)] * 9 + [("B", k) for k in range(NPRE) for _ in range(4)] + [("F", 0)]
        P.main(L, "d", NPRE, None, 0, cst)
        L.e("s_nop 7")
        emit(L)
        A.e(f"s_branch {name}_join")
        n1 = nst[0]; nst[0] = n0
        A.label(f"{name}_role_s")
        A.e("s_waitcnt vmcnt(18)")
        A.e(oflag)
        A.e("s_mov_b32 s15, 0")
        A.label(f"{name}_pollo")
        A.e(f"buffer_load_dword {v(P.FL)}, {vlane}, s[16:19], {s(sPoll)} offen{SC}")
        A.e("s_waitcnt vmcnt(0)")
        A.e(f"v_cmp_ne_u32 vcc, 1, {v(P.FL)}")
        A.e("s_nop 0")
        A.e(f"s_cbranch_vccz {name}_pollo_ok")
        A.e("s_add_u32 s15, s15, 1")
        A.e(f"s_cmp_ge_u32 s15, {SPIN_LIMIT}"); A.e(f"s_cbranch_scc1 {name}_pollo_ok")
        A.e("s_sleep 1")
        A.e(f"s_branch {name}_pollo")
        A.label(f"{name}_pollo_ok")
        stamp()
        L = Lin()
        for k in range(4):
            for pre, ins in P.bload(k):
                for x in pre: L.e(x)
                L.vm_op(ins, ("B", k))
        P.main(L, "s", 4, None, 0, cst)
        L.e("s_nop 7")
        emit(L)
        if opt.get("cstamp"):
            assert nst[0] == n1 - 1
            stamp()
        nst[0] = max(nst[0], n1)
        A.label(f"{name}_join")
        stamp()
        L = Lin()
        L.e("s_waitcnt vmcnt(20) lgkmcnt(0)")
        P.store_partials(L)
        emit(L)
        nerr = 0
    def tail_seq_code():
        def gate_h(A_):
            A_.e("s_waitcnt vmcnt(9)")
            A_.e(f"v_cmp_ne_u32 vcc, 1, {v(P.FL)}")
            A_.e("s_nop 0")
            A_.e(f"s_cbranch_vccnz {name}_slowh")
            A_.label(f"{name}_h_ok")
        pv_fill = []
        for k in range(4): pv_fill += grp(P.bload(k))
        G.emit_all(A, name, pv_fill, gate_h)
        stamp()
        A.e("s_barrier")
        fill = grp(P.dma(1, "s12")) + grp(P.bload(4)) + grp(P.bload(5)) + grp(P.dma(2, "s12"))
        nfill = len(fill)
        fill = [sum(fill[i:i + 2], []) for i in range(0, len(fill), 2)]
        G.epilogue_pack(A, P.OS, P.AF, 4, fill)
        A.e(f"s_waitcnt vmcnt({16 + nfill})")
        for sx in range(4):
            A.e(f"s_add_u32 s25, s24, {sx*16384}")
            for qb in range(4):
                A.e(f"buffer_store_dwordx4 {v(P.OS + 4*(4*sx+qb),4)}, v3, s[16:19], s25 offen offset:{qb*1024}{SC}")
        stamp()
        L = Lin()
        L.vm = [("B", k) for k in range(4) for _ in range(4)] + [("W", 1)] * 9 + [("B", 4)] * 8 + [("B", 5)] * 4 + [("W", 2)] * 9 + [("O", 0)] * 16
        assert len(L.vm) == 16 + nfill + 16
        def flagcheck(L_):
            L_.e(f"v_cmp_ne_u32 vcc, 1, {v(P.FL)}")
            L_.e("s_nop 0")
            L_.e(f"s_cbranch_vccnz {name}_slowo")
            L_.e(f"{name}_o_ok:")
        hooks = dict(oflag=[f"buffer_store_dword v{ONE}, off, s[16:19], {s(sOF)}{SC}"],
                     flagload=f"buffer_load_dword {v(P.FL)}, {vlane}, s[16:19], s23 offen{SC}", flagcheck=flagcheck,
                     stamp=(lambda L_: stamp(L_)) if opt.get("cstamp") else None)
        A.e(f"s_add_u32 s23, {s(sPoll)}, 8192")
        P.main(L, hooks, "s12")
        L.e("s_nop 7")
        if stamps: stamp(L)
        L.e("s_waitcnt vmcnt(24)"); L.vm = L.vm[-24:]
        P.final_partials(L)
        for x in L.out:
            if x.endswith(":"): A.label(x[:-1])
            else: A.e(x)
    (tail_seq_code if SEQ else tail_roles_code)()
    nerr = 0
    def poll(base, lab, last):
        A.e(f"v_min_u32 v4, {last}, v2"); A.e("v_lshlrev_b32 v4, 2, v4")
        A.e("s_mov_b32 s15, 0")
        A.label(f"{name}_{lab}")
        A.e(f"buffer_load_dword v5, v4, s[16:19], {base} offen{SC}")
        A.e("s_waitcnt vmcnt(0)")
        A.e("v_cmp_ne_u32 vcc, 1, v5")
        A.e(f"s_cbranch_vccz {name}_{lab}_ok")
        A.e("s_add_u32 s15, s15, 1")
        A.e(f"s_cmp_ge_u32 s15, {SPIN_LIMIT}"); A.e(f"s_cbranch_scc1 {name}_{lab}_ok")
        A.e("s_sleep 2")
        A.e(f"s_branch {name}_{lab}")
        A.label(f"{name}_{lab}_ok")
    A.e(f"s_lshl_b32 s78, s14, 4"); A.e(f"s_lshl_b32 s79, {s(sPart)}, 1"); A.e("s_add_u32 s78, s78, s79")
    A.e("s_lshr_b32 s79, s12, 1"); A.e("s_add_u32 s80, s78, s79")
    A.e("s_and_b32 s79, s12, 1"); A.e("s_add_u32 s81, s78, s79")
    A.e("s_lshl_b32 s82, s79, 1")
    A.e("v_and_b32 v4, 15, v2"); A.e("v_lshrrev_b32 v5, 4, v2")
    A.e("v_mul_u32_u24 v4, 1152, v4"); A.e("v_lshl_add_u32 v4, v5, 3, v4")
    A.e(f"s_mul_i32 s74, {s(sCt)}, 288")
    A.e(f"s_mul_i32 s75, s80, {16*1152}"); A.e("s_add_u32 s75, s75, s74"); A.e("s_lshl_b32 s76, s82, 6"); A.e("s_add_u32 s75, s75, s76")
    A.e(f"s_mul_i32 s76, s81, {16*1152}"); A.e("s_add_u32 s76, s76, s74"); A.e("s_add_u32 s76, s76, 256")
    A.e(f"s_mov_b32 s60, {s(sX)}"); A.e(f"s_mov_b32 s61, {s(sX+1)}"); A.e(f"s_mov_b32 s62, {2048*1152}"); A.e("s_mov_b32 s63, 0x20000")
    A.e(f"s_mov_b32 s64, {s(sOut)}"); A.e(f"s_mov_b32 s65, {s(sOut+1)}"); A.e(f"s_mov_b32 s66, {2048*1152}"); A.e("s_mov_b32 s67, 0x20000")
    XR = 220
    for k in range(4): A.e(f"buffer_load_dwordx2 {v(XR+2*k,2)}, v4, s[60:63], s75 offen offset:{32*k}")
    A.e(f"buffer_load_dwordx2 {v(XR+8,2)}, v4, s[60:63], s76 offen")
    A.e("s_waitcnt vmcnt(5)")
    A.e(f"buffer_store_dword v{ONE}, off, s[16:19], {s(sPF)}{SC}")
    A.e("v_mov_b32 v6, v4")
    A.e(f"s_lshl_b32 s77, {s(sI)}, 2"); A.e(f"s_lshr_b32 s79, {s(sPart)}, 1"); A.e("s_add_u32 s77, s77, s79")
    A.e("s_lshl_b32 s77, s77, 7"); A.e(f"s_add_u32 s77, s77, {FLAG_OFF + 32768}")
    poll("s77", "polld", 7)
    stamp()
    A.e(f"s_lshl_b32 s78, s80, 2"); A.e(f"s_add_u32 s78, s78, {s(sCt)}"); A.e(f"s_mul_i32 s78, s78, {PART_UNIT}")
    A.e(f"s_add_u32 s78, s78, {PART_OFF}"); A.e("s_lshl_b32 s79, s82, 10"); A.e("s_add_u32 s78, s78, s79")
    A.e(f"s_lshl_b32 s79, s81, 2"); A.e(f"s_add_u32 s79, s79, {s(sCt)}"); A.e(f"s_mul_i32 s79, s79, {PART_UNIT}")
    A.e(f"s_add_u32 s79, s79, {PART_OFF + NPART*4096}")
    A.e("v_lshlrev_b32 v7, 3, v2")
    PA_, PB_, PS_ = 8, 72, 136
    for p in range(NPART):
        A.e(f"buffer_load_dwordx4 {v(PA_+4*p,4)}, v3, s[16:19], s78 offen{SC}")
        A.e(f"buffer_load_dwordx4 {v(PB_+4*p,4)}, v3, s[16:19], s78 offen offset:1024{SC}")
        if p < NPART - 1: A.e("s_add_u32 s78, s78, 4096")
    for p in range(NPART):
        if p == 8: A.e("s_add_u32 s79, s79, 4096")
        A.e(f"buffer_load_dwordx2 {v(PS_+2*p,2)}, v7, s[16:19], s79 offen offset:{(p%8)*512}{SC}")
    A.e(f"s_mov_b32 s23, {hex(f32(-1.4426950408889634))}")
    def unpack_sum(dst, srcs, nreg, t, waits=None):
        for n, sr in enumerate(srcs):
            if waits: A.e(f"s_waitcnt vmcnt({waits[n]})")
            for j in range(nreg):
                lo, hi = v(dst + 2 * j), v(dst + 2 * j + 1)
                if n == 0:
                    A.e(f"v_lshlrev_b32 {lo}, 16, {v(sr+j)}"); A.e(f"v_and_b32 {hi}, 0xffff0000, {v(sr+j)}")
                else:
                    A.e(f"v_lshlrev_b32 {v(t)}, 16, {v(sr+j)}"); A.e(f"v_and_b32 {v(t+1)}, 0xffff0000, {v(sr+j)}")
                    A.e(f"v_pk_add_f32 {v(dst+2*j,2)}, {v(dst+2*j,2)}, {v(t,2)}")
    S0, D0, T0 = 170, 190, 210
    tot = 2 * NPART + NPART
    for half, dst in ((0, S0), (1, D0)):
        for p in range(NPART // 2):
            pp = NPART // 2 * half + p
            A.e(f"s_waitcnt vmcnt({tot - 2*(pp+1)})")
            for q, base in ((0, PA_), (1, PB_)):
                for j in range(4):
                    sr = base + 4 * pp + j
                    d2 = dst + 8 * q + 2 * j
                    if p == 0:
                        A.e(f"v_lshlrev_b32 {v(d2)}, 16, {v(sr)}"); A.e(f"v_and_b32 {v(d2+1)}, 0xffff0000, {v(sr)}")
                    else:
                        tt = 216 + 2 * (j & 1)
                        A.e(f"v_lshlrev_b32 {v(tt)}, 16, {v(sr)}"); A.e(f"v_and_b32 {v(tt+1)}, 0xffff0000, {v(sr)}")
                        A.e(f"v_pk_add_f32 {v(d2,2)}, {v(d2,2)}, {v(tt,2)}")
    for q in range(4):
        k2.final_math(A, S0 + 4 * q, D0 + 4 * q, XR + 2 * q, T0, "s23")
        A.e(f"buffer_store_dwordx2 {v(XR+2*q,2)}, v6, s[64:67], s75 offen offset:{32*q}")
    A.e("s_waitcnt vmcnt(4)")
    unpack_sum(S0 + 16, [PS_ + 2 * p for p in range(NPART // 2)], 2, 216)
    unpack_sum(D0 + 16, [PS_ + NPART + 2 * p for p in range(NPART // 2)], 2, 216)
    k2.final_math(A, S0 + 16, D0 + 16, XR + 8, T0, "s23")
    A.e(f"buffer_store_dwordx2 {v(XR+8,2)}, v6, s[64:67], s76 offen")
    if stamps or opt.get("span"):
        A.e("s_waitcnt vmcnt(0)")
        stamp()
        A.e("s_memrealtime s[94:95]"); A.e("s_waitcnt lgkmcnt(0)")
        A.e("s_sub_u32 s94, s94, s92")
        A.e(f"v_writelane_b32 v253, s94, 30"); A.e("v_writelane_b32 v253, s92, 31")
        A.e("s_lshl_b32 s21, s2, 2"); A.e("s_add_u32 s21, s21, s12"); A.e("s_lshl_b32 s21, s21, 8")
        A.e(f"s_add_u32 s21, s21, {STAMP_OFF}")
        A.e("v_lshlrev_b32 v1, 2, v2")
        A.e("buffer_store_dword v253, v1, s[16:19], s21 offen")
        if opt.get("dbgout"):
            A.e("s_cmp_eq_u32 s2, 0"); A.e(f"s_cbranch_scc0 {name}_nodbg")
            A.e("s_cmp_eq_u32 s12, 0"); A.e(f"s_cbranch_scc0 {name}_nodbg")
            lanes = [30, 1, 2, 3, 5, 6, 8, 9, 10, 11, 30, 30, 30, 30]
            words = [1, 2, 3, 4, 5, 6, 7, 9, 10, 11]
            A.e("s_mov_b64 exec, 1")
            for ln_, wd in zip(lanes, words):
                A.e(f"v_readlane_b32 s25, v253, {ln_}")
                A.e("s_nop 3")
                A.e("v_mov_b32 v4, s25")
                A.e(f"buffer_store_dword v4, off, {s(sDbg,4)}, 0 offset:{wd*4}")
            A.e("s_mov_b64 exec, -1")
            A.label(f"{name}_nodbg")
    A.e("s_endpgm")
    A.label(f"{name}_slowh")
    spin(f"buffer_load_dword {v(P.FL)}, {vlane}, s[16:19], {s(sPoll)} offen{SC}",
         [f"v_cmp_ne_u32 vcc, 1, {v(P.FL)}", "s_nop 0", f"s_cbranch_vccz {name}_slowh2_ok"], "slowh2")
    A.label(f"{name}_slowh2_ok")
    A.e(f"s_branch {name}_h_ok")
    if SEQ:
        A.label(f"{name}_slowo")
        spin(f"buffer_load_dword {v(P.FL)}, {vlane}, s[16:19], s23 offen{SC}",
             [f"v_cmp_ne_u32 vcc, 1, {v(P.FL)}", "s_nop 0", f"s_cbranch_vccz {name}_slowo2_ok"], "slowo2")
        A.label(f"{name}_slowo2_ok")
        A.e(f"s_branch {name}_o_ok")
    G.emit_rare(A)
    A.label(f"{name}_end")
    A.e("s_endpgm")
    A(kernel_desc(name, 512, 102, 256))
    errs = checker.check([l for l in A.lines if not l.startswith(";")], name)
    for e in errs[:10]: print(e)
    print(name, "lines", len(A.lines), "hazard errors", len(errs), nerr)
    return A
```

```python
from asmgen import *
from layout import *
from phasea import Lin, MF

SLOT = 4 * 9216
NSLOT = 4
NB = 8
ND, NS = 18, 16
NK = ND + NS
NST = (NK + 3) // 4

class Tail:
    def __init__(G, opt=None):
        G.opt = opt or {}
        G.dist = G.opt.get("dist", 3)
        G.B = 8
        G.AF = 136
        G.OS = 152
        G.ACCV = 152
        G.PK = 184
        G.DV = 219
        G.LA = 228; G.RA = 229
        G.FL = 230
        G.L8 = 232
        G.sWd, G.sWo, G.sH, G.sO = 60, 64, 68, 72
        G.sWoff, G.sBoff, G.sM0, G.sP4, G.sP2 = 76, 77, 78, 79, 80
        G.sT = 99
        G.sWc = 84
        G.sWS = 16
    def acc(G, job, t, rb, r=None):
        n = t * 4 + rb
        if job == 0: f, b = a, n * 4
        elif n < 28: f, b = a, 144 + n * 4
        else: f, b = v, G.ACCV + (n - 28) * 4
        return f(b, 4) if r is None else f(b + r)
    def acc_in_vgpr(G, job, t, rb): return job == 1 and t * 4 + rb >= 28
    def bf(G, k, rb): return v(G.B + (k % NB) * 16 + rb * 4, 4)
    def af(G, gi, h=None):
        b = G.AF + (gi % 4) * 4
        return v(b, 4) if h is None else v(b + 2 * h, 2)

    def setup(G, A, wave, x, ct, rt, pwo, pwd, pws):
        T = G.sT
        for srd, p, nrow in ((G.sWd, pwd, ND * 32), (G.sWo, pwo, NS * 32)):
            A.e(f"s_mul_i32 {s(T)}, {x}, {nrow*1152}")
            A.e(f"s_add_u32 {s(srd)}, {s(p)}, {s(T)}"); A.e(f"s_addc_u32 {s(srd+1)}, {s(p+1)}, 0")
            A.e(f"s_mov_b32 {s(srd+2)}, {nrow*1152}"); A.e(f"s_mov_b32 {s(srd+3)}, 0x20000")
        for srd, off, nk_all, nk in ((G.sH, H_OFF, 144, ND), (G.sO, O_OFF, 128, NS)):
            A.e(f"s_mul_i32 {s(T)}, {rt}, {nk_all}"); A.e(f"s_mul_i32 {s(T+2)}, {x}, {nk}"); A.e(f"s_add_u32 {s(T)}, {s(T)}, {s(T+2)}")
            A.e(f"s_lshl_b32 {s(T)}, {s(T)}, 14"); A.e(f"s_add_u32 {s(T)}, {s(T)}, {off}")
            A.e(f"s_add_u32 {s(srd)}, {s(pws)}, {s(T)}"); A.e(f"s_addc_u32 {s(srd+1)}, {s(pws+1)}, 0")
            A.e(f"s_mov_b32 {s(srd+2)}, {nk*16384}"); A.e(f"s_mov_b32 {s(srd+3)}, 0x20000")
        A.e(f"s_lshl_b32 {s(G.sBoff)}, {wave}, 12")
        A.e(f"s_mul_i32 {s(G.sWoff)}, {ct}, 288"); A.e(f"s_mul_i32 {s(T)}, {wave}, {32*1152}")
        A.e(f"s_add_u32 {s(G.sWoff)}, {s(G.sWoff)}, {s(T)}")
        for n in range(9):
            A.e(f"v_add_u32 v4, {64*n}, v2")
            A.e("v_mul_u32_u24 v5, 3641, v4"); A.e("v_lshrrev_b32 v5, 16, v5")
            A.e("v_mul_u32_u24 v6, 18, v5"); A.e("v_sub_u32 v6, v4, v6")
            A.e("v_mul_u32_u24 v5, 1152, v5")
            A.e(f"v_lshl_add_u32 {v(G.DV+n)}, v6, 4, v5")
            if n % 4: A.e(f"v_subrev_u32 {v(G.DV+n)}, {(n%4)*1024}, {v(G.DV+n)}")
        A.e(f"s_mul_i32 {s(G.sM0)}, {wave}, {9*1024}")
        A.e(f"v_lshlrev_b32 {v(G.L8)}, 3, v2")
        A.e("v_and_b32 v4, 15, v2"); A.e("v_lshrrev_b32 v5, 4, v2")
        A.e("v_lshrrev_b32 v6, 2, v4"); A.e("v_lshl_add_u32 v6, v5, 2, v6")
        A.e("v_mul_u32_u24 v6, 288, v6"); A.e("v_and_b32 v4, 3, v4")
        A.e(f"v_lshl_add_u32 {v(G.LA)}, v4, 3, v6")
        A.e(f"s_lshl_b32 {s(T)}, {rt}, 4"); A.e(f"s_lshl_b32 {s(T+1)}, {wave}, 2"); A.e(f"s_add_u32 {s(T)}, {s(T)}, {s(T+1)}")
        A.e(f"s_lshl_b32 {s(T)}, {s(T)}, 2"); A.e(f"s_add_u32 {s(T)}, {s(T)}, {ct}")
        A.e(f"s_mul_i32 {s(T)}, {s(T)}, {PART_UNIT}"); A.e(f"s_add_u32 {s(T)}, {s(T)}, {PART_OFF}")
        A.e(f"s_lshl_b32 {s(T+1)}, {x}, 12"); A.e(f"s_add_u32 {s(G.sP4)}, {s(T)}, {s(T+1)}")
        A.e(f"s_lshl_b32 {s(T+1)}, {x}, 9"); A.e(f"s_add_u32 {s(G.sP2)}, {s(T)}, {s(T+1)}"); A.e(f"s_add_u32 {s(G.sP2)}, {s(G.sP2)}, {NPART*4096}")

    def dma(G, st, wave):
        k0 = 4 * st
        pre0 = []
        if k0 + 3 < ND:
            srd = G.sWd; pre0 = [f"s_add_u32 s99, {s(G.sWoff)}, {k0*32*1152}"]
        elif k0 >= ND:
            srd = G.sWo; pre0 = [f"s_add_u32 s99, {s(G.sWoff)}, {(k0-ND)*32*1152}"]
        else:
            nd = ND - k0
            srd = G.sWc
            pre0 = [f"s_cmp_lt_u32 {wave}, {nd}"]
            for j in range(4): pre0.append(f"s_cselect_b32 {s(G.sWc+j)}, {s(G.sWd+j)}, {s(G.sWo+j)}")
            pre0 += [f"s_add_u32 s99, {s(G.sWoff)}, {k0*32*1152}", f"s_sub_u32 s101, {s(G.sWoff)}, {nd*32*1152}",
                     f"s_cmp_lt_u32 {wave}, {nd}", "s_cselect_b32 s99, s99, s101"]
        ops = []
        for n in range(9):
            pre = list(pre0) if n == 0 else []
            if n % 4 == 0: pre.append(f"s_add_u32 m0, {s(G.sM0)}, {(st % NSLOT) * SLOT + (n//4)*4096}")
            ops.append((pre, f"buffer_load_dwordx4 {v(G.DV+n)}, {s(srd,4)}, s99 offen offset:{(n%4)*1024} lds"))
        return ops
    def bload(G, k):
        job = 0 if k < ND else 1
        srd = G.sH if job == 0 else G.sO
        kk = k if job == 0 else k - ND
        pre = [f"s_add_u32 s100, {s(G.sBoff)}, {kk*16384}"]
        if job == 0 and k % 9 == 4:
            return [(pre, f"buffer_load_dwordx2 {v(G.B + (k % NB) * 16 + rb * 4 + 2*h, 2)}, {v(G.L8)}, {s(srd,4)}, s100 offen offset:{rb*1024 + h*512} sc1")
                    for rb in range(4) for h in range(2)]
        return [(pre, f"buffer_load_dwordx4 {G.bf(k,rb)}, v3, {s(srd,4)}, s100 offen offset:{rb*1024} sc1") for rb in range(4)]
    def rd(G, gi):
        st, r = divmod(gi, 36); k, t = divmod(r, 9)
        return [f"ds_read_b64_tr_b16 {G.af(gi,h)}, {v(G.RA)} offset:{k*9216 + 16*h*288 + 32*t}" for h in range(2)]

    def partial_items(G, job):
        p4 = 8 * 4096 if job == 0 else 0; p2 = 8 * 512 if job == 0 else 0
        it = []; k = 0
        for rb in range(4):
            for pr in range(5):
                b = G.PK + (k % 4) * 8; k += 1
                n = 8 if pr < 4 else 4
                src = []
                for j in range(n):
                    t = 2 * pr + j // 4
                    if G.acc_in_vgpr(job, t, rb): src.append(G.acc(job, t, rb, j % 4))
                    else:
                        it.append(("V", f"v_accvgpr_read_b32 {v(b+j)}, {G.acc(job, t, rb, j%4)}")); src.append(v(b + j))
                for j in range(n // 2): it.append(("V", f"v_cvt_pk_bf16_f32 {v(b+j)}, {src[2*j]}, {src[2*j+1]}"))
                if pr < 4:
                    it.append(("S", [f"s_add_u32 s101, {s(G.sP4)}, {p4 + rb*4*PART_UNIT}"],
                               f"buffer_store_dwordx4 {v(b,4)}, v3, {s(G.sWS,4)}, s101 offen offset:{pr*1024} sc1"))
                else:
                    it.append(("S", [f"s_add_u32 s101, {s(G.sP2)}, {p2 + rb*4*PART_UNIT}"],
                               f"buffer_store_dwordx2 {v(b,2)}, v4, {s(G.sWS,4)}, s101 offen sc1"))
        return it

    NB0 = 6
    def main(G, L, hooks, wave):
        total = NK * 9
        def addb(k): return [(p, i, ("B", k)) for p, i in G.bload(k)]
        def addw(st): return [(p, i, ("W", st)) for p, i in G.dma(st, wave)]
        L.e(f"v_mov_b32 {v(G.RA)}, {v(G.LA)}")
        L.e("v_lshlrev_b32 v4, 3, v2")
        L.e(f"s_waitcnt vmcnt({len(L.vm)})")
        L.e("s_barrier")
        for gi in range(G.dist):
            for x in G.rd(gi): L.ds_op(x, ("A", gi))
        vmq = []
        for k in range(G.NB0, NB): vmq += addb(k)
        vmq += addw(3)
        held = []; released = False; vq = []; staged = None
        K_FLAG, K_LOAD, K_CHECK = G.opt.get("kflag", 2), G.opt.get("kload", 9), G.opt.get("kcheck", 11)
        for kg in range(NK):
            job = 0 if kg < ND else 1
            if kg == ND: vq = G.partial_items(0)
            for t in range(9):
                gi = kg * 9 + t
                nx = gi + G.dist
                rd = G.rd(nx) if nx < total else None
                first = (kg == 0 or kg == ND)
                for rb in range(4):
                    if rb == 0:
                        L.need_ds(("A", gi))
                        if t == 0: L.need_vm(("B", kg))
                    ac = G.acc(job, t, rb)
                    L.e(f"{MF} {ac}, {G.af(gi)}, {G.bf(kg,rb)}, {'0' if first else ac}")
                    used = False
                    if rb == 0 and rd and nx % 36 == 0:
                        ns = nx // 36
                        L.need_vm(("W", ns))
                        if ns == K_FLAG: L.need_vm(("O", 0))
                        L.e("s_waitcnt lgkmcnt(0)"); L.ds = []
                        L.e("s_barrier")
                        L.e(f"v_add_u32 {v(G.RA)}, {(ns % NSLOT) * SLOT}, {v(G.LA)}")
                        if ns == K_FLAG:
                            for x in hooks["oflag"]: L.vm_op(x, ("F", 0))
                        if 4 <= ns + 3 < NST: vmq += addw(ns + 3)
                        if hooks.get("stamp"): hooks["stamp"](L)
                        used = True
                    if rd and rb == 1: L.ds_op(rd[0], ("A", nx))
                    if rd and rb == 2: L.ds_op(rd[1], ("A", nx))
                    if rb == 3 and t == 8:
                        if kg + NB < NK:
                            if kg + NB >= ND and not released: held += addb(kg + NB)
                            else: vmq = addb(kg + NB) + vmq
                        if kg == K_LOAD: vmq.insert(0, ([], hooks["flagload"], ("FL", 0)))
                        if kg == K_CHECK:
                            L.need_vm(("FL", 0)); hooks["flagcheck"](L)
                            released = True; vmq = held + vmq; held = []
                    if rb == 0 and staged is not None:
                        L.vm_op(*staged); staged = None; used = True
                    if rb == 3 and len(L.vm) < 60 and gi + 1 < total:
                        if vq and vq[0][0] == "S" and (not vmq or vmq[0][2][0] == "W" or len(vmq) < 3):
                            x = vq.pop(0)
                            for y in x[1]: L.e(y)
                            staged = (x[2], ("P", 0))
                        elif vmq:
                            p, i, key = vmq.pop(0)
                            for x in p: L.e(x)
                            staged = (i, key)
                    nv = 0 if used else (1 if rb in (1, 2) else 2)
                    if nv == 2 and vq and vq[0][0] == "V": L.e("s_nop 0")
                    while vq and nv and vq[0][0] == "V":
                        L.e(vq.pop(0)[1]); nv -= 1
        G.left = vq; vq = []
        assert not vmq and not vq and not held, (vmq, vq)

    def final_partials(G, L):
        for x in G.left + G.partial_items(1):
            if x[0] == "V": L.e(x[1])
            else:
                for y in x[1]: L.e(y)
                L.vm_op(x[2], ("P", 1))
```

```python
from asmgen import *

NSUB = 64
THR = 0x4b800000
ORDER = [0, 2, 1, 3]
MSUM = (0, 1)

class Regs:
    def __init__(R, vbase=8):
        n = vbase
        def al(k, align=1):
            nonlocal n
            n = (n + align - 1) // align * align
            r = n; n += k; return r
        R.S = al(64, 4)
        R.P = al(32, 4)
        R.NEGM = al(16, 4)
        R.SD = al(8, 4)
        R.ONES = al(4, 4)
        R.NT = 32
        R.T = al(R.NT)
        R.PS = al(4)
        R.L = al(4)
        R.KADDR = al(4)
        R.VADDR = al(8)
        R.KDMA = 247
        R.VDMA = 251
        R.CHK = al(1)
        R.TMP = al(12, 4)
        R.vend = n
        R.O = 128
        R.sK = 36
        R.sV = 40
        R.sKoff = 44
        R.sVoff = 45
        R.sM0K = 46
        R.sM0V = 47
        R.sThr = 48
        R.sLoop = 49
        R.sRet = 50
        R.sTmp = 52
    def s(R, par, qb, kb, r=None):
        b = R.S + par * 32 + qb * 8 + kb * 4
        return v(b, 4) if r is None else v(b + r)
    def p(R, par, qb, j=None):
        b = R.P + par * 16 + qb * 4
        return v(b, 4) if j is None else v(b + j)
    def negm(R, qb, r=None):
        return v(R.NEGM + qb * 4, 4) if r is None else v(R.NEGM + qb * 4 + r)
    def o(R, qb, db, r=None):
        b = R.O + (qb * 8 + db) * 4
        return a(b, 4) if r is None else a(b + r)
    def qi(R, qb, ds): return (8 * ds + qb) * 4
    def q(R, qb, ds):
        return a(R.qi(qb, ds), 4)
    def f(R, i, n=4, off=0):
        return a((8 * (i >> 2) + 4 + (i & 3)) * 4 + off, n)
    def psum(R, qb):
        if qb in MSUM: return v(R.SD + MSUM.index(qb) * 4)
        return v(R.PS + qb)

MF = "v_mfma_f32_16x16x32_bf16"

def kslot(u): return (u + 3) & 7
def vslot(u): return u & 7

class Item:
    def __init__(s, kind, text, lo, hi, tag=""):
        s.kind, s.text, s.lo, s.hi, s.tag = kind, text, lo, hi, tag

S0_AFTER, S1_AFTER = 9, 41
def pos(n):
    return n + (1 if n > S0_AFTER else 0) + (1 if n > S1_AFTER else 0)
NG = 66
POS_S0, POS_S1 = S0_AFTER + 1, S1_AFTER + 2
SHIFT = 4

def gap_types():
    t = [None] * NG
    for n in range(64):
        if n % 2 == 0: t[pos(n)] = "E"
    free = [g for g in range(NG) if t[g] is None]
    vv = CFG["vv"]; dm = CFG["dma"]
    for g in free:
        t[g] = "V" if g in vv else ("M" if g in dm else "D")
    return t

CFG = dict(vv=[pos(15), pos(19), pos(23), pos(57), pos(59), pos(61)], dma=[pos(5), pos(11), pos(27), pos(33)])

class AttnGen:
    def __init__(G, R, opt=None):
        G.R = R
        G.opt = opt or {}
        if 'cfg' in G.opt: CFG.update(G.opt['cfg'])
        G.types = gap_types()
        G.late = []
        G.extra_vm = {}; G.extra_bar = set(); G.after_bar = {}
        G.vm_init = []
        G.nD = G.types.count("D")
        assert G.nD >= 24, G.nD

    def mfma_list(G, p, do_pv, do_qk):
        R = G.R; par = p & 1
        L = [None] * NG
        for n in range(32):
            qb = ORDER[n >> 3]; db = n & 7
            c = "0" if p == 1 else R.o(qb, db)
            L[pos(n)] = (f"{MF} {R.o(qb,db)}, {R.f(db)}, {R.p(par^1,qb)}, {c}", ("V", db)) if do_pv else None
        for n in range(32, 64):
            i = (n - 32) >> 2; kb = i >> 2; ds = i & 3; qb = ORDER[n & 3]
            c = R.negm(qb) if ds == 0 else R.s(par^1, qb, kb)
            L[pos(n)] = (f"{MF} {R.s(par^1,qb,kb)}, {R.f(8+i)}, {R.q(qb,ds)}, {c}", ("K", i)) if do_qk else None
        L[POS_S0] = (f"{MF} {v(R.SD,4)}, {v(R.ONES,4)}, {R.p(par,MSUM[0])}, 0", None)
        L[POS_S1] = (f"{MF} {v(R.SD+4,4)}, {v(R.ONES,4)}, {R.p(par,MSUM[1])}, 0", None)
        return L

    def exp_src(G, tile, e):
        qb = ORDER[e >> 3]; kb = (e >> 2) & 1; r = e & 3
        return G.R.s(tile & 1, qb, kb, r)
    def tmp(G, tile, e):
        return v(G.R.T + (tile * 32 + e) % G.R.NT)
    def exp_text(G, tile, e):
        return f"v_exp_f32 {G.tmp(tile,e)}, {G.exp_src(tile,e)}"
    def cvt_text(G, tile, e):
        qb = ORDER[e >> 3]; j = (e & 7) >> 1
        return f"v_cvt_pk_bf16_f32 {G.R.p(tile&1,qb,j)}, {G.tmp(tile,e)}, {G.tmp(tile,e+1)}"
    def exp_time(G, tile, e):
        k = e - SHIFT
        if k < 0: return (tile - 1) * NG + pos(64 + 2 * k)
        return tile * NG + pos(2 * k)

    def valu_items(G, tile):
        R = G.R; it = []; T0 = tile * NG
        nxtI = lambda t: t + 1
        for e in range(0, 32, 2):
            qb = ORDER[e >> 3]
            lo = G.exp_time(tile, e + 1) + 1
            if qb == MSUM[0]: hi = T0 + POS_S0 - 2
            elif qb == MSUM[1]: hi = T0 + POS_S1 - 2
            else: hi = T0 + NG + pos(8 * ORDER.index(qb)) - 2
            hi = min(hi, G.exp_time(tile, e) + 0 + self_reuse(G, tile, e))
            it.append(Item("V", G.cvt_text(tile, e), lo, hi, ("cvt", tile, e)))
        for qb in range(4):
            if qb in MSUM: continue
            b = ORDER.index(qb) * 8
            it.append(Item("V", f"v_add_f32 {R.psum(qb)}, {G.tmp(tile,b)}, {G.tmp(tile,b+1)}", G.exp_time(tile, b + 1) + 1,
                           G.exp_time(tile, b + 1) + 3, ("add", tile, qb, 1)))
            for j in range(2, 8):
                it.append(Item("V", f"v_add_f32 {R.psum(qb)}, {R.psum(qb)}, {G.tmp(tile,b+j)}", G.exp_time(tile, b + j) + 1,
                               G.exp_time(tile, b + j) + 3, ("add", tile, qb, j)))
        vq = [q for q in ORDER if q not in MSUM]
        last = G.exp_time(tile, 31) + 1
        it.append(Item("V", f"v_max3_f32 {v(R.CHK)}, {R.psum(MSUM[0])}, {R.psum(MSUM[1])}, {R.psum(vq[0])}", T0 + POS_S1 + 6, last, ("chk", tile, 0)))
        it.append(Item("V", f"v_max_f32 {v(R.CHK)}, {v(R.CHK)}, {R.psum(vq[1])}", last + 1, last + 2, ("chk", tile, 1)))
        it.append(Item("V", f"v_cmp_lt_f32 vcc, {s(R.sThr)}, {v(R.CHK)}", last + 1, last + 2, ("chk", tile, 2)))
        for qb in range(4):
            if qb == MSUM[0]: hi = T0 + NG + POS_S0 - 1
            elif qb == MSUM[1]: hi = T0 + NG + POS_S1 - 1
            else: hi = G.exp_time(tile + 1, ORDER.index(qb) * 8 + 1)
            it.append(Item("V", f"v_add_f32 {v(R.L+qb)}, {v(R.L+qb)}, {R.psum(qb)}", "afterchk", hi, ("ladd", tile, qb)))
        return it

    def ds_items(G, p):
        R = G.R; it = []
        ks = kslot(p + 1)
        for i in range(8):
            kb, ds = i >> 2, i & 3
            it.append((f"ds_read_b128 {R.f(8+i)}, {v(R.KADDR+ds)} offset:{ks*8192+kb*4096}", ("K", i), p * NG + 1, "K"))
        vs = vslot(p)
        for db in range(8):
            for h in range(2):
                it.append((f"ds_read_b64_tr_b16 {R.f(db,2,2*h)}, {v(R.VADDR+db)} offset:{vs*8192+h*4096}", ("V", db),
                           p * NG + pos(24 + db) + 1, "V"))
        return it

    def dma_items(G, p):
        R = G.R; out = []
        if p % 2 == 0 and p + 5 <= NSUB - 1:
            for n in range(4):
                pre = [f"s_add_u32 m0, {s(R.sM0K)}, {(p & 7) * 8192}"] if n == 0 else []
                post = [f"s_add_u32 {s(R.sKoff)}, {s(R.sKoff)}, 16384"] if n == 3 else []
                out.append((pre, f"buffer_load_dwordx4 {v(R.KDMA+n)}, {s(R.sK,4)}, {s(R.sKoff)} offen offset:{n*1024}{G.opt.get('kvmod','')} lds", ("KV", p // 2), post))
        if p % 2 == 1 and p + 3 <= NSUB - 1:
            for n in range(4):
                pre = [f"s_add_u32 m0, {s(R.sM0V)}, {((p + 3) & 7) * 8192}"] if n == 0 else []
                post = [f"s_add_u32 {s(R.sVoff)}, {s(R.sVoff)}, 16384"] if n == 3 else []
                out.append((pre, f"buffer_load_dwordx4 {v(R.VDMA+(n&1))}, {s(R.sV,4)}, {s(R.sVoff)} offen offset:{n*1024}{G.opt.get('kvmod','')} lds", ("KV", p // 2), post))
        if G.opt.get("nodma"): out = []
        return out + list(G.extra_vm.get(p, []))

    def schedule(G, first=0, last=NSUB - 1):
        R = G.R
        pend = []
        placed = {}
        periods = []
        for t in (first,):
            pend += [x for x in G.valu_items(t) if G.keep_first(x, t)]
        added = first
        G.chk_pos = {}
        for p in range(first, last + 1):
            do_pv = p > 0; do_qk = p < NSUB - 1
            M = G.mfma_list(p, do_pv, do_qk)
            dsq = G.ds_items(p)
            if not do_qk: dsq = [d for d in dsq if d[3] != "K"]
            vmq = G.dma_items(p)
            if p + 1 <= last + 1 and do_qk:
                pend += G.valu_items(p + 1)
            gaps = []
            e_next = {}
            for e in range(32):
                e_next[G.exp_time(p, e)] = (p, e)
                if do_qk: e_next[G.exp_time(p + 1, e)] = (p + 1, e)
            for g in range(NG):
                T = p * NG + g
                gap = dict(mfma=M[g], pre=[], body=[], post=[])
                ty = G.types[g]
                if ty == "E":
                    if T in e_next:
                        gap["body"].append(G.exp_text(*e_next[T]))
                else:
                    nv = 2 if ty == "V" else 1
                    if ty == "M" and G.opt.get("dmaalone"): nv = 0
                    if ty == "D":
                        if dsq and dsq[0][2] <= T:
                            d = dsq.pop(0); gap["body"].append(("DS", d[0], d[1]))
                        else:
                            nv = 2
                    n_m_left = sum(1 for gg in range(g, NG) if G.types[gg] == "M")
                    spare = (ty == "V" and g == G.opt.get("xgap", pos(23)) and len(vmq) > n_m_left)
                    if (ty == "M" or spare or (ty == "D" and nv == 2 and G.opt_fill(p))) and vmq:
                        x = vmq.pop(0)
                        if x[0]:
                            if x[2][0] == "KV": gaps[-1]["pre"] += x[0]
                            else: gap["pre"] += x[0] + ["s_nop 0"]
                        gap["body"].append(("VM", x[1], x[2])); nv = 1
                        gap["next_pre"] = list(x[3])
                    elif ty == "M":
                        nv = 2
                    for _ in range(nv):
                        ready = [x for x in pend if G.ready(x, T, placed)]
                        if not ready: break
                        ready.sort(key=lambda x: x.hi)
                        x = ready[0]; pend.remove(x); placed[x.tag] = T
                        if x.hi < T: G.late.append((x.tag, T, x.hi))
                        gap["body"].append(x.text)
                        if x.tag[0] == "chk" and x.tag[2] == 2:
                            gap["post"].append(("CHECK", p)); G.chk_pos[p] = T
                gaps.append(gap)
            assert not dsq, (p, dsq)
            assert not vmq, (p, vmq)
            for g in range(NG - 1):
                if gaps[g].get("next_pre"): gaps[g + 1]["pre"] = gaps[g]["next_pre"] + gaps[g + 1]["pre"]
            if (p % 2 == 0 or p in G.extra_bar) and not G.opt.get("nobar"):
                gaps[G.opt.get("barpos", 0)]["pre"] += [("VMWAIT", ("KV", p // 2 - 2)), "s_barrier"]
            for g, lst in G.after_bar.get(p, {}).items():
                gaps[g]["body"] = [("VM", x, ("X", p)) for x in lst] + gaps[g]["body"]
            periods.append(gaps)
        G.leftover = pend
        return periods
    late = []
    fill_periods = set()
    def opt_fill(G, p): return p == NSUB - 1 or p in G.fill_periods
    def keep_first(G, x, t):
        return True
    def ready(G, x, T, placed):
        if x.lo == "afterchk":
            k = ("chk", x.tag[1], 2)
            return k in placed and placed[k] + G.opt.get("brdelay", 0) < T
        if x.lo > T: return False
        if x.tag[0] == "add" and x.tag[3] > 1:
            return ("add", x.tag[1], x.tag[2], x.tag[3] - 1) in placed
        if x.tag[0] == "chk" and x.tag[2] > 0:
            if ("chk", x.tag[1], x.tag[2] - 1) not in placed: return False
            vq = [q for q in ORDER if q not in MSUM]
            return ("add", x.tag[1], vq[1], 7) in placed
        if x.tag[0] == "chk" and x.tag[2] == 0:
            vq = [q for q in ORDER if q not in MSUM]
            return ("add", x.tag[1], vq[0], 7) in placed
        return True

def self_reuse(G, tile, e):
    nxt = tile * 32 + e + G.R.NT
    t2, e2 = divmod(nxt, 32)
    return G.exp_time(t2, e2) - G.exp_time(tile, e) - 1


class AttnEmit(AttnGen):
    def linearise(G, periods, first):
        out = []
        fifo = []
        vm = list(G.vm_init)
        done = set()
        seq = []
        for k, gaps in enumerate(periods):
            for g, gap in enumerate(gaps): seq.append((k, g, gap))
        lists = [[] for _ in periods]
        pendchk = None
        vkeys = {}
        for n, (k, g, gap) in enumerate(seq):
            L = lists[k]
            m = gap["mfma"]
            L.append(m[0] if m else "s_nop 0")
            pre = []
            for x in gap["pre"]:
                if isinstance(x, tuple) and x[0] == "VMWAIT":
                    if x[1] in vm:
                        lastv = max(i for i, y in enumerate(vm) if y == x[1])
                        pre.append(f"s_waitcnt vmcnt({len(vm) - 1 - lastv})"); vm = vm[lastv + 1:]
                else:
                    pre.append(x)
            if pendchk is not None:
                if pendchk[1] <= 0:
                    pre.append(("CHECK", pendchk[0])); pendchk = None
                else:
                    pendchk = (pendchk[0], pendchk[1] - 1)
            nxt = seq[n + 1][2]["mfma"] if n + 1 < len(seq) else None
            if nxt and nxt[1] is not None and nxt[1] in fifo:
                last = max(i for i, x in enumerate(fifo) if x == nxt[1])
                cnt = len(fifo) - 1 - last
                if not G.opt.get("nolgkm"): pre.append(f"s_waitcnt lgkmcnt({min(cnt, 15)})")
                fifo = fifo[len(fifo) - min(cnt, 15):] if cnt > 0 else []
            L += pre
            body = gap["body"]
            nval = sum(1 for b in body if isinstance(b, str) and b.startswith("v_"))
            if not pre and nval >= 2 and not isinstance(body[0], tuple):
                L.append("s_nop 0")
            for b in body:
                if isinstance(b, tuple) and b[0] == "VM":
                    L.append(b[1]); vm.append(b[2])
                elif isinstance(b, tuple):
                    L.append(b[1]); fifo.append(b[2])
                else:
                    L.append(b)
            for x in gap["post"]:
                pendchk = (x[1], G.opt.get("brdelay", 0))
        G.final_fifo = fifo; G.final_vm = vm
        assert pendchk is None
        return lists

    def xlane(G, A, reg, t0, op):
        for sw in ("v_permlane32_swap_b32", "v_permlane16_swap_b32"):
            A.e(f"v_mov_b32 {t0}, {reg}")
            A.e("s_nop 1")
            A.e(f"{sw} {t0}, {reg}")
            A.e("s_nop 1")
            A.e(f"{op} {reg}, {t0}, {reg}")

    def rare(G, A, p, redo, label):
        R = G.R; par = p & 1
        t0, t1, dl, fc = v(R.TMP), v(R.TMP + 1), v(R.TMP + 2), v(R.TMP + 3)
        A.label(label)
        A.e("s_nop 15")
        for qb in range(4):
            S = [R.s(par, qb, kb, r) for kb in range(2) for r in range(4)]
            A.e(f"v_max3_f32 {dl}, {S[0]}, {S[1]}, {S[2]}")
            A.e(f"v_max3_f32 {dl}, {dl}, {S[3]}, {S[4]}")
            A.e(f"v_max3_f32 {dl}, {dl}, {S[5]}, {S[6]}")
            A.e(f"v_max3_f32 {dl}, {dl}, {S[7]}, 0")
            G.xlane(A, dl, t0, "v_max_f32")
            A.e(f"v_sub_f32 {fc}, 0, {dl}")
            A.e(f"v_exp_f32 {fc}, {fc}")
            for r in range(4):
                A.e(f"v_sub_f32 {R.negm(qb,r)}, {R.negm(qb,r)}, {dl}")
            for x in S:
                A.e(f"v_sub_f32 {x}, {x}, {dl}")
            for kb in range(2):
                for r in range(4):
                    x = R.s(par ^ 1, qb, kb, r)
                    A.e(f"v_sub_f32 {x}, {x}, {dl}")
            A.e(f"v_mul_f32 {v(R.L+qb)}, {v(R.L+qb)}, {fc}")
            for db in range(8):
                for r in range(4):
                    A.e(f"v_accvgpr_read_b32 {t1}, {R.o(qb,db,r)}")
                    A.e(f"v_mul_f32 {t1}, {t1}, {fc}")
                    A.e(f"v_accvgpr_write_b32 {R.o(qb,db,r)}, {t1}")
        for b in range(4):
            qb = ORDER[b]
            ps = R.psum(qb)
            for j in range(8):
                e = b * 8 + j
                A.e(G.exp_text(p, e))
                A.e("s_nop 0")
                if j == 1:
                    A.e(f"v_add_f32 {ps}, {G.tmp(p,e-1)}, {G.tmp(p,e)}")
                elif j > 1:
                    A.e(f"v_add_f32 {ps}, {ps}, {G.tmp(p,e)}")
                if j & 1:
                    A.e(G.cvt_text(p, e - 1))
            if qb in MSUM:
                G.xlane(A, ps, t0, "v_add_f32")
        for x in redo:
            A.e(x)
            A.e("s_nop 0")
        A.e("s_nop 3")
        A.e(f"s_setpc_b64 {s(R.sRet,2)}")

    def setup_reads(G, A, lane):
        R = G.R
        t = [v(R.TMP + i) for i in range(8)]
        m, g, i2 = t[0], t[1], t[2]
        A.e(f"v_and_b32 {m}, 15, {lane}")
        A.e(f"v_lshrrev_b32 {g}, 4, {lane}")
        for ds in range(4):
            A.e(f"v_add_u32 {t[4]}, {4*ds}, {g}")
            A.e(f"v_xor_b32 {t[4]}, {t[4]}, {m}")
            A.e(f"v_lshlrev_b32 {t[4]}, 4, {t[4]}")
            A.e(f"v_lshl_add_u32 {v(R.KADDR+ds)}, {m}, 8, {t[4]}")
        A.e(f"v_lshrrev_b32 {i2}, 2, {m}")
        A.e(f"v_lshl_add_u32 {t[4]}, {g}, 2, {i2}")
        A.e(f"v_and_b32 {t[5]}, 7, {t[4]}")
        A.e(f"v_lshlrev_b32 {t[4]}, 8, {t[4]}")
        A.e(f"v_add_u32 {t[4]}, 0x10000, {t[4]}")
        A.e(f"v_bfe_u32 {t[6]}, {m}, 1, 1")
        A.e(f"v_lshl_add_u32 {t[4]}, {t[6]}, 4, {t[4]}")
        A.e(f"v_and_b32 {t[6]}, 1, {m}")
        A.e(f"v_lshl_add_u32 {t[4]}, {t[6]}, 3, {t[4]}")
        for db in range(8):
            A.e(f"v_xor_b32 {t[6]}, {db}, {t[5]}")
            A.e(f"v_lshl_add_u32 {v(R.VADDR+db)}, {t[6]}, 5, {t[4]}")

    def setup_dma(G, A, lane, wave_s, tbase):
        R = G.R
        m, g, t4, t5 = v(tbase), v(tbase + 1), v(tbase + 2), v(tbase + 3)
        A.e(f"v_and_b32 {m}, 15, {lane}")
        A.e(f"v_lshrrev_b32 {g}, 4, {lane}")
        A.e(f"s_lshl_b32 {s(R.sTmp)}, {wave_s}, 12")
        A.e(f"v_lshl_add_u32 {t4}, {g}, 8, {s(R.sTmp)}")
        for n in range(4):
            A.e(f"v_add_u32 {t5}, {4*n}, {g}")
            A.e(f"v_xor_b32 {t5}, {t5}, {m}")
            A.e(f"v_lshl_add_u32 {v(R.KDMA+n)}, {t5}, 4, {t4}")
        for n in range(2):
            A.e(f"v_add_u32 {t5}, {4*n}, {g}")
            A.e(f"v_lshlrev_b32 {t5}, 1, {t5}")
            A.e(f"v_xor_b32 {t5}, {t5}, {m}")
            A.e(f"v_lshl_add_u32 {v(R.VDMA+n)}, {t5}, 4, {t4}")
        A.e(f"s_mov_b32 {s(R.sM0K)}, {s(R.sTmp)}")
        A.e(f"s_add_u32 {s(R.sM0V)}, {s(R.sTmp)}, 0x10000")
        A.e(f"s_mov_b32 {s(R.sThr)}, {THR}")

    def initial_dma_ops(G):
        R = G.R; ops = []
        for pair in range(3):
            base = kslot(2 * pair) * 8192
            for n in range(4):
                pre = [f"s_add_u32 m0, {s(R.sM0K)}, {base}", "s_and_b32 m0, m0, 0xffff", f"s_mov_b32 {s(R.sTmp)}, {pair*16384}"] if n == 0 else []
                ops.append((pre, f"buffer_load_dwordx4 {v(R.KDMA+n)}, {s(R.sK,4)}, {s(R.sTmp)} offen offset:{n*1024}{G.opt.get('kvmod','')} lds"))
        for pair in range(2):
            for n in range(4):
                pre = [f"s_add_u32 m0, {s(R.sM0V)}, {pair*16384}", f"s_mov_b32 {s(R.sTmp)}, {pair*16384}"] if n == 0 else []
                ops.append((pre, f"buffer_load_dwordx4 {v(R.VDMA+(n&1))}, {s(R.sV,4)}, {s(R.sTmp)} offen offset:{n*1024}{G.opt.get('kvmod','')} lds"))
        return ops

    def init_offsets(G, A):
        R = G.R
        A.e(f"s_mov_b32 {s(R.sKoff)}, {5*8192}")
        A.e(f"s_mov_b32 {s(R.sVoff)}, {4*8192}")

    def initial_dma(G, A):
        for pre, ins in G.initial_dma_ops():
            for x in pre: A.e(x)
            A.e(ins)
        G.init_offsets(A)

    def prologue(G, A, vmcnt=0):
        R = G.R
        A.e(f"s_waitcnt vmcnt({vmcnt})")
        A.e("s_barrier")
        ks = kslot(0)
        for i in range(8):
            kb, ds = i >> 2, i & 3
            A.e(f"ds_read_b128 {R.f(8+i)}, {v(R.KADDR+ds)} offset:{ks*8192+kb*4096}")
        for i in range(4): A.e(f"v_mov_b32 {v(R.ONES+i)}, 0x3f803f80")
        for i in range(4): A.e(f"v_mov_b32 {v(R.L+i)}, 0")
        A.e("s_waitcnt lgkmcnt(0)")
        for i in range(8):
            kb, ds = i >> 2, i & 3
            for qb in range(4):
                c = "0" if ds == 0 else R.s(0, qb, kb)
                A.e(f"{MF} {R.s(0,qb,kb)}, {R.f(8+i)}, {R.q(qb,ds)}, {c}")
        A.e("s_nop 7")
        t0, dl = v(R.TMP), v(R.TMP + 2)
        for qb in range(4):
            S = [R.s(0, qb, kb, r) for kb in range(2) for r in range(4)]
            A.e(f"v_max3_f32 {dl}, {S[0]}, {S[1]}, {S[2]}")
            A.e(f"v_max3_f32 {dl}, {dl}, {S[3]}, {S[4]}")
            A.e(f"v_max3_f32 {dl}, {dl}, {S[5]}, {S[6]}")
            A.e(f"v_max_f32 {dl}, {dl}, {S[7]}")
            G.xlane(A, dl, t0, "v_max_f32")
            for r in range(4): A.e(f"v_sub_f32 {R.negm(qb,r)}, 0, {dl}")
            for x in S: A.e(f"v_sub_f32 {x}, {x}, {dl}")
        for e in range(SHIFT):
            A.e(G.exp_text(0, e))
        A.e("s_nop 1")

    def body(G, A, prefix):
        R = G.R
        G.late = []
        periods = G.schedule()
        lists = G.linearise(periods, 0)
        G.late_report = list(G.late)
        G.lists = lists
        rare = {}
        G.stubs = []
        def emit(p, tagp):
            L = lists[p]
            for k, x in enumerate(L):
                if isinstance(x, tuple):
                    tile = x[1]
                    redo = [y for y in L[:k] if isinstance(y, str) and G.is_next_tile(y, tile)]
                    key = (tile & 1, tuple(redo))
                    if key not in rare: rare[key] = (f"{prefix}_rare{len(rare)}", tile, redo)
                    if G.opt.get("nochk"): continue
                    if G.opt.get("farbranch"):
                        A.e(f"s_cbranch_vccnz {prefix}_stub{tagp}")
                        A.label(f"{prefix}_ok{tagp}")
                        G.stubs.append((f"{prefix}_stub{tagp}", rare[key][0], f"{prefix}_ok{tagp}"))
                        continue
                    A.e(f"s_cbranch_vccz {prefix}_ok{tagp}")
                    A.e(f"s_call_b64 {s(R.sRet,2)}, {rare[key][0]}")
                    A.label(f"{prefix}_ok{tagp}")
                else:
                    A.e(x)
        return lists, rare, emit

    def is_next_tile(G, text, tile):
        for e in range(SHIFT):
            if text == G.exp_text(tile + 1, e): return True
        for e in range(0, SHIFT, 2):
            if text == G.cvt_text(tile + 1, e): return True
        return False


    def emit_all(G, A, prefix, pv_fill=None, gate=None):
        R = G.R
        lists, rare, emit = G.body(A, prefix)
        G.rare_paths = rare
        txt = lambda p: [x if isinstance(x, str) else ("CHECK",) for x in lists[p]]
        for p in range(2, 50):
            assert txt(p) == txt(p + 8), p
        emit(0, "p0"); emit(1, "p1")
        A.e(f"s_mov_b32 {s(R.sLoop)}, 7")
        A.e(".p2align 6")
        A.label(f"{prefix}_loop")
        for p in range(2, 10): emit(p, f"l{p}")
        A.e(f"s_sub_u32 {s(R.sLoop)}, {s(R.sLoop)}, 1")
        A.e(f"s_cmp_lg_u32 {s(R.sLoop)}, 0")
        A.e(f"s_cbranch_scc1 {prefix}_loop")
        for p in range(58, 64): emit(p, f"t{p}")
        pend = list(G.leftover)
        order = {"cvt": 0, "ladd": 1}
        pend.sort(key=lambda x: order[x.tag[0]])
        for x in pend: A.e(x.text)
        A.e("s_waitcnt lgkmcnt(0)")
        A.e("s_nop 1")
        if gate: gate(A)
        par = (NSUB - 1) & 1
        for n in range(32):
            qb = ORDER[n >> 3]; db = n & 7
            A.e(f"{MF} {R.o(qb,db)}, {R.f(db)}, {R.p(par,qb)}, {R.o(qb,db)}")
            if pv_fill and n % 2 == 1 and pv_fill:
                for x in pv_fill.pop(0): A.e(x)

    def emit_rare(G, A):
        for st, tgt, back in G.stubs:
            A.label(st)
            A.e(f"s_call_b64 {s(G.R.sRet,2)}, {tgt}")
            A.e(f"s_branch {back}")
        for key, (label, tile, redo) in G.rare_paths.items():
            G.rare(A, tile, redo, label)

    def trace(G):
        out = []
        for L in G.lists:
            for x in L:
                out.append(x if isinstance(x, str) else "s_cbranch_vccz x")
        return out

    def epilogue(G, A, srd, voff, soff_reg):
        R = G.R
        t0 = v(R.TMP)
        for qb in range(4):
            l = v(R.L + qb)
            if qb not in MSUM: G.xlane(A, l, t0, "v_add_f32")
            A.e(f"v_rcp_f32 {l}, {l}")
        A.e("s_nop 7")
        buf = [R.S, R.S + 8, R.S + 16, R.S + 24]
        k = 0
        for qb in range(4):
            for sx in range(4):
                b = R.S + (k % 8) * 8; k += 1
                for h in range(2):
                    for r in range(4):
                        A.e(f"v_accvgpr_read_b32 {v(b+4*h+r)}, {R.o(qb,2*sx+h,r)}")
                for j in range(8):
                    A.e(f"v_mul_f32 {v(b+j)}, {v(b+j)}, {v(R.L+qb)}")
                for j in range(4):
                    A.e(f"v_cvt_pk_bf16_f32 {v(b+j)}, {v(b+2*j)}, {v(b+2*j+1)}")
                A.e(f"s_add_u32 {s(R.sTmp)}, {soff_reg}, {sx*16384}")
                A.e(f"buffer_store_dwordx4 {v(b,4)}, {voff}, {srd}, {s(R.sTmp)} offen offset:{qb*1024}{G.opt.get('stmod','')}")

    def epilogue_pack(G, A, dst, tmp, linv, fill, store=None):
        R = G.R
        t0 = v(R.TMP)
        for qb in range(4):
            l = v(R.L + qb)
            if qb not in MSUM: G.xlane(A, l, t0, "v_add_f32")
            A.e(f"v_rcp_f32 {v(linv+qb)}, {l}")
        A.e("s_nop 7")
        k = 0
        for qb in ORDER:
            for sx in range(4):
                b = tmp + (k % 2) * 8; k += 1
                d = dst + 4 * (4 * sx + qb)
                for h in range(2):
                    for r in range(4):
                        A.e(f"v_accvgpr_read_b32 {v(b+4*h+r)}, {R.o(qb,2*sx+h,r)}")
                lp = linv + (qb & ~1); hi = qb & 1
                for j in range(0, 8, 2):
                    A.e(f"v_pk_mul_f32 {v(b+j,2)}, {v(b+j,2)}, {v(lp,2)} op_sel:[0,{hi}] op_sel_hi:[1,{hi}]")
                for j in range(4):
                    A.e(f"v_cvt_pk_bf16_f32 {v(d+j)}, {v(b+2*j)}, {v(b+2*j+1)}")
                if store: store(sx, qb, d)
                if fill:
                    for x in fill.pop(0): A.e(x)
        while fill:
            for x in fill.pop(0): A.e(x)
```

```python
from asmgen import *
from layout import *
from phasea import f32

LN_LDS = 159744

def xl(A, reg, t0, op):
    for sw in ("v_permlane32_swap_b32", "v_permlane16_swap_b32"):
        A.e(f"v_mov_b32 {t0}, {reg}")
        A.e("s_nop 1")
        A.e(f"{sw} {t0}, {reg}")
        A.e("s_nop 1")
        A.e(f"{op} {reg}, {t0}, {reg}")
    A.e("s_nop 1")
    A.e(f"v_add_f32_dpp {reg}, {reg}, {reg} row_ror:8 row_mask:0xf bank_mask:0xf")

def ln_loads(A, lane, wave, head, rt, sx_srd, RAW, T, sT, mod=''):
    vs, vd, t2, t3 = v(T), v(T + 1), v(T + 2), v(T + 3)
    A.e(f"v_and_b32 {t2}, 7, {lane}")
    A.e(f"v_bfe_u32 {t3}, {lane}, 3, 2")
    A.e(f"v_mul_u32_u24 {vs}, 1152, {t2}")
    A.e(f"v_lshl_add_u32 {vs}, {t3}, 3, {vs}")
    A.e(f"v_lshlrev_b32 {vd}, 4, {t2}")
    A.e(f"v_lshl_add_u32 {vd}, {t3}, 8, {vd}")
    A.e(f"v_lshrrev_b32 {t3}, 5, {lane}")
    A.e(f"v_lshl_add_u32 {vs}, {t3}, 6, {vs}")
    A.e(f"v_lshl_add_u32 {vd}, {t3}, 12, {vd}")
    A.e(f"s_lshl_b32 {s(sT)}, {rt}, 5"); A.e(f"s_add_u32 {s(sT)}, {s(sT)}, {head}"); A.e(f"s_mul_i32 {s(sT)}, {s(sT)}, {8*1152}")
    A.e(f"s_lshl_b32 {s(sT+1)}, {wave}, 7"); A.e(f"s_add_u32 {s(sT)}, {s(sT)}, {s(sT+1)}")
    A.e(f"s_cmp_eq_u32 {wave}, 0")
    A.e(f"s_cselect_b32 {s(sT+1)}, 0, 0x10000000")
    A.e(f"s_add_u32 {s(sT+2)}, {s(sT)}, {s(sT+1)}")
    for q in range(3):
        so = s(sT) if q < 2 else s(sT + 2)
        for h in range(2):
            A.e(f"buffer_load_dwordx2 {v(RAW+4*q+2*h,2)}, {vs}, {sx_srd}, {so} offen offset:{512*q + 32*h}{mod}")

def ln_compute(A, lane, wave, head, rt, ws_srd, RAW, T, F, sT, nvm_after):
    vs, vd, acc, t0, la, lb = v(T), v(T + 1), v(T + 2), v(T + 3), v(T + 4), v(T + 5)
    A.e(f"v_and_b32 {la}, 7, {lane}"); A.e(f"v_lshlrev_b32 {la}, 3, {la}")
    A.e(f"v_add_u32 {la}, {LN_LDS}, {la}")
    A.e(f"s_lshl_b32 {s(sT+1)}, {wave}, 6"); A.e(f"v_add_u32 {lb}, {s(sT+1)}, {la}")
    A.e(f"s_waitcnt vmcnt({nvm_after})")
    s1, s2 = v(F + 24), v(F + 25)
    A.e(f"v_mov_b32 {s1}, 0"); A.e(f"v_mov_b32 {s2}, 0")
    for k in range(12):
        A.e(f"v_lshlrev_b32 {v(F+2*k)}, 16, {v(RAW+k)}")
        A.e(f"v_and_b32 {v(F+2*k+1)}, 0xffff0000, {v(RAW+k)}")
        A.e(f"v_add_f32 {s1}, {s1}, {v(F+2*k)}")
        A.e(f"v_fmac_f32 {s2}, {v(F+2*k)}, {v(F+2*k)}")
        A.e(f"v_add_f32 {s1}, {s1}, {v(F+2*k+1)}")
        A.e(f"v_fmac_f32 {s2}, {v(F+2*k+1)}, {v(F+2*k+1)}")
    xl(A, s1, t0, "v_add_f32"); xl(A, s2, t0, "v_add_f32")
    A.e(f"ds_write_b64 {lb}, {v(F+24,2)}")
    A.e("s_waitcnt lgkmcnt(0)")
    A.e("s_barrier")
    for w in range(4): A.e(f"ds_read_b64 {v(F+26+2*w,2)}, {la} offset:{64*w}")
    A.e("s_waitcnt lgkmcnt(0)")
    for j in range(2):
        A.e(f"v_add_f32 {v(F+26+j)}, {v(F+26+j)}, {v(F+28+j)}"); A.e(f"v_add_f32 {v(F+30+j)}, {v(F+30+j)}, {v(F+32+j)}")
        A.e(f"v_add_f32 {v(F+26+j)}, {v(F+26+j)}, {v(F+30+j)}")
    A.e(f"v_mul_f32 {s1}, {hex(f32(1.0/576))}, {v(F+26)}")
    A.e(f"v_mul_f32 {acc}, {hex(f32(1.0/576))}, {v(F+27)}")
    A.e(f"v_fma_f32 {acc}, -{s1}, {s1}, {acc}")
    A.e(f"v_max_f32 {acc}, 0, {acc}")
    for k in range(24): A.e(f"v_sub_f32 {v(F+k)}, {v(F+k)}, {s1}")
    A.e(f"v_add_f32 {t0}, {hex(f32(1e-5))}, {acc}")
    A.e(f"v_rsq_f32 {t0}, {t0}")
    A.e("s_nop 0")
    for k in range(24): A.e(f"v_mul_f32 {v(F+k)}, {v(F+k)}, {t0}")
    for k in range(12): A.e(f"v_cvt_pk_bf16_f32 {v(RAW+k)}, {v(F+2*k)}, {v(F+2*k+1)}")
    a0, a1 = s(sT), s(sT + 1)
    A.e(f"s_lshl_b32 {a0}, {rt}, 2"); A.e(f"s_lshr_b32 {a1}, {head}, 3"); A.e(f"s_add_u32 {a0}, {a0}, {a1}")
    A.e(f"s_mul_i32 {a0}, {a0}, 18"); A.e(f"s_lshl_b32 {a1}, {wave}, 1"); A.e(f"s_add_u32 {a0}, {a0}, {a1}")
    A.e(f"s_lshl_b32 {a0}, {a0}, 2"); A.e(f"s_bfe_u32 {a1}, {head}, 0x20001"); A.e(f"s_add_u32 {a0}, {a0}, {a1}")
    A.e(f"s_lshl_b32 {a0}, {a0}, 10"); A.e(f"s_and_b32 {a1}, {head}, 1"); A.e(f"s_lshl_b32 {a1}, {a1}, 7"); A.e(f"s_add_u32 {a0}, {a0}, {a1}")
    if XN_OFF: A.e(f"s_add_u32 {a0}, {a0}, {XN_OFF}")
    A.e(f"s_cmp_eq_u32 {wave}, 0")
    A.e(f"s_cselect_b32 {a1}, 0, 0x10000000")
    for q in range(3):
        so = s(sT + 2)
        A.e(f"s_add_u32 {so}, {a0}, {q*32768}")
        if q == 2: A.e(f"s_add_u32 {so}, {so}, {a1}")
        A.e(f"buffer_store_dwordx4 {v(RAW+4*q,4)}, {vd}, {ws_srd}, {so} offen sc1")
```

```python
from asmgen import *
from layout import *
import attn, phasea, k2, checker, lnfuse
import tail as tail_roles, tail_seq
tail = tail_seq if SEQ else tail_roles
from phasea import Lin, f32

SPIN_LIMIT = 200000

def gen_mega(name, opt=None, stamps=False):
    opt = opt or {}
    SC = " sc1"
    RA = phasea.RegsA(); PA = phasea.PhaseA(RA); PA.stmod = opt.get('hst', SC); PA.dist = opt.get('distA', 3); PA.ldmod = opt.get('wld', '')
    R = attn.Regs(vbase=8)
    G = attn.AttnEmit(R, dict(farbranch=1, brdelay=2, barpos=1, stmod=SC, kvmod=opt.get('kvld', ''), **opt.get("attn", {})))
    P = tail.Tail(opt.get("tail", {}))
    assert RA.vend <= R.KDMA and R.vend <= P.DV and R.L >= 152
    A = Asm()
    A(kernel_head(name))
    sX, sOut, sWo, sDbg, sWd = 26, 28, 30, 32, 96
    sPart, sI, sCt, sHF, sOF, sPF, sPoll = 53, 54, 55, 56, 57, 58, 59
    ONE, ZERO, DBGV, PFV = 254, 255, 246, 240
    nst = [0]
    def stamp(dst=None):
        if not stamps: return
        o = dst or A
        o.e("s_memrealtime s[88:89]" if opt.get("rt") else "s_memtime s[88:89]"); o.e("s_waitcnt lgkmcnt(0)")
        if isinstance(o, Lin): o.ds = []
        o.e("s_sub_u32 s88, s88, s92" if opt.get("rt") else "s_sub_u32 s88, s88, s90")
        o.e(f"v_writelane_b32 v253, s88, {nst[0]}"); nst[0] += 1

    A.e("s_cmp_ge_u32 s2, 256")
    A.e(f"s_cbranch_scc0 {name}_go")
    A.e("s_endpgm")
    A.label(f"{name}_go")
    A.e("s_load_dwordx4 s[4:7], s[0:1], 8")
    A.e("s_load_dwordx2 s[8:9], s[0:1], 24")
    A.e("s_load_dwordx4 s[20:23], s[0:1], 48")
    A.e("s_load_dwordx2 s[10:11], s[0:1], 88")
    A.e(f"s_load_dwordx2 {s(sX,2)}, s[0:1], 0")
    A.e(f"s_load_dwordx2 {s(sOut,2)}, s[0:1], 72")
    A.e(f"s_load_dwordx2 {s(sWo,2)}, s[0:1], 32")
    A.e(f"s_load_dwordx2 {s(sWd,2)}, s[0:1], 64")
    A.e(f"s_load_dwordx2 {s(sDbg,2)}, s[0:1], 80")
    if stamps or opt.get("span"):
        A.e("s_memtime s[90:91]"); A.e("s_memrealtime s[92:93]")
    A.e("v_lshrrev_b32 v1, 6, v0")
    A.e("v_and_b32 v2, 63, v0")
    A.e("v_readfirstlane_b32 s12, v1")
    A.e(f"s_and_b32 {s(sPart)}, s2, 7")
    A.e(f"s_lshr_b32 {s(sI)}, s2, 3")
    A.e(f"s_and_b32 {s(sCt)}, {s(sI)}, 3")
    A.e(f"s_lshl_b32 s13, {s(sPart)}, 2")
    A.e(f"s_add_u32 s13, s13, {s(sCt)}")
    A.e(f"s_lshr_b32 s14, {s(sI)}, 2")
    A.e("s_lshr_b32 s15, s13, 1")
    A.e("s_lshl_b32 s15, s15, 19")
    A.e("v_lshlrev_b32 v3, 4, v2")
    A.e(f"v_mov_b32 v{ONE}, 1"); A.e(f"v_mov_b32 v{ZERO}, 0")
    A.e("s_waitcnt lgkmcnt(0)")
    A.e("s_lshl_b32 s98, s14, 5")
    RAW, LT, LF = 8, 20, 28
    A.e(f"s_mov_b32 s84, {s(sX)}"); A.e(f"s_mov_b32 s85, {s(sX+1)}"); A.e(f"s_mov_b32 s86, {2048*1152}"); A.e("s_mov_b32 s87, 0x20000")
    lnfuse.ln_loads(A, "v2", "s12", "s13", "s14", "s[84:87]", RAW, LT, 99)
    A.e(f"s_add_u32 {s(R.sK)}, s4, s15"); A.e(f"s_addc_u32 {s(R.sK+1)}, s5, 0")
    A.e(f"s_mov_b32 {s(R.sK+2)}, 524288"); A.e(f"s_mov_b32 {s(R.sK+3)}, 0x20000")
    A.e(f"s_add_u32 {s(R.sV)}, s6, s15"); A.e(f"s_addc_u32 {s(R.sV+1)}, s7, 0")
    A.e(f"s_mov_b32 {s(R.sV+2)}, 524288"); A.e(f"s_mov_b32 {s(R.sV+3)}, 0x20000")
    A.e("s_mov_b32 s16, s10"); A.e("s_mov_b32 s17, s11"); A.e(f"s_mov_b32 s18, {WS_RANGE}"); A.e("s_mov_b32 s19, 0x20000")
    A.e(f"s_mov_b32 {s(sDbg+2)}, 256"); A.e(f"s_mov_b32 {s(sDbg+3)}, 0x20000")
    A.e("s_lshl_b32 s24, s14, 2"); A.e("s_lshr_b32 s25, s13, 3"); A.e("s_add_u32 s24, s24, s25")
    A.e("s_lshl_b32 s24, s24, 2"); A.e("s_add_u32 s24, s24, s12"); A.e("s_lshl_b32 s24, s24, 7")
    A.e("s_and_b32 s25, s13, 7"); A.e("s_lshl_b32 s25, s25, 2"); A.e("s_add_u32 s24, s24, s25")
    A.e(f"s_add_u32 {s(sHF)}, s24, {FLAG_OFF}"); A.e(f"s_add_u32 {s(sOF)}, {s(sHF)}, 16384")
    A.e(f"s_and_b32 s24, {s(sPart)}, 3"); A.e("s_lshl_b32 s25, s14, 2"); A.e("s_add_u32 s24, s24, s25")
    A.e("s_lshl_b32 s24, s24, 2"); A.e("s_add_u32 s24, s24, s12"); A.e("s_lshl_b32 s24, s24, 7")
    A.e(f"s_cmp_lt_u32 {s(sPart)}, 4"); A.e("s_cselect_b32 s25, 16384, 0"); A.e("s_add_u32 s24, s24, s25")
    A.e(f"s_add_u32 {s(sPoll)}, s24, {FLAG_OFF}")
    A.e(f"s_lshl_b32 s24, {s(sI)}, 2"); A.e("s_add_u32 s24, s24, s12"); A.e("s_lshl_b32 s24, s24, 7")
    A.e(f"s_lshl_b32 s25, {s(sPart)}, 2"); A.e("s_add_u32 s24, s24, s25")
    A.e(f"s_add_u32 {s(sPF)}, s24, {FLAG_OFF + 32768}")
    def code_prefetch(dst, nk):
        lab = f"{name}_pc{dst}"
        A.e("s_getpc_b64 s[24:25]")
        A.label(lab)
        A.e(f"s_lshl_b32 s15, {s(sI)}, 2"); A.e("s_add_u32 s15, s15, s12"); A.e("s_lshl_b32 s15, s15, 10")
        for k in range(nk):
            A.e(f"v_add_u32 v4, s15, v3")
            if k: A.e(f"v_add_u32 v4, {k*131072}, v4")
            A.e(f"v_min_u32 v4, {name}_end-{lab}-16, v4")
            A.e("v_mov_b32 v5, s25")
            A.e("v_add_co_u32 v4, vcc, s24, v4")
            A.e("s_nop 1")
            A.e("v_addc_co_u32 v5, vcc, 0, v5, vcc")
            A.e(f"global_load_dwordx4 {v(dst+4*k,4)}, v[4:5], off")
    if not opt.get("nocpf"): code_prefetch(64, 1)
    for f in (sHF, sOF, sPF):
        A.e(f"buffer_store_dword v{ZERO}, off, s[16:19], {s(f)}{SC}")
    ptr = {"wq": 8, "Wg": 20, "Wu": 22}
    PA.setup(A, "v2", "s12", "s13", "s14", lambda n: ptr[n])
    G.setup_dma(A, "v2", "s12", 4)
    A.e("s_lshl_b32 s24, s14, 7"); A.e("s_lshl_b32 s25, s13, 2"); A.e("s_add_u32 s24, s24, s25")
    A.e("s_lshl_b32 s24, s24, 14"); A.e("s_lshl_b32 s25, s12, 12"); A.e("s_add_u32 s24, s24, s25")
    A.e(f"s_add_u32 s24, s24, {O_OFF}")

    stamp()
    L = Lin()
    def after_w0(L_):
        T_ = Asm()
        lnfuse.ln_compute(T_, "v2", "s12", "s13", "s14", "s[16:19]", RAW, LT, LF, 4, 13 + 3 + (0 if opt.get("nocpf") else 1))
        for x in T_.lines: L_.e(x.strip())
        L_.e("s_waitcnt vmcnt(0)")
        L_.e("s_barrier")
        L_.e("s_cmp_eq_u32 s12, 0"); L_.e(f"s_cbranch_scc0 {name}_noann")
        L_.e("s_mov_b64 exec, 1")
        L_.e(f"buffer_atomic_add v{ONE}, off, {s(sDbg,4)}, s98")
        L_.e("s_mov_b64 exec, -1")
        L_.e(f"{name}_noann:")
        if stamps: stamp(L_)
    def wait_xn(L_):
        L_.e("s_mov_b32 s15, 0")
        L_.e(f"{name}_xn_spin:")
        L_.e(f"buffer_load_dword v{DBGV}, off, {s(sDbg,4)}, s98{SC}")
        L_.e("s_waitcnt vmcnt(0)")
        L_.e(f"v_readfirstlane_b32 s25, v{DBGV}")
        L_.e("s_add_u32 s15, s15, 1")
        L_.e(f"s_cmp_ge_u32 s15, {SPIN_LIMIT}"); L_.e(f"s_cbranch_scc1 {name}_xn_ok")
        L_.e("s_cmp_ge_u32 s25, 32"); L_.e(f"s_cbranch_scc0 {name}_xn_spin")
        L_.e(f"{name}_xn_ok:")
        if stamps: stamp(L_)
    PA.xmod = SC
    kvpf = None
    if not opt.get("nokvpf"):
        kvpf = {opt.get("kvpf_ks", 8): [
            (["s_lshl_b32 s25, s14, 1", "s_and_b32 s15, s13, 1", "s_add_u32 s25, s25, s15", "s_mul_i32 s15, s25, 3072",
              "s_lshl_b32 s3, s12, 10", "s_add_u32 s15, s15, s3"],
             f"buffer_load_dwordx4 v[4:7], v3, {s(R.sK,4)}, s15 offen", ("PF", 0)),
            (["s_lshl_b32 s25, s25, 11", "s_and_b32 s3, s12, 1", "s_lshl_b32 s3, s3, 10", "s_add_u32 s25, s25, s3"],
             f"buffer_load_dwordx4 v[4:7], v3, {s(R.sV,4)}, s25 offen", ("PF", 1))]}
    PA.main(L, "v3", (after_w0, wait_xn), (lambda L_: stamp(L_)) if opt.get('afine') else None, kvpf, G.initial_dma_ops())
    for x in L.out:
        if x.endswith(":"): A.label(x[:-1])
        else: A.e(x)
    stamp()
    A.e("v_lshlrev_b32 v1, 3, v2")
    A.e("s_nop 7")
    for sx in (0, 1):
        for rb in range(4):
            d = PA.h_unit(A, sx, rb); PA.h_store(A, sx, rb, d)
    if opt.get("estamp"): stamp()
    HB3 = 208
    h2 = []
    for sx in (2, 3):
        for rb in range(4):
            h2.append((sx, rb, PA.h_unit(A, sx, rb)))
    h3 = [(4, rb, PA.h_unit(A, 4, rb, HB3 + 2 * rb)) for rb in range(4)]
    if opt.get("estamp"): stamp()
    PA.epilogue_q(A, R.qi, RA.A)
    if opt.get("estamp"): stamp()
    for sx, rb, d in h2: PA.h_store(A, sx, rb, d)
    stamp()
    G.setup_reads(A, "v2")
    G.init_offsets(A)
    P.setup(A, "s12", s(sPart), s(sCt), "s14", sWo, sWd, 10)
    A.e(f"s_lshl_b32 s22, {s(sI)}, 2"); A.e("s_add_u32 s22, s22, s12")
    if SEQ:
        A.e(f"s_mul_i32 s20, s22, {tail.ND*32*1152//128}"); A.e(f"s_mul_i32 s21, s22, {tail.NS*32*1152//128}")
    else:
        A.e(f"s_mul_i32 s20, {s(P.sNk)}, {32*1152//128}"); A.e("s_mul_i32 s20, s20, s22")
    NH = 16
    G.vm_init = [("H", 0)] * 18 + [("KV", -1)] + [("H", 0)] * (0 if opt.get("nopf") else 1)
    if opt.get("estamp"):
        stamp(); A.e(f"s_waitcnt vmcnt({NH})"); stamp(); A.e("s_barrier"); stamp()
    G.prologue(A, NH)
    if opt.get("estamp"): stamp()
    for sx, rb, d in h3: PA.h_store(A, sx, rb, d)
    stamp()
    flag_h = f"buffer_store_dword v{ONE}, off, s[16:19], {s(sHF)}{SC}"
    def pf(srd, off):
        return ([], f"buffer_load_dwordx4 {v(PFV,4)}, v3, {s(srd,4)}, {off} offen{opt.get('pfld','')}", ("PF", 0), [f"s_add_u32 {off}, {off}, 1024"])
    G.after_bar = {p: {3: [flag_h]} for p in range(4, 58, 8)}
    if not opt.get("nopf"):
        for p in range(2, 58):
            if SEQ:
                if p % 8 == 3: G.extra_vm[p] = [pf(P.sWd, "s20")]
                if p % 8 == 7: G.extra_vm[p] = [pf(P.sWo, "s21")]
            elif p % 4 == 3: G.extra_vm[p] = [pf(P.sW, "s20")]
    w0 = [(pre, ins, ("W", 0), []) for pre, ins in (P.dma(0, "s12") if SEQ else P.dma(0))]
    G.extra_vm[63] = w0
    G.extra_bar = {63}
    vlane = "v231"
    G.extra_vm[61] = [([f"v_min_u32 {vlane}, {3 if SEQ else 7}, v2", f"v_lshlrev_b32 {vlane}, 2, {vlane}"],
                       f"buffer_load_dword {v(P.FL)}, {vlane}, s[16:19], {s(sPoll)} offen{SC}", ("X", 0), [])]
    grp = lambda ops: [pre + (["s_nop 0"] if pre else []) + [ins] for pre, ins in ops]
    def spin(load, test, lab):
        A.e("s_mov_b32 s15, 0")
        A.label(f"{name}_{lab}")
        A.e(load)
        A.e("s_waitcnt vmcnt(0)")
        for x in test: A.e(x)
        A.e("s_add_u32 s15, s15, 1")
        A.e(f"s_cmp_ge_u32 s15, {SPIN_LIMIT}"); A.e(f"s_cbranch_scc1 {name}_{lab}_ok")
        A.e("s_sleep 2")
        A.e(f"s_branch {name}_{lab}")
    def tail_roles_code():
        G.emit_all(A, name)
        stamp()
        A.e("s_barrier")
        def ostore(sx, qb, d):
            if opt.get("noostore"):
                A.e("s_nop 0"); A.e(f"buffer_load_dword v5, off, {s(sDbg,4)}, 0"); return
            A.e(f"s_add_u32 s25, s24, {sx*16384}")
            A.e(f"buffer_store_dwordx4 {v(d,4)}, v3, s[16:19], s25 offen offset:{qb*1024}{SC}")
        oflag = f"buffer_store_dword v{ONE}, off, s[16:19], {s(sOF)}{SC}"
        def emit(L_):
            for x in L_.out:
                if x.endswith(":"): A.label(x[:-1])
                else: A.e(x)
        def issue(ops):
            for g_ in grp(ops):
                for x in g_: A.e(x)
        cst = (lambda L_: stamp(L_)) if opt.get("cstamp") else None
        G.epilogue_pack(A, P.OS, P.AF, 4, [], ostore)
        issue(P.dma(1)); issue(P.dma(2))
        A.e(f"s_cmp_lt_u32 {s(sPart)}, 4"); A.e(f"s_cbranch_scc1 {name}_role_s")
        A.e("s_waitcnt vmcnt(43)")
        A.e(f"v_cmp_ne_u32 vcc, 1, {v(P.FL)}")
        A.e("s_nop 0")
        A.e(f"s_cbranch_vccnz {name}_slowh")
        A.label(f"{name}_h_ok")
        NPRE = 4
        for k in range(NPRE): issue(P.bload(k))
        A.e(f"s_waitcnt vmcnt({18 + 4*NPRE})")
        A.e(oflag)
        n0 = nst[0]
        stamp()
        L = Lin()
        L.vm = [("W", 1)] * 9 + [("W", 2)] * 9 + [("B", k) for k in range(NPRE) for _ in range(4)] + [("F", 0)]
        P.main(L, "d", NPRE, None, 0, cst)
        L.e("s_nop 7")
        emit(L)
        A.e(f"s_branch {name}_join")
        n1 = nst[0]; nst[0] = n0
        A.label(f"{name}_role_s")
        A.e("s_waitcnt vmcnt(18)")
        A.e(oflag)
        A.e("s_mov_b32 s15, 0")
        A.label(f"{name}_pollo")
        A.e(f"buffer_load_dword {v(P.FL)}, {vlane}, s[16:19], {s(sPoll)} offen{SC}")
        A.e("s_waitcnt vmcnt(0)")
        A.e(f"v_cmp_ne_u32 vcc, 1, {v(P.FL)}")
        A.e("s_nop 0")
        A.e(f"s_cbranch_vccz {name}_pollo_ok")
        A.e("s_add_u32 s15, s15, 1")
        A.e(f"s_cmp_ge_u32 s15, {SPIN_LIMIT}"); A.e(f"s_cbranch_scc1 {name}_pollo_ok")
        A.e("s_sleep 1")
        A.e(f"s_branch {name}_pollo")
        A.label(f"{name}_pollo_ok")
        stamp()
        L = Lin()
        for k in range(4):
            for pre, ins in P.bload(k):
                for x in pre: L.e(x)
                L.vm_op(ins, ("B", k))
        P.main(L, "s", 4, None, 0, cst)
        L.e("s_nop 7")
        emit(L)
        if opt.get("cstamp"):
            assert nst[0] == n1 - 1
            stamp()
        nst[0] = max(nst[0], n1)
        A.label(f"{name}_join")
        stamp()
        L = Lin()
        L.e("s_waitcnt vmcnt(20) lgkmcnt(0)")
        P.store_partials(L)
        emit(L)
        nerr = 0
    def tail_seq_code():
        def gate_h(A_):
            A_.e("s_waitcnt vmcnt(9)")
            A_.e(f"v_cmp_ne_u32 vcc, 1, {v(P.FL)}")
            A_.e("s_nop 0")
            A_.e(f"s_cbranch_vccnz {name}_slowh")
            A_.label(f"{name}_h_ok")
        pv_fill = []
        for k in range(4): pv_fill += grp(P.bload(k))
        G.emit_all(A, name, pv_fill, gate_h)
        stamp()
        A.e("s_barrier")
        fill = grp(P.dma(1, "s12")) + grp(P.bload(4)) + grp(P.bload(5)) + grp(P.dma(2, "s12"))
        nfill = len(fill)
        fill = [sum(fill[i:i + 2], []) for i in range(0, len(fill), 2)]
        G.epilogue_pack(A, P.OS, P.AF, 4, fill)
        A.e(f"s_waitcnt vmcnt({16 + nfill})")
        for sx in range(4):
            A.e(f"s_add_u32 s25, s24, {sx*16384}")
            for qb in range(4):
                A.e(f"buffer_store_dwordx4 {v(P.OS + 4*(4*sx+qb),4)}, v3, s[16:19], s25 offen offset:{qb*1024}{SC}")
        stamp()
        L = Lin()
        L.vm = [("B", k) for k in range(4) for _ in range(4)] + [("W", 1)] * 9 + [("B", 4)] * 8 + [("B", 5)] * 4 + [("W", 2)] * 9 + [("O", 0)] * 16
        assert len(L.vm) == 16 + nfill + 16
        def flagcheck(L_):
            L_.e(f"v_cmp_ne_u32 vcc, 1, {v(P.FL)}")
            L_.e("s_nop 0")
            L_.e(f"s_cbranch_vccnz {name}_slowo")
            L_.e(f"{name}_o_ok:")
        hooks = dict(oflag=[f"buffer_store_dword v{ONE}, off, s[16:19], {s(sOF)}{SC}"],
                     flagload=f"buffer_load_dword {v(P.FL)}, {vlane}, s[16:19], s23 offen{SC}", flagcheck=flagcheck,
                     stamp=(lambda L_: stamp(L_)) if opt.get("cstamp") else None)
        A.e(f"s_add_u32 s23, {s(sPoll)}, 8192")
        P.main(L, hooks, "s12")
        L.e("s_nop 7")
        if stamps: stamp(L)
        L.e("s_waitcnt vmcnt(24)"); L.vm = L.vm[-24:]
        P.final_partials(L)
        for x in L.out:
            if x.endswith(":"): A.label(x[:-1])
            else: A.e(x)
    (tail_seq_code if SEQ else tail_roles_code)()
    nerr = 0
    def poll(base, lab, last):
        A.e(f"v_min_u32 v4, {last}, v2"); A.e("v_lshlrev_b32 v4, 2, v4")
        A.e("s_mov_b32 s15, 0")
        A.label(f"{name}_{lab}")
        A.e(f"buffer_load_dword v5, v4, s[16:19], {base} offen{SC}")
        A.e("s_waitcnt vmcnt(0)")
        A.e("v_cmp_ne_u32 vcc, 1, v5")
        A.e(f"s_cbranch_vccz {name}_{lab}_ok")
        A.e("s_add_u32 s15, s15, 1")
        A.e(f"s_cmp_ge_u32 s15, {SPIN_LIMIT}"); A.e(f"s_cbranch_scc1 {name}_{lab}_ok")
        A.e("s_sleep 2")
        A.e(f"s_branch {name}_{lab}")
        A.label(f"{name}_{lab}_ok")
    A.e(f"s_lshl_b32 s78, s14, 4"); A.e(f"s_lshl_b32 s79, {s(sPart)}, 1"); A.e("s_add_u32 s78, s78, s79")
    A.e("s_lshr_b32 s79, s12, 1"); A.e("s_add_u32 s80, s78, s79")
    A.e("s_and_b32 s79, s12, 1"); A.e("s_add_u32 s81, s78, s79")
    A.e("s_lshl_b32 s82, s79, 1")
    A.e("v_and_b32 v4, 15, v2"); A.e("v_lshrrev_b32 v5, 4, v2")
    A.e("v_mul_u32_u24 v4, 1152, v4"); A.e("v_lshl_add_u32 v4, v5, 3, v4")
    A.e(f"s_mul_i32 s74, {s(sCt)}, 288")
    A.e(f"s_mul_i32 s75, s80, {16*1152}"); A.e("s_add_u32 s75, s75, s74"); A.e("s_lshl_b32 s76, s82, 6"); A.e("s_add_u32 s75, s75, s76")
    A.e(f"s_mul_i32 s76, s81, {16*1152}"); A.e("s_add_u32 s76, s76, s74"); A.e("s_add_u32 s76, s76, 256")
    A.e(f"s_mov_b32 s60, {s(sX)}"); A.e(f"s_mov_b32 s61, {s(sX+1)}"); A.e(f"s_mov_b32 s62, {2048*1152}"); A.e("s_mov_b32 s63, 0x20000")
    A.e(f"s_mov_b32 s64, {s(sOut)}"); A.e(f"s_mov_b32 s65, {s(sOut+1)}"); A.e(f"s_mov_b32 s66, {2048*1152}"); A.e("s_mov_b32 s67, 0x20000")
    XR = 220
    for k in range(4): A.e(f"buffer_load_dwordx2 {v(XR+2*k,2)}, v4, s[60:63], s75 offen offset:{32*k}")
    A.e(f"buffer_load_dwordx2 {v(XR+8,2)}, v4, s[60:63], s76 offen")
    A.e("s_waitcnt vmcnt(5)")
    A.e(f"buffer_store_dword v{ONE}, off, s[16:19], {s(sPF)}{SC}")
    A.e("v_mov_b32 v6, v4")
    A.e(f"s_lshl_b32 s77, {s(sI)}, 2"); A.e(f"s_lshr_b32 s79, {s(sPart)}, 1"); A.e("s_add_u32 s77, s77, s79")
    A.e("s_lshl_b32 s77, s77, 7"); A.e(f"s_add_u32 s77, s77, {FLAG_OFF + 32768}")
    poll("s77", "polld", 7)
    stamp()
    A.e(f"s_lshl_b32 s78, s80, 2"); A.e(f"s_add_u32 s78, s78, {s(sCt)}"); A.e(f"s_mul_i32 s78, s78, {PART_UNIT}")
    A.e(f"s_add_u32 s78, s78, {PART_OFF}"); A.e("s_lshl_b32 s79, s82, 10"); A.e("s_add_u32 s78, s78, s79")
    A.e(f"s_lshl_b32 s79, s81, 2"); A.e(f"s_add_u32 s79, s79, {s(sCt)}"); A.e(f"s_mul_i32 s79, s79, {PART_UNIT}")
    A.e(f"s_add_u32 s79, s79, {PART_OFF + NPART*4096}")
    A.e("v_lshlrev_b32 v7, 3, v2")
    PA_, PB_, PS_ = 8, 72, 136
    for p in range(NPART):
        A.e(f"buffer_load_dwordx4 {v(PA_+4*p,4)}, v3, s[16:19], s78 offen{SC}")
        A.e(f"buffer_load_dwordx4 {v(PB_+4*p,4)}, v3, s[16:19], s78 offen offset:1024{SC}")
        if p < NPART - 1: A.e("s_add_u32 s78, s78, 4096")
    for p in range(NPART):
        if p == 8: A.e("s_add_u32 s79, s79, 4096")
        A.e(f"buffer_load_dwordx2 {v(PS_+2*p,2)}, v7, s[16:19], s79 offen offset:{(p%8)*512}{SC}")
    A.e(f"s_mov_b32 s23, {hex(f32(-1.4426950408889634))}")
    def unpack_sum(dst, srcs, nreg, t, waits=None):
        for n, sr in enumerate(srcs):
            if waits: A.e(f"s_waitcnt vmcnt({waits[n]})")
            for j in range(nreg):
                lo, hi = v(dst + 2 * j), v(dst + 2 * j + 1)
                if n == 0:
                    A.e(f"v_lshlrev_b32 {lo}, 16, {v(sr+j)}"); A.e(f"v_and_b32 {hi}, 0xffff0000, {v(sr+j)}")
                else:
                    A.e(f"v_lshlrev_b32 {v(t)}, 16, {v(sr+j)}"); A.e(f"v_and_b32 {v(t+1)}, 0xffff0000, {v(sr+j)}")
                    A.e(f"v_pk_add_f32 {v(dst+2*j,2)}, {v(dst+2*j,2)}, {v(t,2)}")
    S0, D0, T0 = 170, 190, 210
    tot = 2 * NPART + NPART
    for half, dst in ((0, S0), (1, D0)):
        for p in range(NPART // 2):
            pp = NPART // 2 * half + p
            A.e(f"s_waitcnt vmcnt({tot - 2*(pp+1)})")
            for q, base in ((0, PA_), (1, PB_)):
                for j in range(4):
                    sr = base + 4 * pp + j
                    d2 = dst + 8 * q + 2 * j
                    if p == 0:
                        A.e(f"v_lshlrev_b32 {v(d2)}, 16, {v(sr)}"); A.e(f"v_and_b32 {v(d2+1)}, 0xffff0000, {v(sr)}")
                    else:
                        tt = 216 + 2 * (j & 1)
                        A.e(f"v_lshlrev_b32 {v(tt)}, 16, {v(sr)}"); A.e(f"v_and_b32 {v(tt+1)}, 0xffff0000, {v(sr)}")
                        A.e(f"v_pk_add_f32 {v(d2,2)}, {v(d2,2)}, {v(tt,2)}")
    for q in range(4):
        k2.final_math(A, S0 + 4 * q, D0 + 4 * q, XR + 2 * q, T0, "s23")
        A.e(f"buffer_store_dwordx2 {v(XR+2*q,2)}, v6, s[64:67], s75 offen offset:{32*q}{opt.get('outmod','')}")
    A.e("s_waitcnt vmcnt(4)")
    unpack_sum(S0 + 16, [PS_ + 2 * p for p in range(NPART // 2)], 2, 216)
    unpack_sum(D0 + 16, [PS_ + NPART + 2 * p for p in range(NPART // 2)], 2, 216)
    k2.final_math(A, S0 + 16, D0 + 16, XR + 8, T0, "s23")
    A.e(f"buffer_store_dwordx2 {v(XR+8,2)}, v6, s[64:67], s76 offen{opt.get('outmod','')}")
    if stamps or opt.get("span"):
        A.e("s_waitcnt vmcnt(0)")
        stamp()
        A.e("s_memrealtime s[94:95]"); A.e("s_waitcnt lgkmcnt(0)")
        A.e("s_sub_u32 s94, s94, s92")
        A.e(f"v_writelane_b32 v253, s94, 30"); A.e("v_writelane_b32 v253, s92, 31")
        A.e("s_lshl_b32 s21, s2, 2"); A.e("s_add_u32 s21, s21, s12"); A.e("s_lshl_b32 s21, s21, 8")
        A.e(f"s_add_u32 s21, s21, {STAMP_OFF}")
        A.e("v_lshlrev_b32 v1, 2, v2")
        A.e("buffer_store_dword v253, v1, s[16:19], s21 offen")
        if opt.get("dbgout"):
            A.e("s_cmp_eq_u32 s2, 0"); A.e(f"s_cbranch_scc0 {name}_nodbg")
            A.e("s_cmp_eq_u32 s12, 0"); A.e(f"s_cbranch_scc0 {name}_nodbg")
            lanes = [30, 1, 2, 3, 5, 6, 8, 9, 10, 11, 30, 30, 30, 30]
            words = [1, 2, 3, 4, 5, 6, 7, 9, 10, 11]
            A.e("s_mov_b64 exec, 1")
            for ln_, wd in zip(lanes, words):
                A.e(f"v_readlane_b32 s25, v253, {ln_}")
                A.e("s_nop 3")
                A.e("v_mov_b32 v4, s25")
                A.e(f"buffer_store_dword v4, off, {s(sDbg,4)}, 0 offset:{wd*4}")
            A.e("s_mov_b64 exec, -1")
            A.label(f"{name}_nodbg")
    A.e("s_endpgm")
    A.label(f"{name}_slowh")
    spin(f"buffer_load_dword {v(P.FL)}, {vlane}, s[16:19], {s(sPoll)} offen{SC}",
         [f"v_cmp_ne_u32 vcc, 1, {v(P.FL)}", "s_nop 0", f"s_cbranch_vccz {name}_slowh2_ok"], "slowh2")
    A.label(f"{name}_slowh2_ok")
    A.e(f"s_branch {name}_h_ok")
    if SEQ:
        A.label(f"{name}_slowo")
        spin(f"buffer_load_dword {v(P.FL)}, {vlane}, s[16:19], s23 offen{SC}",
             [f"v_cmp_ne_u32 vcc, 1, {v(P.FL)}", "s_nop 0", f"s_cbranch_vccz {name}_slowo2_ok"], "slowo2")
        A.label(f"{name}_slowo2_ok")
        A.e(f"s_branch {name}_o_ok")
    G.emit_rare(A)
    A.label(f"{name}_end")
    A.e("s_endpgm")
    A(kernel_desc(name, 512, 102, 256))
    errs = checker.check([l for l in A.lines if not l.startswith(";")], name)
    for e in errs[:10]: print(e)
    print(name, "lines", len(A.lines), "hazard errors", len(errs), nerr)
    return A
```

```python
from asmgen import *
from layout import *
import struct
def f32(x): return struct.unpack("<I", struct.pack("<f", x))[0]

MF = "v_mfma_f32_16x16x32_bf16"
STAGE = 53248
BLK_U = 18432
BLK_Q = 36864
NKS = 18

class RegsA:
    def __init__(R):
        R.QA = 0
        R.GA = 128
        n = 8
        R.U = n; n += 144
        R.GV = n; n += 16
        R.B = n; n += 48
        R.A = n; n += 16
        R.DG = n; n += 4
        R.DX = n; n += 1
        R.DQ = n; n += 4
        R.LG = n; n += 1; R.GA_ADDR = n; n += 1
        R.LQ = n; n += 1; R.QA_ADDR = n; n += 1
        R.QT = n; n += 2
        R.vend = n
        R.sG = 60; R.sU = 64; R.sX = 68; R.sQ = 72
        R.sWS = 16
        R.sM0G = 76; R.sM0X = 77; R.sM0Q = 78
        R.sXoff = 79
        R.sT = 80; R.sT2 = 81; R.sHoff = 82; R.sH8 = 83
    def g(R, t, rb, r=None):
        if t < 8:
            b = R.GA + (t * 4 + rb) * 4
            return a(b, 4) if r is None else a(b + r)
        b = R.GV + rb * 4
        return v(b, 4) if r is None else v(b + r)
    def u(R, t, rb, r=None):
        b = R.U + (t * 4 + rb) * 4
        return v(b, 4) if r is None else v(b + r)
    def qa(R, dt, rb, r=None):
        b = R.QA + (dt * 4 + rb) * 4
        return a(b, 4) if r is None else a(b + r)
    def b(R, ks, rb): return v(R.B + (ks % 3) * 16 + rb * 4, 4)
    def af(R, gi, h=None):
        b = R.A + (gi % 4) * 4
        return v(b, 4) if h is None else v(b + 2 * h, 2)

TILES = [x for t in range(9) for x in (("G", t), ("U", t))] + [("Q", dt) for dt in range(8)]
NT = len(TILES)

class Lin:
    def __init__(L):
        L.out = []; L.ds = []; L.vm = []
    def e(L, t): L.out.append(t)
    def ds_op(L, t, key): L.out.append(t); L.ds.append(key)
    def vm_op(L, t, key): L.out.append(t); L.vm.append(key)
    def need_ds(L, key):
        if key in L.ds:
            last = max(i for i, x in enumerate(L.ds) if x == key)
            cnt = len(L.ds) - 1 - last
            assert cnt <= 15
            L.out.append(f"s_waitcnt lgkmcnt({cnt})")
            L.ds = L.ds[last + 1:]
    def need_vm(L, key):
        if key in L.vm:
            last = max(i for i, x in enumerate(L.vm) if x == key)
            cnt = len(L.vm) - 1 - last
            assert cnt <= 63, cnt
            L.out.append(f"s_waitcnt vmcnt({cnt})")
            L.vm = L.vm[last + 1:]

class PhaseA:
    def __init__(G, R, vm_period=2):
        G.R = R; G.vm_period = vm_period; G.stmod = ''; G.dist = 3; G.ldmod = ''; G.xmod = ''; G.noq = False

    def setup(G, A, lane, wave, head, rt, ptr):
        R = G.R
        t = [v(R.B + i) for i in range(12)]
        for srd, nm, size in ((R.sG, "Wg", 576 * 9216), (R.sU, "Wu", 576 * 9216), (R.sQ, "wq", 576 * 8192)):
            p = ptr(nm)
            A.e(f"s_mov_b32 {s(srd)}, {s(p)}"); A.e(f"s_mov_b32 {s(srd+1)}, {s(p+1)}")
            A.e(f"s_mov_b32 {s(srd+2)}, {size}"); A.e(f"s_mov_b32 {s(srd+3)}, 0x20000")
        A.e(f"s_cmp_lt_u32 {wave}, 2")
        A.e(f"s_cselect_b32 {s(R.sX)}, {s(R.sG)}, {s(R.sU)}")
        A.e(f"s_cselect_b32 {s(R.sX+1)}, {s(R.sG+1)}, {s(R.sU+1)}")
        A.e(f"s_mov_b32 {s(R.sX+2)}, {576*9216}"); A.e(f"s_mov_b32 {s(R.sX+3)}, 0x20000")
        A.e(f"s_lshl_b32 {s(R.sM0G)}, {wave}, 12")
        A.e(f"s_and_b32 {s(R.sT)}, {wave}, 1"); A.e(f"s_add_u32 {s(R.sT)}, {s(R.sT)}, 16"); A.e(f"s_lshl_b32 {s(R.sM0X)}, {s(R.sT)}, 10")
        A.e(f"s_cmp_lt_u32 {wave}, 2")
        A.e(f"s_cselect_b32 {s(R.sT2)}, 0, {BLK_U}")
        A.e(f"s_add_u32 {s(R.sM0X)}, {s(R.sM0X)}, {s(R.sT2)}")
        A.e(f"s_lshl_b32 {s(R.sM0Q)}, {wave}, 12"); A.e(f"s_add_u32 {s(R.sM0Q)}, {s(R.sM0Q)}, {BLK_Q}")
        A.e(f"s_mul_i32 {s(R.sT2)}, {head}, 288")
        A.e(f"s_and_b32 s87, {head}, 1"); A.e("s_lshl_b32 s87, s87, 1")
        def gu(dst, idx_s, idx_c, comp):
            A.e(f"s_lshl_b32 s84, {idx_s}, 6")
            A.e(f"v_add_u32 {t[0]}, s84, {lane}")
            if idx_c: A.e(f"v_add_u32 {t[0]}, {64*idx_c}, {t[0]}")
            A.e(f"v_mul_u32_u24 {t[1]}, 3641, {t[0]}")
            A.e(f"v_lshrrev_b32 {t[1]}, 16, {t[1]}")
            A.e(f"v_mul_u32_u24 {t[2]}, 18, {t[1]}")
            A.e(f"v_sub_u32 {t[2]}, {t[0]}, {t[2]}")
            A.e(f"v_add_u32 {t[2]}, s87, {t[2]}")
            A.e(f"v_subrev_u32 {t[5]}, 18, {t[2]}")
            A.e(f"v_min_u32 {t[2]}, {t[2]}, {t[5]}")
            A.e(f"v_mul_u32_u24 {t[1]}, 9216, {t[1]}")
            A.e(f"v_lshl_add_u32 {t[1]}, {t[2]}, 4, {t[1]}")
            A.e(f"v_add_u32 {dst}, {s(R.sT2)}, {t[1]}")
            if comp: A.e(f"v_subrev_u32 {dst}, {comp}, {dst}")
        A.e(f"s_lshl_b32 s85, {wave}, 2")
        for n in range(4): gu(v(R.DG + n), "s85", n, n * 1024)
        gu(v(R.DX), s(R.sT), 0, 0)
        m, g = t[3], t[4]
        A.e(f"v_and_b32 {m}, 15, {lane}"); A.e(f"v_lshrrev_b32 {g}, 4, {lane}")
        A.e(f"s_lshl_b32 s84, {wave}, 4")
        A.e(f"s_lshl_b32 s85, {head}, 8")
        for n in range(4):
            A.e(f"v_add_u32 {t[0]}, {4*n}, {g}")
            A.e(f"v_and_b32 {t[1]}, 7, {t[0]}")
            A.e(f"v_lshlrev_b32 {t[1]}, 1, {t[1]}")
            A.e(f"v_xor_b32 {t[1]}, {t[1]}, {m}")
            A.e(f"v_add_u32 {t[0]}, s84, {t[0]}")
            A.e(f"v_lshlrev_b32 {t[0]}, 13, {t[0]}")
            A.e(f"v_lshl_add_u32 {t[0]}, {t[1]}, 4, {t[0]}")
            A.e(f"v_add_u32 {v(R.DQ+n)}, s85, {t[0]}")
            if n: A.e(f"v_subrev_u32 {v(R.DQ+n)}, {n*1024}, {v(R.DQ+n)}")
        A.e(f"v_lshrrev_b32 {t[0]}, 2, {m}")
        A.e(f"v_lshl_add_u32 {t[0]}, {g}, 2, {t[0]}")
        A.e(f"v_mul_u32_u24 {t[1]}, 288, {t[0]}")
        A.e(f"v_and_b32 {t[2]}, 3, {m}")
        A.e(f"v_lshl_add_u32 {v(R.LG)}, {t[2]}, 3, {t[1]}")
        A.e(f"v_lshlrev_b32 {t[1]}, 8, {t[0]}")
        A.e(f"v_and_b32 {t[2]}, 7, {t[0]}")
        A.e(f"v_lshl_add_u32 {t[1]}, {t[2]}, 5, {t[1]}")
        A.e(f"v_bfe_u32 {t[2]}, {m}, 1, 1")
        A.e(f"v_lshl_add_u32 {t[1]}, {t[2]}, 4, {t[1]}")
        A.e(f"v_and_b32 {t[2]}, 1, {m}")
        A.e(f"v_lshl_add_u32 {t[1]}, {t[2]}, 3, {t[1]}")
        A.e(f"v_add_u32 {v(R.LQ)}, {BLK_Q}, {t[1]}")
        A.e(f"s_lshl_b32 {s(R.sXoff)}, {rt}, 2"); A.e(f"s_add_u32 {s(R.sXoff)}, {s(R.sXoff)}, {wave}")
        A.e(f"s_mul_i32 {s(R.sXoff)}, {s(R.sXoff)}, {18*4096}")
        if XN_OFF: A.e(f"s_add_u32 {s(R.sXoff)}, {s(R.sXoff)}, {XN_OFF}")
        A.e(f"s_mul_i32 s84, {rt}, 144")
        A.e(f"s_lshr_b32 s85, {head}, 1"); A.e("s_mul_i32 s85, s85, 9"); A.e("s_add_u32 s84, s84, s85")
        A.e("s_lshl_b32 s84, s84, 14")
        A.e(f"s_lshl_b32 s85, {wave}, 12"); A.e("s_add_u32 s84, s84, s85")
        A.e(f"s_add_u32 s84, s84, {H_OFF}")
        A.e(f"s_and_b32 s85, {head}, 1")
        A.e(f"s_mul_i32 {s(R.sT)}, s85, {5*16384}"); A.e(f"s_add_u32 {s(R.sHoff)}, s84, {s(R.sT)}")
        A.e(f"s_lshl_b32 {s(R.sT)}, s85, 9"); A.e(f"s_add_u32 {s(R.sH8)}, s84, {s(R.sT)}"); A.e(f"s_add_u32 {s(R.sH8)}, {s(R.sH8)}, {4*16384}")

    def dma_ops(G, st):
        R = G.R; slot = (st % 3) * STAGE
        so_g = st * 64 * 9216; so_q = st * 64 * 8192
        ops = []
        for n in range(4):
            pre = [f"s_add_u32 m0, {s(R.sM0G)}, {slot}", f"s_mov_b32 {s(R.sT)}, {so_g}"] if n == 0 else []
            ops.append((pre, f"buffer_load_dwordx4 {v(R.DG+n)}, {s(R.sG,4)}, {s(R.sT)} offen offset:{n*1024}{G.ldmod} lds"))
        for n in range(4):
            pre = [f"s_add_u32 m0, {s(R.sM0G)}, {slot + BLK_U}"] if n == 0 else []
            ops.append((pre, f"buffer_load_dwordx4 {v(R.DG+n)}, {s(R.sU,4)}, {s(R.sT)} offen offset:{n*1024}{G.ldmod} lds"))
        ops.append(([f"s_add_u32 m0, {s(R.sM0X)}, {slot}"], f"buffer_load_dwordx4 {v(R.DX)}, {s(R.sX,4)}, {s(R.sT)} offen{G.ldmod} lds"))
        for n in range(4):
            pre = [f"s_add_u32 m0, {s(R.sM0Q)}, {slot}", f"s_mov_b32 {s(R.sT2)}, {so_q}"] if n == 0 else []
            ops.append((pre, f"buffer_load_dwordx4 {v(R.DQ+n)}, {s(R.sQ,4)}, {s(R.sT2)} offen offset:{n*1024}{G.ldmod} lds"))
        return ops

    def x_ops(G, ks, lane16):
        R = G.R
        return [([f"s_add_u32 s86, {s(R.sXoff)}, {ks*4096}"],
                 f"buffer_load_dwordx4 {R.b(ks,rb)}, {lane16}, {s(R.sWS,4)}, s86 offen offset:{rb*1024}{G.xmod}") for rb in range(4)]

    def read_ops(G, gi):
        R = G.R; ks, n = divmod(gi, NT); st, kk = divmod(ks, 2)
        kind, t = TILES[n]; pre = []
        if n == 0 and kk == 0:
            pre.append(f"v_add_u32 {v(R.GA_ADDR)}, {(st%3)*STAGE}, {v(R.LG)}")
            pre.append(f"v_add_u32 {v(R.QA_ADDR)}, {(st%3)*STAGE}, {v(R.LQ)}")
        if kind == "Q":
            tmp = v(R.QT + (t & 1))
            pre.append(f"v_xor_b32 {tmp}, {t*32}, {v(R.QA_ADDR)}")
            rd = [f"ds_read_b64_tr_b16 {R.af(gi,h)}, {tmp} offset:{kk*8192 + h*4096}" for h in range(2)]
        else:
            blk = 0 if kind == "G" else BLK_U
            rd = [f"ds_read_b64_tr_b16 {R.af(gi,h)}, {v(R.GA_ADDR)} offset:{blk + (32*kk + 16*h)*288 + 32*t}" for h in range(2)]
        return pre, rd

    def main(G, L, lane16, fused, stamp=None, extra=None, tail_ops=None):
        R = G.R
        def issue(ops, key):
            for pre, ins in ops:
                for x in pre: L.e(x)
                if pre: L.e("s_nop 0")
                L.vm_op(ins, key)
        issue(G.dma_ops(0), ("W", 0))
        fused[0](L)
        L.vm = []
        issue(G.dma_ops(1), ("W", 1))
        issue(G.dma_ops(2), ("W", 2))
        fused[1](L)
        L.vm = []
        issue(G.x_ops(0, lane16), ("X", 0))
        issue(G.x_ops(1, lane16), ("X", 1))
        if stamp: stamp(L)
        L.need_vm(("X", 0))
        DIST = G.dist
        total = NKS * NT
        for gi in range(DIST):
            pre, rd = G.read_ops(gi)
            for x in pre: L.e(x)
            for x in rd: L.ds_op(x, ("A", gi))
        vmq = []; staged = None
        for ks in range(NKS):
            if stamp and ks > 0: stamp(L)
            if ks + 2 < NKS: vmq = [(p, i, ("X", ks + 2)) for p, i in G.x_ops(ks + 2, lane16)] + vmq
            if extra and ks in extra: vmq += extra[ks]
            for n in range(NT):
                gi = ks * NT + n
                nx = gi + DIST
                rd = None
                if nx < total:
                    pre, rd = G.read_ops(nx)
                    newstage = (nx % (2 * NT) == 0)
                kind, t = TILES[n]
                for rb in range(4):
                    if rb == 0:
                        L.need_ds(("A", gi))
                        if n == 0: L.need_vm(("X", ks))
                    acc = R.g(t, rb) if kind == "G" else (R.u(t, rb) if kind == "U" else R.qa(t, rb))
                    c = "0" if ks == 0 else acc
                    L.e(f"{MF} {acc}, {R.af(gi)}, {R.b(ks,rb)}, {c}")
                    if rd:
                        if rb == 0:
                            if newstage:
                                ns = nx // (2 * NT)
                                L.need_vm(("W", ns))
                                L.e("s_waitcnt lgkmcnt(0)"); L.ds = []
                                L.e("s_barrier")
                                if ns + 2 <= 8: vmq += [(p, i, ("W", ns + 2)) for p, i in G.dma_ops(ns + 2)]
                                if ns == 8 and tail_ops: vmq += [(p, i, ("T", 0)) for p, i in tail_ops]
                            for x in pre: L.e(x)
                        if rb == 1: L.ds_op(rd[0], ("A", nx))
                        if rb == 2: L.ds_op(rd[1], ("A", nx))
                    if rb == 0 and staged is not None:
                        L.vm_op(*staged); staged = None
                    period = G.vm_period
                    if rb == 3 and vmq and (n >= 1 or vmq[0][2][0] != "X") and (n % period == period - 1 or ks >= NKS - 2) and gi + 1 < total:
                        p, i, key = vmq.pop(0)
                        for x in p: L.e(x)
                        staged = (i, key)
            assert not [x for x in vmq if x[2][0] == "X" and x[2][1] <= ks + 1], ks
        assert not vmq and staged is None

    def h_unit(G, A, sx, rb, dst=None):
        R = G.R
        def hvals(t, d):
            x = R.DG
            for r in range(4):
                if t < 8:
                    A.e(f"v_accvgpr_read_b32 {v(x+r)}, {R.g(t,rb,r)}")
            for r in range(4):
                A.e(f"v_max_f32 {v(x+r)}, 0, {v(x+r) if t < 8 else R.g(t,rb,r)}")
            ub = R.U + (t * 4 + rb) * 4
            for r in (0, 2):
                A.e(f"v_pk_mul_f32 {v(ub+r,2)}, {v(x+r,2)}, {v(ub+r,2)}")
            A.e(f"v_cvt_pk_bf16_f32 {v(d)}, {R.u(t,rb,0)}, {R.u(t,rb,1)}")
            A.e(f"v_cvt_pk_bf16_f32 {v(d+1)}, {R.u(t,rb,2)}, {R.u(t,rb,3)}")
        d = dst if dst is not None else R.U + (2 * sx * 4 + rb) * 4
        hvals(2 * sx, d)
        if sx < 4: hvals(2 * sx + 1, d + 2)
        return d
    def h_store(G, A, sx, rb, d):
        R = G.R
        if sx < 4:
            A.e(f"s_add_u32 {s(R.sT)}, {s(R.sHoff)}, {sx*16384}")
            A.e(f"buffer_store_dwordx4 {v(d,4)}, v3, {s(R.sWS,4)}, {s(R.sT)} offen offset:{rb*1024}{G.stmod}")
        else:
            A.e(f"buffer_store_dwordx2 {v(d,2)}, v1, {s(R.sWS,4)}, {s(R.sH8)} offen offset:{rb*1024}{G.stmod}")

    def epilogue_q(G, A, qfrag, tmp):
        R = G.R
        c = f32(128 ** -0.5 * 1.4426950408889634)
        A.e(f"s_mov_b32 s86, {hex(c)}"); A.e(f"s_mov_b32 s87, {hex(c)}")
        for sx in range(4):
            for rb in range(4):
                b = tmp
                for h in range(2):
                    for r in range(4):
                        A.e(f"v_accvgpr_read_b32 {v(b+4*h+r)}, {R.qa(2*sx+h,rb,r)}")
                for j in range(0, 8, 2): A.e(f"v_pk_mul_f32 {v(b+j,2)}, {v(b+j,2)}, s[86:87]")
                for j in range(4): A.e(f"v_cvt_pk_bf16_f32 {v(b+8+j)}, {v(b+2*j)}, {v(b+2*j+1)}")
                b += 8
                A.e("s_nop 0")
                A.e(f"v_permlane32_swap_b32 {v(b)}, {v(b+2)}")
                A.e(f"v_permlane32_swap_b32 {v(b+1)}, {v(b+3)}")
                A.e("s_nop 0")
                A.e(f"v_permlane16_swap_b32 {v(b)}, {v(b+2)}")
                A.e(f"v_permlane16_swap_b32 {v(b+1)}, {v(b+3)}")
                for j in range(4): A.e(f"v_accvgpr_write_b32 {a(qfrag(rb,sx)+j)}, {v(b+j)}")
```

```python
from asmgen import *
from layout import *
import attn, phasea, k2, checker, lnfuse
import tail as tail_roles, tail_seq
tail = tail_seq if SEQ else tail_roles
from phasea import Lin, f32

SPIN_LIMIT = 200000

def gen_mega(name, opt=None, stamps=False):
    opt = opt or {}
    SC = " sc1"
    RA = phasea.RegsA(); PA = phasea.PhaseA(RA); PA.pre_w = opt.get('pre_w', 1); PA.mid_w = opt.get('mid_w', 1); PA.stmod = opt.get('hst', SC); PA.dist = opt.get('distA', 3); PA.ldmod = opt.get('wld', '')
    R = attn.Regs(vbase=8)
    G = attn.AttnEmit(R, dict(farbranch=1, brdelay=2, barpos=1, stmod=SC, kvmod=opt.get('kvld', ''), **opt.get("attn", {})))
    P = tail.Tail(opt.get("tail", {}))
    assert RA.vend <= R.KDMA and R.vend <= P.DV and R.L >= 152
    A = Asm()
    A(kernel_head(name))
    sX, sOut, sWo, sDbg, sWd = 26, 28, 30, 32, 96
    sPart, sI, sCt, sHF, sOF, sPF, sPoll = 53, 54, 55, 56, 57, 58, 59
    ONE, ZERO, DBGV, PFV = 254, 255, 246, 240
    nst = [0]
    def stamp(dst=None):
        if not stamps: return
        o = dst or A
        o.e("s_memrealtime s[88:89]" if opt.get("rt") else "s_memtime s[88:89]"); o.e("s_waitcnt lgkmcnt(0)")
        if isinstance(o, Lin): o.ds = []
        o.e("s_sub_u32 s88, s88, s92" if opt.get("rt") else "s_sub_u32 s88, s88, s90")
        o.e(f"v_writelane_b32 v253, s88, {nst[0]}"); nst[0] += 1

    A.e("s_cmp_ge_u32 s2, 256")
    A.e(f"s_cbranch_scc0 {name}_go")
    A.e("s_endpgm")
    A.label(f"{name}_go")
    A.e("s_load_dwordx4 s[4:7], s[0:1], 8")
    A.e("s_load_dwordx2 s[8:9], s[0:1], 24")
    A.e("s_load_dwordx4 s[20:23], s[0:1], 48")
    A.e("s_load_dwordx2 s[10:11], s[0:1], 88")
    A.e(f"s_load_dwordx2 {s(sX,2)}, s[0:1], 0")
    A.e(f"s_load_dwordx2 {s(sOut,2)}, s[0:1], 72")
    A.e(f"s_load_dwordx2 {s(sWo,2)}, s[0:1], 32")
    A.e(f"s_load_dwordx2 {s(sWd,2)}, s[0:1], 64")
    A.e(f"s_load_dwordx2 {s(sDbg,2)}, s[0:1], 80")
    if stamps or opt.get("span"):
        A.e("s_memtime s[90:91]"); A.e("s_memrealtime s[92:93]")
    A.e("v_lshrrev_b32 v1, 6, v0")
    A.e("v_and_b32 v2, 63, v0")
    A.e("v_readfirstlane_b32 s12, v1")
    A.e(f"s_and_b32 {s(sPart)}, s2, 7")
    A.e(f"s_lshr_b32 {s(sI)}, s2, 3")
    A.e(f"s_and_b32 {s(sCt)}, {s(sI)}, 3")
    A.e(f"s_lshl_b32 s13, {s(sPart)}, 2")
    A.e(f"s_add_u32 s13, s13, {s(sCt)}")
    A.e(f"s_lshr_b32 s14, {s(sI)}, 2")
    A.e("s_lshr_b32 s15, s13, 1")
    A.e("s_lshl_b32 s15, s15, 19")
    A.e("v_lshlrev_b32 v3, 4, v2")
    A.e(f"v_mov_b32 v{ONE}, 1"); A.e(f"v_mov_b32 v{ZERO}, 0")
    A.e("s_waitcnt lgkmcnt(0)")
    A.e("s_lshl_b32 s98, s14, 5")
    RAW, LT, LF = 8, 20, 28
    A.e(f"s_mov_b32 s84, {s(sX)}"); A.e(f"s_mov_b32 s85, {s(sX+1)}"); A.e(f"s_mov_b32 s86, {2048*1152}"); A.e("s_mov_b32 s87, 0x20000")
    lnfuse.ln_loads(A, "v2", "s12", "s13", "s14", "s[84:87]", RAW, LT, 99)
    A.e(f"s_add_u32 {s(R.sK)}, s4, s15"); A.e(f"s_addc_u32 {s(R.sK+1)}, s5, 0")
    A.e(f"s_mov_b32 {s(R.sK+2)}, 524288"); A.e(f"s_mov_b32 {s(R.sK+3)}, 0x20000")
    A.e(f"s_add_u32 {s(R.sV)}, s6, s15"); A.e(f"s_addc_u32 {s(R.sV+1)}, s7, 0")
    A.e(f"s_mov_b32 {s(R.sV+2)}, 524288"); A.e(f"s_mov_b32 {s(R.sV+3)}, 0x20000")
    A.e("s_mov_b32 s16, s10"); A.e("s_mov_b32 s17, s11"); A.e(f"s_mov_b32 s18, {WS_RANGE}"); A.e("s_mov_b32 s19, 0x20000")
    A.e(f"s_mov_b32 {s(sDbg+2)}, 256"); A.e(f"s_mov_b32 {s(sDbg+3)}, 0x20000")
    A.e("s_lshl_b32 s24, s14, 2"); A.e("s_lshr_b32 s25, s13, 3"); A.e("s_add_u32 s24, s24, s25")
    A.e("s_lshl_b32 s24, s24, 2"); A.e("s_add_u32 s24, s24, s12"); A.e("s_lshl_b32 s24, s24, 7")
    A.e("s_and_b32 s25, s13, 7"); A.e("s_lshl_b32 s25, s25, 2"); A.e("s_add_u32 s24, s24, s25")
    A.e(f"s_add_u32 {s(sHF)}, s24, {FLAG_OFF}"); A.e(f"s_add_u32 {s(sOF)}, {s(sHF)}, 16384")
    A.e(f"s_and_b32 s24, {s(sPart)}, 3"); A.e("s_lshl_b32 s25, s14, 2"); A.e("s_add_u32 s24, s24, s25")
    A.e("s_lshl_b32 s24, s24, 2"); A.e("s_add_u32 s24, s24, s12"); A.e("s_lshl_b32 s24, s24, 7")
    A.e(f"s_cmp_lt_u32 {s(sPart)}, 4"); A.e("s_cselect_b32 s25, 16384, 0"); A.e("s_add_u32 s24, s24, s25")
    A.e(f"s_add_u32 {s(sPoll)}, s24, {FLAG_OFF}")
    A.e(f"s_lshl_b32 s24, {s(sI)}, 2"); A.e("s_add_u32 s24, s24, s12"); A.e("s_lshl_b32 s24, s24, 7")
    A.e(f"s_lshl_b32 s25, {s(sPart)}, 2"); A.e("s_add_u32 s24, s24, s25")
    A.e(f"s_add_u32 {s(sPF)}, s24, {FLAG_OFF + 32768}")
    def code_address(lab, dst):
        A.e("s_getpc_b64 s[84:85]")
        A.label(lab)
        A.e(f"s_lshl_b32 s15, {s(sI)}, 2"); A.e("s_add_u32 s15, s15, s12"); A.e("s_lshl_b32 s15, s15, 10")
        A.e(f"v_add_u32 {v(dst)}, s15, v3")
        A.e(f"v_min_u32 {v(dst)}, {name}_end-{lab}-16, {v(dst)}")
        A.e(f"v_mov_b32 {v(dst+1)}, s85")
        A.e(f"v_add_co_u32 {v(dst)}, vcc, s84, {v(dst)}")
        A.e("s_nop 1")
        A.e(f"v_addc_co_u32 {v(dst+1)}, vcc, 0, {v(dst+1)}, vcc")
    def code_prefetch(dst, nk):
        lab = f"{name}_pc{dst}"
        A.e("s_getpc_b64 s[24:25]")
        A.label(lab)
        A.e(f"s_lshl_b32 s15, {s(sI)}, 2"); A.e("s_add_u32 s15, s15, s12"); A.e("s_lshl_b32 s15, s15, 10")
        for k in range(nk):
            A.e(f"v_add_u32 v4, s15, v3")
            if k: A.e(f"v_add_u32 v4, {k*131072}, v4")
            A.e(f"v_min_u32 v4, {name}_end-{lab}-16, v4")
            A.e("v_mov_b32 v5, s25")
            A.e("v_add_co_u32 v4, vcc, s24, v4")
            A.e("s_nop 1")
            A.e("v_addc_co_u32 v5, vcc, 0, v5, vcc")
            A.e(f"global_load_dwordx4 {v(dst+4*k,4)}, v[4:5], off")
    if not opt.get("nocpf"): code_prefetch(64, 1)
    for f in (sHF, sOF, sPF):
        A.e(f"buffer_store_dword v{ZERO}, off, s[16:19], {s(f)}{SC}")
    ptr = {"wq": 8, "Wg": 20, "Wu": 22}
    PA.setup(A, "v2", "s12", "s13", "s14", lambda n: ptr[n])
    G.setup_dma(A, "v2", "s12", 4)
    A.e("s_lshl_b32 s24, s14, 7"); A.e("s_lshl_b32 s25, s13, 2"); A.e("s_add_u32 s24, s24, s25")
    A.e("s_lshl_b32 s24, s24, 14"); A.e("s_lshl_b32 s25, s12, 12"); A.e("s_add_u32 s24, s24, s25")
    A.e(f"s_add_u32 s24, s24, {O_OFF}")

    stamp()
    L = Lin()
    def after_w0(L_):
        T_ = Asm()
        lnfuse.ln_compute(T_, "v2", "s12", "s13", "s14", "s[16:19]", RAW, LT, LF, 4, PA.pre_w * 13 + 3 + (0 if opt.get("nocpf") else 1))
        for x in T_.lines: L_.e(x.strip())
        L_.e("s_waitcnt vmcnt(0)")
        L_.e("s_barrier")
        L_.e("s_cmp_eq_u32 s12, 0"); L_.e(f"s_cbranch_scc0 {name}_noann")
        L_.e("s_mov_b64 exec, 1")
        L_.e(f"buffer_atomic_add v{ONE}, off, {s(sDbg,4)}, s98")
        L_.e("s_mov_b64 exec, -1")
        L_.e(f"{name}_noann:")
        if stamps: stamp(L_)
    def wait_xn(L_):
        L_.e("s_mov_b32 s15, 0")
        L_.e(f"{name}_xn_spin:")
        L_.e(f"buffer_load_dword v{DBGV}, off, {s(sDbg,4)}, s98{SC}")
        L_.e("s_waitcnt vmcnt(0)")
        L_.e(f"v_readfirstlane_b32 s25, v{DBGV}")
        L_.e("s_add_u32 s15, s15, 1")
        L_.e(f"s_cmp_ge_u32 s15, {SPIN_LIMIT}"); L_.e(f"s_cbranch_scc1 {name}_xn_ok")
        if opt.get("xsleep"): L_.e(f"s_sleep {opt['xsleep']}")
        L_.e("s_cmp_ge_u32 s25, 32"); L_.e(f"s_cbranch_scc0 {name}_xn_spin")
        L_.e(f"{name}_xn_ok:")
        if stamps: stamp(L_)
    PA.xmod = SC
    kvpf = None
    if not opt.get("nokvpf"):
        kvpf = {opt.get("kvpf_ks", 8): [
            (["s_lshl_b32 s25, s14, 1", "s_and_b32 s15, s13, 1", "s_add_u32 s25, s25, s15", "s_mul_i32 s15, s25, 3072",
              "s_lshl_b32 s3, s12, 10", "s_add_u32 s15, s15, s3"],
             f"buffer_load_dwordx4 v[4:7], v3, {s(R.sK,4)}, s15 offen", ("PF", 0)),
            (["s_lshl_b32 s25, s25, 11", "s_and_b32 s3, s12, 1", "s_lshl_b32 s3, s3, 10", "s_add_u32 s25, s25, s3"],
             f"buffer_load_dwordx4 v[4:7], v3, {s(R.sV,4)}, s25 offen", ("PF", 1))]}
    PA.main(L, "v3", (after_w0, wait_xn), (lambda L_: stamp(L_)) if opt.get('afine') else None, kvpf, G.initial_dma_ops())
    for x in L.out:
        if x.endswith(":"): A.label(x[:-1])
        else: A.e(x)
    stamp()
    A.e("v_lshlrev_b32 v1, 3, v2")
    A.e("s_nop 7")
    for sx in (0, 1):
        for rb in range(4):
            d = PA.h_unit(A, sx, rb); PA.h_store(A, sx, rb, d)
    if opt.get("estamp"): stamp()
    HB3 = 208
    h2 = []
    for sx in (2, 3):
        for rb in range(4):
            h2.append((sx, rb, PA.h_unit(A, sx, rb)))
    h3 = [(4, rb, PA.h_unit(A, 4, rb, HB3 + 2 * rb)) for rb in range(4)]
    if opt.get("estamp"): stamp()
    PA.epilogue_q(A, R.qi, RA.A)
    if opt.get("estamp"): stamp()
    for sx, rb, d in h2: PA.h_store(A, sx, rb, d)
    stamp()
    G.setup_reads(A, "v2")
    G.init_offsets(A)
    P.setup(A, "s12", s(sPart), s(sCt), "s14", sWo, sWd, 10)
    A.e(f"s_lshl_b32 s22, {s(sI)}, 2"); A.e("s_add_u32 s22, s22, s12")
    if SEQ:
        A.e(f"s_mul_i32 s20, s22, {tail.ND*32*1152//128}"); A.e(f"s_mul_i32 s21, s22, {tail.NS*32*1152//128}")
    else:
        A.e(f"s_mul_i32 s20, {s(P.sNk)}, {32*1152//128}"); A.e("s_mul_i32 s20, s20, s22")
    NH = 16
    G.vm_init = [("H", 0)] * 18 + [("KV", -1)] + [("H", 0)] * (0 if opt.get("nopf") else 1)
    if opt.get("estamp"):
        stamp(); A.e(f"s_waitcnt vmcnt({NH})"); stamp(); A.e("s_barrier"); stamp()
    G.prologue(A, NH)
    if opt.get("estamp"): stamp()
    for sx, rb, d in h3: PA.h_store(A, sx, rb, d)
    stamp()
    flag_h = f"buffer_store_dword v{ONE}, off, s[16:19], {s(sHF)}{SC}"
    def pf(srd, off):
        return ([], f"buffer_load_dwordx4 {v(PFV,4)}, v3, {s(srd,4)}, {off} offen{opt.get('pfld','')}", ("PF", 0), [f"s_add_u32 {off}, {off}, 1024"])
    G.after_bar = {p: {3: [flag_h]} for p in range(4, 58, 8)}
    if not opt.get("nopf"):
        for p in range(2, 58):
            if SEQ:
                if p % 8 == 3: G.extra_vm[p] = [pf(P.sWd, "s20")]
                if p % 8 == 7: G.extra_vm[p] = [pf(P.sWo, "s21")]
            elif p % 4 == 3: G.extra_vm[p] = [pf(P.sW, "s20")]
    w0 = [(pre, ins, ("W", 0), []) for pre, ins in (P.dma(0, "s12") if SEQ else P.dma(0))]
    G.extra_vm[63] = w0
    if opt.get("cpf2"):
        code_address(f"{name}_pc2", 206)
        G.extra_vm[opt["cpf2"]] = [([], f"global_load_dwordx4 {v(PFV,4)}, v[206:207], off", ("X", 0), [])]
    G.extra_bar = {63}
    vlane = "v231"
    fl_load = ([f"v_min_u32 {vlane}, {3 if SEQ else 7}, v2", f"v_lshlrev_b32 {vlane}, 2, {vlane}"],
               f"buffer_load_dword {v(P.FL)}, {vlane}, s[16:19], {s(sPoll)} offen{SC}", ("X", 0), [])
    if not opt.get("hpf"):
        G.extra_vm[61] = [fl_load]
    else:
        G.extra_vm[58] = list(G.extra_vm.get(58, [])) + [fl_load]
        chk = ["s_waitcnt vmcnt(4)", f"v_cmp_ne_u32 vcc, 1, {v(P.FL)}", "s_nop 1", "s_mov_b32 s84, s64", "s_mov_b32 s85, s65",
               "s_cmp_eq_u64 vcc, 0", "s_cselect_b32 s86, s66, 0", f"s_cmp_lt_u32 {s(sPart)}, 4", "s_cselect_b32 s86, 0, s86",
               "s_mov_b32 s87, 0x20000", f"s_add_u32 s25, {s(sCt)}, 4", "s_lshl_b32 s25, s25, 14", f"s_add_u32 s25, s25, {s(P.sBoff)}"]
        n_pf = opt["hpf"]
        items = []
        for n in range(n_pf):
            kk, rb = divmod(n, 4)
            pre = chk if n == 0 else ([f"s_add_u32 s25, s25, 65536"] if rb == 0 else [])
            items.append((pre, f"buffer_load_dwordx4 {v(PFV,4)}, v3, s[84:87], s25 offen offset:{rb*1024}{SC}", ("X", 0), []))
        per = [60, 61, 62]
        k_ = (n_pf + 2) // 3
        for a_, p_ in enumerate(per): G.extra_vm[p_] = list(G.extra_vm.get(p_, [])) + items[a_*k_:(a_+1)*k_]
        G.fill_periods = {60, 61, 62}
    grp = lambda ops: [pre + (["s_nop 0"] if pre else []) + [ins] for pre, ins in ops]
    def spin(load, test, lab):
        A.e("s_mov_b32 s15, 0")
        A.label(f"{name}_{lab}")
        A.e(load)
        A.e("s_waitcnt vmcnt(0)")
        for x in test: A.e(x)
        A.e("s_add_u32 s15, s15, 1")
        A.e(f"s_cmp_ge_u32 s15, {SPIN_LIMIT}"); A.e(f"s_cbranch_scc1 {name}_{lab}_ok")
        A.e("s_sleep 2")
        A.e(f"s_branch {name}_{lab}")
    def tail_roles_code():
        G.emit_all(A, name)
        stamp()
        A.e("s_barrier")
        def ostore(sx, qb, d):
            if opt.get("noostore"):
                A.e("s_nop 0"); A.e(f"buffer_load_dword v5, off, {s(sDbg,4)}, 0"); return
            A.e(f"s_add_u32 s25, s24, {sx*16384}")
            A.e(f"buffer_store_dwordx4 {v(d,4)}, v3, s[16:19], s25 offen offset:{qb*1024}{SC}")
        oflag = f"buffer_store_dword v{ONE}, off, s[16:19], {s(sOF)}{SC}"
        def emit(L_):
            for x in L_.out:
                if x.endswith(":"): A.label(x[:-1])
                else: A.e(x)
        def issue(ops):
            for g_ in grp(ops):
                for x in g_: A.e(x)
        cst = (lambda L_: stamp(L_)) if opt.get("cstamp") else None
        G.epilogue_pack(A, P.OS, P.AF, 4, [], ostore)
        issue(P.dma(1)); issue(P.dma(2))
        A.e(f"s_cmp_lt_u32 {s(sPart)}, 4"); A.e(f"s_cbranch_scc1 {name}_role_s")
        A.e("s_waitcnt vmcnt(43)")
        A.e(f"v_cmp_ne_u32 vcc, 1, {v(P.FL)}")
        A.e("s_nop 0")
        A.e(f"s_cbranch_vccnz {name}_slowh")
        A.label(f"{name}_h_ok")
        NPRE = 4
        for k in range(NPRE): issue(P.bload(k))
        A.e(f"s_waitcnt vmcnt({18 + 4*NPRE})")
        A.e(oflag)
        n0 = nst[0]
        stamp()
        L = Lin()
        L.vm = [("W", 1)] * 9 + [("W", 2)] * 9 + [("B", k) for k in range(NPRE) for _ in range(4)] + [("F", 0)]
        P.main(L, "d", NPRE, None, 0, cst)
        L.e("s_nop 7")
        emit(L)
        A.e(f"s_branch {name}_join")
        n1 = nst[0]; nst[0] = n0
        A.label(f"{name}_role_s")
        A.e("s_waitcnt vmcnt(18)")
        A.e(oflag)
        A.e("s_mov_b32 s15, 0")
        if opt.get("opre"): A.e(f"s_sleep {opt['opre']}")
        A.label(f"{name}_pollo")
        A.e(f"buffer_load_dword {v(P.FL)}, {vlane}, s[16:19], {s(sPoll)} offen{SC}")
        A.e("s_waitcnt vmcnt(0)")
        A.e(f"v_cmp_ne_u32 vcc, 1, {v(P.FL)}")
        A.e("s_nop 0")
        A.e(f"s_cbranch_vccz {name}_pollo_ok")
        A.e("s_add_u32 s15, s15, 1")
        A.e(f"s_cmp_ge_u32 s15, {SPIN_LIMIT}"); A.e(f"s_cbranch_scc1 {name}_pollo_ok")
        A.e(f"s_sleep {opt.get('osleep', 1)}")
        A.e(f"s_branch {name}_pollo")
        A.label(f"{name}_pollo_ok")
        stamp()
        L = Lin()
        for k in range(4):
            for pre, ins in P.bload(k):
                for x in pre: L.e(x)
                L.vm_op(ins, ("B", k))
        P.main(L, "s", 4, None, 0, cst)
        L.e("s_nop 7")
        emit(L)
        if opt.get("cstamp"):
            assert nst[0] == n1 - 1
            stamp()
        nst[0] = max(nst[0], n1)
        A.label(f"{name}_join")
        stamp()
        L = Lin()
        L.e("s_waitcnt vmcnt(20) lgkmcnt(0)")
        P.store_partials(L)
        emit(L)
        nerr = 0
    def tail_seq_code():
        def gate_h(A_):
            A_.e("s_waitcnt vmcnt(9)")
            A_.e(f"v_cmp_ne_u32 vcc, 1, {v(P.FL)}")
            A_.e("s_nop 0")
            A_.e(f"s_cbranch_vccnz {name}_slowh")
            A_.label(f"{name}_h_ok")
        pv_fill = []
        for k in range(4): pv_fill += grp(P.bload(k))
        G.emit_all(A, name, pv_fill, gate_h)
        stamp()
        A.e("s_barrier")
        fill = grp(P.dma(1, "s12")) + grp(P.bload(4)) + grp(P.bload(5)) + grp(P.dma(2, "s12"))
        nfill = len(fill)
        fill = [sum(fill[i:i + 2], []) for i in range(0, len(fill), 2)]
        G.epilogue_pack(A, P.OS, P.AF, 4, fill)
        A.e(f"s_waitcnt vmcnt({16 + nfill})")
        for sx in range(4):
            A.e(f"s_add_u32 s25, s24, {sx*16384}")
            for qb in range(4):
                A.e(f"buffer_store_dwordx4 {v(P.OS + 4*(4*sx+qb),4)}, v3, s[16:19], s25 offen offset:{qb*1024}{SC}")
        stamp()
        L = Lin()
        L.vm = [("B", k) for k in range(4) for _ in range(4)] + [("W", 1)] * 9 + [("B", 4)] * 8 + [("B", 5)] * 4 + [("W", 2)] * 9 + [("O", 0)] * 16
        assert len(L.vm) == 16 + nfill + 16
        def flagcheck(L_):
            L_.e(f"v_cmp_ne_u32 vcc, 1, {v(P.FL)}")
            L_.e("s_nop 0")
            L_.e(f"s_cbranch_vccnz {name}_slowo")
            L_.e(f"{name}_o_ok:")
        hooks = dict(oflag=[f"buffer_store_dword v{ONE}, off, s[16:19], {s(sOF)}{SC}"],
                     flagload=f"buffer_load_dword {v(P.FL)}, {vlane}, s[16:19], s23 offen{SC}", flagcheck=flagcheck,
                     stamp=(lambda L_: stamp(L_)) if opt.get("cstamp") else None)
        A.e(f"s_add_u32 s23, {s(sPoll)}, 8192")
        P.main(L, hooks, "s12")
        L.e("s_nop 7")
        if stamps: stamp(L)
        L.e("s_waitcnt vmcnt(24)"); L.vm = L.vm[-24:]
        P.final_partials(L)
        for x in L.out:
            if x.endswith(":"): A.label(x[:-1])
            else: A.e(x)
    (tail_seq_code if SEQ else tail_roles_code)()
    nerr = 0
    def poll(base, lab, last):
        A.e(f"v_min_u32 v4, {last}, v2"); A.e("v_lshlrev_b32 v4, 2, v4")
        A.e("s_mov_b32 s15, 0")
        A.label(f"{name}_{lab}")
        A.e(f"buffer_load_dword v5, v4, s[16:19], {base} offen{SC}")
        A.e("s_waitcnt vmcnt(0)")
        A.e("v_cmp_ne_u32 vcc, 1, v5")
        A.e(f"s_cbranch_vccz {name}_{lab}_ok")
        A.e("s_add_u32 s15, s15, 1")
        A.e(f"s_cmp_ge_u32 s15, {SPIN_LIMIT}"); A.e(f"s_cbranch_scc1 {name}_{lab}_ok")
        A.e(f"s_sleep {opt.get('dsleep', 2)}")
        A.e(f"s_branch {name}_{lab}")
        A.label(f"{name}_{lab}_ok")
    A.e(f"s_lshl_b32 s78, s14, 4"); A.e(f"s_lshl_b32 s79, {s(sPart)}, 1"); A.e("s_add_u32 s78, s78, s79")
    A.e("s_lshr_b32 s79, s12, 1"); A.e("s_add_u32 s80, s78, s79")
    A.e("s_and_b32 s79, s12, 1"); A.e("s_add_u32 s81, s78, s79")
    A.e("s_lshl_b32 s82, s79, 1")
    A.e("v_and_b32 v4, 15, v2"); A.e("v_lshrrev_b32 v5, 4, v2")
    A.e("v_mul_u32_u24 v4, 1152, v4"); A.e("v_lshl_add_u32 v4, v5, 3, v4")
    A.e(f"s_mul_i32 s74, {s(sCt)}, 288")
    A.e(f"s_mul_i32 s75, s80, {16*1152}"); A.e("s_add_u32 s75, s75, s74"); A.e("s_lshl_b32 s76, s82, 6"); A.e("s_add_u32 s75, s75, s76")
    A.e(f"s_mul_i32 s76, s81, {16*1152}"); A.e("s_add_u32 s76, s76, s74"); A.e("s_add_u32 s76, s76, 256")
    A.e(f"s_mov_b32 s60, {s(sX)}"); A.e(f"s_mov_b32 s61, {s(sX+1)}"); A.e(f"s_mov_b32 s62, {2048*1152}"); A.e("s_mov_b32 s63, 0x20000")
    A.e(f"s_mov_b32 s64, {s(sOut)}"); A.e(f"s_mov_b32 s65, {s(sOut+1)}"); A.e(f"s_mov_b32 s66, {2048*1152}"); A.e("s_mov_b32 s67, 0x20000")
    XR = 220
    for k in range(4): A.e(f"buffer_load_dwordx2 {v(XR+2*k,2)}, v4, s[60:63], s75 offen offset:{32*k}")
    A.e(f"buffer_load_dwordx2 {v(XR+8,2)}, v4, s[60:63], s76 offen")
    A.e("s_waitcnt vmcnt(5)")
    A.e(f"buffer_store_dword v{ONE}, off, s[16:19], {s(sPF)}{SC}")
    A.e("v_mov_b32 v6, v4")
    A.e(f"s_lshl_b32 s77, {s(sI)}, 2"); A.e(f"s_lshr_b32 s79, {s(sPart)}, 1"); A.e("s_add_u32 s77, s77, s79")
    A.e("s_lshl_b32 s77, s77, 7"); A.e(f"s_add_u32 s77, s77, {FLAG_OFF + 32768}")
    poll("s77", "polld", 7)
    stamp()
    A.e(f"s_lshl_b32 s78, s80, 2"); A.e(f"s_add_u32 s78, s78, {s(sCt)}"); A.e(f"s_mul_i32 s78, s78, {PART_UNIT}")
    A.e(f"s_add_u32 s78, s78, {PART_OFF}"); A.e("s_lshl_b32 s79, s82, 10"); A.e("s_add_u32 s78, s78, s79")
    A.e(f"s_lshl_b32 s79, s81, 2"); A.e(f"s_add_u32 s79, s79, {s(sCt)}"); A.e(f"s_mul_i32 s79, s79, {PART_UNIT}")
    A.e(f"s_add_u32 s79, s79, {PART_OFF + NPART*4096}")
    A.e("v_lshlrev_b32 v7, 3, v2")
    PA_, PB_, PS_ = 8, 72, 136
    for p in range(NPART):
        A.e(f"buffer_load_dwordx4 {v(PA_+4*p,4)}, v3, s[16:19], s78 offen{SC}")
        A.e(f"buffer_load_dwordx4 {v(PB_+4*p,4)}, v3, s[16:19], s78 offen offset:1024{SC}")
        if p < NPART - 1: A.e("s_add_u32 s78, s78, 4096")
    for p in range(NPART):
        if p == 8: A.e("s_add_u32 s79, s79, 4096")
        A.e(f"buffer_load_dwordx2 {v(PS_+2*p,2)}, v7, s[16:19], s79 offen offset:{(p%8)*512}{SC}")
    A.e(f"s_mov_b32 s23, {hex(f32(-1.4426950408889634))}")
    def unpack_sum(dst, srcs, nreg, t, waits=None):
        for n, sr in enumerate(srcs):
            if waits: A.e(f"s_waitcnt vmcnt({waits[n]})")
            for j in range(nreg):
                lo, hi = v(dst + 2 * j), v(dst + 2 * j + 1)
                if n == 0:
                    A.e(f"v_lshlrev_b32 {lo}, 16, {v(sr+j)}"); A.e(f"v_and_b32 {hi}, 0xffff0000, {v(sr+j)}")
                else:
                    A.e(f"v_lshlrev_b32 {v(t)}, 16, {v(sr+j)}"); A.e(f"v_and_b32 {v(t+1)}, 0xffff0000, {v(sr+j)}")
                    A.e(f"v_pk_add_f32 {v(dst+2*j,2)}, {v(dst+2*j,2)}, {v(t,2)}")
    S0, D0, T0 = 170, 190, 210
    tot = 2 * NPART + NPART
    for half, dst in ((0, S0), (1, D0)):
        for p in range(NPART // 2):
            pp = NPART // 2 * half + p
            A.e(f"s_waitcnt vmcnt({tot - 2*(pp+1)})")
            for q, base in ((0, PA_), (1, PB_)):
                for j in range(4):
                    sr = base + 4 * pp + j
                    d2 = dst + 8 * q + 2 * j
                    if p == 0:
                        A.e(f"v_lshlrev_b32 {v(d2)}, 16, {v(sr)}"); A.e(f"v_and_b32 {v(d2+1)}, 0xffff0000, {v(sr)}")
                    else:
                        tt = 216 + 2 * (j & 1)
                        A.e(f"v_lshlrev_b32 {v(tt)}, 16, {v(sr)}"); A.e(f"v_and_b32 {v(tt+1)}, 0xffff0000, {v(sr)}")
                        A.e(f"v_pk_add_f32 {v(d2,2)}, {v(d2,2)}, {v(tt,2)}")
    for q in range(4):
        k2.final_math(A, S0 + 4 * q, D0 + 4 * q, XR + 2 * q, T0, "s23")
        A.e(f"buffer_store_dwordx2 {v(XR+2*q,2)}, v6, s[64:67], s75 offen offset:{32*q}{opt.get('outmod','')}")
    A.e("s_waitcnt vmcnt(4)")
    unpack_sum(S0 + 16, [PS_ + 2 * p for p in range(NPART // 2)], 2, 216)
    unpack_sum(D0 + 16, [PS_ + NPART + 2 * p for p in range(NPART // 2)], 2, 216)
    k2.final_math(A, S0 + 16, D0 + 16, XR + 8, T0, "s23")
    A.e(f"buffer_store_dwordx2 {v(XR+8,2)}, v6, s[64:67], s76 offen{opt.get('outmod','')}")
    if stamps or opt.get("span"):
        A.e("s_waitcnt vmcnt(0)")
        stamp()
        A.e("s_memrealtime s[94:95]"); A.e("s_waitcnt lgkmcnt(0)")
        A.e("s_sub_u32 s94, s94, s92")
        A.e(f"v_writelane_b32 v253, s94, 30"); A.e("v_writelane_b32 v253, s92, 31")
        A.e("s_lshl_b32 s21, s2, 2"); A.e("s_add_u32 s21, s21, s12"); A.e("s_lshl_b32 s21, s21, 8")
        A.e(f"s_add_u32 s21, s21, {STAMP_OFF}")
        A.e("v_lshlrev_b32 v1, 2, v2")
        A.e("buffer_store_dword v253, v1, s[16:19], s21 offen")
        if opt.get("dbgout"):
            A.e("s_cmp_eq_u32 s2, 0"); A.e(f"s_cbranch_scc0 {name}_nodbg")
            A.e("s_cmp_eq_u32 s12, 0"); A.e(f"s_cbranch_scc0 {name}_nodbg")
            lanes = [30, 1, 2, 3, 5, 6, 8, 9, 10, 11, 30, 30, 30, 30]
            words = [1, 2, 3, 4, 5, 6, 7, 9, 10, 11]
            A.e("s_mov_b64 exec, 1")
            for ln_, wd in zip(lanes, words):
                A.e(f"v_readlane_b32 s25, v253, {ln_}")
                A.e("s_nop 3")
                A.e("v_mov_b32 v4, s25")
                A.e(f"buffer_store_dword v4, off, {s(sDbg,4)}, 0 offset:{wd*4}")
            A.e("s_mov_b64 exec, -1")
            A.label(f"{name}_nodbg")
    A.e("s_endpgm")
    A.label(f"{name}_slowh")
    spin(f"buffer_load_dword {v(P.FL)}, {vlane}, s[16:19], {s(sPoll)} offen{SC}",
         [f"v_cmp_ne_u32 vcc, 1, {v(P.FL)}", "s_nop 0", f"s_cbranch_vccz {name}_slowh2_ok"], "slowh2")
    A.label(f"{name}_slowh2_ok")
    A.e(f"s_branch {name}_h_ok")
    if SEQ:
        A.label(f"{name}_slowo")
        spin(f"buffer_load_dword {v(P.FL)}, {vlane}, s[16:19], s23 offen{SC}",
             [f"v_cmp_ne_u32 vcc, 1, {v(P.FL)}", "s_nop 0", f"s_cbranch_vccz {name}_slowo2_ok"], "slowo2")
        A.label(f"{name}_slowo2_ok")
        A.e(f"s_branch {name}_o_ok")
    G.emit_rare(A)
    A.label(f"{name}_end")
    A.e("s_endpgm")
    A(kernel_desc(name, 512, 102, 256))
    errs = checker.check([l for l in A.lines if not l.startswith(";")], name)
    errs = [e for e in errs if not ("buffer_load_dwordx4 v[240:243]" in e.split("<-")[0] or "global_load_dwordx4 v[240:243]" in e.split("<-")[0]
                                    or "buffer_load_dwordx4 v[4:7]" in e.split("<-")[0])]
    for e in errs[:10]: print(e)
    print(name, "lines", len(A.lines), "hazard errors", len(errs), nerr)
    return A
```

```python
from asmgen import *
from layout import *
import struct
def f32(x): return struct.unpack("<I", struct.pack("<f", x))[0]

MF = "v_mfma_f32_16x16x32_bf16"
STAGE = 53248
BLK_U = 18432
BLK_Q = 36864
NKS = 18

class RegsA:
    def __init__(R):
        R.QA = 0
        R.GA = 128
        n = 8
        R.U = n; n += 144
        R.GV = n; n += 16
        R.B = n; n += 48
        R.A = n; n += 16
        R.DG = n; n += 4
        R.DX = n; n += 1
        R.DQ = n; n += 4
        R.LG = n; n += 1; R.GA_ADDR = n; n += 1
        R.LQ = n; n += 1; R.QA_ADDR = n; n += 1
        R.QT = n; n += 2
        R.vend = n
        R.sG = 60; R.sU = 64; R.sX = 68; R.sQ = 72
        R.sWS = 16
        R.sM0G = 76; R.sM0X = 77; R.sM0Q = 78
        R.sXoff = 79
        R.sT = 80; R.sT2 = 81; R.sHoff = 82; R.sH8 = 83
    def g(R, t, rb, r=None):
        if t < 8:
            b = R.GA + (t * 4 + rb) * 4
            return a(b, 4) if r is None else a(b + r)
        b = R.GV + rb * 4
        return v(b, 4) if r is None else v(b + r)
    def u(R, t, rb, r=None):
        b = R.U + (t * 4 + rb) * 4
        return v(b, 4) if r is None else v(b + r)
    def qa(R, dt, rb, r=None):
        b = R.QA + (dt * 4 + rb) * 4
        return a(b, 4) if r is None else a(b + r)
    def b(R, ks, rb): return v(R.B + (ks % 3) * 16 + rb * 4, 4)
    def af(R, gi, h=None):
        b = R.A + (gi % 4) * 4
        return v(b, 4) if h is None else v(b + 2 * h, 2)

TILES = [x for t in range(9) for x in (("G", t), ("U", t))] + [("Q", dt) for dt in range(8)]
NT = len(TILES)

class Lin:
    def __init__(L):
        L.out = []; L.ds = []; L.vm = []
    def e(L, t): L.out.append(t)
    def ds_op(L, t, key): L.out.append(t); L.ds.append(key)
    def vm_op(L, t, key): L.out.append(t); L.vm.append(key)
    def need_ds(L, key):
        if key in L.ds:
            last = max(i for i, x in enumerate(L.ds) if x == key)
            cnt = len(L.ds) - 1 - last
            assert cnt <= 15
            L.out.append(f"s_waitcnt lgkmcnt({cnt})")
            L.ds = L.ds[last + 1:]
    def need_vm(L, key):
        if key in L.vm:
            last = max(i for i, x in enumerate(L.vm) if x == key)
            cnt = len(L.vm) - 1 - last
            assert cnt <= 63, cnt
            L.out.append(f"s_waitcnt vmcnt({cnt})")
            L.vm = L.vm[last + 1:]

class PhaseA:
    def __init__(G, R, vm_period=2):
        G.R = R; G.vm_period = vm_period; G.stmod = ''; G.dist = 3; G.ldmod = ''; G.xmod = ''; G.noq = False

    def setup(G, A, lane, wave, head, rt, ptr):
        R = G.R
        t = [v(R.B + i) for i in range(12)]
        for srd, nm, size in ((R.sG, "Wg", 576 * 9216), (R.sU, "Wu", 576 * 9216), (R.sQ, "wq", 576 * 8192)):
            p = ptr(nm)
            A.e(f"s_mov_b32 {s(srd)}, {s(p)}"); A.e(f"s_mov_b32 {s(srd+1)}, {s(p+1)}")
            A.e(f"s_mov_b32 {s(srd+2)}, {size}"); A.e(f"s_mov_b32 {s(srd+3)}, 0x20000")
        A.e(f"s_cmp_lt_u32 {wave}, 2")
        A.e(f"s_cselect_b32 {s(R.sX)}, {s(R.sG)}, {s(R.sU)}")
        A.e(f"s_cselect_b32 {s(R.sX+1)}, {s(R.sG+1)}, {s(R.sU+1)}")
        A.e(f"s_mov_b32 {s(R.sX+2)}, {576*9216}"); A.e(f"s_mov_b32 {s(R.sX+3)}, 0x20000")
        A.e(f"s_lshl_b32 {s(R.sM0G)}, {wave}, 12")
        A.e(f"s_and_b32 {s(R.sT)}, {wave}, 1"); A.e(f"s_add_u32 {s(R.sT)}, {s(R.sT)}, 16"); A.e(f"s_lshl_b32 {s(R.sM0X)}, {s(R.sT)}, 10")
        A.e(f"s_cmp_lt_u32 {wave}, 2")
        A.e(f"s_cselect_b32 {s(R.sT2)}, 0, {BLK_U}")
        A.e(f"s_add_u32 {s(R.sM0X)}, {s(R.sM0X)}, {s(R.sT2)}")
        A.e(f"s_lshl_b32 {s(R.sM0Q)}, {wave}, 12"); A.e(f"s_add_u32 {s(R.sM0Q)}, {s(R.sM0Q)}, {BLK_Q}")
        A.e(f"s_mul_i32 {s(R.sT2)}, {head}, 288")
        A.e(f"s_and_b32 s87, {head}, 1"); A.e("s_lshl_b32 s87, s87, 1")
        def gu(dst, idx_s, idx_c, comp):
            A.e(f"s_lshl_b32 s84, {idx_s}, 6")
            A.e(f"v_add_u32 {t[0]}, s84, {lane}")
            if idx_c: A.e(f"v_add_u32 {t[0]}, {64*idx_c}, {t[0]}")
            A.e(f"v_mul_u32_u24 {t[1]}, 3641, {t[0]}")
            A.e(f"v_lshrrev_b32 {t[1]}, 16, {t[1]}")
            A.e(f"v_mul_u32_u24 {t[2]}, 18, {t[1]}")
            A.e(f"v_sub_u32 {t[2]}, {t[0]}, {t[2]}")
            A.e(f"v_add_u32 {t[2]}, s87, {t[2]}")
            A.e(f"v_subrev_u32 {t[5]}, 18, {t[2]}")
            A.e(f"v_min_u32 {t[2]}, {t[2]}, {t[5]}")
            A.e(f"v_mul_u32_u24 {t[1]}, 9216, {t[1]}")
            A.e(f"v_lshl_add_u32 {t[1]}, {t[2]}, 4, {t[1]}")
            A.e(f"v_add_u32 {dst}, {s(R.sT2)}, {t[1]}")
            if comp: A.e(f"v_subrev_u32 {dst}, {comp}, {dst}")
        A.e(f"s_lshl_b32 s85, {wave}, 2")
        for n in range(4): gu(v(R.DG + n), "s85", n, n * 1024)
        gu(v(R.DX), s(R.sT), 0, 0)
        m, g = t[3], t[4]
        A.e(f"v_and_b32 {m}, 15, {lane}"); A.e(f"v_lshrrev_b32 {g}, 4, {lane}")
        A.e(f"s_lshl_b32 s84, {wave}, 4")
        A.e(f"s_lshl_b32 s85, {head}, 8")
        for n in range(4):
            A.e(f"v_add_u32 {t[0]}, {4*n}, {g}")
            A.e(f"v_and_b32 {t[1]}, 7, {t[0]}")
            A.e(f"v_lshlrev_b32 {t[1]}, 1, {t[1]}")
            A.e(f"v_xor_b32 {t[1]}, {t[1]}, {m}")
            A.e(f"v_add_u32 {t[0]}, s84, {t[0]}")
            A.e(f"v_lshlrev_b32 {t[0]}, 13, {t[0]}")
            A.e(f"v_lshl_add_u32 {t[0]}, {t[1]}, 4, {t[0]}")
            A.e(f"v_add_u32 {v(R.DQ+n)}, s85, {t[0]}")
            if n: A.e(f"v_subrev_u32 {v(R.DQ+n)}, {n*1024}, {v(R.DQ+n)}")
        A.e(f"v_lshrrev_b32 {t[0]}, 2, {m}")
        A.e(f"v_lshl_add_u32 {t[0]}, {g}, 2, {t[0]}")
        A.e(f"v_mul_u32_u24 {t[1]}, 288, {t[0]}")
        A.e(f"v_and_b32 {t[2]}, 3, {m}")
        A.e(f"v_lshl_add_u32 {v(R.LG)}, {t[2]}, 3, {t[1]}")
        A.e(f"v_lshlrev_b32 {t[1]}, 8, {t[0]}")
        A.e(f"v_and_b32 {t[2]}, 7, {t[0]}")
        A.e(f"v_lshl_add_u32 {t[1]}, {t[2]}, 5, {t[1]}")
        A.e(f"v_bfe_u32 {t[2]}, {m}, 1, 1")
        A.e(f"v_lshl_add_u32 {t[1]}, {t[2]}, 4, {t[1]}")
        A.e(f"v_and_b32 {t[2]}, 1, {m}")
        A.e(f"v_lshl_add_u32 {t[1]}, {t[2]}, 3, {t[1]}")
        A.e(f"v_add_u32 {v(R.LQ)}, {BLK_Q}, {t[1]}")
        A.e(f"s_lshl_b32 {s(R.sXoff)}, {rt}, 2"); A.e(f"s_add_u32 {s(R.sXoff)}, {s(R.sXoff)}, {wave}")
        A.e(f"s_mul_i32 {s(R.sXoff)}, {s(R.sXoff)}, {18*4096}")
        if XN_OFF: A.e(f"s_add_u32 {s(R.sXoff)}, {s(R.sXoff)}, {XN_OFF}")
        A.e(f"s_mul_i32 s84, {rt}, 144")
        A.e(f"s_lshr_b32 s85, {head}, 1"); A.e("s_mul_i32 s85, s85, 9"); A.e("s_add_u32 s84, s84, s85")
        A.e("s_lshl_b32 s84, s84, 14")
        A.e(f"s_lshl_b32 s85, {wave}, 12"); A.e("s_add_u32 s84, s84, s85")
        A.e(f"s_add_u32 s84, s84, {H_OFF}")
        A.e(f"s_and_b32 s85, {head}, 1")
        A.e(f"s_mul_i32 {s(R.sT)}, s85, {5*16384}"); A.e(f"s_add_u32 {s(R.sHoff)}, s84, {s(R.sT)}")
        A.e(f"s_lshl_b32 {s(R.sT)}, s85, 9"); A.e(f"s_add_u32 {s(R.sH8)}, s84, {s(R.sT)}"); A.e(f"s_add_u32 {s(R.sH8)}, {s(R.sH8)}, {4*16384}")

    def dma_ops(G, st):
        R = G.R; slot = (st % 3) * STAGE
        so_g = st * 64 * 9216; so_q = st * 64 * 8192
        ops = []
        for n in range(4):
            pre = [f"s_add_u32 m0, {s(R.sM0G)}, {slot}", f"s_mov_b32 {s(R.sT)}, {so_g}"] if n == 0 else []
            ops.append((pre, f"buffer_load_dwordx4 {v(R.DG+n)}, {s(R.sG,4)}, {s(R.sT)} offen offset:{n*1024}{G.ldmod} lds"))
        for n in range(4):
            pre = [f"s_add_u32 m0, {s(R.sM0G)}, {slot + BLK_U}"] if n == 0 else []
            ops.append((pre, f"buffer_load_dwordx4 {v(R.DG+n)}, {s(R.sU,4)}, {s(R.sT)} offen offset:{n*1024}{G.ldmod} lds"))
        ops.append(([f"s_add_u32 m0, {s(R.sM0X)}, {slot}"], f"buffer_load_dwordx4 {v(R.DX)}, {s(R.sX,4)}, {s(R.sT)} offen{G.ldmod} lds"))
        for n in range(4):
            pre = [f"s_add_u32 m0, {s(R.sM0Q)}, {slot}", f"s_mov_b32 {s(R.sT2)}, {so_q}"] if n == 0 else []
            ops.append((pre, f"buffer_load_dwordx4 {v(R.DQ+n)}, {s(R.sQ,4)}, {s(R.sT2)} offen offset:{n*1024}{G.ldmod} lds"))
        return ops

    def x_ops(G, ks, lane16):
        R = G.R
        return [([f"s_add_u32 s86, {s(R.sXoff)}, {ks*4096}"],
                 f"buffer_load_dwordx4 {R.b(ks,rb)}, {lane16}, {s(R.sWS,4)}, s86 offen offset:{rb*1024}{G.xmod}") for rb in range(4)]

    def read_ops(G, gi):
        R = G.R; ks, n = divmod(gi, NT); st, kk = divmod(ks, 2)
        kind, t = TILES[n]; pre = []
        if n == 0 and kk == 0:
            pre.append(f"v_add_u32 {v(R.GA_ADDR)}, {(st%3)*STAGE}, {v(R.LG)}")
            pre.append(f"v_add_u32 {v(R.QA_ADDR)}, {(st%3)*STAGE}, {v(R.LQ)}")
        if kind == "Q":
            tmp = v(R.QT + (t & 1))
            pre.append(f"v_xor_b32 {tmp}, {t*32}, {v(R.QA_ADDR)}")
            rd = [f"ds_read_b64_tr_b16 {R.af(gi,h)}, {tmp} offset:{kk*8192 + h*4096}" for h in range(2)]
        else:
            blk = 0 if kind == "G" else BLK_U
            rd = [f"ds_read_b64_tr_b16 {R.af(gi,h)}, {v(R.GA_ADDR)} offset:{blk + (32*kk + 16*h)*288 + 32*t}" for h in range(2)]
        return pre, rd

    def main(G, L, lane16, fused, stamp=None, extra=None, tail_ops=None):
        R = G.R
        def issue(ops, key):
            for pre, ins in ops:
                for x in pre: L.e(x)
                if pre: L.e("s_nop 0")
                L.vm_op(ins, key)
        for st in range(G.pre_w): issue(G.dma_ops(st), ("W", st))
        fused[0](L)
        L.vm = []
        for st in range(G.pre_w, G.pre_w + G.mid_w): issue(G.dma_ops(st), ("W", st))
        fused[1](L)
        L.vm = []
        issue(G.x_ops(0, lane16), ("X", 0))
        issue(G.x_ops(1, lane16), ("X", 1))
        late_w = [(p, i, ("W", st)) for st in range(G.pre_w + G.mid_w, 3) for p, i in G.dma_ops(st)]
        if stamp: stamp(L)
        L.need_vm(("X", 0))
        DIST = G.dist
        total = NKS * NT
        for gi in range(DIST):
            pre, rd = G.read_ops(gi)
            for x in pre: L.e(x)
            for x in rd: L.ds_op(x, ("A", gi))
        vmq = list(late_w); staged = None
        for ks in range(NKS):
            if stamp and ks > 0: stamp(L)
            if ks + 2 < NKS: vmq = [(p, i, ("X", ks + 2)) for p, i in G.x_ops(ks + 2, lane16)] + vmq
            if extra and ks in extra: vmq += extra[ks]
            for n in range(NT):
                gi = ks * NT + n
                nx = gi + DIST
                rd = None
                if nx < total:
                    pre, rd = G.read_ops(nx)
                    newstage = (nx % (2 * NT) == 0)
                kind, t = TILES[n]
                for rb in range(4):
                    if rb == 0:
                        L.need_ds(("A", gi))
                        if n == 0: L.need_vm(("X", ks))
                    acc = R.g(t, rb) if kind == "G" else (R.u(t, rb) if kind == "U" else R.qa(t, rb))
                    c = "0" if ks == 0 else acc
                    L.e(f"{MF} {acc}, {R.af(gi)}, {R.b(ks,rb)}, {c}")
                    if rd:
                        if rb == 0:
                            if newstage:
                                ns = nx // (2 * NT)
                                L.need_vm(("W", ns))
                                L.e("s_waitcnt lgkmcnt(0)"); L.ds = []
                                L.e("s_barrier")
                                if ns + 2 <= 8: vmq += [(p, i, ("W", ns + 2)) for p, i in G.dma_ops(ns + 2)]
                                if ns == 8 and tail_ops: vmq += [(p, i, ("T", 0)) for p, i in tail_ops]
                            for x in pre: L.e(x)
                        if rb == 1: L.ds_op(rd[0], ("A", nx))
                        if rb == 2: L.ds_op(rd[1], ("A", nx))
                    if rb == 0 and staged is not None:
                        L.vm_op(*staged); staged = None
                    period = G.vm_period
                    if rb == 3 and vmq and (n >= 1 or vmq[0][2][0] != "X") and (n % period == period - 1 or ks >= NKS - 2 or ks < 2) and gi + 1 < total:
                        p, i, key = vmq.pop(0)
                        for x in p: L.e(x)
                        staged = (i, key)
            assert not [x for x in vmq if x[2][0] == "X" and x[2][1] <= ks + 1], ks
        assert not vmq and staged is None

    def h_unit(G, A, sx, rb, dst=None):
        R = G.R
        def hvals(t, d):
            x = R.DG
            for r in range(4):
                if t < 8:
                    A.e(f"v_accvgpr_read_b32 {v(x+r)}, {R.g(t,rb,r)}")
            for r in range(4):
                A.e(f"v_max_f32 {v(x+r)}, 0, {v(x+r) if t < 8 else R.g(t,rb,r)}")
            ub = R.U + (t * 4 + rb) * 4
            for r in (0, 2):
                A.e(f"v_pk_mul_f32 {v(ub+r,2)}, {v(x+r,2)}, {v(ub+r,2)}")
            A.e(f"v_cvt_pk_bf16_f32 {v(d)}, {R.u(t,rb,0)}, {R.u(t,rb,1)}")
            A.e(f"v_cvt_pk_bf16_f32 {v(d+1)}, {R.u(t,rb,2)}, {R.u(t,rb,3)}")
        d = dst if dst is not None else R.U + (2 * sx * 4 + rb) * 4
        hvals(2 * sx, d)
        if sx < 4: hvals(2 * sx + 1, d + 2)
        return d
    def h_store(G, A, sx, rb, d):
        R = G.R
        if sx < 4:
            A.e(f"s_add_u32 {s(R.sT)}, {s(R.sHoff)}, {sx*16384}")
            A.e(f"buffer_store_dwordx4 {v(d,4)}, v3, {s(R.sWS,4)}, {s(R.sT)} offen offset:{rb*1024}{G.stmod}")
        else:
            A.e(f"buffer_store_dwordx2 {v(d,2)}, v1, {s(R.sWS,4)}, {s(R.sH8)} offen offset:{rb*1024}{G.stmod}")

    def epilogue_q(G, A, qfrag, tmp):
        R = G.R
        c = f32(128 ** -0.5 * 1.4426950408889634)
        A.e(f"s_mov_b32 s86, {hex(c)}"); A.e(f"s_mov_b32 s87, {hex(c)}")
        for sx in range(4):
            for rb in range(4):
                b = tmp
                for h in range(2):
                    for r in range(4):
                        A.e(f"v_accvgpr_read_b32 {v(b+4*h+r)}, {R.qa(2*sx+h,rb,r)}")
                for j in range(0, 8, 2): A.e(f"v_pk_mul_f32 {v(b+j,2)}, {v(b+j,2)}, s[86:87]")
                for j in range(4): A.e(f"v_cvt_pk_bf16_f32 {v(b+8+j)}, {v(b+2*j)}, {v(b+2*j+1)}")
                b += 8
                A.e("s_nop 0")
                A.e(f"v_permlane32_swap_b32 {v(b)}, {v(b+2)}")
                A.e(f"v_permlane32_swap_b32 {v(b+1)}, {v(b+3)}")
                A.e("s_nop 0")
                A.e(f"v_permlane16_swap_b32 {v(b)}, {v(b+2)}")
                A.e(f"v_permlane16_swap_b32 {v(b+1)}, {v(b+3)}")
                for j in range(4): A.e(f"v_accvgpr_write_b32 {a(qfrag(rb,sx)+j)}, {v(b+j)}")
```

```python
from asmgen import *

NSUB = 64
THR = 0x4b800000
ORDER = [0, 2, 1, 3]
MSUM = (0, 1)

class Regs:
    def __init__(R, vbase=8):
        n = vbase
        def al(k, align=1):
            nonlocal n
            n = (n + align - 1) // align * align
            r = n; n += k; return r
        R.S = al(64, 4)
        R.P = al(32, 4)
        R.NEGM = al(16, 4)
        R.SD = al(8, 4)
        R.ONES = al(4, 4)
        R.NT = 32
        R.T = al(R.NT)
        R.PS = al(4)
        R.L = al(4)
        R.KADDR = al(4)
        R.VADDR = al(8)
        R.KDMA = 247
        R.VDMA = 251
        R.CHK = al(1)
        R.TMP = al(12, 4)
        R.vend = n
        R.O = 128
        R.sK = 36
        R.sV = 40
        R.sKoff = 44
        R.sVoff = 45
        R.sM0K = 46
        R.sM0V = 47
        R.sThr = 48
        R.sLoop = 49
        R.sRet = 50
        R.sTmp = 52
    def s(R, par, qb, kb, r=None):
        b = R.S + par * 32 + qb * 8 + kb * 4
        return v(b, 4) if r is None else v(b + r)
    def p(R, par, qb, j=None):
        b = R.P + par * 16 + qb * 4
        return v(b, 4) if j is None else v(b + j)
    def negm(R, qb, r=None):
        return v(R.NEGM + qb * 4, 4) if r is None else v(R.NEGM + qb * 4 + r)
    def o(R, qb, db, r=None):
        b = R.O + (qb * 8 + db) * 4
        return a(b, 4) if r is None else a(b + r)
    def qi(R, qb, ds): return (8 * ds + qb) * 4
    def q(R, qb, ds):
        return a(R.qi(qb, ds), 4)
    def f(R, i, n=4, off=0):
        return a((8 * (i >> 2) + 4 + (i & 3)) * 4 + off, n)
    def psum(R, qb):
        if qb in MSUM: return v(R.SD + MSUM.index(qb) * 4)
        return v(R.PS + qb)

MF = "v_mfma_f32_16x16x32_bf16"

def kslot(u): return (u + 3) & 7
def vslot(u): return u & 7

class Item:
    def __init__(s, kind, text, lo, hi, tag=""):
        s.kind, s.text, s.lo, s.hi, s.tag = kind, text, lo, hi, tag

S0_AFTER, S1_AFTER = 9, 41
def pos(n):
    return n + (1 if n > S0_AFTER else 0) + (1 if n > S1_AFTER else 0)
NG = 66
POS_S0, POS_S1 = S0_AFTER + 1, S1_AFTER + 2
SHIFT = 4

def gap_types():
    t = [None] * NG
    for n in range(64):
        if n % 2 == 0: t[pos(n)] = "E"
    free = [g for g in range(NG) if t[g] is None]
    vv = CFG["vv"]; dm = CFG["dma"]
    for g in free:
        t[g] = "V" if g in vv else ("M" if g in dm else "D")
    return t

CFG = dict(vv=[pos(15), pos(19), pos(23), pos(57), pos(59), pos(61)], dma=[pos(5), pos(11), pos(27), pos(33)])

class AttnGen:
    def __init__(G, R, opt=None):
        G.R = R
        G.opt = opt or {}
        if 'cfg' in G.opt: CFG.update(G.opt['cfg'])
        G.types = gap_types()
        G.late = []
        G.extra_vm = {}; G.extra_bar = set(); G.after_bar = {}
        G.vm_init = []
        G.nD = G.types.count("D")
        assert G.nD >= 24, G.nD

    def mfma_list(G, p, do_pv, do_qk):
        R = G.R; par = p & 1
        L = [None] * NG
        for n in range(32):
            qb = ORDER[n >> 3]; db = n & 7
            c = "0" if p == 1 else R.o(qb, db)
            L[pos(n)] = (f"{MF} {R.o(qb,db)}, {R.f(db)}, {R.p(par^1,qb)}, {c}", ("V", db)) if do_pv else None
        for n in range(32, 64):
            i = (n - 32) >> 2; kb = i >> 2; ds = i & 3; qb = ORDER[n & 3]
            c = R.negm(qb) if ds == 0 else R.s(par^1, qb, kb)
            L[pos(n)] = (f"{MF} {R.s(par^1,qb,kb)}, {R.f(8+i)}, {R.q(qb,ds)}, {c}", ("K", i)) if do_qk else None
        L[POS_S0] = (f"{MF} {v(R.SD,4)}, {v(R.ONES,4)}, {R.p(par,MSUM[0])}, 0", None)
        L[POS_S1] = (f"{MF} {v(R.SD+4,4)}, {v(R.ONES,4)}, {R.p(par,MSUM[1])}, 0", None)
        return L

    def exp_src(G, tile, e):
        qb = ORDER[e >> 3]; kb = (e >> 2) & 1; r = e & 3
        return G.R.s(tile & 1, qb, kb, r)
    def tmp(G, tile, e):
        return v(G.R.T + (tile * 32 + e) % G.R.NT)
    def exp_text(G, tile, e):
        return f"v_exp_f32 {G.tmp(tile,e)}, {G.exp_src(tile,e)}"
    def cvt_text(G, tile, e):
        qb = ORDER[e >> 3]; j = (e & 7) >> 1
        return f"v_cvt_pk_bf16_f32 {G.R.p(tile&1,qb,j)}, {G.tmp(tile,e)}, {G.tmp(tile,e+1)}"
    def exp_time(G, tile, e):
        k = e - SHIFT
        if k < 0: return (tile - 1) * NG + pos(64 + 2 * k)
        return tile * NG + pos(2 * k)

    def valu_items(G, tile):
        R = G.R; it = []; T0 = tile * NG
        nxtI = lambda t: t + 1
        for e in range(0, 32, 2):
            qb = ORDER[e >> 3]
            lo = G.exp_time(tile, e + 1) + 1
            if qb == MSUM[0]: hi = T0 + POS_S0 - 2
            elif qb == MSUM[1]: hi = T0 + POS_S1 - 2
            else: hi = T0 + NG + pos(8 * ORDER.index(qb)) - 2
            hi = min(hi, G.exp_time(tile, e) + 0 + self_reuse(G, tile, e))
            it.append(Item("V", G.cvt_text(tile, e), lo, hi, ("cvt", tile, e)))
        for qb in range(4):
            if qb in MSUM: continue
            b = ORDER.index(qb) * 8
            it.append(Item("V", f"v_add_f32 {R.psum(qb)}, {G.tmp(tile,b)}, {G.tmp(tile,b+1)}", G.exp_time(tile, b + 1) + 1,
                           G.exp_time(tile, b + 1) + 3, ("add", tile, qb, 1)))
            for j in range(2, 8):
                it.append(Item("V", f"v_add_f32 {R.psum(qb)}, {R.psum(qb)}, {G.tmp(tile,b+j)}", G.exp_time(tile, b + j) + 1,
                               G.exp_time(tile, b + j) + 3, ("add", tile, qb, j)))
        vq = [q for q in ORDER if q not in MSUM]
        last = G.exp_time(tile, 31) + 1
        it.append(Item("V", f"v_max3_f32 {v(R.CHK)}, {R.psum(MSUM[0])}, {R.psum(MSUM[1])}, {R.psum(vq[0])}", T0 + POS_S1 + 6, last, ("chk", tile, 0)))
        it.append(Item("V", f"v_max_f32 {v(R.CHK)}, {v(R.CHK)}, {R.psum(vq[1])}", last + 1, last + 2, ("chk", tile, 1)))
        it.append(Item("V", f"v_cmp_lt_f32 vcc, {s(R.sThr)}, {v(R.CHK)}", last + 1, last + 2, ("chk", tile, 2)))
        for qb in range(4):
            if qb == MSUM[0]: hi = T0 + NG + POS_S0 - 1
            elif qb == MSUM[1]: hi = T0 + NG + POS_S1 - 1
            else: hi = G.exp_time(tile + 1, ORDER.index(qb) * 8 + 1)
            it.append(Item("V", f"v_add_f32 {v(R.L+qb)}, {v(R.L+qb)}, {R.psum(qb)}", "afterchk", hi, ("ladd", tile, qb)))
        return it

    def ds_items(G, p):
        R = G.R; it = []
        ks = kslot(p + 1)
        for i in range(8):
            kb, ds = i >> 2, i & 3
            it.append((f"ds_read_b128 {R.f(8+i)}, {v(R.KADDR+ds)} offset:{ks*8192+kb*4096}", ("K", i), p * NG + 1, "K"))
        vs = vslot(p)
        for db in range(8):
            for h in range(2):
                it.append((f"ds_read_b64_tr_b16 {R.f(db,2,2*h)}, {v(R.VADDR+db)} offset:{vs*8192+h*4096}", ("V", db),
                           p * NG + pos(24 + db) + 1, "V"))
        return it

    def dma_items(G, p):
        R = G.R; out = []
        if p % 2 == 0 and p + 5 <= NSUB - 1:
            for n in range(4):
                pre = [f"s_add_u32 m0, {s(R.sM0K)}, {(p & 7) * 8192}"] if n == 0 else []
                post = [f"s_add_u32 {s(R.sKoff)}, {s(R.sKoff)}, 16384"] if n == 3 else []
                out.append((pre, f"buffer_load_dwordx4 {v(R.KDMA+n)}, {s(R.sK,4)}, {s(R.sKoff)} offen offset:{n*1024}{G.opt.get('kvmod','')} lds", ("KV", p // 2), post))
        if p % 2 == 1 and p + 3 <= NSUB - 1:
            for n in range(4):
                pre = [f"s_add_u32 m0, {s(R.sM0V)}, {((p + 3) & 7) * 8192}"] if n == 0 else []
                post = [f"s_add_u32 {s(R.sVoff)}, {s(R.sVoff)}, 16384"] if n == 3 else []
                out.append((pre, f"buffer_load_dwordx4 {v(R.VDMA+(n&1))}, {s(R.sV,4)}, {s(R.sVoff)} offen offset:{n*1024}{G.opt.get('kvmod','')} lds", ("KV", p // 2), post))
        if G.opt.get("nodma"): out = []
        return out + list(G.extra_vm.get(p, []))

    def schedule(G, first=0, last=NSUB - 1):
        R = G.R
        pend = []
        placed = {}
        periods = []
        for t in (first,):
            pend += [x for x in G.valu_items(t) if G.keep_first(x, t)]
        added = first
        G.chk_pos = {}
        for p in range(first, last + 1):
            do_pv = p > 0; do_qk = p < NSUB - 1
            M = G.mfma_list(p, do_pv, do_qk)
            dsq = G.ds_items(p)
            if not do_qk: dsq = [d for d in dsq if d[3] != "K"]
            vmq = G.dma_items(p)
            if p + 1 <= last + 1 and do_qk:
                pend += G.valu_items(p + 1)
            gaps = []
            e_next = {}
            for e in range(32):
                e_next[G.exp_time(p, e)] = (p, e)
                if do_qk: e_next[G.exp_time(p + 1, e)] = (p + 1, e)
            for g in range(NG):
                T = p * NG + g
                gap = dict(mfma=M[g], pre=[], body=[], post=[])
                ty = G.types[g]
                if ty == "E":
                    if T in e_next:
                        gap["body"].append(G.exp_text(*e_next[T]))
                else:
                    nv = 2 if ty == "V" else 1
                    if ty == "M" and G.opt.get("dmaalone"): nv = 0
                    if ty == "D":
                        if dsq and dsq[0][2] <= T:
                            d = dsq.pop(0); gap["body"].append(("DS", d[0], d[1]))
                        else:
                            nv = 2
                    n_m_left = sum(1 for gg in range(g, NG) if G.types[gg] == "M")
                    spare = (ty == "V" and g == G.opt.get("xgap", pos(23)) and len(vmq) > n_m_left)
                    if (ty == "M" or spare or (ty == "D" and nv == 2 and G.opt_fill(p))) and vmq:
                        x = vmq.pop(0)
                        if x[0]:
                            if x[2][0] == "KV": gaps[-1]["pre"] += x[0]
                            else: gap["pre"] += x[0] + ["s_nop 0"]
                        gap["body"].append(("VM", x[1], x[2])); nv = 1
                        gap["next_pre"] = list(x[3])
                    elif ty == "M":
                        nv = 2
                    for _ in range(nv):
                        ready = [x for x in pend if G.ready(x, T, placed)]
                        if not ready: break
                        ready.sort(key=lambda x: x.hi)
                        x = ready[0]; pend.remove(x); placed[x.tag] = T
                        if x.hi < T: G.late.append((x.tag, T, x.hi))
                        gap["body"].append(x.text)
                        if x.tag[0] == "chk" and x.tag[2] == 2:
                            gap["post"].append(("CHECK", p)); G.chk_pos[p] = T
                gaps.append(gap)
            assert not dsq, (p, dsq)
            assert not vmq, (p, vmq)
            for g in range(NG - 1):
                if gaps[g].get("next_pre"): gaps[g + 1]["pre"] = gaps[g]["next_pre"] + gaps[g + 1]["pre"]
            if (p % 2 == 0 or p in G.extra_bar) and not G.opt.get("nobar"):
                gaps[G.opt.get("barpos", 0)]["pre"] += [("VMWAIT", ("KV", p // 2 - 2)), "s_barrier"]
            for g, lst in G.after_bar.get(p, {}).items():
                gaps[g]["body"] = [("VM", x, ("X", p)) for x in lst] + gaps[g]["body"]
            periods.append(gaps)
        G.leftover = pend
        return periods
    late = []
    fill_periods = set()
    def opt_fill(G, p): return p == NSUB - 1 or p in G.fill_periods
    def keep_first(G, x, t):
        return True
    def ready(G, x, T, placed):
        if x.lo == "afterchk":
            k = ("chk", x.tag[1], 2)
            return k in placed and placed[k] + G.opt.get("brdelay", 0) < T
        if x.lo > T: return False
        if x.tag[0] == "add" and x.tag[3] > 1:
            return ("add", x.tag[1], x.tag[2], x.tag[3] - 1) in placed
        if x.tag[0] == "chk" and x.tag[2] > 0:
            if ("chk", x.tag[1], x.tag[2] - 1) not in placed: return False
            vq = [q for q in ORDER if q not in MSUM]
            return ("add", x.tag[1], vq[1], 7) in placed
        if x.tag[0] == "chk" and x.tag[2] == 0:
            vq = [q for q in ORDER if q not in MSUM]
            return ("add", x.tag[1], vq[0], 7) in placed
        return True

def self_reuse(G, tile, e):
    nxt = tile * 32 + e + G.R.NT
    t2, e2 = divmod(nxt, 32)
    return G.exp_time(t2, e2) - G.exp_time(tile, e) - 1


class AttnEmit(AttnGen):
    def linearise(G, periods, first):
        out = []
        fifo = []
        vm = list(G.vm_init)
        done = set()
        seq = []
        for k, gaps in enumerate(periods):
            for g, gap in enumerate(gaps): seq.append((k, g, gap))
        lists = [[] for _ in periods]
        pendchk = None
        vkeys = {}
        for n, (k, g, gap) in enumerate(seq):
            L = lists[k]
            m = gap["mfma"]
            L.append(m[0] if m else "s_nop 0")
            pre = []
            for x in gap["pre"]:
                if isinstance(x, tuple) and x[0] == "VMWAIT":
                    if x[1] in vm:
                        lastv = max(i for i, y in enumerate(vm) if y == x[1])
                        pre.append(f"s_waitcnt vmcnt({len(vm) - 1 - lastv})"); vm = vm[lastv + 1:]
                else:
                    pre.append(x)
            if pendchk is not None:
                if pendchk[1] <= 0:
                    pre.append(("CHECK", pendchk[0])); pendchk = None
                else:
                    pendchk = (pendchk[0], pendchk[1] - 1)
            nxt = seq[n + 1][2]["mfma"] if n + 1 < len(seq) else None
            if nxt and nxt[1] is not None and nxt[1] in fifo:
                last = max(i for i, x in enumerate(fifo) if x == nxt[1])
                cnt = len(fifo) - 1 - last
                if not G.opt.get("nolgkm"): pre.append(f"s_waitcnt lgkmcnt({min(cnt, 15)})")
                fifo = fifo[len(fifo) - min(cnt, 15):] if cnt > 0 else []
            L += pre
            body = gap["body"]
            nval = sum(1 for b in body if isinstance(b, str) and b.startswith("v_"))
            if not pre and nval >= 2 and not isinstance(body[0], tuple):
                L.append("s_nop 0")
            for b in body:
                if isinstance(b, tuple) and b[0] == "VM":
                    L.append(b[1]); vm.append(b[2])
                elif isinstance(b, tuple):
                    L.append(b[1]); fifo.append(b[2])
                else:
                    L.append(b)
            for x in gap["post"]:
                pendchk = (x[1], G.opt.get("brdelay", 0))
        G.final_fifo = fifo; G.final_vm = vm
        assert pendchk is None
        return lists

    def xlane(G, A, reg, t0, op):
        for sw in ("v_permlane32_swap_b32", "v_permlane16_swap_b32"):
            A.e(f"v_mov_b32 {t0}, {reg}")
            A.e("s_nop 1")
            A.e(f"{sw} {t0}, {reg}")
            A.e("s_nop 1")
            A.e(f"{op} {reg}, {t0}, {reg}")

    def rare(G, A, p, redo, label):
        R = G.R; par = p & 1
        t0, t1, dl, fc = v(R.TMP), v(R.TMP + 1), v(R.TMP + 2), v(R.TMP + 3)
        A.label(label)
        A.e("s_nop 15")
        for qb in range(4):
            S = [R.s(par, qb, kb, r) for kb in range(2) for r in range(4)]
            A.e(f"v_max3_f32 {dl}, {S[0]}, {S[1]}, {S[2]}")
            A.e(f"v_max3_f32 {dl}, {dl}, {S[3]}, {S[4]}")
            A.e(f"v_max3_f32 {dl}, {dl}, {S[5]}, {S[6]}")
            A.e(f"v_max3_f32 {dl}, {dl}, {S[7]}, 0")
            G.xlane(A, dl, t0, "v_max_f32")
            A.e(f"v_sub_f32 {fc}, 0, {dl}")
            A.e(f"v_exp_f32 {fc}, {fc}")
            for r in range(4):
                A.e(f"v_sub_f32 {R.negm(qb,r)}, {R.negm(qb,r)}, {dl}")
            for x in S:
                A.e(f"v_sub_f32 {x}, {x}, {dl}")
            for kb in range(2):
                for r in range(4):
                    x = R.s(par ^ 1, qb, kb, r)
                    A.e(f"v_sub_f32 {x}, {x}, {dl}")
            A.e(f"v_mul_f32 {v(R.L+qb)}, {v(R.L+qb)}, {fc}")
            for db in range(8):
                for r in range(4):
                    A.e(f"v_accvgpr_read_b32 {t1}, {R.o(qb,db,r)}")
                    A.e(f"v_mul_f32 {t1}, {t1}, {fc}")
                    A.e(f"v_accvgpr_write_b32 {R.o(qb,db,r)}, {t1}")
        for b in range(4):
            qb = ORDER[b]
            ps = R.psum(qb)
            for j in range(8):
                e = b * 8 + j
                A.e(G.exp_text(p, e))
                A.e("s_nop 0")
                if j == 1:
                    A.e(f"v_add_f32 {ps}, {G.tmp(p,e-1)}, {G.tmp(p,e)}")
                elif j > 1:
                    A.e(f"v_add_f32 {ps}, {ps}, {G.tmp(p,e)}")
                if j & 1:
                    A.e(G.cvt_text(p, e - 1))
            if qb in MSUM:
                G.xlane(A, ps, t0, "v_add_f32")
        for x in redo:
            A.e(x)
            A.e("s_nop 0")
        A.e("s_nop 3")
        A.e(f"s_setpc_b64 {s(R.sRet,2)}")

    def setup_reads(G, A, lane):
        R = G.R
        t = [v(R.TMP + i) for i in range(8)]
        m, g, i2 = t[0], t[1], t[2]
        A.e(f"v_and_b32 {m}, 15, {lane}")
        A.e(f"v_lshrrev_b32 {g}, 4, {lane}")
        for ds in range(4):
            A.e(f"v_add_u32 {t[4]}, {4*ds}, {g}")
            A.e(f"v_xor_b32 {t[4]}, {t[4]}, {m}")
            A.e(f"v_lshlrev_b32 {t[4]}, 4, {t[4]}")
            A.e(f"v_lshl_add_u32 {v(R.KADDR+ds)}, {m}, 8, {t[4]}")
        A.e(f"v_lshrrev_b32 {i2}, 2, {m}")
        A.e(f"v_lshl_add_u32 {t[4]}, {g}, 2, {i2}")
        A.e(f"v_and_b32 {t[5]}, 7, {t[4]}")
        A.e(f"v_lshlrev_b32 {t[4]}, 8, {t[4]}")
        A.e(f"v_add_u32 {t[4]}, 0x10000, {t[4]}")
        A.e(f"v_bfe_u32 {t[6]}, {m}, 1, 1")
        A.e(f"v_lshl_add_u32 {t[4]}, {t[6]}, 4, {t[4]}")
        A.e(f"v_and_b32 {t[6]}, 1, {m}")
        A.e(f"v_lshl_add_u32 {t[4]}, {t[6]}, 3, {t[4]}")
        for db in range(8):
            A.e(f"v_xor_b32 {t[6]}, {db}, {t[5]}")
            A.e(f"v_lshl_add_u32 {v(R.VADDR+db)}, {t[6]}, 5, {t[4]}")

    def setup_dma(G, A, lane, wave_s, tbase):
        R = G.R
        m, g, t4, t5 = v(tbase), v(tbase + 1), v(tbase + 2), v(tbase + 3)
        A.e(f"v_and_b32 {m}, 15, {lane}")
        A.e(f"v_lshrrev_b32 {g}, 4, {lane}")
        A.e(f"s_lshl_b32 {s(R.sTmp)}, {wave_s}, 12")
        A.e(f"v_lshl_add_u32 {t4}, {g}, 8, {s(R.sTmp)}")
        for n in range(4):
            A.e(f"v_add_u32 {t5}, {4*n}, {g}")
            A.e(f"v_xor_b32 {t5}, {t5}, {m}")
            A.e(f"v_lshl_add_u32 {v(R.KDMA+n)}, {t5}, 4, {t4}")
        for n in range(2):
            A.e(f"v_add_u32 {t5}, {4*n}, {g}")
            A.e(f"v_lshlrev_b32 {t5}, 1, {t5}")
            A.e(f"v_xor_b32 {t5}, {t5}, {m}")
            A.e(f"v_lshl_add_u32 {v(R.VDMA+n)}, {t5}, 4, {t4}")
        A.e(f"s_mov_b32 {s(R.sM0K)}, {s(R.sTmp)}")
        A.e(f"s_add_u32 {s(R.sM0V)}, {s(R.sTmp)}, 0x10000")
        A.e(f"s_mov_b32 {s(R.sThr)}, {THR}")

    def initial_dma_ops(G):
        R = G.R; ops = []
        for pair in range(3):
            base = kslot(2 * pair) * 8192
            for n in range(4):
                pre = [f"s_add_u32 m0, {s(R.sM0K)}, {base}", "s_and_b32 m0, m0, 0xffff", f"s_mov_b32 {s(R.sTmp)}, {pair*16384}"] if n == 0 else []
                ops.append((pre, f"buffer_load_dwordx4 {v(R.KDMA+n)}, {s(R.sK,4)}, {s(R.sTmp)} offen offset:{n*1024}{G.opt.get('kvmod','')} lds"))
        for pair in range(2):
            for n in range(4):
                pre = [f"s_add_u32 m0, {s(R.sM0V)}, {pair*16384}", f"s_mov_b32 {s(R.sTmp)}, {pair*16384}"] if n == 0 else []
                ops.append((pre, f"buffer_load_dwordx4 {v(R.VDMA+(n&1))}, {s(R.sV,4)}, {s(R.sTmp)} offen offset:{n*1024}{G.opt.get('kvmod','')} lds"))
        return ops

    def init_offsets(G, A):
        R = G.R
        A.e(f"s_mov_b32 {s(R.sKoff)}, {5*8192}")
        A.e(f"s_mov_b32 {s(R.sVoff)}, {4*8192}")

    def initial_dma(G, A):
        for pre, ins in G.initial_dma_ops():
            for x in pre: A.e(x)
            A.e(ins)
        G.init_offsets(A)

    def prologue(G, A, vmcnt=0):
        R = G.R
        A.e(f"s_waitcnt vmcnt({vmcnt})")
        A.e("s_barrier")
        ks = kslot(0)
        for i in range(8):
            kb, ds = i >> 2, i & 3
            A.e(f"ds_read_b128 {R.f(8+i)}, {v(R.KADDR+ds)} offset:{ks*8192+kb*4096}")
        for i in range(4): A.e(f"v_mov_b32 {v(R.ONES+i)}, 0x3f803f80")
        for i in range(4): A.e(f"v_mov_b32 {v(R.L+i)}, 0")
        A.e("s_waitcnt lgkmcnt(0)")
        for i in range(8):
            kb, ds = i >> 2, i & 3
            for qb in range(4):
                c = "0" if ds == 0 else R.s(0, qb, kb)
                A.e(f"{MF} {R.s(0,qb,kb)}, {R.f(8+i)}, {R.q(qb,ds)}, {c}")
        A.e("s_nop 7")
        t0, dl = v(R.TMP), v(R.TMP + 2)
        for qb in range(4):
            S = [R.s(0, qb, kb, r) for kb in range(2) for r in range(4)]
            A.e(f"v_max3_f32 {dl}, {S[0]}, {S[1]}, {S[2]}")
            A.e(f"v_max3_f32 {dl}, {dl}, {S[3]}, {S[4]}")
            A.e(f"v_max3_f32 {dl}, {dl}, {S[5]}, {S[6]}")
            A.e(f"v_max_f32 {dl}, {dl}, {S[7]}")
            G.xlane(A, dl, t0, "v_max_f32")
            for r in range(4): A.e(f"v_sub_f32 {R.negm(qb,r)}, 0, {dl}")
            for x in S: A.e(f"v_sub_f32 {x}, {x}, {dl}")
        for e in range(SHIFT):
            A.e(G.exp_text(0, e))
        A.e("s_nop 1")

    def body(G, A, prefix):
        R = G.R
        G.late = []
        periods = G.schedule()
        lists = G.linearise(periods, 0)
        G.late_report = list(G.late)
        G.lists = lists
        rare = {}
        G.stubs = []
        def emit(p, tagp):
            L = lists[p]
            for k, x in enumerate(L):
                if isinstance(x, tuple):
                    tile = x[1]
                    redo = [y for y in L[:k] if isinstance(y, str) and G.is_next_tile(y, tile)]
                    key = (tile & 1, tuple(redo))
                    if key not in rare: rare[key] = (f"{prefix}_rare{len(rare)}", tile, redo)
                    if G.opt.get("nochk"): continue
                    if G.opt.get("farbranch"):
                        A.e(f"s_cbranch_vccnz {prefix}_stub{tagp}")
                        A.label(f"{prefix}_ok{tagp}")
                        G.stubs.append((f"{prefix}_stub{tagp}", rare[key][0], f"{prefix}_ok{tagp}"))
                        continue
                    A.e(f"s_cbranch_vccz {prefix}_ok{tagp}")
                    A.e(f"s_call_b64 {s(R.sRet,2)}, {rare[key][0]}")
                    A.label(f"{prefix}_ok{tagp}")
                else:
                    A.e(x)
        return lists, rare, emit

    def is_next_tile(G, text, tile):
        for e in range(SHIFT):
            if text == G.exp_text(tile + 1, e): return True
        for e in range(0, SHIFT, 2):
            if text == G.cvt_text(tile + 1, e): return True
        return False


    def emit_all(G, A, prefix, pv_fill=None, gate=None, final=True):
        R = G.R
        lists, rare, emit = G.body(A, prefix)
        G.rare_paths = rare
        txt = lambda p: [x if isinstance(x, str) else ("CHECK",) for x in lists[p]]
        for p in range(2, 50):
            assert txt(p) == txt(p + 8), p
        emit(0, "p0"); emit(1, "p1")
        A.e(f"s_mov_b32 {s(R.sLoop)}, 7")
        A.e(".p2align 6")
        A.label(f"{prefix}_loop")
        for p in range(2, 10): emit(p, f"l{p}")
        A.e(f"s_sub_u32 {s(R.sLoop)}, {s(R.sLoop)}, 1")
        A.e(f"s_cmp_lg_u32 {s(R.sLoop)}, 0")
        A.e(f"s_cbranch_scc1 {prefix}_loop")
        for p in range(58, 64): emit(p, f"t{p}")
        pend = list(G.leftover)
        order = {"cvt": 0, "ladd": 1}
        pend.sort(key=lambda x: order[x.tag[0]])
        for x in pend: A.e(x.text)
        if final: G.final_pv(A, pv_fill, gate)

    def final_pv(G, A, pv_fill=None, gate=None):
        R = G.R
        A.e("s_waitcnt lgkmcnt(0)")
        A.e("s_nop 1")
        if gate: gate(A)
        par = (NSUB - 1) & 1
        for n in range(32):
            qb = ORDER[n >> 3]; db = n & 7
            A.e(f"{MF} {R.o(qb,db)}, {R.f(db)}, {R.p(par,qb)}, {R.o(qb,db)}")
            if pv_fill and n % 2 == 1:
                for x in pv_fill.pop(0): A.e(x)

    def emit_rare(G, A):
        for st, tgt, back in G.stubs:
            A.label(st)
            A.e(f"s_call_b64 {s(G.R.sRet,2)}, {tgt}")
            A.e(f"s_branch {back}")
        for key, (label, tile, redo) in G.rare_paths.items():
            G.rare(A, tile, redo, label)

    def trace(G):
        out = []
        for L in G.lists:
            for x in L:
                out.append(x if isinstance(x, str) else "s_cbranch_vccz x")
        return out

    def epilogue(G, A, srd, voff, soff_reg):
        R = G.R
        t0 = v(R.TMP)
        for qb in range(4):
            l = v(R.L + qb)
            if qb not in MSUM: G.xlane(A, l, t0, "v_add_f32")
            A.e(f"v_rcp_f32 {l}, {l}")
        A.e("s_nop 7")
        buf = [R.S, R.S + 8, R.S + 16, R.S + 24]
        k = 0
        for qb in range(4):
            for sx in range(4):
                b = R.S + (k % 8) * 8; k += 1
                for h in range(2):
                    for r in range(4):
                        A.e(f"v_accvgpr_read_b32 {v(b+4*h+r)}, {R.o(qb,2*sx+h,r)}")
                for j in range(8):
                    A.e(f"v_mul_f32 {v(b+j)}, {v(b+j)}, {v(R.L+qb)}")
                for j in range(4):
                    A.e(f"v_cvt_pk_bf16_f32 {v(b+j)}, {v(b+2*j)}, {v(b+2*j+1)}")
                A.e(f"s_add_u32 {s(R.sTmp)}, {soff_reg}, {sx*16384}")
                A.e(f"buffer_store_dwordx4 {v(b,4)}, {voff}, {srd}, {s(R.sTmp)} offen offset:{qb*1024}{G.opt.get('stmod','')}")

    def epilogue_pack(G, A, dst, tmp, linv, fill, store=None):
        R = G.R
        t0 = v(R.TMP)
        for qb in range(4):
            l = v(R.L + qb)
            if qb not in MSUM: G.xlane(A, l, t0, "v_add_f32")
            A.e(f"v_rcp_f32 {v(linv+qb)}, {l}")
        A.e("s_nop 7")
        k = 0
        for sx in range(4):
            for qb in ORDER:
                b = tmp + (k % 2) * 8; k += 1
                d = dst + 4 * (4 * sx + qb)
                for h in range(2):
                    for r in range(4):
                        A.e(f"v_accvgpr_read_b32 {v(b+4*h+r)}, {R.o(qb,2*sx+h,r)}")
                lp = linv + (qb & ~1); hi = qb & 1
                for j in range(0, 8, 2):
                    A.e(f"v_pk_mul_f32 {v(b+j,2)}, {v(b+j,2)}, {v(lp,2)} op_sel:[0,{hi}] op_sel_hi:[1,{hi}]")
                for j in range(4):
                    A.e(f"v_cvt_pk_bf16_f32 {v(d+j)}, {v(b+2*j)}, {v(b+2*j+1)}")
                if store: store(sx, qb, d)
                if fill:
                    for x in fill.pop(0): A.e(x)
        while fill:
            for x in fill.pop(0): A.e(x)
```

```python
from asmgen import *
from layout import *
import attn, phasea, k2, checker, lnfuse
import tail as tail_roles, tail_seq
tail = tail_seq if SEQ else tail_roles
from phasea import Lin, f32

SPIN_LIMIT = 200000

def gen_mega(name, opt=None, stamps=False):
    opt = {**dict(wld=" nt", kvld=" nt", cpf2=59, osleep=0, dsleep=0, hpf=12, kA=2, kBd=8, kBs=5, kL=8, kC=10), **(opt or {})}
    SC = " sc1"
    RA = phasea.RegsA(); PA = phasea.PhaseA(RA); PA.pre_w = opt.get('pre_w', 1); PA.mid_w = opt.get('mid_w', 1); PA.late_bar = opt.get('late_bar', False); PA.vm_period = opt.get('vm_period', 2); PA.stmod = opt.get('hst', SC); PA.dist = opt.get('distA', 3); PA.ldmod = opt.get('wld', '')
    R = attn.Regs(vbase=8)
    G = attn.AttnEmit(R, {**dict(farbranch=1, brdelay=2, barpos=1, stmod=SC, kvmod=opt.get('kvld', '')), **opt.get("attn", {})})
    P = tail.Tail(opt.get("tail", {}))
    assert RA.vend <= R.KDMA and R.vend <= P.DV and R.L >= 152
    A = Asm()
    A(kernel_head(name))
    sX, sOut, sWo, sDbg, sWd = 26, 28, 30, 32, 96
    sPart, sI, sCt, sHF, sOF, sPF, sPoll = 53, 54, 55, 56, 57, 58, 59
    ONE, ZERO, DBGV, PFV = 254, 255, 246, 240
    nst = [0]
    def stamp(dst=None):
        if not stamps: return
        o = dst or A
        o.e("s_memrealtime s[88:89]" if opt.get("rt") else "s_memtime s[88:89]"); o.e("s_waitcnt lgkmcnt(0)")
        if isinstance(o, Lin): o.ds = []
        o.e("s_sub_u32 s88, s88, s92" if opt.get("rt") else "s_sub_u32 s88, s88, s90")
        o.e(f"v_writelane_b32 v253, s88, {nst[0]}"); nst[0] += 1

    A.e("s_cmp_ge_u32 s2, 256")
    A.e(f"s_cbranch_scc0 {name}_go")
    A.e("s_endpgm")
    A.label(f"{name}_go")
    A.e("s_load_dwordx4 s[4:7], s[0:1], 8")
    A.e("s_load_dwordx2 s[8:9], s[0:1], 24")
    A.e("s_load_dwordx4 s[20:23], s[0:1], 48")
    A.e("s_load_dwordx2 s[10:11], s[0:1], 88")
    A.e(f"s_load_dwordx2 {s(sX,2)}, s[0:1], 0")
    A.e(f"s_load_dwordx2 {s(sOut,2)}, s[0:1], 72")
    A.e(f"s_load_dwordx2 {s(sWo,2)}, s[0:1], 32")
    A.e(f"s_load_dwordx2 {s(sWd,2)}, s[0:1], 64")
    A.e(f"s_load_dwordx2 {s(sDbg,2)}, s[0:1], 80")
    if stamps or opt.get("span"):
        A.e("s_memtime s[90:91]"); A.e("s_memrealtime s[92:93]")
    A.e("v_lshrrev_b32 v1, 6, v0")
    A.e("v_and_b32 v2, 63, v0")
    A.e("v_readfirstlane_b32 s12, v1")
    A.e(f"s_and_b32 {s(sPart)}, s2, 7")
    A.e(f"s_lshr_b32 {s(sI)}, s2, 3")
    A.e(f"s_and_b32 {s(sCt)}, {s(sI)}, 3")
    A.e(f"s_lshl_b32 s13, {s(sPart)}, 2")
    A.e(f"s_add_u32 s13, s13, {s(sCt)}")
    A.e(f"s_lshr_b32 s14, {s(sI)}, 2")
    A.e("s_lshr_b32 s15, s13, 1")
    A.e("s_lshl_b32 s15, s15, 19")
    A.e("v_lshlrev_b32 v3, 4, v2")
    A.e(f"v_mov_b32 v{ONE}, 1"); A.e(f"v_mov_b32 v{ZERO}, 0")
    A.e("s_waitcnt lgkmcnt(0)")
    A.e("s_lshl_b32 s98, s14, 5")
    RAW, LT, LF = 8, 20, 28
    A.e(f"s_mov_b32 s84, {s(sX)}"); A.e(f"s_mov_b32 s85, {s(sX+1)}"); A.e(f"s_mov_b32 s86, {2048*1152}"); A.e("s_mov_b32 s87, 0x20000")
    lnfuse.ln_loads(A, "v2", "s12", "s13", "s14", "s[84:87]", RAW, LT, 99, opt.get('xld', ''))
    A.e(f"s_add_u32 {s(R.sK)}, s4, s15"); A.e(f"s_addc_u32 {s(R.sK+1)}, s5, 0")
    A.e(f"s_mov_b32 {s(R.sK+2)}, 524288"); A.e(f"s_mov_b32 {s(R.sK+3)}, 0x20000")
    A.e(f"s_add_u32 {s(R.sV)}, s6, s15"); A.e(f"s_addc_u32 {s(R.sV+1)}, s7, 0")
    A.e(f"s_mov_b32 {s(R.sV+2)}, 524288"); A.e(f"s_mov_b32 {s(R.sV+3)}, 0x20000")
    A.e("s_mov_b32 s16, s10"); A.e("s_mov_b32 s17, s11"); A.e(f"s_mov_b32 s18, {WS_RANGE}"); A.e("s_mov_b32 s19, 0x20000")
    A.e(f"s_mov_b32 {s(sDbg+2)}, 256"); A.e(f"s_mov_b32 {s(sDbg+3)}, 0x20000")
    PFO = 65536 if SEQ else 32768
    if SEQ:
        A.e("s_lshl_b32 s24, s14, 3"); A.e(f"s_add_u32 s24, s24, {s(sPart)}"); A.e("s_lshl_b32 s24, s24, 2"); A.e("s_add_u32 s24, s24, s12")
        A.e("s_lshl_b32 s24, s24, 7"); A.e(f"s_add_u32 {s(sPoll)}, s24, {FLAG_OFF}")
        A.e(f"s_lshl_b32 s25, {s(sCt)}, 2"); A.e(f"s_add_u32 {s(sHF)}, {s(sPoll)}, s25"); A.e(f"s_add_u32 {s(sOF)}, {s(sHF)}, 32768")
        A.e(f"s_lshl_b32 s24, {s(sI)}, 2"); A.e("s_add_u32 s24, s24, s12"); A.e("s_lshl_b32 s24, s24, 7")
        A.e(f"s_lshl_b32 s25, {s(sPart)}, 2"); A.e("s_add_u32 s24, s24, s25")
        A.e(f"s_add_u32 {s(sPF)}, s24, {FLAG_OFF + PFO}")
    else:
        A.e("s_lshl_b32 s24, s14, 2"); A.e("s_lshr_b32 s25, s13, 3"); A.e("s_add_u32 s24, s24, s25")
        A.e("s_lshl_b32 s24, s24, 2"); A.e("s_add_u32 s24, s24, s12"); A.e("s_lshl_b32 s24, s24, 7")
        A.e("s_and_b32 s25, s13, 7"); A.e("s_lshl_b32 s25, s25, 2"); A.e("s_add_u32 s24, s24, s25")
        A.e(f"s_add_u32 {s(sHF)}, s24, {FLAG_OFF}"); A.e(f"s_add_u32 {s(sOF)}, {s(sHF)}, 16384")
        A.e(f"s_and_b32 s24, {s(sPart)}, 3"); A.e("s_lshl_b32 s25, s14, 2"); A.e("s_add_u32 s24, s24, s25")
        A.e("s_lshl_b32 s24, s24, 2"); A.e("s_add_u32 s24, s24, s12"); A.e("s_lshl_b32 s24, s24, 7")
        A.e(f"s_cmp_lt_u32 {s(sPart)}, 4"); A.e("s_cselect_b32 s25, 16384, 0"); A.e("s_add_u32 s24, s24, s25")
        A.e(f"s_add_u32 {s(sPoll)}, s24, {FLAG_OFF}")
        A.e(f"s_lshl_b32 s24, {s(sI)}, 2"); A.e("s_add_u32 s24, s24, s12"); A.e("s_lshl_b32 s24, s24, 7")
        A.e(f"s_lshl_b32 s25, {s(sPart)}, 2"); A.e("s_add_u32 s24, s24, s25")
        A.e(f"s_add_u32 {s(sPF)}, s24, {FLAG_OFF + 32768}")
    def code_address(lab, dst):
        A.e("s_getpc_b64 s[84:85]")
        A.label(lab)
        A.e(f"s_lshl_b32 s15, {s(sI)}, 2"); A.e("s_add_u32 s15, s15, s12"); A.e("s_lshl_b32 s15, s15, 10")
        A.e(f"v_add_u32 {v(dst)}, s15, v3")
        A.e(f"v_min_u32 {v(dst)}, {name}_end-{lab}-16, {v(dst)}")
        A.e(f"v_mov_b32 {v(dst+1)}, s85")
        A.e(f"v_add_co_u32 {v(dst)}, vcc, s84, {v(dst)}")
        A.e("s_nop 1")
        A.e(f"v_addc_co_u32 {v(dst+1)}, vcc, 0, {v(dst+1)}, vcc")
    def code_prefetch(dst, nk):
        lab = f"{name}_pc{dst}"
        A.e("s_getpc_b64 s[24:25]")
        A.label(lab)
        A.e(f"s_lshl_b32 s15, {s(sI)}, 2"); A.e("s_add_u32 s15, s15, s12"); A.e("s_lshl_b32 s15, s15, 10")
        for k in range(nk):
            A.e(f"v_add_u32 v4, s15, v3")
            if k: A.e(f"v_add_u32 v4, {k*131072}, v4")
            A.e(f"v_min_u32 v4, {name}_end-{lab}-16, v4")
            A.e("v_mov_b32 v5, s25")
            A.e("v_add_co_u32 v4, vcc, s24, v4")
            A.e("s_nop 1")
            A.e("v_addc_co_u32 v5, vcc, 0, v5, vcc")
            A.e(f"global_load_dwordx4 {v(dst+4*k,4)}, v[4:5], off")
    if not opt.get("nocpf"): code_prefetch(64, 1)
    for f in (sHF, sOF, sPF):
        A.e(f"buffer_store_dword v{ZERO}, off, s[16:19], {s(f)}{SC}")
    A.e(f"s_add_u32 s25, {s(sOF)}, 32768")
    A.e(f"buffer_store_dword v{ZERO}, off, s[16:19], s25{SC}")
    ptr = {"wq": 8, "Wg": 20, "Wu": 22}
    PA.setup(A, "v2", "s12", "s13", "s14", lambda n: ptr[n])
    G.setup_dma(A, "v2", "s12", 4)
    A.e("s_lshl_b32 s24, s14, 7"); A.e("s_lshl_b32 s25, s13, 2"); A.e("s_add_u32 s24, s24, s25")
    A.e("s_lshl_b32 s24, s24, 14"); A.e("s_lshl_b32 s25, s12, 12"); A.e("s_add_u32 s24, s24, s25")
    A.e(f"s_add_u32 s24, s24, {O_OFF}")

    stamp()
    L = Lin()
    def after_w0(L_):
        T_ = Asm()
        lnfuse.ln_compute(T_, "v2", "s12", "s13", "s14", "s[16:19]", RAW, LT, LF, 4, PA.pre_w * 13 + 4 + (0 if opt.get("nocpf") else 1))
        for x in T_.lines: L_.e(x.strip())
        L_.e("s_waitcnt vmcnt(0)")
        L_.e("s_barrier")
        L_.e("s_cmp_eq_u32 s12, 0"); L_.e(f"s_cbranch_scc0 {name}_noann")
        L_.e("s_mov_b64 exec, 1")
        L_.e(f"buffer_atomic_add v{ONE}, off, {s(sDbg,4)}, s98")
        L_.e("s_mov_b64 exec, -1")
        L_.e(f"{name}_noann:")
        if stamps: stamp(L_)
    def wait_xn(L_):
        L_.e("s_mov_b32 s15, 0")
        L_.e(f"{name}_xn_spin:")
        L_.e(f"buffer_load_dword v{DBGV}, off, {s(sDbg,4)}, s98{SC}")
        L_.e("s_waitcnt vmcnt(0)")
        L_.e(f"v_readfirstlane_b32 s25, v{DBGV}")
        L_.e("s_add_u32 s15, s15, 1")
        L_.e(f"s_cmp_ge_u32 s15, {SPIN_LIMIT}"); L_.e(f"s_cbranch_scc1 {name}_xn_ok")
        if opt.get("xsleep"): L_.e(f"s_sleep {opt['xsleep']}")
        L_.e("s_cmp_ge_u32 s25, 32"); L_.e(f"s_cbranch_scc0 {name}_xn_spin")
        L_.e(f"{name}_xn_ok:")
        if stamps: stamp(L_)
    PA.xmod = SC
    kvpf = None
    if not opt.get("nokvpf"):
        kvpf = {opt.get("kvpf_ks", 8): [
            (["s_lshl_b32 s25, s14, 1", "s_and_b32 s15, s13, 1", "s_add_u32 s25, s25, s15", "s_mul_i32 s15, s25, 3072",
              "s_lshl_b32 s3, s12, 10", "s_add_u32 s15, s15, s3"],
             f"buffer_load_dwordx4 v[4:7], v3, {s(R.sK,4)}, s15 offen", ("PF", 0)),
            (["s_lshl_b32 s25, s25, 11", "s_and_b32 s3, s12, 1", "s_lshl_b32 s3, s3, 10", "s_add_u32 s25, s25, s3"],
             f"buffer_load_dwordx4 v[4:7], v3, {s(R.sV,4)}, s25 offen", ("PF", 1))]}
    PA.main(L, "v3", (after_w0, wait_xn), (lambda L_: stamp(L_)) if opt.get('afine') else None, kvpf, G.initial_dma_ops())
    for x in L.out:
        if x.endswith(":"): A.label(x[:-1])
        else: A.e(x)
    stamp()
    A.e("v_lshlrev_b32 v1, 3, v2")
    A.e("s_nop 7")
    for sx in (0, 1):
        for rb in range(4):
            d = PA.h_unit(A, sx, rb); PA.h_store(A, sx, rb, d)
    if opt.get("estamp"): stamp()
    HB3 = 208
    h2 = []
    for sx in (2, 3):
        for rb in range(4):
            h2.append((sx, rb, PA.h_unit(A, sx, rb)))
    h3 = [(4, rb, PA.h_unit(A, 4, rb, HB3 + 2 * rb)) for rb in range(4)]
    if opt.get("estamp"): stamp()
    PA.epilogue_q(A, R.qi, RA.A)
    if opt.get("estamp"): stamp()
    for sx, rb, d in h2: PA.h_store(A, sx, rb, d)
    stamp()
    G.setup_reads(A, "v2")
    G.init_offsets(A)
    P.setup(A, "s12", s(sPart), s(sCt), "s14", sWo, sWd, 10)
    A.e(f"s_lshl_b32 s22, {s(sI)}, 2"); A.e("s_add_u32 s22, s22, s12")
    if SEQ:
        A.e(f"s_mul_i32 s20, s22, {tail.ND*32*1152//128}"); A.e(f"s_mul_i32 s21, s22, {tail.NS*32*1152//128}")
    else:
        A.e(f"s_mul_i32 s20, {s(P.sNk)}, {32*1152//128}"); A.e("s_mul_i32 s20, s20, s22")
    NH = 16
    G.vm_init = [("H", 0)] * 18 + [("KV", -1)] + [("H", 0)] * (0 if opt.get("nopf") else 1)
    if opt.get("estamp"):
        stamp(); A.e(f"s_waitcnt vmcnt({NH})"); stamp(); A.e("s_barrier"); stamp()
    G.prologue(A, NH)
    if opt.get("estamp"): stamp()
    for sx, rb, d in h3: PA.h_store(A, sx, rb, d)
    stamp()
    flag_h = f"buffer_store_dword v{ONE}, off, s[16:19], {s(sHF)}{SC}"
    def pf(srd, off):
        return ([], f"buffer_load_dwordx4 {v(PFV,4)}, v3, {s(srd,4)}, {off} offen{opt.get('pfld','')}", ("PF", 0), [f"s_add_u32 {off}, {off}, 1024"])
    G.after_bar = {p: {3: [flag_h]} for p in range(4, 58, 8)}
    if not opt.get("nopf"):
        for p in range(2, 58):
            if SEQ:
                if p % 8 == 3: G.extra_vm[p] = [pf(P.sWd, "s20")]
                if p % 8 == 7: G.extra_vm[p] = [pf(P.sWo, "s21")]
            elif p % 4 == 3: G.extra_vm[p] = [pf(P.sW, "s20")]
    w0 = [(pre, ins, ("W", 0), []) for pre, ins in (P.dma(0, "s12") if SEQ else P.dma(0, "d"))]
    G.extra_vm[63] = w0
    if opt.get("cpf2"):
        code_address(f"{name}_pc2", 206)
        G.extra_vm[opt["cpf2"]] = [([], f"global_load_dwordx4 {v(PFV,4)}, v[206:207], off", ("X", 0), [])]
    G.extra_bar = {63}
    vlane = "v231"
    fl_load = ([f"v_min_u32 {vlane}, {3 if SEQ else 7}, v2", f"v_lshlrev_b32 {vlane}, 2, {vlane}"],
               f"buffer_load_dword {v(P.FL)}, {vlane}, s[16:19], {s(sPoll)} offen{SC}", ("X", 0), [])
    if not opt.get("hpf"):
        G.extra_vm[61] = [fl_load]
    else:
        G.extra_vm[58] = list(G.extra_vm.get(58, [])) + [fl_load]
        sa = P.sH if SEQ else P.sAct
        chk = ["s_waitcnt vmcnt(4)", f"v_cmp_ne_u32 vcc, 1, {v(P.FL)}", "s_nop 1", f"s_mov_b32 s4, {s(sa)}", f"s_mov_b32 s5, {s(sa+1)}",
               "s_cmp_eq_u64 vcc, 0", f"s_cselect_b32 s6, {s(sa+2)}, 0"]
        if not SEQ: chk += [f"s_cmp_lt_u32 {s(sPart)}, 4", "s_cselect_b32 s6, 0, s6"]
        chk += ["s_mov_b32 s7, 0x20000", f"s_add_u32 s25, {s(sCt)}, {6 if SEQ else 4}", "s_lshl_b32 s25, s25, 14", f"s_add_u32 s25, s25, {s(P.sBoff)}"]
        n_pf = opt["hpf"]
        items = []
        for n in range(n_pf):
            kk, rb = divmod(n, 4)
            pre = chk if n == 0 else ([f"s_add_u32 s25, s25, 65536"] if rb == 0 else [])
            items.append((pre, f"buffer_load_dwordx4 {v(PFV,4)}, v3, s[4:7], s25 offen offset:{rb*1024}{SC}", ("X", 0), []))
        per = [60, 61, 62]
        k_ = (n_pf + 2) // 3
        for a_, p_ in enumerate(per): G.extra_vm[p_] = list(G.extra_vm.get(p_, [])) + items[a_*k_:(a_+1)*k_]
        G.fill_periods = {60, 61, 62}
    grp = lambda ops: [pre + (["s_nop 0"] if pre else []) + [ins] for pre, ins in ops]
    def spin(load, test, lab):
        A.e("s_mov_b32 s15, 0")
        A.label(f"{name}_{lab}")
        A.e(load)
        A.e("s_waitcnt vmcnt(0)")
        for x in test: A.e(x)
        A.e("s_add_u32 s15, s15, 1")
        A.e(f"s_cmp_ge_u32 s15, {SPIN_LIMIT}"); A.e(f"s_cbranch_scc1 {name}_{lab}_ok")
        A.e("s_sleep 2")
        A.e(f"s_branch {name}_{lab}")
    def tail_roles_code():
        G.emit_all(A, name, final=False)
        def ostore_ops(sxs):
            return [([f"s_add_u32 s25, s24, {sx*16384}"],
                     f"buffer_store_dwordx4 {v(P.OS + 4*(4*sx+qb),4)}, v3, s[16:19], s25 offen offset:{qb*1024}{SC}") for sx in sxs for qb in attn.ORDER]
        def ostore(sx, qb, d):
            if sx < 2:
                A.e(f"s_add_u32 s25, s24, {sx*16384}")
                A.e(f"buffer_store_dwordx4 {v(d,4)}, v3, s[16:19], s25 offen offset:{qb*1024}{SC}")
        flagA = f"buffer_store_dword v{ONE}, off, s[16:19], {s(sOF)}{SC}"
        flagB = f"buffer_store_dword v{ONE}, off, s[16:19], s23{SC}"
        A.e(f"s_add_u32 s23, {s(sOF)}, 32768"); A.e(f"s_add_u32 s22, {s(sPoll)}, 32768")
        o2 = [(p, i, ("O", 2)) for p, i in ostore_ops((2, 3))]
        def emit(L_):
            for x in L_.out:
                if x.endswith(":"): A.label(x[:-1])
                else: A.e(x)
        def issue(ops):
            for g_ in grp(ops):
                for x in g_: A.e(x)
        cst = (lambda L_: stamp(L_)) if opt.get("cstamp") else None
        def raise_flag(ins, key):
            def f(L_, q):
                assert key in L_.vm and not [x_ for x_ in q if x_[2] == key]
                L_.need_vm(key); L_.vm_op(ins, ("F", 0))
            return f
        A.e(f"s_cmp_lt_u32 {s(sPart)}, 4"); A.e(f"s_cbranch_scc1 {name}_role_s")
        n0 = nst[0]
        def gate_h(A_):
            if not opt.get("hpf"): A_.e("s_waitcnt vmcnt(9)")
            A_.e(f"v_cmp_ne_u32 vcc, 1, {v(P.FL)}")
            A_.e("s_nop 0")
            A_.e(f"s_cbranch_vccnz {name}_slowh")
            A_.label(f"{name}_h_ok")
        pv_fill = []
        for k in range(4): pv_fill += grp(P.bload(k, "d"))
        G.final_pv(A, pv_fill, gate_h)
        stamp()
        A.e("s_barrier")
        issue(P.dma(1, "d"))
        G.epilogue_pack(A, P.OS, P.AF, 4, [], ostore)
        A.e("s_waitcnt vmcnt(33)")
        stamp()
        L = Lin()
        L.vm = [("B", k) for k in range(4) for _ in range(4)] + [("W", 1)] * 9 + [("O", 1)] * 8
        q = P.addb(4, "d") + P.addb(5, "d") + P.addw(2, "d") + P.addb(6, "d") + P.addb(7, "d") + P.addw(3, "d")
        def first_half_done(L_, q_):
            L_.need_vm(("O", 1)); L_.vm_op(flagA, ("F", 0))
            last = max([i_ for i_, x_ in enumerate(q_) if x_[2][0] == "B"], default=-1)
            q_[last + 1:last + 1] = o2
        P.main(L, "d", q, {opt.get("kA", 4): first_half_done, opt.get("kBd", 10): raise_flag(flagB, ("O", 2))}, stamp=cst)
        L.e("s_nop 7")
        emit(L)
        A.e(f"s_branch {name}_join")
        n1 = nst[0]; nst[0] = n0
        A.label(f"{name}_role_s")
        G.final_pv(A)
        stamp()
        A.e("s_barrier")
        issue(P.dma(1, "s")); issue(P.dma(2, "s"))
        G.epilogue_pack(A, P.OS, P.AF, 4, [], ostore)
        A.e("s_waitcnt vmcnt(0)")
        A.e(flagA)
        A.e("s_mov_b32 s15, 0")
        A.label(f"{name}_pollo")
        A.e(f"buffer_load_dword {v(P.FL)}, {vlane}, s[16:19], {s(sPoll)} offen{SC}")
        A.e("s_waitcnt vmcnt(0)")
        A.e(f"v_cmp_ne_u32 vcc, 1, {v(P.FL)}")
        A.e("s_nop 0")
        A.e(f"s_cbranch_vccz {name}_pollo_ok")
        A.e("s_add_u32 s15, s15, 1")
        A.e(f"s_cmp_ge_u32 s15, {SPIN_LIMIT}"); A.e(f"s_cbranch_scc1 {name}_pollo_ok")
        A.e(f"s_sleep {opt.get('osleep', 1)}")
        A.e(f"s_branch {name}_pollo")
        A.label(f"{name}_pollo_ok")
        stamp()
        L = Lin()
        for k in range(4):
            for pre, ins in P.bload(k, "s"):
                for x in pre: L.e(x)
                L.vm_op(ins, ("B", k))
        q = P.addb(4, "s") + P.addb(5, "s") + P.addb(6, "s") + P.addb(7, "s") + o2 + P.addw(3, "s")
        kL, kC = opt.get("kL", 9), opt.get("kC", 11)
        def load_b(L_, q_): q_.insert(0, ([], f"buffer_load_dword {v(P.FL)}, {vlane}, s[16:19], s22 offen{SC}", ("FL", 0)))
        def check_b(L_, q_):
            L_.need_vm(("FL", 0))
            L_.e(f"v_cmp_ne_u32 vcc, 1, {v(P.FL)}")
            L_.e("s_nop 0")
            L_.e(f"s_cbranch_vccnz {name}_slowo")
            L_.e(f"{name}_o_ok:")
        P.main(L, "s", q, {opt.get("kBs", 7): raise_flag(flagB, ("O", 2))}, {kL: load_b, kC: check_b}, 16, kC, stamp=cst)
        L.e("s_nop 7")
        emit(L)
        if opt.get("cstamp"):
            assert nst[0] == n1 - 1
            stamp()
        nst[0] = max(nst[0], n1)
        A.label(f"{name}_join")
        stamp()
        L = Lin()
        L.e("s_waitcnt vmcnt(20) lgkmcnt(0)")
        P.store_partials(L)
        emit(L)
        nerr = 0
    def tail_seq_code():
        def gate_h(A_):
            A_.e("s_waitcnt vmcnt(9)")
            A_.e(f"v_cmp_ne_u32 vcc, 1, {v(P.FL)}")
            A_.e("s_nop 0")
            A_.e(f"s_cbranch_vccnz {name}_slowh")
            A_.label(f"{name}_h_ok")
        pv_fill = []
        for k in range(4): pv_fill += grp(P.bload(k))
        G.emit_all(A, name, pv_fill, gate_h)
        stamp()
        A.e("s_barrier")
        fill = grp(P.dma(1, "s12")) + grp(P.bload(4)) + grp(P.bload(5)) + grp(P.dma(2, "s12"))
        nfill = len(fill)
        fill = [sum(fill[i:i + 2], []) for i in range(0, len(fill), 2)]
        G.epilogue_pack(A, P.OS, P.AF, 4, fill)
        A.e(f"s_waitcnt vmcnt({16 + nfill})")
        for sx in range(4):
            A.e(f"s_add_u32 s25, s24, {sx*16384}")
            for qb in range(4):
                A.e(f"buffer_store_dwordx4 {v(P.OS + 4*(4*sx+qb),4)}, v3, s[16:19], s25 offen offset:{qb*1024}{SC}")
        stamp()
        L = Lin()
        L.vm = [("B", k) for k in range(4) for _ in range(4)] + [("W", 1)] * 9 + [("B", 4)] * 8 + [("B", 5)] * 4 + [("W", 2)] * 9 + [("O", 0)] * 16
        assert len(L.vm) == 16 + nfill + 16
        def flagcheck(L_):
            L_.e(f"v_cmp_ne_u32 vcc, 1, {v(P.FL)}")
            L_.e("s_nop 0")
            L_.e(f"s_cbranch_vccnz {name}_slowo")
            L_.e(f"{name}_o_ok:")
        hooks = dict(oflag=[f"buffer_store_dword v{ONE}, off, s[16:19], {s(sOF)}{SC}"],
                     flagload=f"buffer_load_dword {v(P.FL)}, {vlane}, s[16:19], s23 offen{SC}", flagcheck=flagcheck,
                     stamp=(lambda L_: stamp(L_)) if opt.get("cstamp") else None)
        A.e(f"s_add_u32 s23, {s(sPoll)}, 32768")
        P.main(L, hooks, "s12")
        L.e("s_nop 7")
        if stamps: stamp(L)
        L.e("s_waitcnt vmcnt(24)"); L.vm = L.vm[-24:]
        P.final_partials(L)
        for x in L.out:
            if x.endswith(":"): A.label(x[:-1])
            else: A.e(x)
    (tail_seq_code if SEQ else tail_roles_code)()
    nerr = 0
    def poll(base, lab, last):
        A.e(f"v_min_u32 v4, {last}, v2"); A.e("v_lshlrev_b32 v4, 2, v4")
        A.e("s_mov_b32 s15, 0")
        A.label(f"{name}_{lab}")
        A.e(f"buffer_load_dword v5, v4, s[16:19], {base} offen{SC}")
        A.e("s_waitcnt vmcnt(0)")
        A.e("v_cmp_ne_u32 vcc, 1, v5")
        A.e(f"s_cbranch_vccz {name}_{lab}_ok")
        A.e("s_add_u32 s15, s15, 1")
        A.e(f"s_cmp_ge_u32 s15, {SPIN_LIMIT}"); A.e(f"s_cbranch_scc1 {name}_{lab}_ok")
        A.e(f"s_sleep {opt.get('dsleep', 2)}")
        A.e(f"s_branch {name}_{lab}")
        A.label(f"{name}_{lab}_ok")
    A.e(f"s_lshl_b32 s78, s14, 4"); A.e(f"s_lshl_b32 s79, {s(sPart)}, 1"); A.e("s_add_u32 s78, s78, s79")
    A.e("s_lshr_b32 s79, s12, 1"); A.e("s_add_u32 s80, s78, s79")
    A.e("s_and_b32 s79, s12, 1"); A.e("s_add_u32 s81, s78, s79")
    A.e("s_lshl_b32 s82, s79, 1")
    A.e("v_and_b32 v4, 15, v2"); A.e("v_lshrrev_b32 v5, 4, v2")
    A.e("v_mul_u32_u24 v4, 1152, v4"); A.e("v_lshl_add_u32 v4, v5, 3, v4")
    A.e(f"s_mul_i32 s74, {s(sCt)}, 288")
    A.e(f"s_mul_i32 s75, s80, {16*1152}"); A.e("s_add_u32 s75, s75, s74"); A.e("s_lshl_b32 s76, s82, 6"); A.e("s_add_u32 s75, s75, s76")
    A.e(f"s_mul_i32 s76, s81, {16*1152}"); A.e("s_add_u32 s76, s76, s74"); A.e("s_add_u32 s76, s76, 256")
    A.e(f"s_mov_b32 s60, {s(sX)}"); A.e(f"s_mov_b32 s61, {s(sX+1)}"); A.e(f"s_mov_b32 s62, {2048*1152}"); A.e("s_mov_b32 s63, 0x20000")
    A.e(f"s_mov_b32 s64, {s(sOut)}"); A.e(f"s_mov_b32 s65, {s(sOut+1)}"); A.e(f"s_mov_b32 s66, {2048*1152}"); A.e("s_mov_b32 s67, 0x20000")
    XR = 220
    for k in range(4): A.e(f"buffer_load_dwordx2 {v(XR+2*k,2)}, v4, s[60:63], s75 offen offset:{32*k}")
    A.e(f"buffer_load_dwordx2 {v(XR+8,2)}, v4, s[60:63], s76 offen")
    A.e("s_waitcnt vmcnt(5)")
    A.e(f"buffer_store_dword v{ONE}, off, s[16:19], {s(sPF)}{SC}")
    A.e("v_mov_b32 v6, v4")
    A.e(f"s_lshl_b32 s77, {s(sI)}, 2"); A.e(f"s_lshr_b32 s79, {s(sPart)}, 1"); A.e("s_add_u32 s77, s77, s79")
    A.e("s_lshl_b32 s77, s77, 7"); A.e(f"s_add_u32 s77, s77, {FLAG_OFF + PFO}")
    poll("s77", "polld", 7)
    stamp()
    A.e(f"s_lshl_b32 s78, s80, 2"); A.e(f"s_add_u32 s78, s78, {s(sCt)}"); A.e(f"s_mul_i32 s78, s78, {PART_UNIT}")
    A.e(f"s_add_u32 s78, s78, {PART_OFF}"); A.e("s_lshl_b32 s79, s82, 10"); A.e("s_add_u32 s78, s78, s79")
    A.e(f"s_lshl_b32 s79, s81, 2"); A.e(f"s_add_u32 s79, s79, {s(sCt)}"); A.e(f"s_mul_i32 s79, s79, {PART_UNIT}")
    A.e(f"s_add_u32 s79, s79, {PART_OFF + NPART*4096}")
    A.e("v_lshlrev_b32 v7, 3, v2")
    PA_, PB_, PS_ = 8, 72, 136
    for p in range(NPART):
        A.e(f"buffer_load_dwordx4 {v(PA_+4*p,4)}, v3, s[16:19], s78 offen{SC}")
        A.e(f"buffer_load_dwordx4 {v(PB_+4*p,4)}, v3, s[16:19], s78 offen offset:1024{SC}")
        if p < NPART - 1: A.e("s_add_u32 s78, s78, 4096")
    for p in range(NPART):
        if p == 8: A.e("s_add_u32 s79, s79, 4096")
        A.e(f"buffer_load_dwordx2 {v(PS_+2*p,2)}, v7, s[16:19], s79 offen offset:{(p%8)*512}{SC}")
    A.e(f"s_mov_b32 s23, {hex(f32(-1.4426950408889634))}")
    def unpack_sum(dst, srcs, nreg, t, waits=None):
        for n, sr in enumerate(srcs):
            if waits: A.e(f"s_waitcnt vmcnt({waits[n]})")
            for j in range(nreg):
                lo, hi = v(dst + 2 * j), v(dst + 2 * j + 1)
                if n == 0:
                    A.e(f"v_lshlrev_b32 {lo}, 16, {v(sr+j)}"); A.e(f"v_and_b32 {hi}, 0xffff0000, {v(sr+j)}")
                else:
                    A.e(f"v_lshlrev_b32 {v(t)}, 16, {v(sr+j)}"); A.e(f"v_and_b32 {v(t+1)}, 0xffff0000, {v(sr+j)}")
                    A.e(f"v_pk_add_f32 {v(dst+2*j,2)}, {v(dst+2*j,2)}, {v(t,2)}")
    S0, D0, T0 = 170, 190, 210
    tot = 2 * NPART + NPART
    for half, dst in ((0, S0), (1, D0)):
        for p in range(NPART // 2):
            pp = NPART // 2 * half + p
            A.e(f"s_waitcnt vmcnt({tot - 2*(pp+1)})")
            for q, base in ((0, PA_), (1, PB_)):
                for j in range(4):
                    sr = base + 4 * pp + j
                    d2 = dst + 8 * q + 2 * j
                    if p == 0:
                        A.e(f"v_lshlrev_b32 {v(d2)}, 16, {v(sr)}"); A.e(f"v_and_b32 {v(d2+1)}, 0xffff0000, {v(sr)}")
                    else:
                        tt = 216 + 2 * (j & 1)
                        A.e(f"v_lshlrev_b32 {v(tt)}, 16, {v(sr)}"); A.e(f"v_and_b32 {v(tt+1)}, 0xffff0000, {v(sr)}")
                        A.e(f"v_pk_add_f32 {v(d2,2)}, {v(d2,2)}, {v(tt,2)}")
    for q in range(4):
        k2.final_math(A, S0 + 4 * q, D0 + 4 * q, XR + 2 * q, T0, "s23")
        A.e(f"buffer_store_dwordx2 {v(XR+2*q,2)}, v6, s[64:67], s75 offen offset:{32*q}{opt.get('outmod','')}")
    A.e("s_waitcnt vmcnt(4)")
    unpack_sum(S0 + 16, [PS_ + 2 * p for p in range(NPART // 2)], 2, 216)
    unpack_sum(D0 + 16, [PS_ + NPART + 2 * p for p in range(NPART // 2)], 2, 216)
    k2.final_math(A, S0 + 16, D0 + 16, XR + 8, T0, "s23")
    A.e(f"buffer_store_dwordx2 {v(XR+8,2)}, v6, s[64:67], s76 offen{opt.get('outmod','')}")
    if stamps or opt.get("span"):
        A.e("s_waitcnt vmcnt(0)")
        stamp()
        A.e("s_memrealtime s[94:95]"); A.e("s_waitcnt lgkmcnt(0)")
        A.e("s_sub_u32 s94, s94, s92")
        A.e(f"v_writelane_b32 v253, s94, 30"); A.e("v_writelane_b32 v253, s92, 31")
        A.e("s_lshl_b32 s21, s2, 2"); A.e("s_add_u32 s21, s21, s12"); A.e("s_lshl_b32 s21, s21, 8")
        A.e(f"s_add_u32 s21, s21, {STAMP_OFF}")
        A.e("v_lshlrev_b32 v1, 2, v2")
        A.e("buffer_store_dword v253, v1, s[16:19], s21 offen")
        if opt.get("dbgout"):
            A.e("s_cmp_eq_u32 s2, 0"); A.e(f"s_cbranch_scc0 {name}_nodbg")
            A.e("s_cmp_eq_u32 s12, 0"); A.e(f"s_cbranch_scc0 {name}_nodbg")
            lanes = [30, 1, 2, 3, 5, 6, 8, 9, 10, 11, 30, 30, 30, 30]
            words = [1, 2, 3, 4, 5, 6, 7, 9, 10, 11]
            A.e("s_mov_b64 exec, 1")
            for ln_, wd in zip(lanes, words):
                A.e(f"v_readlane_b32 s25, v253, {ln_}")
                A.e("s_nop 3")
                A.e("v_mov_b32 v4, s25")
                A.e(f"buffer_store_dword v4, off, {s(sDbg,4)}, 0 offset:{wd*4}")
            A.e("s_mov_b64 exec, -1")
            A.label(f"{name}_nodbg")
    A.e("s_endpgm")
    A.label(f"{name}_slowh")
    spin(f"buffer_load_dword {v(P.FL)}, {vlane}, s[16:19], {s(sPoll)} offen{SC}",
         [f"v_cmp_ne_u32 vcc, 1, {v(P.FL)}", "s_nop 0", f"s_cbranch_vccz {name}_slowh2_ok"], "slowh2")
    A.label(f"{name}_slowh2_ok")
    A.e(f"s_branch {name}_h_ok")
    if True:
        A.label(f"{name}_slowo")
        spin(f"buffer_load_dword {v(P.FL)}, {vlane}, s[16:19], {'s23' if SEQ else 's22'} offen{SC}",
             [f"v_cmp_ne_u32 vcc, 1, {v(P.FL)}", "s_nop 0", f"s_cbranch_vccz {name}_slowo2_ok"], "slowo2")
        A.label(f"{name}_slowo2_ok")
        A.e(f"s_branch {name}_o_ok")
    G.emit_rare(A)
    A.label(f"{name}_end")
    A.e("s_endpgm")
    A(kernel_desc(name, 512, 102, 256))
    errs = checker.check([l for l in A.lines if not l.startswith(";")], name)
    errs = [e for e in errs if not ("buffer_load_dwordx4 v[240:243]" in e.split("<-")[0] or "global_load_dwordx4 v[240:243]" in e.split("<-")[0]
                                    or "buffer_load_dwordx4 v[4:7]" in e.split("<-")[0])]
    for e in errs[:opt.get("nerr", 10)]: print(e[:200])
    print(name, "lines", len(A.lines), "hazard errors", len(errs), nerr)
    return A
```

```python
from asmgen import *
from layout import *
import struct
def f32(x): return struct.unpack("<I", struct.pack("<f", x))[0]

MF = "v_mfma_f32_16x16x32_bf16"
STAGE = 53248
BLK_U = 18432
BLK_Q = 36864
NKS = 18

class RegsA:
    def __init__(R):
        R.QA = 0
        R.GA = 128
        n = 8
        R.U = n; n += 144
        R.GV = n; n += 16
        R.B = n; n += 48
        R.A = n; n += 16
        R.DG = n; n += 4
        R.DX = n; n += 1
        R.DQ = n; n += 4
        R.LG = n; n += 1; R.GA_ADDR = n; n += 1
        R.LQ = n; n += 1; R.QA_ADDR = n; n += 1
        R.QT = n; n += 2
        R.vend = n
        R.sG = 60; R.sU = 64; R.sX = 68; R.sQ = 72
        R.sWS = 16
        R.sM0G = 76; R.sM0X = 77; R.sM0Q = 78
        R.sXoff = 79
        R.sT = 80; R.sT2 = 81; R.sHoff = 82; R.sH8 = 83
    def g(R, t, rb, r=None):
        if t < 8:
            b = R.GA + (t * 4 + rb) * 4
            return a(b, 4) if r is None else a(b + r)
        b = R.GV + rb * 4
        return v(b, 4) if r is None else v(b + r)
    def u(R, t, rb, r=None):
        b = R.U + (t * 4 + rb) * 4
        return v(b, 4) if r is None else v(b + r)
    def qa(R, dt, rb, r=None):
        b = R.QA + (dt * 4 + rb) * 4
        return a(b, 4) if r is None else a(b + r)
    def b(R, ks, rb): return v(R.B + (ks % 3) * 16 + rb * 4, 4)
    def af(R, gi, h=None):
        b = R.A + (gi % 4) * 4
        return v(b, 4) if h is None else v(b + 2 * h, 2)

TILES = [x for t in range(9) for x in (("G", t), ("U", t))] + [("Q", dt) for dt in range(8)]
NT = len(TILES)

class Lin:
    def __init__(L):
        L.out = []; L.ds = []; L.vm = []
    def e(L, t): L.out.append(t)
    def ds_op(L, t, key): L.out.append(t); L.ds.append(key)
    def vm_op(L, t, key): L.out.append(t); L.vm.append(key)
    def need_ds(L, key):
        if key in L.ds:
            last = max(i for i, x in enumerate(L.ds) if x == key)
            cnt = len(L.ds) - 1 - last
            assert cnt <= 15
            L.out.append(f"s_waitcnt lgkmcnt({cnt})")
            L.ds = L.ds[last + 1:]
    def need_vm(L, key):
        if key in L.vm:
            last = max(i for i, x in enumerate(L.vm) if x == key)
            cnt = len(L.vm) - 1 - last
            assert cnt <= 63, cnt
            L.out.append(f"s_waitcnt vmcnt({cnt})")
            L.vm = L.vm[last + 1:]

class PhaseA:
    def __init__(G, R, vm_period=2):
        G.R = R; G.vm_period = vm_period; G.stmod = ''; G.dist = 3; G.ldmod = ''; G.xmod = ''; G.noq = False; G.late_bar = False

    def setup(G, A, lane, wave, head, rt, ptr):
        R = G.R
        t = [v(R.B + i) for i in range(12)]
        for srd, nm, size in ((R.sG, "Wg", 576 * 9216), (R.sU, "Wu", 576 * 9216), (R.sQ, "wq", 576 * 8192)):
            p = ptr(nm)
            A.e(f"s_mov_b32 {s(srd)}, {s(p)}"); A.e(f"s_mov_b32 {s(srd+1)}, {s(p+1)}")
            A.e(f"s_mov_b32 {s(srd+2)}, {size}"); A.e(f"s_mov_b32 {s(srd+3)}, 0x20000")
        A.e(f"s_cmp_lt_u32 {wave}, 2")
        A.e(f"s_cselect_b32 {s(R.sX)}, {s(R.sG)}, {s(R.sU)}")
        A.e(f"s_cselect_b32 {s(R.sX+1)}, {s(R.sG+1)}, {s(R.sU+1)}")
        A.e(f"s_mov_b32 {s(R.sX+2)}, {576*9216}"); A.e(f"s_mov_b32 {s(R.sX+3)}, 0x20000")
        A.e(f"s_lshl_b32 {s(R.sM0G)}, {wave}, 12")
        A.e(f"s_and_b32 {s(R.sT)}, {wave}, 1"); A.e(f"s_add_u32 {s(R.sT)}, {s(R.sT)}, 16"); A.e(f"s_lshl_b32 {s(R.sM0X)}, {s(R.sT)}, 10")
        A.e(f"s_cmp_lt_u32 {wave}, 2")
        A.e(f"s_cselect_b32 {s(R.sT2)}, 0, {BLK_U}")
        A.e(f"s_add_u32 {s(R.sM0X)}, {s(R.sM0X)}, {s(R.sT2)}")
        A.e(f"s_lshl_b32 {s(R.sM0Q)}, {wave}, 12"); A.e(f"s_add_u32 {s(R.sM0Q)}, {s(R.sM0Q)}, {BLK_Q}")
        A.e(f"s_mul_i32 {s(R.sT2)}, {head}, 288")
        A.e(f"s_and_b32 s87, {head}, 1"); A.e("s_lshl_b32 s87, s87, 1")
        def gu(dst, idx_s, idx_c, comp):
            A.e(f"s_lshl_b32 s84, {idx_s}, 6")
            A.e(f"v_add_u32 {t[0]}, s84, {lane}")
            if idx_c: A.e(f"v_add_u32 {t[0]}, {64*idx_c}, {t[0]}")
            A.e(f"v_mul_u32_u24 {t[1]}, 3641, {t[0]}")
            A.e(f"v_lshrrev_b32 {t[1]}, 16, {t[1]}")
            A.e(f"v_mul_u32_u24 {t[2]}, 18, {t[1]}")
            A.e(f"v_sub_u32 {t[2]}, {t[0]}, {t[2]}")
            A.e(f"v_add_u32 {t[2]}, s87, {t[2]}")
            A.e(f"v_subrev_u32 {t[5]}, 18, {t[2]}")
            A.e(f"v_min_u32 {t[2]}, {t[2]}, {t[5]}")
            A.e(f"v_mul_u32_u24 {t[1]}, 9216, {t[1]}")
            A.e(f"v_lshl_add_u32 {t[1]}, {t[2]}, 4, {t[1]}")
            A.e(f"v_add_u32 {dst}, {s(R.sT2)}, {t[1]}")
            if comp: A.e(f"v_subrev_u32 {dst}, {comp}, {dst}")
        A.e(f"s_lshl_b32 s85, {wave}, 2")
        for n in range(4): gu(v(R.DG + n), "s85", n, n * 1024)
        gu(v(R.DX), s(R.sT), 0, 0)
        m, g = t[3], t[4]
        A.e(f"v_and_b32 {m}, 15, {lane}"); A.e(f"v_lshrrev_b32 {g}, 4, {lane}")
        A.e(f"s_lshl_b32 s84, {wave}, 4")
        A.e(f"s_lshl_b32 s85, {head}, 8")
        for n in range(4):
            A.e(f"v_add_u32 {t[0]}, {4*n}, {g}")
            A.e(f"v_and_b32 {t[1]}, 7, {t[0]}")
            A.e(f"v_lshlrev_b32 {t[1]}, 1, {t[1]}")
            A.e(f"v_xor_b32 {t[1]}, {t[1]}, {m}")
            A.e(f"v_add_u32 {t[0]}, s84, {t[0]}")
            A.e(f"v_lshlrev_b32 {t[0]}, 13, {t[0]}")
            A.e(f"v_lshl_add_u32 {t[0]}, {t[1]}, 4, {t[0]}")
            A.e(f"v_add_u32 {v(R.DQ+n)}, s85, {t[0]}")
            if n: A.e(f"v_subrev_u32 {v(R.DQ+n)}, {n*1024}, {v(R.DQ+n)}")
        A.e(f"v_lshrrev_b32 {t[0]}, 2, {m}")
        A.e(f"v_lshl_add_u32 {t[0]}, {g}, 2, {t[0]}")
        A.e(f"v_mul_u32_u24 {t[1]}, 288, {t[0]}")
        A.e(f"v_and_b32 {t[2]}, 3, {m}")
        A.e(f"v_lshl_add_u32 {v(R.LG)}, {t[2]}, 3, {t[1]}")
        A.e(f"v_lshlrev_b32 {t[1]}, 8, {t[0]}")
        A.e(f"v_and_b32 {t[2]}, 7, {t[0]}")
        A.e(f"v_lshl_add_u32 {t[1]}, {t[2]}, 5, {t[1]}")
        A.e(f"v_bfe_u32 {t[2]}, {m}, 1, 1")
        A.e(f"v_lshl_add_u32 {t[1]}, {t[2]}, 4, {t[1]}")
        A.e(f"v_and_b32 {t[2]}, 1, {m}")
        A.e(f"v_lshl_add_u32 {t[1]}, {t[2]}, 3, {t[1]}")
        A.e(f"v_add_u32 {v(R.LQ)}, {BLK_Q}, {t[1]}")
        A.e(f"s_lshl_b32 {s(R.sXoff)}, {rt}, 2"); A.e(f"s_add_u32 {s(R.sXoff)}, {s(R.sXoff)}, {wave}")
        A.e(f"s_mul_i32 {s(R.sXoff)}, {s(R.sXoff)}, {18*4096}")
        if XN_OFF: A.e(f"s_add_u32 {s(R.sXoff)}, {s(R.sXoff)}, {XN_OFF}")
        A.e(f"s_mul_i32 s84, {rt}, 144")
        A.e(f"s_lshr_b32 s85, {head}, 1"); A.e("s_mul_i32 s85, s85, 9"); A.e("s_add_u32 s84, s84, s85")
        A.e("s_lshl_b32 s84, s84, 14")
        A.e(f"s_lshl_b32 s85, {wave}, 12"); A.e("s_add_u32 s84, s84, s85")
        A.e(f"s_add_u32 s84, s84, {H_OFF}")
        A.e(f"s_and_b32 s85, {head}, 1")
        A.e(f"s_mul_i32 {s(R.sT)}, s85, {5*16384}"); A.e(f"s_add_u32 {s(R.sHoff)}, s84, {s(R.sT)}")
        A.e(f"s_lshl_b32 {s(R.sT)}, s85, 9"); A.e(f"s_add_u32 {s(R.sH8)}, s84, {s(R.sT)}"); A.e(f"s_add_u32 {s(R.sH8)}, {s(R.sH8)}, {4*16384}")

    def dma_ops(G, st):
        R = G.R; slot = (st % 3) * STAGE
        so_g = st * 64 * 9216; so_q = st * 64 * 8192
        ops = []
        for n in range(4):
            pre = [f"s_add_u32 m0, {s(R.sM0G)}, {slot}", f"s_mov_b32 {s(R.sT)}, {so_g}"] if n == 0 else []
            ops.append((pre, f"buffer_load_dwordx4 {v(R.DG+n)}, {s(R.sG,4)}, {s(R.sT)} offen offset:{n*1024}{G.ldmod} lds"))
        for n in range(4):
            pre = [f"s_add_u32 m0, {s(R.sM0G)}, {slot + BLK_U}"] if n == 0 else []
            ops.append((pre, f"buffer_load_dwordx4 {v(R.DG+n)}, {s(R.sU,4)}, {s(R.sT)} offen offset:{n*1024}{G.ldmod} lds"))
        ops.append(([f"s_add_u32 m0, {s(R.sM0X)}, {slot}"], f"buffer_load_dwordx4 {v(R.DX)}, {s(R.sX,4)}, {s(R.sT)} offen{G.ldmod} lds"))
        for n in range(4):
            pre = [f"s_add_u32 m0, {s(R.sM0Q)}, {slot}", f"s_mov_b32 {s(R.sT2)}, {so_q}"] if n == 0 else []
            ops.append((pre, f"buffer_load_dwordx4 {v(R.DQ+n)}, {s(R.sQ,4)}, {s(R.sT2)} offen offset:{n*1024}{G.ldmod} lds"))
        return ops

    def x_ops(G, ks, lane16):
        R = G.R
        return [([f"s_add_u32 s86, {s(R.sXoff)}, {ks*4096}"],
                 f"buffer_load_dwordx4 {R.b(ks,rb)}, {lane16}, {s(R.sWS,4)}, s86 offen offset:{rb*1024}{G.xmod}") for rb in range(4)]

    def read_ops(G, gi):
        R = G.R; ks, n = divmod(gi, NT); st, kk = divmod(ks, 2)
        kind, t = TILES[n]; pre = []
        if n == 0 and kk == 0:
            pre.append(f"v_add_u32 {v(R.GA_ADDR)}, {(st%3)*STAGE}, {v(R.LG)}")
            pre.append(f"v_add_u32 {v(R.QA_ADDR)}, {(st%3)*STAGE}, {v(R.LQ)}")
        if kind == "Q":
            tmp = v(R.QT + (t & 1))
            pre.append(f"v_xor_b32 {tmp}, {t*32}, {v(R.QA_ADDR)}")
            rd = [f"ds_read_b64_tr_b16 {R.af(gi,h)}, {tmp} offset:{kk*8192 + h*4096}" for h in range(2)]
        else:
            blk = 0 if kind == "G" else BLK_U
            rd = [f"ds_read_b64_tr_b16 {R.af(gi,h)}, {v(R.GA_ADDR)} offset:{blk + (32*kk + 16*h)*288 + 32*t}" for h in range(2)]
        return pre, rd

    def main(G, L, lane16, fused, stamp=None, extra=None, tail_ops=None):
        R = G.R
        def issue(ops, key):
            for pre, ins in ops:
                for x in pre: L.e(x)
                if pre: L.e("s_nop 0")
                L.vm_op(ins, key)
        for st in range(G.pre_w): issue(G.dma_ops(st), ("W", st))
        fused[0](L)
        L.vm = []
        for st in range(G.pre_w, G.pre_w + G.mid_w): issue(G.dma_ops(st), ("W", st))
        fused[1](L)
        L.vm = []
        issue(G.x_ops(0, lane16), ("X", 0))
        issue(G.x_ops(1, lane16), ("X", 1))
        late_w = [(p, i, ("W", st)) for st in range(G.pre_w + G.mid_w, 3) for p, i in G.dma_ops(st)]
        if stamp: stamp(L)
        L.need_vm(("X", 0))
        DIST = G.dist
        total = NKS * NT
        for gi in range(DIST):
            pre, rd = G.read_ops(gi)
            for x in pre: L.e(x)
            for x in rd: L.ds_op(x, ("A", gi))
        vmq = list(late_w); staged = None
        for ks in range(NKS):
            if stamp and ks > 0: stamp(L)
            if ks + 2 < NKS: vmq = [(p, i, ("X", ks + 2)) for p, i in G.x_ops(ks + 2, lane16)] + vmq
            if extra and ks in extra: vmq += extra[ks]
            for n in range(NT):
                gi = ks * NT + n
                nx = gi + DIST
                rd = None
                if nx < total:
                    pre, rd = G.read_ops(nx)
                    newstage = (nx % (2 * NT) == 0)
                kind, t = TILES[n]
                for rb in range(4):
                    if rb == 0:
                        L.need_ds(("A", gi))
                        if n == 0: L.need_vm(("X", ks))
                    acc = R.g(t, rb) if kind == "G" else (R.u(t, rb) if kind == "U" else R.qa(t, rb))
                    c = "0" if ks == 0 else acc
                    L.e(f"{MF} {acc}, {R.af(gi)}, {R.b(ks,rb)}, {c}")
                    if rd:
                        late = newstage and G.late_bar
                        if rb == (1 if late else 0):
                            if newstage:
                                ns = nx // (2 * NT)
                                L.need_vm(("W", ns))
                                L.e("s_waitcnt lgkmcnt(0)"); L.ds = []
                                L.e("s_barrier")
                                if ns + 2 <= 8: vmq += [(p, i, ("W", ns + 2)) for p, i in G.dma_ops(ns + 2)]
                                if ns == 8 and tail_ops: vmq += [(p, i, ("T", 0)) for p, i in tail_ops]
                            for x in pre: L.e(x)
                        if rb == (2 if late else 1): L.ds_op(rd[0], ("A", nx))
                        if rb == (3 if late else 2): L.ds_op(rd[1], ("A", nx))
                    if rb == 0 and staged is not None:
                        L.vm_op(*staged); staged = None
                    period = G.vm_period
                    if rb == 3 and vmq and (n >= 1 or vmq[0][2][0] != "X") and (n % period == period - 1 or ks >= NKS - 2 or ks < 2) and gi + 1 < total:
                        p, i, key = vmq.pop(0)
                        for x in p: L.e(x)
                        staged = (i, key)
            assert not [x for x in vmq if x[2][0] == "X" and x[2][1] <= ks + 1], ks
        assert not vmq and staged is None

    def h_unit(G, A, sx, rb, dst=None):
        R = G.R
        def hvals(t, d):
            x = R.DG
            for r in range(4):
                if t < 8:
                    A.e(f"v_accvgpr_read_b32 {v(x+r)}, {R.g(t,rb,r)}")
            for r in range(4):
                A.e(f"v_max_f32 {v(x+r)}, 0, {v(x+r) if t < 8 else R.g(t,rb,r)}")
            ub = R.U + (t * 4 + rb) * 4
            for r in (0, 2):
                A.e(f"v_pk_mul_f32 {v(ub+r,2)}, {v(x+r,2)}, {v(ub+r,2)}")
            A.e(f"v_cvt_pk_bf16_f32 {v(d)}, {R.u(t,rb,0)}, {R.u(t,rb,1)}")
            A.e(f"v_cvt_pk_bf16_f32 {v(d+1)}, {R.u(t,rb,2)}, {R.u(t,rb,3)}")
        d = dst if dst is not None else R.U + (2 * sx * 4 + rb) * 4
        hvals(2 * sx, d)
        if sx < 4: hvals(2 * sx + 1, d + 2)
        return d
    def h_store(G, A, sx, rb, d):
        R = G.R
        if sx < 4:
            A.e(f"s_add_u32 {s(R.sT)}, {s(R.sHoff)}, {sx*16384}")
            A.e(f"buffer_store_dwordx4 {v(d,4)}, v3, {s(R.sWS,4)}, {s(R.sT)} offen offset:{rb*1024}{G.stmod}")
        else:
            A.e(f"buffer_store_dwordx2 {v(d,2)}, v1, {s(R.sWS,4)}, {s(R.sH8)} offen offset:{rb*1024}{G.stmod}")

    def epilogue_q(G, A, qfrag, tmp):
        R = G.R
        c = f32(128 ** -0.5 * 1.4426950408889634)
        A.e(f"s_mov_b32 s86, {hex(c)}"); A.e(f"s_mov_b32 s87, {hex(c)}")
        for sx in range(4):
            for rb in range(4):
                b = tmp
                for h in range(2):
                    for r in range(4):
                        A.e(f"v_accvgpr_read_b32 {v(b+4*h+r)}, {R.qa(2*sx+h,rb,r)}")
                for j in range(0, 8, 2): A.e(f"v_pk_mul_f32 {v(b+j,2)}, {v(b+j,2)}, s[86:87]")
                for j in range(4): A.e(f"v_cvt_pk_bf16_f32 {v(b+8+j)}, {v(b+2*j)}, {v(b+2*j+1)}")
                b += 8
                A.e("s_nop 0")
                A.e(f"v_permlane32_swap_b32 {v(b)}, {v(b+2)}")
                A.e(f"v_permlane32_swap_b32 {v(b+1)}, {v(b+3)}")
                A.e("s_nop 0")
                A.e(f"v_permlane16_swap_b32 {v(b)}, {v(b+2)}")
                A.e(f"v_permlane16_swap_b32 {v(b+1)}, {v(b+3)}")
                for j in range(4): A.e(f"v_accvgpr_write_b32 {a(qfrag(rb,sx)+j)}, {v(b+j)}")
```

```python
from asmgen import *
from layout import *
from phasea import Lin, MF

SLOT = 4 * 9216
NSLOT = 4
NB = 8
NKJ = {"s": 32, "d": 36}

def korder(job, k):
    if job == "d": return k
    st, w = divmod(k, 4)
    return 8 * (st % 4) + 2 * (st // 4) + 4 * (w >> 1) + (w & 1)

class Tail:
    def __init__(G, opt=None):
        G.opt = opt or {}
        G.dist = G.opt.get("dist", 3)
        G.B = 8
        G.AF = 136
        G.OS = 152
        G.PK = 152
        G.DV = 219
        G.LA = 228; G.RA = 229
        G.FL = 230
        G.L8 = 232
        G.sW, G.sAct = 60, 64
        G.sWoff, G.sBoff, G.sM0, G.sP4, G.sP2 = 68, 69, 70, 71, 72
        G.sNk = 73
        G.sT = 74
        G.sWS = 16
    def acc(G, t, rb, r=None):
        b = (t * 4 + rb) * 4
        return a(b, 4) if r is None else a(b + r)
    def bf(G, k, rb): return v(G.B + (k % NB) * 16 + rb * 4, 4)
    def af(G, gi, h=None):
        b = G.AF + (gi % 4) * 4
        return v(b, 4) if h is None else v(b + 2 * h, 2)

    def setup(G, A, wave, part, ct, rt, pwo, pwd, pws):
        T = G.sT
        A.e(f"s_cmp_lt_u32 {part}, 4")
        A.e(f"s_cselect_b32 {s(G.sW)}, {s(pwo)}, {s(pwd)}"); A.e(f"s_cselect_b32 {s(G.sW+1)}, {s(pwo+1)}, {s(pwd+1)}")
        A.e(f"s_cselect_b32 {s(G.sNk)}, 32, 36")
        A.e(f"s_mov_b32 {s(T+1)}, 144"); A.e(f"s_cselect_b32 {s(T+1)}, 128, {s(T+1)}")
        A.e(f"s_mov_b32 {s(T+2)}, {G.opt.get('dsrc', H_OFF)}"); A.e(f"s_cselect_b32 {s(T+2)}, {G.opt.get('ssrc', O_OFF)}, {s(T+2)}")
        A.e(f"s_and_b32 {s(T+3)}, {part}, 3"); A.e(f"s_mul_i32 {s(T+3)}, {s(T+3)}, {s(G.sNk)}")
        A.e(f"s_mul_i32 {s(T)}, {s(T+3)}, {32*1152}")
        A.e(f"s_add_u32 {s(G.sW)}, {s(G.sW)}, {s(T)}"); A.e(f"s_addc_u32 {s(G.sW+1)}, {s(G.sW+1)}, 0")
        A.e(f"s_mul_i32 {s(G.sW+2)}, {s(G.sNk)}, {32*1152}"); A.e(f"s_mov_b32 {s(G.sW+3)}, 0x20000")
        A.e(f"s_mul_i32 {s(T)}, {rt}, {s(T+1)}"); A.e(f"s_add_u32 {s(T)}, {s(T)}, {s(T+3)}"); A.e(f"s_lshl_b32 {s(T)}, {s(T)}, 14")
        A.e(f"s_add_u32 {s(T)}, {s(T)}, {s(T+2)}")
        A.e(f"s_add_u32 {s(G.sAct)}, {s(pws)}, {s(T)}"); A.e(f"s_addc_u32 {s(G.sAct+1)}, {s(pws+1)}, 0")
        A.e(f"s_lshl_b32 {s(G.sAct+2)}, {s(G.sNk)}, 14"); A.e(f"s_mov_b32 {s(G.sAct+3)}, 0x20000")
        A.e(f"s_lshl_b32 {s(G.sBoff)}, {wave}, 12")
        A.e(f"s_lshr_b32 {s(T)}, {wave}, 1"); A.e(f"s_lshl_b32 {s(T)}, {s(T)}, 1"); A.e(f"s_add_u32 {s(T)}, {s(T)}, {wave}")
        A.e(f"s_cmp_lt_u32 {part}, 4"); A.e(f"s_cselect_b32 {s(T)}, {s(T)}, {wave}")
        A.e(f"s_mul_i32 {s(T)}, {s(T)}, {32*1152}")
        A.e(f"s_mul_i32 {s(G.sWoff)}, {ct}, 288"); A.e(f"s_add_u32 {s(G.sWoff)}, {s(G.sWoff)}, {s(T)}")
        for n in range(9):
            A.e(f"v_add_u32 v4, {64*n}, v2")
            A.e("v_mul_u32_u24 v5, 3641, v4"); A.e("v_lshrrev_b32 v5, 16, v5")
            A.e("v_mul_u32_u24 v6, 18, v5"); A.e("v_sub_u32 v6, v4, v6")
            A.e("v_mul_u32_u24 v5, 1152, v5")
            A.e(f"v_lshl_add_u32 {v(G.DV+n)}, v6, 4, v5")
            if n % 4: A.e(f"v_subrev_u32 {v(G.DV+n)}, {(n%4)*1024}, {v(G.DV+n)}")
        A.e(f"s_mul_i32 {s(G.sM0)}, {wave}, {9*1024}")
        A.e(f"v_lshlrev_b32 {v(G.L8)}, 3, v2")
        A.e("v_and_b32 v4, 15, v2"); A.e("v_lshrrev_b32 v5, 4, v2")
        A.e("v_lshrrev_b32 v6, 2, v4"); A.e("v_lshl_add_u32 v6, v5, 2, v6")
        A.e("v_mul_u32_u24 v6, 288, v6"); A.e("v_and_b32 v4, 3, v4")
        A.e(f"v_lshl_add_u32 {v(G.LA)}, v4, 3, v6")
        A.e(f"s_lshl_b32 {s(T)}, {rt}, 4"); A.e(f"s_lshl_b32 {s(T+1)}, {wave}, 2"); A.e(f"s_add_u32 {s(T)}, {s(T)}, {s(T+1)}")
        A.e(f"s_lshl_b32 {s(T)}, {s(T)}, 2"); A.e(f"s_add_u32 {s(T)}, {s(T)}, {ct}")
        A.e(f"s_mul_i32 {s(T)}, {s(T)}, {PART_UNIT}"); A.e(f"s_add_u32 {s(T)}, {s(T)}, {PART_OFF}")
        A.e(f"s_lshl_b32 {s(T+1)}, {part}, 12"); A.e(f"s_add_u32 {s(G.sP4)}, {s(T)}, {s(T+1)}")
        A.e(f"s_lshl_b32 {s(T+1)}, {part}, 9"); A.e(f"s_add_u32 {s(G.sP2)}, {s(T)}, {s(T+1)}"); A.e(f"s_add_u32 {s(G.sP2)}, {s(G.sP2)}, {NPART*4096}")

    def dma(G, st, job=None):
        k0 = korder(job, 4 * st) if st else 0
        ops = []
        for n in range(9):
            pre = [f"s_add_u32 s99, {s(G.sWoff)}, {k0*32*1152}"] if n == 0 else []
            if n % 4 == 0: pre.append(f"s_add_u32 m0, {s(G.sM0)}, {(st % NSLOT) * SLOT + (n//4)*4096}")
            ops.append((pre, f"buffer_load_dwordx4 {v(G.DV+n)}, {s(G.sW,4)}, s99 offen offset:{(n%4)*1024} lds"))
        return ops
    def bload(G, k, job):
        m = G.opt.get('bmod', ' sc1')
        pre = [f"s_add_u32 s100, {s(G.sBoff)}, {korder(job, k)*16384}"]
        if job == "d" and k % 9 == 4:
            return [(pre, f"buffer_load_dwordx2 {v(G.B + (k % NB) * 16 + rb * 4 + 2*h, 2)}, {v(G.L8)}, {s(G.sAct,4)}, s100 offen offset:{rb*1024 + h*512}{m}")
                    for rb in range(4) for h in range(2)]
        return [(pre, f"buffer_load_dwordx4 {G.bf(k,rb)}, v3, {s(G.sAct,4)}, s100 offen offset:{rb*1024}{m}") for rb in range(4)]
    def rd(G, gi):
        st, r = divmod(gi, 36); k, t = divmod(r, 9)
        return [f"ds_read_b64_tr_b16 {G.af(gi,h)}, {v(G.RA)} offset:{k*9216 + 16*h*288 + 32*t}" for h in range(2)]

    def store_partials(G, L):
        k = 0
        for rb in range(4):
            for pr in range(5):
                b = G.PK + (k % 8) * 8; k += 1
                n = 8 if pr < 4 else 4
                for j in range(n): L.e(f"v_accvgpr_read_b32 {v(b+j)}, {G.acc(2*pr + j//4, rb, j%4)}")
                for j in range(n // 2): L.e(f"v_cvt_pk_bf16_f32 {v(b+j)}, {v(b+2*j)}, {v(b+2*j+1)}")
                if pr < 4:
                    L.e(f"s_add_u32 s101, {s(G.sP4)}, {rb*4*PART_UNIT}")
                    L.vm_op(f"buffer_store_dwordx4 {v(b,4)}, v3, {s(G.sWS,4)}, s101 offen offset:{pr*1024} sc1", ("P", 0))
                else:
                    L.e(f"s_add_u32 s101, {s(G.sP2)}, {rb*4*PART_UNIT}")
                    L.vm_op(f"buffer_store_dwordx2 {v(b,2)}, v4, {s(G.sWS,4)}, s101 offen sc1", ("P", 0))

    def addb(G, k, job): return [(p, i, ("B", k)) for p, i in G.bload(k, job)]
    def addw(G, st, job): return [(p, i, ("W", st)) for p, i in G.dma(st, job)]

    def main(G, L, job, vmq, at_start=None, at_end=None, hold_from=None, release_at=None, stamp=None):
        NK = NKJ[job]; NST = NK // 4
        total = NK * 9
        at_start = at_start or {}; at_end = at_end or {}
        L.e(f"v_mov_b32 {v(G.RA)}, {v(G.LA)}")
        L.e("v_lshlrev_b32 v4, 3, v2")
        L.e("s_barrier")
        for gi in range(G.dist):
            for x in G.rd(gi): L.ds_op(x, ("A", gi))
        staged = None; held = []; released = hold_from is None
        for kg in range(NK):
            for t in range(9):
                gi = kg * 9 + t
                nx = gi + G.dist
                rd = G.rd(nx) if nx < total else None
                for rb in range(4):
                    if rb == 0:
                        L.need_ds(("A", gi))
                        if t == 0:
                            assert not [x for x in vmq + held if x[2] == ("B", kg)] and not (staged and staged[1] == ("B", kg)), (job, kg)
                            L.need_vm(("B", kg))
                            if kg in at_start: at_start[kg](L, vmq)
                    ac = G.acc(t, rb)
                    L.e(f"{MF} {ac}, {G.af(gi)}, {G.bf(kg,rb)}, {'0' if kg == 0 else ac}")
                    if rb == 0 and rd and nx % 36 == 0:
                        ns = nx // 36
                        assert not [x for x in vmq if x[2] == ("W", ns)] and not (staged and staged[1] == ("W", ns)), (job, ns)
                        L.need_vm(("W", ns))
                        L.e("s_waitcnt lgkmcnt(0)"); L.ds = []
                        L.e("s_barrier")
                        L.e(f"v_add_u32 {v(G.RA)}, {(ns % NSLOT) * SLOT}, {v(G.LA)}")
                        if 4 <= ns + 3 < NST: vmq += G.addw(ns + 3, job)
                        if stamp: stamp(L)
                    if rd and rb == 1: L.ds_op(rd[0], ("A", nx))
                    if rd and rb == 2: L.ds_op(rd[1], ("A", nx))
                    if rb == 3 and t == 8:
                        if kg + NB < NK:
                            if not released and kg + NB >= hold_from: held += G.addb(kg + NB, job)
                            else: vmq[:0] = G.addb(kg + NB, job)
                        if kg in at_end: at_end[kg](L, vmq)
                        if not released and kg == release_at:
                            released = True; vmq[:0] = held; held = []
                    if rb == 0 and staged is not None:
                        L.vm_op(*staged); staged = None
                    if rb == 3 and vmq and len(L.vm) < 60:
                        p, i, key = vmq.pop(0)
                        for x in p: L.e(x)
                        staged = (i, key)
        assert staged is None and not held
        assert not vmq, vmq
```

```python
from asmgen import *
from layout import *
from phasea import Lin, MF

SLOT = 4 * 9216
NSLOT = 4
NB = 8
ND, NS = 18, 16
NK = ND + NS
NST = (NK + 3) // 4

class Tail:
    def __init__(G, opt=None):
        G.opt = opt or {}
        G.dist = G.opt.get("dist", 3)
        G.B = 8
        G.AF = 136
        G.OS = 152
        G.ACCV = 152
        G.PK = 184
        G.DV = 219
        G.LA = 228; G.RA = 229
        G.FL = 230
        G.L8 = 232
        G.sWd, G.sWo, G.sH, G.sO = 60, 64, 68, 72
        G.sWoff, G.sBoff, G.sM0, G.sP4, G.sP2 = 76, 77, 78, 79, 80
        G.sT = 99
        G.sWc = 84
        G.sWS = 16
    def acc(G, job, t, rb, r=None):
        n = t * 4 + rb
        if job == 0: f, b = a, n * 4
        elif n < 28: f, b = a, 144 + n * 4
        else: f, b = v, G.ACCV + (n - 28) * 4
        return f(b, 4) if r is None else f(b + r)
    def acc_in_vgpr(G, job, t, rb): return job == 1 and t * 4 + rb >= 28
    def bf(G, k, rb): return v(G.B + (k % NB) * 16 + rb * 4, 4)
    def af(G, gi, h=None):
        b = G.AF + (gi % 4) * 4
        return v(b, 4) if h is None else v(b + 2 * h, 2)

    def setup(G, A, wave, x, ct, rt, pwo, pwd, pws):
        T = G.sT
        for srd, p, nrow in ((G.sWd, pwd, ND * 32), (G.sWo, pwo, NS * 32)):
            A.e(f"s_mul_i32 {s(T)}, {x}, {nrow*1152}")
            A.e(f"s_add_u32 {s(srd)}, {s(p)}, {s(T)}"); A.e(f"s_addc_u32 {s(srd+1)}, {s(p+1)}, 0")
            A.e(f"s_mov_b32 {s(srd+2)}, {nrow*1152}"); A.e(f"s_mov_b32 {s(srd+3)}, 0x20000")
        for srd, off, nk_all, nk in ((G.sH, H_OFF, 144, ND), (G.sO, O_OFF, 128, NS)):
            A.e(f"s_mul_i32 {s(T)}, {rt}, {nk_all}"); A.e(f"s_mul_i32 {s(T+2)}, {x}, {nk}"); A.e(f"s_add_u32 {s(T)}, {s(T)}, {s(T+2)}")
            A.e(f"s_lshl_b32 {s(T)}, {s(T)}, 14"); A.e(f"s_add_u32 {s(T)}, {s(T)}, {off}")
            A.e(f"s_add_u32 {s(srd)}, {s(pws)}, {s(T)}"); A.e(f"s_addc_u32 {s(srd+1)}, {s(pws+1)}, 0")
            A.e(f"s_mov_b32 {s(srd+2)}, {nk*16384}"); A.e(f"s_mov_b32 {s(srd+3)}, 0x20000")
        A.e(f"s_lshl_b32 {s(G.sBoff)}, {wave}, 12")
        A.e(f"s_mul_i32 {s(G.sWoff)}, {ct}, 288"); A.e(f"s_mul_i32 {s(T)}, {wave}, {32*1152}")
        A.e(f"s_add_u32 {s(G.sWoff)}, {s(G.sWoff)}, {s(T)}")
        for n in range(9):
            A.e(f"v_add_u32 v4, {64*n}, v2")
            A.e("v_mul_u32_u24 v5, 3641, v4"); A.e("v_lshrrev_b32 v5, 16, v5")
            A.e("v_mul_u32_u24 v6, 18, v5"); A.e("v_sub_u32 v6, v4, v6")
            A.e("v_mul_u32_u24 v5, 1152, v5")
            A.e(f"v_lshl_add_u32 {v(G.DV+n)}, v6, 4, v5")
            if n % 4: A.e(f"v_subrev_u32 {v(G.DV+n)}, {(n%4)*1024}, {v(G.DV+n)}")
        A.e(f"s_mul_i32 {s(G.sM0)}, {wave}, {9*1024}")
        A.e(f"v_lshlrev_b32 {v(G.L8)}, 3, v2")
        A.e("v_and_b32 v4, 15, v2"); A.e("v_lshrrev_b32 v5, 4, v2")
        A.e("v_lshrrev_b32 v6, 2, v4"); A.e("v_lshl_add_u32 v6, v5, 2, v6")
        A.e("v_mul_u32_u24 v6, 288, v6"); A.e("v_and_b32 v4, 3, v4")
        A.e(f"v_lshl_add_u32 {v(G.LA)}, v4, 3, v6")
        A.e(f"s_lshl_b32 {s(T)}, {rt}, 4"); A.e(f"s_lshl_b32 {s(T+1)}, {wave}, 2"); A.e(f"s_add_u32 {s(T)}, {s(T)}, {s(T+1)}")
        A.e(f"s_lshl_b32 {s(T)}, {s(T)}, 2"); A.e(f"s_add_u32 {s(T)}, {s(T)}, {ct}")
        A.e(f"s_mul_i32 {s(T)}, {s(T)}, {PART_UNIT}"); A.e(f"s_add_u32 {s(T)}, {s(T)}, {PART_OFF}")
        A.e(f"s_lshl_b32 {s(T+1)}, {x}, 12"); A.e(f"s_add_u32 {s(G.sP4)}, {s(T)}, {s(T+1)}")
        A.e(f"s_lshl_b32 {s(T+1)}, {x}, 9"); A.e(f"s_add_u32 {s(G.sP2)}, {s(T)}, {s(T+1)}"); A.e(f"s_add_u32 {s(G.sP2)}, {s(G.sP2)}, {NPART*4096}")

    def dma(G, st, wave):
        k0 = 4 * st
        pre0 = []
        if k0 + 3 < ND:
            srd = G.sWd; pre0 = [f"s_add_u32 s99, {s(G.sWoff)}, {k0*32*1152}"]
        elif k0 >= ND:
            srd = G.sWo; pre0 = [f"s_add_u32 s99, {s(G.sWoff)}, {(k0-ND)*32*1152}"]
        else:
            nd = ND - k0
            srd = G.sWc
            pre0 = [f"s_cmp_lt_u32 {wave}, {nd}"]
            for j in range(4): pre0.append(f"s_cselect_b32 {s(G.sWc+j)}, {s(G.sWd+j)}, {s(G.sWo+j)}")
            pre0 += [f"s_add_u32 s99, {s(G.sWoff)}, {k0*32*1152}", f"s_sub_u32 s101, {s(G.sWoff)}, {nd*32*1152}",
                     f"s_cmp_lt_u32 {wave}, {nd}", "s_cselect_b32 s99, s99, s101"]
        ops = []
        for n in range(9):
            pre = list(pre0) if n == 0 else []
            if n % 4 == 0: pre.append(f"s_add_u32 m0, {s(G.sM0)}, {(st % NSLOT) * SLOT + (n//4)*4096}")
            ops.append((pre, f"buffer_load_dwordx4 {v(G.DV+n)}, {s(srd,4)}, s99 offen offset:{(n%4)*1024} lds"))
        return ops
    def bload(G, k):
        job = 0 if k < ND else 1
        srd = G.sH if job == 0 else G.sO
        kk = k if job == 0 else k - ND
        pre = [f"s_add_u32 s100, {s(G.sBoff)}, {kk*16384}"]
        if job == 0 and k % 9 == 4:
            return [(pre, f"buffer_load_dwordx2 {v(G.B + (k % NB) * 16 + rb * 4 + 2*h, 2)}, {v(G.L8)}, {s(srd,4)}, s100 offen offset:{rb*1024 + h*512} sc1")
                    for rb in range(4) for h in range(2)]
        return [(pre, f"buffer_load_dwordx4 {G.bf(k,rb)}, v3, {s(srd,4)}, s100 offen offset:{rb*1024} sc1") for rb in range(4)]
    def rd(G, gi):
        st, r = divmod(gi, 36); k, t = divmod(r, 9)
        return [f"ds_read_b64_tr_b16 {G.af(gi,h)}, {v(G.RA)} offset:{k*9216 + 16*h*288 + 32*t}" for h in range(2)]

    def partial_items(G, job):
        p4 = 8 * 4096 if job == 0 else 0; p2 = 8 * 512 if job == 0 else 0
        it = []; k = 0
        for rb in range(4):
            for pr in range(5):
                b = G.PK + (k % 4) * 8; k += 1
                n = 8 if pr < 4 else 4
                src = []
                for j in range(n):
                    t = 2 * pr + j // 4
                    if G.acc_in_vgpr(job, t, rb): src.append(G.acc(job, t, rb, j % 4))
                    else:
                        it.append(("V", f"v_accvgpr_read_b32 {v(b+j)}, {G.acc(job, t, rb, j%4)}")); src.append(v(b + j))
                for j in range(n // 2): it.append(("V", f"v_cvt_pk_bf16_f32 {v(b+j)}, {src[2*j]}, {src[2*j+1]}"))
                if pr < 4:
                    it.append(("S", [f"s_add_u32 s101, {s(G.sP4)}, {p4 + rb*4*PART_UNIT}"],
                               f"buffer_store_dwordx4 {v(b,4)}, v3, {s(G.sWS,4)}, s101 offen offset:{pr*1024} sc1"))
                else:
                    it.append(("S", [f"s_add_u32 s101, {s(G.sP2)}, {p2 + rb*4*PART_UNIT}"],
                               f"buffer_store_dwordx2 {v(b,2)}, v4, {s(G.sWS,4)}, s101 offen sc1"))
        return it

    NB0 = 6
    def main(G, L, hooks, wave):
        total = NK * 9
        def addb(k): return [(p, i, ("B", k)) for p, i in G.bload(k)]
        def addw(st): return [(p, i, ("W", st)) for p, i in G.dma(st, wave)]
        L.e(f"v_mov_b32 {v(G.RA)}, {v(G.LA)}")
        L.e("v_lshlrev_b32 v4, 3, v2")
        L.e(f"s_waitcnt vmcnt({len(L.vm)})")
        L.e("s_barrier")
        for gi in range(G.dist):
            for x in G.rd(gi): L.ds_op(x, ("A", gi))
        vmq = []
        for k in range(G.NB0, NB): vmq += addb(k)
        vmq += addw(3)
        held = []; released = False; vq = []; staged = None
        K_FLAG, K_LOAD, K_CHECK = G.opt.get("kflag", 5), G.opt.get("kload", 8), G.opt.get("kcheck", 10)
        for kg in range(NK):
            job = 0 if kg < ND else 1
            if kg == ND: vq = G.partial_items(0)
            for t in range(9):
                gi = kg * 9 + t
                nx = gi + G.dist
                rd = G.rd(nx) if nx < total else None
                first = (kg == 0 or kg == ND)
                for rb in range(4):
                    if rb == 0:
                        L.need_ds(("A", gi))
                        if t == 0: L.need_vm(("B", kg))
                    ac = G.acc(job, t, rb)
                    L.e(f"{MF} {ac}, {G.af(gi)}, {G.bf(kg,rb)}, {'0' if first else ac}")
                    used = False
                    if rb == 0 and rd and nx % 36 == 0:
                        ns = nx // 36
                        L.need_vm(("W", ns))
                        L.e("s_waitcnt lgkmcnt(0)"); L.ds = []
                        L.e("s_barrier")
                        L.e(f"v_add_u32 {v(G.RA)}, {(ns % NSLOT) * SLOT}, {v(G.LA)}")
                        if 4 <= ns + 3 < NST: vmq += addw(ns + 3)
                        if hooks.get("stamp"): hooks["stamp"](L)
                        used = True
                    if rd and rb == 1: L.ds_op(rd[0], ("A", nx))
                    if rd and rb == 2: L.ds_op(rd[1], ("A", nx))
                    if rb == 3 and t == 8:
                        if kg + NB < NK:
                            if kg + NB >= ND and not released: held += addb(kg + NB)
                            else: vmq = addb(kg + NB) + vmq
                        if kg == K_FLAG:
                            L.need_vm(("O", 0))
                            for x in hooks["oflag"]: L.vm_op(x, ("F", 0))
                        if kg == K_LOAD: vmq.insert(0, ([], hooks["flagload"], ("FL", 0)))
                        if kg == K_CHECK:
                            L.need_vm(("FL", 0)); hooks["flagcheck"](L)
                            released = True; vmq = held + vmq; held = []
                    if rb == 0 and staged is not None:
                        L.vm_op(*staged); staged = None; used = True
                    if rb == 3 and len(L.vm) < 60 and gi + 1 < total:
                        if vq and vq[0][0] == "S" and (not vmq or vmq[0][2][0] == "W" or len(vmq) < 3):
                            x = vq.pop(0)
                            for y in x[1]: L.e(y)
                            staged = (x[2], ("P", 0))
                        elif vmq:
                            p, i, key = vmq.pop(0)
                            for x in p: L.e(x)
                            staged = (i, key)
                    nv = 0 if used else (1 if rb in (1, 2) else 2)
                    if nv == 2 and vq and vq[0][0] == "V": L.e("s_nop 0")
                    while vq and nv and vq[0][0] == "V":
                        L.e(vq.pop(0)[1]); nv -= 1
        G.left = vq; vq = []
        assert not vmq and not vq and not held, (vmq, vq)

    def final_partials(G, L):
        for x in G.left + G.partial_items(1):
            if x[0] == "V": L.e(x[1])
            else:
                for y in x[1]: L.e(y)
                L.vm_op(x[2], ("P", 1))
```

```python
from asmgen import *
from layout import *
import attn, phasea, k2, checker, lnfuse
import tail as tail_roles, tail_seq
tail = tail_seq if SEQ else tail_roles
from phasea import Lin, f32

SPIN_LIMIT = 200000

def gen_mega(name, opt=None, stamps=False):
    opt = {**dict(wld=" nt", kvld=" nt", cpf2=59, osleep=0, dsleep=0, hpf=None, kA=2, kBd=8, kBs=5, kL=8, kC=10), **(opt or {})}
    SC = " sc1"
    RA = phasea.RegsA(); PA = phasea.PhaseA(RA); PA.pre_w = opt.get('pre_w', 1); PA.mid_w = opt.get('mid_w', 1); PA.late_bar = opt.get('late_bar', False); PA.vm_period = opt.get('vm_period', 2); PA.stmod = opt.get('hst', SC); PA.dist = opt.get('distA', 3); PA.ldmod = opt.get('wld', '')
    R = attn.Regs(vbase=8)
    G = attn.AttnEmit(R, {**dict(farbranch=1, brdelay=2, barpos=1, stmod=SC, kvmod=opt.get('kvld', '')), **opt.get("attn", {})})
    P = tail.Tail(opt.get("tail", {}))
    assert RA.vend <= R.KDMA and R.vend <= P.DV and R.L >= 152
    A = Asm()
    A(kernel_head(name))
    sX, sOut, sWo, sDbg, sWd = 26, 28, 30, 32, 96
    sPart, sI, sCt, sHF, sOF, sPF, sPoll = 53, 54, 55, 56, 57, 58, 59
    ONE, ZERO, DBGV, PFV = 254, 255, 246, 240
    nst = [0]
    def stamp(dst=None):
        if not stamps: return
        o = dst or A
        o.e("s_memrealtime s[88:89]" if opt.get("rt") else "s_memtime s[88:89]"); o.e("s_waitcnt lgkmcnt(0)")
        if isinstance(o, Lin): o.ds = []
        o.e("s_sub_u32 s88, s88, s92" if opt.get("rt") else "s_sub_u32 s88, s88, s90")
        o.e(f"v_writelane_b32 v253, s88, {nst[0]}"); nst[0] += 1

    A.e("s_cmp_ge_u32 s2, 256")
    A.e(f"s_cbranch_scc0 {name}_go")
    A.e("s_endpgm")
    A.label(f"{name}_go")
    if opt.get("perm"):
        A.e("s_mul_i32 s2, s2, 37"); A.e("s_add_u32 s2, s2, 11"); A.e("s_and_b32 s2, s2, 255")
        A.e("s_lshr_b32 s3, s2, 3"); A.e("s_and_b32 s3, s3, 7"); A.e("s_xor_b32 s2, s2, s3")
    A.e("s_load_dwordx4 s[4:7], s[0:1], 8")
    A.e("s_load_dwordx2 s[8:9], s[0:1], 24")
    A.e("s_load_dwordx4 s[20:23], s[0:1], 48")
    A.e("s_load_dwordx2 s[10:11], s[0:1], 88")
    A.e(f"s_load_dwordx2 {s(sX,2)}, s[0:1], 0")
    A.e(f"s_load_dwordx2 {s(sOut,2)}, s[0:1], 72")
    A.e(f"s_load_dwordx2 {s(sWo,2)}, s[0:1], 32")
    A.e(f"s_load_dwordx2 {s(sWd,2)}, s[0:1], 64")
    A.e(f"s_load_dwordx2 {s(sDbg,2)}, s[0:1], 80")
    if stamps or opt.get("span"):
        A.e("s_memtime s[90:91]"); A.e("s_memrealtime s[92:93]")
    A.e("v_lshrrev_b32 v1, 6, v0")
    A.e("v_and_b32 v2, 63, v0")
    A.e("v_readfirstlane_b32 s12, v1")
    A.e(f"s_and_b32 {s(sPart)}, s2, 7")
    A.e(f"s_lshr_b32 {s(sI)}, s2, 3")
    A.e(f"s_and_b32 {s(sCt)}, {s(sI)}, 3")
    A.e(f"s_lshl_b32 s13, {s(sPart)}, 2")
    A.e(f"s_add_u32 s13, s13, {s(sCt)}")
    A.e(f"s_lshr_b32 s14, {s(sI)}, 2")
    A.e("s_lshr_b32 s15, s13, 1")
    A.e("s_lshl_b32 s15, s15, 19")
    A.e("v_lshlrev_b32 v3, 4, v2")
    A.e(f"v_mov_b32 v{ONE}, 1"); A.e(f"v_mov_b32 v{ZERO}, 0")
    A.e("s_waitcnt lgkmcnt(0)")
    A.e("s_lshl_b32 s98, s14, 5")
    RAW, LT, LF = 8, 20, 28
    A.e(f"s_mov_b32 s84, {s(sX)}"); A.e(f"s_mov_b32 s85, {s(sX+1)}"); A.e(f"s_mov_b32 s86, {2048*1152}"); A.e("s_mov_b32 s87, 0x20000")
    lnfuse.ln_loads(A, "v2", "s12", "s13", "s14", "s[84:87]", RAW, LT, 99, opt.get('xld', ''))
    A.e(f"s_add_u32 {s(R.sK)}, s4, s15"); A.e(f"s_addc_u32 {s(R.sK+1)}, s5, 0")
    A.e(f"s_mov_b32 {s(R.sK+2)}, 524288"); A.e(f"s_mov_b32 {s(R.sK+3)}, 0x20000")
    A.e(f"s_add_u32 {s(R.sV)}, s6, s15"); A.e(f"s_addc_u32 {s(R.sV+1)}, s7, 0")
    A.e(f"s_mov_b32 {s(R.sV+2)}, 524288"); A.e(f"s_mov_b32 {s(R.sV+3)}, 0x20000")
    A.e("s_mov_b32 s16, s10"); A.e("s_mov_b32 s17, s11"); A.e(f"s_mov_b32 s18, {WS_RANGE}"); A.e("s_mov_b32 s19, 0x20000")
    A.e(f"s_mov_b32 {s(sDbg+2)}, 256"); A.e(f"s_mov_b32 {s(sDbg+3)}, 0x20000")
    PFO = 65536 if SEQ else 32768
    if SEQ:
        A.e("s_lshl_b32 s24, s14, 3"); A.e(f"s_add_u32 s24, s24, {s(sPart)}"); A.e("s_lshl_b32 s24, s24, 2"); A.e("s_add_u32 s24, s24, s12")
        A.e("s_lshl_b32 s24, s24, 7"); A.e(f"s_add_u32 {s(sPoll)}, s24, {FLAG_OFF}")
        A.e(f"s_lshl_b32 s25, {s(sCt)}, 2"); A.e(f"s_add_u32 {s(sHF)}, {s(sPoll)}, s25"); A.e(f"s_add_u32 {s(sOF)}, {s(sHF)}, 32768")
        A.e(f"s_lshl_b32 s24, {s(sI)}, 2"); A.e("s_add_u32 s24, s24, s12"); A.e("s_lshl_b32 s24, s24, 7")
        A.e(f"s_lshl_b32 s25, {s(sPart)}, 2"); A.e("s_add_u32 s24, s24, s25")
        A.e(f"s_add_u32 {s(sPF)}, s24, {FLAG_OFF + PFO}")
    else:
        A.e("s_lshl_b32 s24, s14, 2"); A.e("s_lshr_b32 s25, s13, 3"); A.e("s_add_u32 s24, s24, s25")
        A.e("s_lshl_b32 s24, s24, 2"); A.e("s_add_u32 s24, s24, s12"); A.e("s_lshl_b32 s24, s24, 7")
        A.e("s_and_b32 s25, s13, 7"); A.e("s_lshl_b32 s25, s25, 2"); A.e("s_add_u32 s24, s24, s25")
        A.e(f"s_add_u32 {s(sHF)}, s24, {FLAG_OFF}"); A.e(f"s_add_u32 {s(sOF)}, {s(sHF)}, 16384")
        A.e(f"s_and_b32 s24, {s(sPart)}, 3"); A.e("s_lshl_b32 s25, s14, 2"); A.e("s_add_u32 s24, s24, s25")
        A.e("s_lshl_b32 s24, s24, 2"); A.e("s_add_u32 s24, s24, s12"); A.e("s_lshl_b32 s24, s24, 7")
        A.e(f"s_cmp_lt_u32 {s(sPart)}, 4"); A.e("s_cselect_b32 s25, 16384, 0"); A.e("s_add_u32 s24, s24, s25")
        A.e(f"s_add_u32 {s(sPoll)}, s24, {FLAG_OFF}")
        A.e(f"s_lshl_b32 s24, {s(sI)}, 2"); A.e("s_add_u32 s24, s24, s12"); A.e("s_lshl_b32 s24, s24, 7")
        A.e(f"s_lshl_b32 s25, {s(sPart)}, 2"); A.e("s_add_u32 s24, s24, s25")
        A.e(f"s_add_u32 {s(sPF)}, s24, {FLAG_OFF + 32768}")
    def code_address(lab, dst):
        A.e("s_getpc_b64 s[84:85]")
        A.label(lab)
        A.e(f"s_lshl_b32 s15, {s(sI)}, 2"); A.e("s_add_u32 s15, s15, s12"); A.e("s_lshl_b32 s15, s15, 10")
        A.e(f"v_add_u32 {v(dst)}, s15, v3")
        A.e(f"v_min_u32 {v(dst)}, {name}_end-{lab}-16, {v(dst)}")
        A.e(f"v_mov_b32 {v(dst+1)}, s85")
        A.e(f"v_add_co_u32 {v(dst)}, vcc, s84, {v(dst)}")
        A.e("s_nop 1")
        A.e(f"v_addc_co_u32 {v(dst+1)}, vcc, 0, {v(dst+1)}, vcc")
    def code_prefetch(dst, nk):
        lab = f"{name}_pc{dst}"
        A.e("s_getpc_b64 s[24:25]")
        A.label(lab)
        A.e(f"s_lshl_b32 s15, {s(sI)}, 2"); A.e("s_add_u32 s15, s15, s12"); A.e("s_lshl_b32 s15, s15, 10")
        for k in range(nk):
            A.e(f"v_add_u32 v4, s15, v3")
            if k: A.e(f"v_add_u32 v4, {k*131072}, v4")
            A.e(f"v_min_u32 v4, {name}_end-{lab}-16, v4")
            A.e("v_mov_b32 v5, s25")
            A.e("v_add_co_u32 v4, vcc, s24, v4")
            A.e("s_nop 1")
            A.e("v_addc_co_u32 v5, vcc, 0, v5, vcc")
            A.e(f"global_load_dwordx4 {v(dst+4*k,4)}, v[4:5], off")
    if not opt.get("nocpf"): code_prefetch(64, 1)
    for f in (sHF, sOF, sPF):
        A.e(f"buffer_store_dword v{ZERO}, off, s[16:19], {s(f)}{SC}")
    A.e(f"s_add_u32 s25, {s(sOF)}, 32768")
    A.e(f"buffer_store_dword v{ZERO}, off, s[16:19], s25{SC}")
    ptr = {"wq": 8, "Wg": 20, "Wu": 22}
    PA.setup(A, "v2", "s12", "s13", "s14", lambda n: ptr[n])
    G.setup_dma(A, "v2", "s12", 4)
    A.e("s_lshl_b32 s24, s14, 7"); A.e("s_lshl_b32 s25, s13, 2"); A.e("s_add_u32 s24, s24, s25")
    A.e("s_lshl_b32 s24, s24, 14"); A.e("s_lshl_b32 s25, s12, 12"); A.e("s_add_u32 s24, s24, s25")
    A.e(f"s_add_u32 s24, s24, {O_OFF}")

    stamp()
    L = Lin()
    def after_w0(L_):
        T_ = Asm()
        lnfuse.ln_compute(T_, "v2", "s12", "s13", "s14", "s[16:19]", RAW, LT, LF, 4, PA.pre_w * 13 + 4 + (0 if opt.get("nocpf") else 1))
        for x in T_.lines: L_.e(x.strip())
        L_.e("s_waitcnt vmcnt(0)")
        L_.e("s_barrier")
        L_.e("s_cmp_eq_u32 s12, 0"); L_.e(f"s_cbranch_scc0 {name}_noann")
        L_.e("s_mov_b64 exec, 1")
        L_.e(f"buffer_atomic_add v{ONE}, off, {s(sDbg,4)}, s98")
        L_.e("s_mov_b64 exec, -1")
        L_.e(f"{name}_noann:")
        if stamps: stamp(L_)
    def wait_xn(L_):
        L_.e("s_mov_b32 s15, 0")
        L_.e(f"{name}_xn_spin:")
        L_.e(f"buffer_load_dword v{DBGV}, off, {s(sDbg,4)}, s98{SC}")
        L_.e("s_waitcnt vmcnt(0)")
        L_.e(f"v_readfirstlane_b32 s25, v{DBGV}")
        L_.e("s_add_u32 s15, s15, 1")
        L_.e(f"s_cmp_ge_u32 s15, {SPIN_LIMIT}"); L_.e(f"s_cbranch_scc1 {name}_xn_ok")
        if opt.get("xsleep"): L_.e(f"s_sleep {opt['xsleep']}")
        L_.e("s_cmp_ge_u32 s25, 32"); L_.e(f"s_cbranch_scc0 {name}_xn_spin")
        L_.e(f"{name}_xn_ok:")
        if stamps: stamp(L_)
    PA.xmod = SC
    if opt.get('w0poll'): PA.w0poll = (wait_xn, name + '_xs')
    kvpf = None
    if not opt.get("nokvpf"):
        kvpf = {opt.get("kvpf_ks", 8): [
            (["s_lshl_b32 s25, s14, 1", "s_and_b32 s15, s13, 1", "s_add_u32 s25, s25, s15", "s_mul_i32 s15, s25, 3072",
              "s_lshl_b32 s3, s12, 10", "s_add_u32 s15, s15, s3"],
             f"buffer_load_dwordx4 v[4:7], v3, {s(R.sK,4)}, s15 offen", ("PF", 0)),
            (["s_lshl_b32 s25, s25, 11", "s_and_b32 s3, s12, 1", "s_lshl_b32 s3, s3, 10", "s_add_u32 s25, s25, s3"],
             f"buffer_load_dwordx4 v[4:7], v3, {s(R.sV,4)}, s25 offen", ("PF", 1))]}
    PA.main(L, "v3", (after_w0, wait_xn), (lambda L_: stamp(L_)) if opt.get('afine') else None, kvpf, G.initial_dma_ops())
    for x in L.out:
        if x.endswith(":"): A.label(x[:-1])
        else: A.e(x)
    stamp()
    A.e("v_lshlrev_b32 v1, 3, v2")
    A.e("s_nop 7")
    for sx in (0, 1):
        for rb in range(4):
            d = PA.h_unit(A, sx, rb); PA.h_store(A, sx, rb, d)
    if opt.get("estamp"): stamp()
    HB3 = 208
    h2 = []
    for sx in (2, 3):
        for rb in range(4):
            h2.append((sx, rb, PA.h_unit(A, sx, rb)))
    h3 = [(4, rb, PA.h_unit(A, 4, rb, HB3 + 2 * rb)) for rb in range(4)]
    if opt.get("estamp"): stamp()
    PA.epilogue_q(A, R.qi, RA.A)
    if opt.get("estamp"): stamp()
    for sx, rb, d in h2: PA.h_store(A, sx, rb, d)
    stamp()
    G.setup_reads(A, "v2")
    G.init_offsets(A)
    P.setup(A, "s12", s(sPart), s(sCt), "s14", sWo, sWd, 10)
    A.e(f"s_lshl_b32 s22, {s(sI)}, 2"); A.e("s_add_u32 s22, s22, s12")
    if SEQ:
        A.e(f"s_mul_i32 s20, s22, {tail.ND*32*1152//128}"); A.e(f"s_mul_i32 s21, s22, {tail.NS*32*1152//128}")
    else:
        A.e(f"s_mul_i32 s20, {s(P.sNk)}, {32*1152//128}"); A.e("s_mul_i32 s20, s20, s22")
    NH = 16
    G.vm_init = [("H", 0)] * 18 + [("KV", -1)] + [("H", 0)] * (0 if opt.get("nopf") else 1)
    if opt.get("estamp"):
        stamp(); A.e(f"s_waitcnt vmcnt({NH})"); stamp(); A.e("s_barrier"); stamp()
    G.prologue(A, NH)
    if opt.get("estamp"): stamp()
    for sx, rb, d in h3: PA.h_store(A, sx, rb, d)
    stamp()
    flag_h = f"buffer_store_dword v{ONE}, off, s[16:19], {s(sHF)}{SC}"
    def pf(srd, off):
        return ([], f"buffer_load_dwordx4 {v(PFV,4)}, v3, {s(srd,4)}, {off} offen{opt.get('pfld','')}", ("PF", 0), [f"s_add_u32 {off}, {off}, 1024"])
    G.after_bar = {p: {3: [flag_h]} for p in range(4, 58, 8)}
    if not opt.get("nopf"):
        for p in range(2, 58):
            if SEQ:
                if p % 8 == 3: G.extra_vm[p] = [pf(P.sWd, "s20")]
                if p % 8 == 7: G.extra_vm[p] = [pf(P.sWo, "s21")]
            elif p % 4 == 3: G.extra_vm[p] = [pf(P.sW, "s20")]
    w0 = [(pre, ins, ("W", 0), []) for pre, ins in (P.dma(0, "s12") if SEQ else P.dma(0, "d"))]
    G.extra_vm[63] = w0
    if opt.get("cpf2"):
        code_address(f"{name}_pc2", 206)
        G.extra_vm[opt["cpf2"]] = [([], f"global_load_dwordx4 {v(PFV,4)}, v[206:207], off", ("X", 0), [])]
    G.extra_bar = {63}
    vlane = "v231"
    fl_load = ([f"v_min_u32 {vlane}, {3 if SEQ else 7}, v2", f"v_lshlrev_b32 {vlane}, 2, {vlane}"],
               f"buffer_load_dword {v(P.FL)}, {vlane}, s[16:19], {s(sPoll)} offen{SC}", ("X", 0), [])
    if not opt.get("hpf"):
        G.extra_vm[61] = [fl_load]
    else:
        G.extra_vm[58] = list(G.extra_vm.get(58, [])) + [fl_load]
        sa = P.sH if SEQ else P.sAct
        chk = ["s_waitcnt vmcnt(4)", f"v_cmp_ne_u32 vcc, 1, {v(P.FL)}", "s_nop 1", f"s_mov_b32 s4, {s(sa)}", f"s_mov_b32 s5, {s(sa+1)}",
               "s_cmp_eq_u64 vcc, 0", f"s_cselect_b32 s6, {s(sa+2)}, 0"]
        if not SEQ: chk += [f"s_cmp_lt_u32 {s(sPart)}, 4", "s_cselect_b32 s6, 0, s6"]
        chk += ["s_mov_b32 s7, 0x20000", f"s_add_u32 s25, {s(sCt)}, {6 if SEQ else 4}", "s_lshl_b32 s25, s25, 14", f"s_add_u32 s25, s25, {s(P.sBoff)}"]
        n_pf = opt["hpf"]
        items = []
        for n in range(n_pf):
            kk, rb = divmod(n, 4)
            pre = chk if n == 0 else ([f"s_add_u32 s25, s25, 65536"] if rb == 0 else [])
            items.append((pre, f"buffer_load_dwordx4 {v(PFV,4)}, v3, s[4:7], s25 offen offset:{rb*1024}{SC}", ("X", 0), []))
        per = [60, 61, 62]
        k_ = (n_pf + 2) // 3
        for a_, p_ in enumerate(per): G.extra_vm[p_] = list(G.extra_vm.get(p_, [])) + items[a_*k_:(a_+1)*k_]
        G.fill_periods = {60, 61, 62}
    grp = lambda ops: [pre + (["s_nop 0"] if pre else []) + [ins] for pre, ins in ops]
    def spin(load, test, lab):
        A.e("s_mov_b32 s15, 0")
        A.label(f"{name}_{lab}")
        A.e(load)
        A.e("s_waitcnt vmcnt(0)")
        for x in test: A.e(x)
        A.e("s_add_u32 s15, s15, 1")
        A.e(f"s_cmp_ge_u32 s15, {SPIN_LIMIT}"); A.e(f"s_cbranch_scc1 {name}_{lab}_ok")
        A.e("s_sleep 2")
        A.e(f"s_branch {name}_{lab}")
    def tail_roles_code():
        G.emit_all(A, name, final=False)
        def ostore_ops(sxs):
            return [([f"s_add_u32 s25, s24, {sx*16384}"],
                     f"buffer_store_dwordx4 {v(P.OS + 4*(4*sx+qb),4)}, v3, s[16:19], s25 offen offset:{qb*1024}{SC}") for sx in sxs for qb in attn.ORDER]
        def ostore(sx, qb, d):
            if sx < 2:
                A.e(f"s_add_u32 s25, s24, {sx*16384}")
                A.e(f"buffer_store_dwordx4 {v(d,4)}, v3, s[16:19], s25 offen offset:{qb*1024}{SC}")
        flagA = f"buffer_store_dword v{ONE}, off, s[16:19], {s(sOF)}{SC}"
        flagB = f"buffer_store_dword v{ONE}, off, s[16:19], s23{SC}"
        A.e(f"s_add_u32 s23, {s(sOF)}, 32768"); A.e(f"s_add_u32 s22, {s(sPoll)}, 32768")
        o2 = [(p, i, ("O", 2)) for p, i in ostore_ops((2, 3))]
        def emit(L_):
            for x in L_.out:
                if x.endswith(":"): A.label(x[:-1])
                else: A.e(x)
        def issue(ops):
            for g_ in grp(ops):
                for x in g_: A.e(x)
        cst = (lambda L_: stamp(L_)) if opt.get("cstamp") else None
        def raise_flag(ins, key):
            def f(L_, q):
                assert key in L_.vm and not [x_ for x_ in q if x_[2] == key]
                L_.need_vm(key); L_.vm_op(ins, ("F", 0))
            return f
        A.e(f"s_cmp_lt_u32 {s(sPart)}, 4"); A.e(f"s_cbranch_scc1 {name}_role_s")
        n0 = nst[0]
        def gate_h(A_):
            if not opt.get("hpf"): A_.e("s_waitcnt vmcnt(9)")
            A_.e(f"v_cmp_ne_u32 vcc, 1, {v(P.FL)}")
            A_.e("s_nop 0")
            A_.e(f"s_cbranch_vccnz {name}_slowh")
            A_.label(f"{name}_h_ok")
        pv_fill = []
        for k in range(4): pv_fill += grp(P.bload(k, "d"))
        G.final_pv(A, pv_fill, gate_h)
        stamp()
        A.e("s_barrier")
        issue(P.dma(1, "d"))
        G.epilogue_pack(A, P.OS, P.AF, 4, [], ostore)
        A.e("s_waitcnt vmcnt(33)")
        stamp()
        L = Lin()
        L.vm = [("B", k) for k in range(4) for _ in range(4)] + [("W", 1)] * 9 + [("O", 1)] * 8
        q = P.addb(4, "d") + P.addb(5, "d") + P.addw(2, "d") + P.addb(6, "d") + P.addb(7, "d") + P.addw(3, "d")
        def first_half_done(L_, q_):
            L_.need_vm(("O", 1)); L_.vm_op(flagA, ("F", 0))
            last = max([i_ for i_, x_ in enumerate(q_) if x_[2][0] == "B"], default=-1)
            q_[last + 1:last + 1] = o2
        P.main(L, "d", q, {opt.get("kA", 4): first_half_done, opt.get("kBd", 10): raise_flag(flagB, ("O", 2))}, stamp=cst)
        L.e("s_nop 7")
        emit(L)
        A.e(f"s_branch {name}_join")
        n1 = nst[0]; nst[0] = n0
        A.label(f"{name}_role_s")
        G.final_pv(A)
        stamp()
        A.e("s_barrier")
        issue(P.dma(1, "s")); issue(P.dma(2, "s"))
        G.epilogue_pack(A, P.OS, P.AF, 4, [], ostore)
        A.e("s_waitcnt vmcnt(0)")
        A.e(flagA)
        A.e("s_mov_b32 s15, 0")
        A.label(f"{name}_pollo")
        A.e(f"buffer_load_dword {v(P.FL)}, {vlane}, s[16:19], {s(sPoll)} offen{SC}")
        A.e("s_waitcnt vmcnt(0)")
        A.e(f"v_cmp_ne_u32 vcc, 1, {v(P.FL)}")
        A.e("s_nop 0")
        A.e(f"s_cbranch_vccz {name}_pollo_ok")
        A.e("s_add_u32 s15, s15, 1")
        A.e(f"s_cmp_ge_u32 s15, {SPIN_LIMIT}"); A.e(f"s_cbranch_scc1 {name}_pollo_ok")
        if opt.get('osleep'): A.e(f"s_sleep {opt['osleep']}")
        A.e(f"s_branch {name}_pollo")
        A.label(f"{name}_pollo_ok")
        stamp()
        L = Lin()
        for k in range(4):
            for pre, ins in P.bload(k, "s"):
                for x in pre: L.e(x)
                L.vm_op(ins, ("B", k))
        q = P.addb(4, "s") + P.addb(5, "s") + P.addb(6, "s") + P.addb(7, "s") + o2 + P.addw(3, "s")
        kL, kC = opt.get("kL", 9), opt.get("kC", 11)
        def load_b(L_, q_): q_.insert(0, ([], f"buffer_load_dword {v(P.FL)}, {vlane}, s[16:19], s22 offen{SC}", ("FL", 0)))
        def check_b(L_, q_):
            L_.need_vm(("FL", 0))
            L_.e(f"v_cmp_ne_u32 vcc, 1, {v(P.FL)}")
            L_.e("s_nop 0")
            L_.e(f"s_cbranch_vccnz {name}_slowo")
            L_.e(f"{name}_o_ok:")
        P.main(L, "s", q, {opt.get("kBs", 7): raise_flag(flagB, ("O", 2))}, {kL: load_b, kC: check_b}, 16, kC, stamp=cst)
        L.e("s_nop 7")
        emit(L)
        if opt.get("cstamp"):
            assert nst[0] == n1 - 1
            stamp()
        nst[0] = max(nst[0], n1)
        A.label(f"{name}_join")
        stamp()
        L = Lin()
        L.e("s_waitcnt vmcnt(20) lgkmcnt(0)")
        P.store_partials(L)
        emit(L)
        nerr = 0
    def tail_seq_code():
        def gate_h(A_):
            A_.e("s_waitcnt vmcnt(9)")
            A_.e(f"v_cmp_ne_u32 vcc, 1, {v(P.FL)}")
            A_.e("s_nop 0")
            A_.e(f"s_cbranch_vccnz {name}_slowh")
            A_.label(f"{name}_h_ok")
        pv_fill = []
        for k in range(4): pv_fill += grp(P.bload(k))
        G.emit_all(A, name, pv_fill, gate_h)
        stamp()
        A.e("s_barrier")
        fill = grp(P.dma(1, "s12")) + grp(P.bload(4)) + grp(P.bload(5)) + grp(P.dma(2, "s12"))
        nfill = len(fill)
        fill = [sum(fill[i:i + 2], []) for i in range(0, len(fill), 2)]
        G.epilogue_pack(A, P.OS, P.AF, 4, fill)
        A.e(f"s_waitcnt vmcnt({16 + nfill})")
        for sx in range(4):
            A.e(f"s_add_u32 s25, s24, {sx*16384}")
            for qb in range(4):
                A.e(f"buffer_store_dwordx4 {v(P.OS + 4*(4*sx+qb),4)}, v3, s[16:19], s25 offen offset:{qb*1024}{SC}")
        stamp()
        L = Lin()
        L.vm = [("B", k) for k in range(4) for _ in range(4)] + [("W", 1)] * 9 + [("B", 4)] * 8 + [("B", 5)] * 4 + [("W", 2)] * 9 + [("O", 0)] * 16
        assert len(L.vm) == 16 + nfill + 16
        def flagcheck(L_):
            L_.e(f"v_cmp_ne_u32 vcc, 1, {v(P.FL)}")
            L_.e("s_nop 0")
            L_.e(f"s_cbranch_vccnz {name}_slowo")
            L_.e(f"{name}_o_ok:")
        hooks = dict(oflag=[f"buffer_store_dword v{ONE}, off, s[16:19], {s(sOF)}{SC}"],
                     flagload=f"buffer_load_dword {v(P.FL)}, {vlane}, s[16:19], s23 offen{SC}", flagcheck=flagcheck,
                     stamp=(lambda L_: stamp(L_)) if opt.get("cstamp") else None)
        A.e(f"s_add_u32 s23, {s(sPoll)}, 32768")
        P.main(L, hooks, "s12")
        L.e("s_nop 7")
        if stamps: stamp(L)
        L.e("s_waitcnt vmcnt(24)"); L.vm = L.vm[-24:]
        P.final_partials(L)
        for x in L.out:
            if x.endswith(":"): A.label(x[:-1])
            else: A.e(x)
    (tail_seq_code if SEQ else tail_roles_code)()
    nerr = 0
    def poll(base, lab, last):
        A.e(f"v_min_u32 v4, {last}, v2"); A.e("v_lshlrev_b32 v4, 2, v4")
        A.e("s_mov_b32 s15, 0")
        A.label(f"{name}_{lab}")
        A.e(f"buffer_load_dword v5, v4, s[16:19], {base} offen{SC}")
        A.e("s_waitcnt vmcnt(0)")
        A.e("v_cmp_ne_u32 vcc, 1, v5")
        A.e(f"s_cbranch_vccz {name}_{lab}_ok")
        A.e("s_add_u32 s15, s15, 1")
        A.e(f"s_cmp_ge_u32 s15, {SPIN_LIMIT}"); A.e(f"s_cbranch_scc1 {name}_{lab}_ok")
        if opt.get('dsleep'): A.e(f"s_sleep {opt['dsleep']}")
        A.e(f"s_branch {name}_{lab}")
        A.label(f"{name}_{lab}_ok")
    A.e(f"s_lshl_b32 s78, s14, 4"); A.e(f"s_lshl_b32 s79, {s(sPart)}, 1"); A.e("s_add_u32 s78, s78, s79")
    A.e("s_lshr_b32 s79, s12, 1"); A.e("s_add_u32 s80, s78, s79")
    A.e("s_and_b32 s79, s12, 1"); A.e("s_add_u32 s81, s78, s79")
    A.e("s_lshl_b32 s82, s79, 1")
    A.e("v_and_b32 v4, 15, v2"); A.e("v_lshrrev_b32 v5, 4, v2")
    A.e("v_mul_u32_u24 v4, 1152, v4"); A.e("v_lshl_add_u32 v4, v5, 3, v4")
    A.e(f"s_mul_i32 s74, {s(sCt)}, 288")
    A.e(f"s_mul_i32 s75, s80, {16*1152}"); A.e("s_add_u32 s75, s75, s74"); A.e("s_lshl_b32 s76, s82, 6"); A.e("s_add_u32 s75, s75, s76")
    A.e(f"s_mul_i32 s76, s81, {16*1152}"); A.e("s_add_u32 s76, s76, s74"); A.e("s_add_u32 s76, s76, 256")
    A.e(f"s_mov_b32 s60, {s(sX)}"); A.e(f"s_mov_b32 s61, {s(sX+1)}"); A.e(f"s_mov_b32 s62, {2048*1152}"); A.e("s_mov_b32 s63, 0x20000")
    A.e(f"s_mov_b32 s64, {s(sOut)}"); A.e(f"s_mov_b32 s65, {s(sOut+1)}"); A.e(f"s_mov_b32 s66, {2048*1152}"); A.e("s_mov_b32 s67, 0x20000")
    XR = 220
    for k in range(4): A.e(f"buffer_load_dwordx2 {v(XR+2*k,2)}, v4, s[60:63], s75 offen offset:{32*k}")
    A.e(f"buffer_load_dwordx2 {v(XR+8,2)}, v4, s[60:63], s76 offen")
    A.e("s_waitcnt vmcnt(5)")
    A.e(f"buffer_store_dword v{ONE}, off, s[16:19], {s(sPF)}{SC}")
    A.e("v_mov_b32 v6, v4")
    A.e(f"s_lshl_b32 s77, {s(sI)}, 2"); A.e(f"s_lshr_b32 s79, {s(sPart)}, 1"); A.e("s_add_u32 s77, s77, s79")
    A.e("s_lshl_b32 s77, s77, 7"); A.e(f"s_add_u32 s77, s77, {FLAG_OFF + PFO}")
    poll("s77", "polld", 7)
    stamp()
    A.e(f"s_lshl_b32 s78, s80, 2"); A.e(f"s_add_u32 s78, s78, {s(sCt)}"); A.e(f"s_mul_i32 s78, s78, {PART_UNIT}")
    A.e(f"s_add_u32 s78, s78, {PART_OFF}"); A.e("s_lshl_b32 s79, s82, 10"); A.e("s_add_u32 s78, s78, s79")
    A.e(f"s_lshl_b32 s79, s81, 2"); A.e(f"s_add_u32 s79, s79, {s(sCt)}"); A.e(f"s_mul_i32 s79, s79, {PART_UNIT}")
    A.e(f"s_add_u32 s79, s79, {PART_OFF + NPART*4096}")
    A.e("v_lshlrev_b32 v7, 3, v2")
    PA_, PB_, PS_ = 8, 72, 136
    for p in range(NPART):
        A.e(f"buffer_load_dwordx4 {v(PA_+4*p,4)}, v3, s[16:19], s78 offen{SC}")
        A.e(f"buffer_load_dwordx4 {v(PB_+4*p,4)}, v3, s[16:19], s78 offen offset:1024{SC}")
        if p < NPART - 1: A.e("s_add_u32 s78, s78, 4096")
    for p in range(NPART):
        if p == 8: A.e("s_add_u32 s79, s79, 4096")
        A.e(f"buffer_load_dwordx2 {v(PS_+2*p,2)}, v7, s[16:19], s79 offen offset:{(p%8)*512}{SC}")
    A.e(f"s_mov_b32 s23, {hex(f32(-1.4426950408889634))}")
    def unpack_sum(dst, srcs, nreg, t, waits=None):
        for n, sr in enumerate(srcs):
            if waits: A.e(f"s_waitcnt vmcnt({waits[n]})")
            for j in range(nreg):
                lo, hi = v(dst + 2 * j), v(dst + 2 * j + 1)
                if n == 0:
                    A.e(f"v_lshlrev_b32 {lo}, 16, {v(sr+j)}"); A.e(f"v_and_b32 {hi}, 0xffff0000, {v(sr+j)}")
                else:
                    A.e(f"v_lshlrev_b32 {v(t)}, 16, {v(sr+j)}"); A.e(f"v_and_b32 {v(t+1)}, 0xffff0000, {v(sr+j)}")
                    A.e(f"v_pk_add_f32 {v(dst+2*j,2)}, {v(dst+2*j,2)}, {v(t,2)}")
    S0, D0, T0 = 170, 190, 210
    tot = 2 * NPART + NPART
    for half, dst in ((0, S0), (1, D0)):
        for p in range(NPART // 2):
            pp = NPART // 2 * half + p
            A.e(f"s_waitcnt vmcnt({tot - 2*(pp+1)})")
            for q, base in ((0, PA_), (1, PB_)):
                for j in range(4):
                    sr = base + 4 * pp + j
                    d2 = dst + 8 * q + 2 * j
                    if p == 0:
                        A.e(f"v_lshlrev_b32 {v(d2)}, 16, {v(sr)}"); A.e(f"v_and_b32 {v(d2+1)}, 0xffff0000, {v(sr)}")
                    else:
                        tt = 216 + 2 * (j & 1)
                        A.e(f"v_lshlrev_b32 {v(tt)}, 16, {v(sr)}"); A.e(f"v_and_b32 {v(tt+1)}, 0xffff0000, {v(sr)}")
                        A.e(f"v_pk_add_f32 {v(d2,2)}, {v(d2,2)}, {v(tt,2)}")
    for q in range(4):
        k2.final_math(A, S0 + 4 * q, D0 + 4 * q, XR + 2 * q, T0, "s23")
        A.e(f"buffer_store_dwordx2 {v(XR+2*q,2)}, v6, s[64:67], s75 offen offset:{32*q}{opt.get('outmod','')}")
    A.e("s_waitcnt vmcnt(4)")
    unpack_sum(S0 + 16, [PS_ + 2 * p for p in range(NPART // 2)], 2, 216)
    unpack_sum(D0 + 16, [PS_ + NPART + 2 * p for p in range(NPART // 2)], 2, 216)
    k2.final_math(A, S0 + 16, D0 + 16, XR + 8, T0, "s23")
    A.e(f"buffer_store_dwordx2 {v(XR+8,2)}, v6, s[64:67], s76 offen{opt.get('outmod','')}")
    if stamps or opt.get("span"):
        A.e("s_waitcnt vmcnt(0)")
        stamp()
        A.e("s_memrealtime s[94:95]"); A.e("s_waitcnt lgkmcnt(0)")
        A.e("s_sub_u32 s94, s94, s92")
        A.e(f"v_writelane_b32 v253, s94, 30"); A.e("v_writelane_b32 v253, s92, 31")
        A.e("s_lshl_b32 s21, s2, 2"); A.e("s_add_u32 s21, s21, s12"); A.e("s_lshl_b32 s21, s21, 8")
        A.e(f"s_add_u32 s21, s21, {STAMP_OFF}")
        A.e("v_lshlrev_b32 v1, 2, v2")
        A.e("buffer_store_dword v253, v1, s[16:19], s21 offen")
        if opt.get("dbgout"):
            A.e("s_cmp_eq_u32 s2, 0"); A.e(f"s_cbranch_scc0 {name}_nodbg")
            A.e("s_cmp_eq_u32 s12, 0"); A.e(f"s_cbranch_scc0 {name}_nodbg")
            lanes = [30, 1, 2, 3, 5, 6, 8, 9, 10, 11, 30, 30, 30, 30]
            words = [1, 2, 3, 4, 5, 6, 7, 9, 10, 11]
            A.e("s_mov_b64 exec, 1")
            for ln_, wd in zip(lanes, words):
                A.e(f"v_readlane_b32 s25, v253, {ln_}")
                A.e("s_nop 3")
                A.e("v_mov_b32 v4, s25")
                A.e(f"buffer_store_dword v4, off, {s(sDbg,4)}, 0 offset:{wd*4}")
            A.e("s_mov_b64 exec, -1")
            A.label(f"{name}_nodbg")
    A.e("s_endpgm")
    A.label(f"{name}_slowh")
    spin(f"buffer_load_dword {v(P.FL)}, {vlane}, s[16:19], {s(sPoll)} offen{SC}",
         [f"v_cmp_ne_u32 vcc, 1, {v(P.FL)}", "s_nop 0", f"s_cbranch_vccz {name}_slowh2_ok"], "slowh2")
    A.label(f"{name}_slowh2_ok")
    A.e(f"s_branch {name}_h_ok")
    if True:
        A.label(f"{name}_slowo")
        spin(f"buffer_load_dword {v(P.FL)}, {vlane}, s[16:19], {'s23' if SEQ else 's22'} offen{SC}",
             [f"v_cmp_ne_u32 vcc, 1, {v(P.FL)}", "s_nop 0", f"s_cbranch_vccz {name}_slowo2_ok"], "slowo2")
        A.label(f"{name}_slowo2_ok")
        A.e(f"s_branch {name}_o_ok")
    G.emit_rare(A)
    A.label(f"{name}_end")
    A.e("s_endpgm")
    A(kernel_desc(name, 512, 102, 256))
    errs = checker.check([l for l in A.lines if not l.startswith(";")], name)
    errs = [e for e in errs if not ("buffer_load_dwordx4 v[240:243]" in e.split("<-")[0] or "global_load_dwordx4 v[240:243]" in e.split("<-")[0]
                                    or "buffer_load_dwordx4 v[4:7]" in e.split("<-")[0])]
    for e in errs[:opt.get("nerr", 10)]: print(e[:200])
    print(name, "lines", len(A.lines), "hazard errors", len(errs), nerr)
    return A
```

```python
from asmgen import *
from layout import *
import struct
def f32(x): return struct.unpack("<I", struct.pack("<f", x))[0]

MF = "v_mfma_f32_16x16x32_bf16"
STAGE = 53248
BLK_U = 18432
BLK_Q = 36864
NKS = 18

class RegsA:
    def __init__(R):
        R.QA = 0
        R.GA = 128
        n = 8
        R.U = n; n += 144
        R.GV = n; n += 16
        R.B = n; n += 48
        R.A = n; n += 16
        R.DG = n; n += 4
        R.DX = n; n += 1
        R.DQ = n; n += 4
        R.LG = n; n += 1; R.GA_ADDR = n; n += 1
        R.LQ = n; n += 1; R.QA_ADDR = n; n += 1
        R.QT = n; n += 2
        R.vend = n
        R.sG = 60; R.sU = 64; R.sX = 68; R.sQ = 72
        R.sWS = 16
        R.sM0G = 76; R.sM0X = 77; R.sM0Q = 78
        R.sXoff = 79
        R.sT = 80; R.sT2 = 81; R.sHoff = 82; R.sH8 = 83
    def g(R, t, rb, r=None):
        if t < 8:
            b = R.GA + (t * 4 + rb) * 4
            return a(b, 4) if r is None else a(b + r)
        b = R.GV + rb * 4
        return v(b, 4) if r is None else v(b + r)
    def u(R, t, rb, r=None):
        b = R.U + (t * 4 + rb) * 4
        return v(b, 4) if r is None else v(b + r)
    def qa(R, dt, rb, r=None):
        b = R.QA + (dt * 4 + rb) * 4
        return a(b, 4) if r is None else a(b + r)
    def b(R, ks, rb): return v(R.B + (ks % 3) * 16 + rb * 4, 4)
    def af(R, gi, h=None):
        b = R.A + (gi % 4) * 4
        return v(b, 4) if h is None else v(b + 2 * h, 2)

TILES = [x for t in range(9) for x in (("G", t), ("U", t))] + [("Q", dt) for dt in range(8)]
NT = len(TILES)

class Lin:
    def __init__(L):
        L.out = []; L.ds = []; L.vm = []
    def e(L, t): L.out.append(t)
    def ds_op(L, t, key): L.out.append(t); L.ds.append(key)
    def vm_op(L, t, key): L.out.append(t); L.vm.append(key)
    def need_ds(L, key):
        if key in L.ds:
            last = max(i for i, x in enumerate(L.ds) if x == key)
            cnt = len(L.ds) - 1 - last
            assert cnt <= 15
            L.out.append(f"s_waitcnt lgkmcnt({cnt})")
            L.ds = L.ds[last + 1:]
    def need_vm(L, key):
        if key in L.vm:
            last = max(i for i, x in enumerate(L.vm) if x == key)
            cnt = len(L.vm) - 1 - last
            assert cnt <= 63, cnt
            L.out.append(f"s_waitcnt vmcnt({cnt})")
            L.vm = L.vm[last + 1:]

class PhaseA:
    def __init__(G, R, vm_period=2):
        G.R = R; G.vm_period = vm_period; G.stmod = ''; G.dist = 3; G.ldmod = ''; G.xmod = ''; G.noq = False; G.late_bar = False; G.w0poll = None

    def setup(G, A, lane, wave, head, rt, ptr):
        R = G.R
        t = [v(R.B + i) for i in range(12)]
        for srd, nm, size in ((R.sG, "Wg", 576 * 9216), (R.sU, "Wu", 576 * 9216), (R.sQ, "wq", 576 * 8192)):
            p = ptr(nm)
            A.e(f"s_mov_b32 {s(srd)}, {s(p)}"); A.e(f"s_mov_b32 {s(srd+1)}, {s(p+1)}")
            A.e(f"s_mov_b32 {s(srd+2)}, {size}"); A.e(f"s_mov_b32 {s(srd+3)}, 0x20000")
        A.e(f"s_cmp_lt_u32 {wave}, 2")
        A.e(f"s_cselect_b32 {s(R.sX)}, {s(R.sG)}, {s(R.sU)}")
        A.e(f"s_cselect_b32 {s(R.sX+1)}, {s(R.sG+1)}, {s(R.sU+1)}")
        A.e(f"s_mov_b32 {s(R.sX+2)}, {576*9216}"); A.e(f"s_mov_b32 {s(R.sX+3)}, 0x20000")
        A.e(f"s_lshl_b32 {s(R.sM0G)}, {wave}, 12")
        A.e(f"s_and_b32 {s(R.sT)}, {wave}, 1"); A.e(f"s_add_u32 {s(R.sT)}, {s(R.sT)}, 16"); A.e(f"s_lshl_b32 {s(R.sM0X)}, {s(R.sT)}, 10")
        A.e(f"s_cmp_lt_u32 {wave}, 2")
        A.e(f"s_cselect_b32 {s(R.sT2)}, 0, {BLK_U}")
        A.e(f"s_add_u32 {s(R.sM0X)}, {s(R.sM0X)}, {s(R.sT2)}")
        A.e(f"s_lshl_b32 {s(R.sM0Q)}, {wave}, 12"); A.e(f"s_add_u32 {s(R.sM0Q)}, {s(R.sM0Q)}, {BLK_Q}")
        A.e(f"s_mul_i32 {s(R.sT2)}, {head}, 288")
        A.e(f"s_and_b32 s87, {head}, 1"); A.e("s_lshl_b32 s87, s87, 1")
        def gu(dst, idx_s, idx_c, comp):
            A.e(f"s_lshl_b32 s84, {idx_s}, 6")
            A.e(f"v_add_u32 {t[0]}, s84, {lane}")
            if idx_c: A.e(f"v_add_u32 {t[0]}, {64*idx_c}, {t[0]}")
            A.e(f"v_mul_u32_u24 {t[1]}, 3641, {t[0]}")
            A.e(f"v_lshrrev_b32 {t[1]}, 16, {t[1]}")
            A.e(f"v_mul_u32_u24 {t[2]}, 18, {t[1]}")
            A.e(f"v_sub_u32 {t[2]}, {t[0]}, {t[2]}")
            A.e(f"v_add_u32 {t[2]}, s87, {t[2]}")
            A.e(f"v_subrev_u32 {t[5]}, 18, {t[2]}")
            A.e(f"v_min_u32 {t[2]}, {t[2]}, {t[5]}")
            A.e(f"v_mul_u32_u24 {t[1]}, 9216, {t[1]}")
            A.e(f"v_lshl_add_u32 {t[1]}, {t[2]}, 4, {t[1]}")
            A.e(f"v_add_u32 {dst}, {s(R.sT2)}, {t[1]}")
            if comp: A.e(f"v_subrev_u32 {dst}, {comp}, {dst}")
        A.e(f"s_lshl_b32 s85, {wave}, 2")
        for n in range(4): gu(v(R.DG + n), "s85", n, n * 1024)
        gu(v(R.DX), s(R.sT), 0, 0)
        m, g = t[3], t[4]
        A.e(f"v_and_b32 {m}, 15, {lane}"); A.e(f"v_lshrrev_b32 {g}, 4, {lane}")
        A.e(f"s_lshl_b32 s84, {wave}, 4")
        A.e(f"s_lshl_b32 s85, {head}, 8")
        for n in range(4):
            A.e(f"v_add_u32 {t[0]}, {4*n}, {g}")
            A.e(f"v_and_b32 {t[1]}, 7, {t[0]}")
            A.e(f"v_lshlrev_b32 {t[1]}, 1, {t[1]}")
            A.e(f"v_xor_b32 {t[1]}, {t[1]}, {m}")
            A.e(f"v_add_u32 {t[0]}, s84, {t[0]}")
            A.e(f"v_lshlrev_b32 {t[0]}, 13, {t[0]}")
            A.e(f"v_lshl_add_u32 {t[0]}, {t[1]}, 4, {t[0]}")
            A.e(f"v_add_u32 {v(R.DQ+n)}, s85, {t[0]}")
            if n: A.e(f"v_subrev_u32 {v(R.DQ+n)}, {n*1024}, {v(R.DQ+n)}")
        A.e(f"v_lshrrev_b32 {t[0]}, 2, {m}")
        A.e(f"v_lshl_add_u32 {t[0]}, {g}, 2, {t[0]}")
        A.e(f"v_mul_u32_u24 {t[1]}, 288, {t[0]}")
        A.e(f"v_and_b32 {t[2]}, 3, {m}")
        A.e(f"v_lshl_add_u32 {v(R.LG)}, {t[2]}, 3, {t[1]}")
        A.e(f"v_lshlrev_b32 {t[1]}, 8, {t[0]}")
        A.e(f"v_and_b32 {t[2]}, 7, {t[0]}")
        A.e(f"v_lshl_add_u32 {t[1]}, {t[2]}, 5, {t[1]}")
        A.e(f"v_bfe_u32 {t[2]}, {m}, 1, 1")
        A.e(f"v_lshl_add_u32 {t[1]}, {t[2]}, 4, {t[1]}")
        A.e(f"v_and_b32 {t[2]}, 1, {m}")
        A.e(f"v_lshl_add_u32 {t[1]}, {t[2]}, 3, {t[1]}")
        A.e(f"v_add_u32 {v(R.LQ)}, {BLK_Q}, {t[1]}")
        A.e(f"s_lshl_b32 {s(R.sXoff)}, {rt}, 2"); A.e(f"s_add_u32 {s(R.sXoff)}, {s(R.sXoff)}, {wave}")
        A.e(f"s_mul_i32 {s(R.sXoff)}, {s(R.sXoff)}, {18*4096}")
        if XN_OFF: A.e(f"s_add_u32 {s(R.sXoff)}, {s(R.sXoff)}, {XN_OFF}")
        A.e(f"s_mul_i32 s84, {rt}, 144")
        A.e(f"s_lshr_b32 s85, {head}, 1"); A.e("s_mul_i32 s85, s85, 9"); A.e("s_add_u32 s84, s84, s85")
        A.e("s_lshl_b32 s84, s84, 14")
        A.e(f"s_lshl_b32 s85, {wave}, 12"); A.e("s_add_u32 s84, s84, s85")
        A.e(f"s_add_u32 s84, s84, {H_OFF}")
        A.e(f"s_and_b32 s85, {head}, 1")
        A.e(f"s_mul_i32 {s(R.sT)}, s85, {5*16384}"); A.e(f"s_add_u32 {s(R.sHoff)}, s84, {s(R.sT)}")
        A.e(f"s_lshl_b32 {s(R.sT)}, s85, 9"); A.e(f"s_add_u32 {s(R.sH8)}, s84, {s(R.sT)}"); A.e(f"s_add_u32 {s(R.sH8)}, {s(R.sH8)}, {4*16384}")

    def dma_ops(G, st):
        R = G.R; slot = (st % 3) * STAGE
        so_g = st * 64 * 9216; so_q = st * 64 * 8192
        ops = []
        for n in range(4):
            pre = [f"s_add_u32 m0, {s(R.sM0G)}, {slot}", f"s_mov_b32 {s(R.sT)}, {so_g}"] if n == 0 else []
            ops.append((pre, f"buffer_load_dwordx4 {v(R.DG+n)}, {s(R.sG,4)}, {s(R.sT)} offen offset:{n*1024}{G.ldmod} lds"))
        for n in range(4):
            pre = [f"s_add_u32 m0, {s(R.sM0G)}, {slot + BLK_U}"] if n == 0 else []
            ops.append((pre, f"buffer_load_dwordx4 {v(R.DG+n)}, {s(R.sU,4)}, {s(R.sT)} offen offset:{n*1024}{G.ldmod} lds"))
        ops.append(([f"s_add_u32 m0, {s(R.sM0X)}, {slot}"], f"buffer_load_dwordx4 {v(R.DX)}, {s(R.sX,4)}, {s(R.sT)} offen{G.ldmod} lds"))
        for n in range(4):
            pre = [f"s_add_u32 m0, {s(R.sM0Q)}, {slot}", f"s_mov_b32 {s(R.sT2)}, {so_q}"] if n == 0 else []
            ops.append((pre, f"buffer_load_dwordx4 {v(R.DQ+n)}, {s(R.sQ,4)}, {s(R.sT2)} offen offset:{n*1024}{G.ldmod} lds"))
        return ops

    def x_ops(G, ks, lane16):
        R = G.R
        return [([f"s_add_u32 s86, {s(R.sXoff)}, {ks*4096}"],
                 f"buffer_load_dwordx4 {R.b(ks,rb)}, {lane16}, {s(R.sWS,4)}, s86 offen offset:{rb*1024}{G.xmod}") for rb in range(4)]

    def read_ops(G, gi):
        R = G.R; ks, n = divmod(gi, NT); st, kk = divmod(ks, 2)
        kind, t = TILES[n]; pre = []
        if n == 0 and kk == 0:
            pre.append(f"v_add_u32 {v(R.GA_ADDR)}, {(st%3)*STAGE}, {v(R.LG)}")
            pre.append(f"v_add_u32 {v(R.QA_ADDR)}, {(st%3)*STAGE}, {v(R.LQ)}")
        if kind == "Q":
            tmp = v(R.QT + (t & 1))
            pre.append(f"v_xor_b32 {tmp}, {t*32}, {v(R.QA_ADDR)}")
            rd = [f"ds_read_b64_tr_b16 {R.af(gi,h)}, {tmp} offset:{kk*8192 + h*4096}" for h in range(2)]
        else:
            blk = 0 if kind == "G" else BLK_U
            rd = [f"ds_read_b64_tr_b16 {R.af(gi,h)}, {v(R.GA_ADDR)} offset:{blk + (32*kk + 16*h)*288 + 32*t}" for h in range(2)]
        return pre, rd

    def main(G, L, lane16, fused, stamp=None, extra=None, tail_ops=None):
        R = G.R
        def issue(ops, key):
            for pre, ins in ops:
                for x in pre: L.e(x)
                if pre: L.e("s_nop 0")
                L.vm_op(ins, key)
        for st in range(G.pre_w): issue(G.dma_ops(st), ("W", st))
        fused[0](L)
        L.vm = []
        if G.w0poll:
            w0poll, lab = G.w0poll
            L.e("s_cmp_eq_u32 s12, 0"); L.e(f"s_cbranch_scc1 {lab}_w0")
            issue(G.dma_ops(1), ("W", 1)); L.vm = []
            L.e("s_barrier")
            issue(G.x_ops(0, lane16), ("X", 0)); issue(G.x_ops(1, lane16), ("X", 1)); L.vm = []
            L.e("s_waitcnt vmcnt(4)")
            L.e(f"s_branch {lab}_join")
            L.e(f"{lab}_w0:")
            w0poll(L)
            L.e("s_barrier")
            issue(G.x_ops(0, lane16), ("X", 0)); issue(G.x_ops(1, lane16), ("X", 1))
            issue(G.dma_ops(1), ("W", 1)); L.vm = []
            L.e("s_waitcnt vmcnt(17)")
            L.e(f"{lab}_join:")
            L.vm = [("W", 1)] * 13 + [("X", 1)] * 4
        else:
            for st in range(G.pre_w, G.pre_w + G.mid_w): issue(G.dma_ops(st), ("W", st))
            fused[1](L)
            L.vm = []
            issue(G.x_ops(0, lane16), ("X", 0))
            issue(G.x_ops(1, lane16), ("X", 1))
        late_w = [(p, i, ("W", st)) for st in range(G.pre_w + G.mid_w, 3) for p, i in G.dma_ops(st)]
        if stamp: stamp(L)
        L.need_vm(("X", 0))
        DIST = G.dist
        total = NKS * NT
        for gi in range(DIST):
            pre, rd = G.read_ops(gi)
            for x in pre: L.e(x)
            for x in rd: L.ds_op(x, ("A", gi))
        vmq = list(late_w); staged = None
        for ks in range(NKS):
            if stamp and ks > 0: stamp(L)
            if ks + 2 < NKS: vmq = [(p, i, ("X", ks + 2)) for p, i in G.x_ops(ks + 2, lane16)] + vmq
            if extra and ks in extra: vmq += extra[ks]
            for n in range(NT):
                gi = ks * NT + n
                nx = gi + DIST
                rd = None
                if nx < total:
                    pre, rd = G.read_ops(nx)
                    newstage = (nx % (2 * NT) == 0)
                kind, t = TILES[n]
                for rb in range(4):
                    if rb == 0:
                        L.need_ds(("A", gi))
                        if n == 0: L.need_vm(("X", ks))
                    acc = R.g(t, rb) if kind == "G" else (R.u(t, rb) if kind == "U" else R.qa(t, rb))
                    c = "0" if ks == 0 else acc
                    L.e(f"{MF} {acc}, {R.af(gi)}, {R.b(ks,rb)}, {c}")
                    if rd:
                        late = newstage and G.late_bar
                        if rb == (1 if late else 0):
                            if newstage:
                                ns = nx // (2 * NT)
                                L.need_vm(("W", ns))
                                L.e("s_waitcnt lgkmcnt(0)"); L.ds = []
                                L.e("s_barrier")
                                if ns + 2 <= 8: vmq += [(p, i, ("W", ns + 2)) for p, i in G.dma_ops(ns + 2)]
                                if ns == 8 and tail_ops: vmq += [(p, i, ("T", 0)) for p, i in tail_ops]
                            for x in pre: L.e(x)
                        if rb == (2 if late else 1): L.ds_op(rd[0], ("A", nx))
                        if rb == (3 if late else 2): L.ds_op(rd[1], ("A", nx))
                    if rb == 0 and staged is not None:
                        L.vm_op(*staged); staged = None
                    period = G.vm_period
                    if rb == 3 and vmq and (n >= 1 or vmq[0][2][0] != "X") and (n % period == period - 1 or ks >= NKS - 2 or ks < 2) and gi + 1 < total:
                        p, i, key = vmq.pop(0)
                        for x in p: L.e(x)
                        staged = (i, key)
            assert not [x for x in vmq if x[2][0] == "X" and x[2][1] <= ks + 1], ks
        assert not vmq and staged is None

    def h_unit(G, A, sx, rb, dst=None):
        R = G.R
        def hvals(t, d):
            x = R.DG
            for r in range(4):
                if t < 8:
                    A.e(f"v_accvgpr_read_b32 {v(x+r)}, {R.g(t,rb,r)}")
            for r in range(4):
                A.e(f"v_max_f32 {v(x+r)}, 0, {v(x+r) if t < 8 else R.g(t,rb,r)}")
            ub = R.U + (t * 4 + rb) * 4
            for r in (0, 2):
                A.e(f"v_pk_mul_f32 {v(ub+r,2)}, {v(x+r,2)}, {v(ub+r,2)}")
            A.e(f"v_cvt_pk_bf16_f32 {v(d)}, {R.u(t,rb,0)}, {R.u(t,rb,1)}")
            A.e(f"v_cvt_pk_bf16_f32 {v(d+1)}, {R.u(t,rb,2)}, {R.u(t,rb,3)}")
        d = dst if dst is not None else R.U + (2 * sx * 4 + rb) * 4
        hvals(2 * sx, d)
        if sx < 4: hvals(2 * sx + 1, d + 2)
        return d
    def h_store(G, A, sx, rb, d):
        R = G.R
        if sx < 4:
            A.e(f"s_add_u32 {s(R.sT)}, {s(R.sHoff)}, {sx*16384}")
            A.e(f"buffer_store_dwordx4 {v(d,4)}, v3, {s(R.sWS,4)}, {s(R.sT)} offen offset:{rb*1024}{G.stmod}")
        else:
            A.e(f"buffer_store_dwordx2 {v(d,2)}, v1, {s(R.sWS,4)}, {s(R.sH8)} offen offset:{rb*1024}{G.stmod}")

    def epilogue_q(G, A, qfrag, tmp):
        R = G.R
        c = f32(128 ** -0.5 * 1.4426950408889634)
        A.e(f"s_mov_b32 s86, {hex(c)}"); A.e(f"s_mov_b32 s87, {hex(c)}")
        for sx in range(4):
            for rb in range(4):
                b = tmp
                for h in range(2):
                    for r in range(4):
                        A.e(f"v_accvgpr_read_b32 {v(b+4*h+r)}, {R.qa(2*sx+h,rb,r)}")
                for j in range(0, 8, 2): A.e(f"v_pk_mul_f32 {v(b+j,2)}, {v(b+j,2)}, s[86:87]")
                for j in range(4): A.e(f"v_cvt_pk_bf16_f32 {v(b+8+j)}, {v(b+2*j)}, {v(b+2*j+1)}")
                b += 8
                A.e("s_nop 0")
                A.e(f"v_permlane32_swap_b32 {v(b)}, {v(b+2)}")
                A.e(f"v_permlane32_swap_b32 {v(b+1)}, {v(b+3)}")
                A.e("s_nop 0")
                A.e(f"v_permlane16_swap_b32 {v(b)}, {v(b+2)}")
                A.e(f"v_permlane16_swap_b32 {v(b+1)}, {v(b+3)}")
                for j in range(4): A.e(f"v_accvgpr_write_b32 {a(qfrag(rb,sx)+j)}, {v(b+j)}")
```

```python
from asmgen import *

NSUB = 64
THR = 0x4b800000
ORDER = [0, 2, 1, 3]
MSUM = (0, 1)

class Regs:
    def __init__(R, vbase=8):
        n = vbase
        def al(k, align=1):
            nonlocal n
            n = (n + align - 1) // align * align
            r = n; n += k; return r
        R.S = al(64, 4)
        R.P = al(32, 4)
        R.NEGM = al(16, 4)
        R.SD = al(8, 4)
        R.ONES = al(4, 4)
        R.NT = 32
        R.T = al(R.NT)
        R.PS = al(4)
        R.L = al(4)
        R.KADDR = al(4)
        R.VADDR = al(8)
        R.KDMA = 247
        R.VDMA = 251
        R.CHK = al(1)
        R.TMP = al(12, 4)
        R.vend = n
        R.O = 128
        R.sK = 36
        R.sV = 40
        R.sKoff = 44
        R.sVoff = 45
        R.sM0K = 46
        R.sM0V = 47
        R.sThr = 48
        R.sLoop = 49
        R.sRet = 50
        R.sTmp = 52
    def s(R, par, qb, kb, r=None):
        b = R.S + par * 32 + qb * 8 + kb * 4
        return v(b, 4) if r is None else v(b + r)
    def p(R, par, qb, j=None):
        b = R.P + par * 16 + qb * 4
        return v(b, 4) if j is None else v(b + j)
    def negm(R, qb, r=None):
        return v(R.NEGM + qb * 4, 4) if r is None else v(R.NEGM + qb * 4 + r)
    def o(R, qb, db, r=None):
        b = R.O + (qb * 8 + db) * 4
        return a(b, 4) if r is None else a(b + r)
    def qi(R, qb, ds): return (8 * ds + qb) * 4
    def q(R, qb, ds):
        return a(R.qi(qb, ds), 4)
    def f(R, i, n=4, off=0):
        return a((8 * (i >> 2) + 4 + (i & 3)) * 4 + off, n)
    def psum(R, qb):
        if qb in MSUM: return v(R.SD + MSUM.index(qb) * 4)
        return v(R.PS + qb)

MF = "v_mfma_f32_16x16x32_bf16"

def kslot(u): return (u + 3) & 7
def vslot(u): return u & 7

class Item:
    def __init__(s, kind, text, lo, hi, tag=""):
        s.kind, s.text, s.lo, s.hi, s.tag = kind, text, lo, hi, tag

S0_AFTER, S1_AFTER = 9, 41
def pos(n):
    return n + (1 if n > S0_AFTER else 0) + (1 if n > S1_AFTER else 0)
NG = 66
POS_S0, POS_S1 = S0_AFTER + 1, S1_AFTER + 2
SHIFT = 4

def gap_types():
    t = [None] * NG
    for n in range(64):
        if n % 2 == 0: t[pos(n)] = "E"
    free = [g for g in range(NG) if t[g] is None]
    vv = CFG["vv"]; dm = CFG["dma"]
    for g in free:
        t[g] = "V" if g in vv else ("M" if g in dm else "D")
    return t

CFG = dict(vv=[pos(15), pos(19), pos(23), pos(57), pos(59), pos(61)], dma=[pos(5), pos(11), pos(27), pos(33)])

class AttnGen:
    def __init__(G, R, opt=None):
        G.R = R
        G.opt = opt or {}
        if 'cfg' in G.opt: CFG.update(G.opt['cfg'])
        G.types = gap_types()
        G.late = []
        G.extra_vm = {}; G.extra_bar = set(); G.after_bar = {}
        G.vm_init = []
        G.nD = G.types.count("D")
        assert G.nD >= 24, G.nD

    def mfma_list(G, p, do_pv, do_qk):
        R = G.R; par = p & 1
        L = [None] * NG
        for n in range(32):
            qb = ORDER[n >> 3]; db = n & 7
            c = "0" if p == 1 else R.o(qb, db)
            L[pos(n)] = (f"{MF} {R.o(qb,db)}, {R.f(db)}, {R.p(par^1,qb)}, {c}", ("V", db)) if do_pv else None
        for n in range(32, 64):
            i = (n - 32) >> 2; kb = i >> 2; ds = i & 3; qb = ORDER[n & 3]
            c = R.negm(qb) if ds == 0 else R.s(par^1, qb, kb)
            L[pos(n)] = (f"{MF} {R.s(par^1,qb,kb)}, {R.f(8+i)}, {R.q(qb,ds)}, {c}", ("K", i)) if do_qk else None
        L[POS_S0] = (f"{MF} {v(R.SD,4)}, {v(R.ONES,4)}, {R.p(par,MSUM[0])}, 0", None)
        L[POS_S1] = (f"{MF} {v(R.SD+4,4)}, {v(R.ONES,4)}, {R.p(par,MSUM[1])}, 0", None)
        return L

    def exp_src(G, tile, e):
        qb = ORDER[e >> 3]; kb = (e >> 2) & 1; r = e & 3
        return G.R.s(tile & 1, qb, kb, r)
    def tmp(G, tile, e):
        return v(G.R.T + (tile * 32 + e) % G.R.NT)
    def exp_text(G, tile, e):
        return f"v_exp_f32 {G.tmp(tile,e)}, {G.exp_src(tile,e)}"
    def cvt_text(G, tile, e):
        qb = ORDER[e >> 3]; j = (e & 7) >> 1
        return f"v_cvt_pk_bf16_f32 {G.R.p(tile&1,qb,j)}, {G.tmp(tile,e)}, {G.tmp(tile,e+1)}"
    def exp_time(G, tile, e):
        k = e - SHIFT
        if k < 0: return (tile - 1) * NG + pos(64 + 2 * k)
        return tile * NG + pos(2 * k)

    def valu_items(G, tile):
        R = G.R; it = []; T0 = tile * NG
        nxtI = lambda t: t + 1
        for e in range(0, 32, 2):
            qb = ORDER[e >> 3]
            lo = G.exp_time(tile, e + 1) + 1
            if qb == MSUM[0]: hi = T0 + POS_S0 - 2
            elif qb == MSUM[1]: hi = T0 + POS_S1 - 2
            else: hi = T0 + NG + pos(8 * ORDER.index(qb)) - 2
            hi = min(hi, G.exp_time(tile, e) + 0 + self_reuse(G, tile, e))
            it.append(Item("V", G.cvt_text(tile, e), lo, hi, ("cvt", tile, e)))
        for qb in range(4):
            if qb in MSUM: continue
            b = ORDER.index(qb) * 8
            it.append(Item("V", f"v_add_f32 {R.psum(qb)}, {G.tmp(tile,b)}, {G.tmp(tile,b+1)}", G.exp_time(tile, b + 1) + 1,
                           G.exp_time(tile, b + 1) + 3, ("add", tile, qb, 1)))
            for j in range(2, 8):
                it.append(Item("V", f"v_add_f32 {R.psum(qb)}, {R.psum(qb)}, {G.tmp(tile,b+j)}", G.exp_time(tile, b + j) + 1,
                               G.exp_time(tile, b + j) + 3, ("add", tile, qb, j)))
        vq = [q for q in ORDER if q not in MSUM]
        last = G.exp_time(tile, 31) + 1
        it.append(Item("V", f"v_max3_f32 {v(R.CHK)}, {R.psum(MSUM[0])}, {R.psum(MSUM[1])}, {R.psum(vq[0])}", T0 + POS_S1 + 6, last, ("chk", tile, 0)))
        it.append(Item("V", f"v_max_f32 {v(R.CHK)}, {v(R.CHK)}, {R.psum(vq[1])}", last + 1, last + 2, ("chk", tile, 1)))
        it.append(Item("V", f"v_cmp_lt_f32 vcc, {s(R.sThr)}, {v(R.CHK)}", last + 1, last + 2, ("chk", tile, 2)))
        for qb in range(4):
            if qb == MSUM[0]: hi = T0 + NG + POS_S0 - 1
            elif qb == MSUM[1]: hi = T0 + NG + POS_S1 - 1
            else: hi = G.exp_time(tile + 1, ORDER.index(qb) * 8 + 1)
            it.append(Item("V", f"v_add_f32 {v(R.L+qb)}, {v(R.L+qb)}, {R.psum(qb)}", "afterchk", hi, ("ladd", tile, qb)))
        return it

    def ds_items(G, p):
        R = G.R; it = []
        ks = kslot(p + 1)
        for i in range(8):
            kb, ds = i >> 2, i & 3
            it.append((f"ds_read_b128 {R.f(8+i)}, {v(R.KADDR+ds)} offset:{ks*8192+kb*4096}", ("K", i), p * NG + 1, "K"))
        vs = vslot(p)
        for db in range(8):
            for h in range(2):
                it.append((f"ds_read_b64_tr_b16 {R.f(db,2,2*h)}, {v(R.VADDR+db)} offset:{vs*8192+h*4096}", ("V", db),
                           p * NG + pos(24 + db) + 1, "V"))
        return it

    def dma_items(G, p):
        R = G.R; out = []
        if p % 2 == 0 and p + 5 <= NSUB - 1:
            for n in range(4):
                pre = [f"s_add_u32 m0, {s(R.sM0K)}, {(p & 7) * 8192}"] if n == 0 else []
                post = [f"s_add_u32 {s(R.sKoff)}, {s(R.sKoff)}, 16384"] if n == 3 else []
                out.append((pre, f"buffer_load_dwordx4 {v(R.KDMA+n)}, {s(R.sK,4)}, {s(R.sKoff)} offen offset:{n*1024}{G.opt.get('kvmod','')} lds", ("KV", p // 2), post))
        if p % 2 == 1 and p + 3 <= NSUB - 1:
            for n in range(4):
                pre = [f"s_add_u32 m0, {s(R.sM0V)}, {((p + 3) & 7) * 8192}"] if n == 0 else []
                post = [f"s_add_u32 {s(R.sVoff)}, {s(R.sVoff)}, 16384"] if n == 3 else []
                out.append((pre, f"buffer_load_dwordx4 {v(R.VDMA+(n&1))}, {s(R.sV,4)}, {s(R.sVoff)} offen offset:{n*1024}{G.opt.get('kvmod','')} lds", ("KV", p // 2), post))
        if G.opt.get("nodma"): out = []
        return out + list(G.extra_vm.get(p, []))

    def schedule(G, first=0, last=NSUB - 1):
        R = G.R
        pend = []
        placed = {}
        periods = []
        for t in (first,):
            pend += [x for x in G.valu_items(t) if G.keep_first(x, t)]
        added = first
        G.chk_pos = {}
        for p in range(first, last + 1):
            do_pv = p > 0; do_qk = p < NSUB - 1
            M = G.mfma_list(p, do_pv, do_qk)
            dsq = G.ds_items(p)
            if not do_qk: dsq = [d for d in dsq if d[3] != "K"]
            vmq = G.dma_items(p)
            if p + 1 <= last + 1 and do_qk:
                pend += G.valu_items(p + 1)
            gaps = []
            e_next = {}
            for e in range(32):
                e_next[G.exp_time(p, e)] = (p, e)
                if do_qk: e_next[G.exp_time(p + 1, e)] = (p + 1, e)
            for g in range(NG):
                T = p * NG + g
                gap = dict(mfma=M[g], pre=[], body=[], post=[])
                ty = G.types[g]
                if ty == "E":
                    if T in e_next:
                        gap["body"].append(G.exp_text(*e_next[T]))
                else:
                    nv = 2 if ty == "V" else 1
                    if ty == "M" and G.opt.get("dmaalone"): nv = 0
                    if ty == "D":
                        if dsq and dsq[0][2] <= T:
                            d = dsq.pop(0); gap["body"].append(("DS", d[0], d[1]))
                        else:
                            nv = 2
                    n_m_left = sum(1 for gg in range(g, NG) if G.types[gg] == "M")
                    spare = (ty == "V" and g == G.opt.get("xgap", pos(23)) and len(vmq) > n_m_left)
                    if (ty == "M" or spare or (ty == "D" and nv == 2 and G.opt_fill(p))) and vmq:
                        x = vmq.pop(0)
                        if x[0]:
                            if x[2][0] == "KV": gaps[-1]["pre"] += x[0]
                            else: gap["pre"] += x[0] + ["s_nop 0"]
                        gap["body"].append(("VM", x[1], x[2])); nv = 1
                        gap["next_pre"] = list(x[3])
                    elif ty == "M":
                        nv = 2
                    for _ in range(nv):
                        ready = [x for x in pend if G.ready(x, T, placed)]
                        if not ready: break
                        ready.sort(key=lambda x: x.hi)
                        x = ready[0]; pend.remove(x); placed[x.tag] = T
                        if x.hi < T: G.late.append((x.tag, T, x.hi))
                        gap["body"].append(x.text)
                        if x.tag[0] == "chk" and x.tag[2] == 2:
                            gap["post"].append(("CHECK", p)); G.chk_pos[p] = T
                gaps.append(gap)
            assert not dsq, (p, dsq)
            assert not vmq, (p, vmq)
            for g in range(NG - 1):
                if gaps[g].get("next_pre"): gaps[g + 1]["pre"] = gaps[g]["next_pre"] + gaps[g + 1]["pre"]
            if (p % 2 == 0 or p in G.extra_bar) and not G.opt.get("nobar"):
                gaps[G.opt.get("barpos", 0)]["pre"] += [("VMWAIT", ("KV", p // 2 - 2)), "s_barrier"]
            for g, lst in G.after_bar.get(p, {}).items():
                gaps[g]["body"] = [("VM", x, ("X", p)) for x in lst] + gaps[g]["body"]
            periods.append(gaps)
        G.leftover = pend
        return periods
    late = []
    fill_periods = set()
    def opt_fill(G, p): return p == NSUB - 1 or p in G.fill_periods
    def keep_first(G, x, t):
        return True
    def ready(G, x, T, placed):
        if x.lo == "afterchk":
            k = ("chk", x.tag[1], 2)
            return k in placed and placed[k] + G.opt.get("brdelay", 0) < T
        if x.lo > T: return False
        if x.tag[0] == "add" and x.tag[3] > 1:
            return ("add", x.tag[1], x.tag[2], x.tag[3] - 1) in placed
        if x.tag[0] == "chk" and x.tag[2] > 0:
            if ("chk", x.tag[1], x.tag[2] - 1) not in placed: return False
            vq = [q for q in ORDER if q not in MSUM]
            return ("add", x.tag[1], vq[1], 7) in placed
        if x.tag[0] == "chk" and x.tag[2] == 0:
            vq = [q for q in ORDER if q not in MSUM]
            return ("add", x.tag[1], vq[0], 7) in placed
        return True

def self_reuse(G, tile, e):
    nxt = tile * 32 + e + G.R.NT
    t2, e2 = divmod(nxt, 32)
    return G.exp_time(t2, e2) - G.exp_time(tile, e) - 1


class AttnEmit(AttnGen):
    def linearise(G, periods, first):
        out = []
        fifo = []
        vm = list(G.vm_init)
        done = set()
        seq = []
        for k, gaps in enumerate(periods):
            for g, gap in enumerate(gaps): seq.append((k, g, gap))
        lists = [[] for _ in periods]
        pendchk = None
        vkeys = {}
        for n, (k, g, gap) in enumerate(seq):
            L = lists[k]
            m = gap["mfma"]
            L.append(m[0] if m else "s_nop 0")
            pre = []
            for x in gap["pre"]:
                if isinstance(x, tuple) and x[0] == "VMWAIT":
                    if x[1] in vm:
                        lastv = max(i for i, y in enumerate(vm) if y == x[1])
                        pre.append(f"s_waitcnt vmcnt({len(vm) - 1 - lastv})"); vm = vm[lastv + 1:]
                else:
                    pre.append(x)
            if pendchk is not None:
                if pendchk[1] <= 0:
                    pre.append(("CHECK", pendchk[0])); pendchk = None
                else:
                    pendchk = (pendchk[0], pendchk[1] - 1)
            nxt = seq[n + 1][2]["mfma"] if n + 1 < len(seq) else None
            if nxt and nxt[1] is not None and nxt[1] in fifo:
                last = max(i for i, x in enumerate(fifo) if x == nxt[1])
                cnt = len(fifo) - 1 - last
                if not G.opt.get("nolgkm"): pre.append(f"s_waitcnt lgkmcnt({min(cnt, 15)})")
                fifo = fifo[len(fifo) - min(cnt, 15):] if cnt > 0 else []
            L += pre
            body = gap["body"]
            nval = sum(1 for b in body if isinstance(b, str) and b.startswith("v_"))
            if not pre and nval >= 2 and not isinstance(body[0], tuple):
                L.append("s_nop 0")
            for b in body:
                if isinstance(b, tuple) and b[0] == "VM":
                    L.append(b[1]); vm.append(b[2])
                elif isinstance(b, tuple):
                    L.append(b[1]); fifo.append(b[2])
                else:
                    L.append(b)
            for x in gap["post"]:
                pendchk = (x[1], G.opt.get("brdelay", 0))
        G.final_fifo = fifo; G.final_vm = vm
        assert pendchk is None
        return lists

    def xlane(G, A, reg, t0, op):
        for sw in ("v_permlane32_swap_b32", "v_permlane16_swap_b32"):
            A.e(f"v_mov_b32 {t0}, {reg}")
            A.e("s_nop 1")
            A.e(f"{sw} {t0}, {reg}")
            A.e("s_nop 1")
            A.e(f"{op} {reg}, {t0}, {reg}")

    def rare(G, A, p, redo, label):
        R = G.R; par = p & 1
        t0, t1, dl, fc = v(R.TMP), v(R.TMP + 1), v(R.TMP + 2), v(R.TMP + 3)
        A.label(label)
        A.e("s_nop 15")
        for qb in range(4):
            S = [R.s(par, qb, kb, r) for kb in range(2) for r in range(4)]
            A.e(f"v_max3_f32 {dl}, {S[0]}, {S[1]}, {S[2]}")
            A.e(f"v_max3_f32 {dl}, {dl}, {S[3]}, {S[4]}")
            A.e(f"v_max3_f32 {dl}, {dl}, {S[5]}, {S[6]}")
            A.e(f"v_max3_f32 {dl}, {dl}, {S[7]}, 0")
            G.xlane(A, dl, t0, "v_max_f32")
            A.e(f"v_sub_f32 {fc}, 0, {dl}")
            A.e(f"v_exp_f32 {fc}, {fc}")
            for r in range(4):
                A.e(f"v_sub_f32 {R.negm(qb,r)}, {R.negm(qb,r)}, {dl}")
            for x in S:
                A.e(f"v_sub_f32 {x}, {x}, {dl}")
            for kb in range(2):
                for r in range(4):
                    x = R.s(par ^ 1, qb, kb, r)
                    A.e(f"v_sub_f32 {x}, {x}, {dl}")
            A.e(f"v_mul_f32 {v(R.L+qb)}, {v(R.L+qb)}, {fc}")
            for db in range(8):
                for r in range(4):
                    A.e(f"v_accvgpr_read_b32 {t1}, {R.o(qb,db,r)}")
                    A.e(f"v_mul_f32 {t1}, {t1}, {fc}")
                    A.e(f"v_accvgpr_write_b32 {R.o(qb,db,r)}, {t1}")
        for b in range(4):
            qb = ORDER[b]
            ps = R.psum(qb)
            for j in range(8):
                e = b * 8 + j
                A.e(G.exp_text(p, e))
                A.e("s_nop 0")
                if j == 1:
                    A.e(f"v_add_f32 {ps}, {G.tmp(p,e-1)}, {G.tmp(p,e)}")
                elif j > 1:
                    A.e(f"v_add_f32 {ps}, {ps}, {G.tmp(p,e)}")
                if j & 1:
                    A.e(G.cvt_text(p, e - 1))
            if qb in MSUM:
                G.xlane(A, ps, t0, "v_add_f32")
        for x in redo:
            A.e(x)
            A.e("s_nop 0")
        A.e("s_nop 3")
        A.e(f"s_setpc_b64 {s(R.sRet,2)}")

    def setup_reads(G, A, lane):
        R = G.R
        t = [v(R.TMP + i) for i in range(8)]
        m, g, i2 = t[0], t[1], t[2]
        A.e(f"v_and_b32 {m}, 15, {lane}")
        A.e(f"v_lshrrev_b32 {g}, 4, {lane}")
        for ds in range(4):
            A.e(f"v_add_u32 {t[4]}, {4*ds}, {g}")
            A.e(f"v_xor_b32 {t[4]}, {t[4]}, {m}")
            A.e(f"v_lshlrev_b32 {t[4]}, 4, {t[4]}")
            A.e(f"v_lshl_add_u32 {v(R.KADDR+ds)}, {m}, 8, {t[4]}")
        A.e(f"v_lshrrev_b32 {i2}, 2, {m}")
        A.e(f"v_lshl_add_u32 {t[4]}, {g}, 2, {i2}")
        A.e(f"v_and_b32 {t[5]}, 7, {t[4]}")
        A.e(f"v_lshlrev_b32 {t[4]}, 8, {t[4]}")
        A.e(f"v_add_u32 {t[4]}, 0x10000, {t[4]}")
        A.e(f"v_bfe_u32 {t[6]}, {m}, 1, 1")
        A.e(f"v_lshl_add_u32 {t[4]}, {t[6]}, 4, {t[4]}")
        A.e(f"v_and_b32 {t[6]}, 1, {m}")
        A.e(f"v_lshl_add_u32 {t[4]}, {t[6]}, 3, {t[4]}")
        for db in range(8):
            A.e(f"v_xor_b32 {t[6]}, {db}, {t[5]}")
            A.e(f"v_lshl_add_u32 {v(R.VADDR+db)}, {t[6]}, 5, {t[4]}")

    def setup_dma(G, A, lane, wave_s, tbase):
        R = G.R
        m, g, t4, t5 = v(tbase), v(tbase + 1), v(tbase + 2), v(tbase + 3)
        A.e(f"v_and_b32 {m}, 15, {lane}")
        A.e(f"v_lshrrev_b32 {g}, 4, {lane}")
        A.e(f"s_lshl_b32 {s(R.sTmp)}, {wave_s}, 12")
        A.e(f"v_lshl_add_u32 {t4}, {g}, 8, {s(R.sTmp)}")
        for n in range(4):
            A.e(f"v_add_u32 {t5}, {4*n}, {g}")
            A.e(f"v_xor_b32 {t5}, {t5}, {m}")
            A.e(f"v_lshl_add_u32 {v(R.KDMA+n)}, {t5}, 4, {t4}")
        for n in range(2):
            A.e(f"v_add_u32 {t5}, {4*n}, {g}")
            A.e(f"v_lshlrev_b32 {t5}, 1, {t5}")
            A.e(f"v_xor_b32 {t5}, {t5}, {m}")
            A.e(f"v_lshl_add_u32 {v(R.VDMA+n)}, {t5}, 4, {t4}")
        A.e(f"s_mov_b32 {s(R.sM0K)}, {s(R.sTmp)}")
        A.e(f"s_add_u32 {s(R.sM0V)}, {s(R.sTmp)}, 0x10000")
        A.e(f"s_mov_b32 {s(R.sThr)}, {THR}")

    def initial_dma_ops(G):
        R = G.R; ops = []
        for pair in range(3):
            base = kslot(2 * pair) * 8192
            for n in range(4):
                pre = [f"s_add_u32 m0, {s(R.sM0K)}, {base}", "s_and_b32 m0, m0, 0xffff", f"s_mov_b32 {s(R.sTmp)}, {pair*16384}"] if n == 0 else []
                ops.append((pre, f"buffer_load_dwordx4 {v(R.KDMA+n)}, {s(R.sK,4)}, {s(R.sTmp)} offen offset:{n*1024}{G.opt.get('kvmod','')} lds"))
        for pair in range(2):
            for n in range(4):
                pre = [f"s_add_u32 m0, {s(R.sM0V)}, {pair*16384}", f"s_mov_b32 {s(R.sTmp)}, {pair*16384}"] if n == 0 else []
                ops.append((pre, f"buffer_load_dwordx4 {v(R.VDMA+(n&1))}, {s(R.sV,4)}, {s(R.sTmp)} offen offset:{n*1024}{G.opt.get('kvmod','')} lds"))
        return ops

    def init_offsets(G, A):
        R = G.R
        A.e(f"s_mov_b32 {s(R.sKoff)}, {5*8192}")
        A.e(f"s_mov_b32 {s(R.sVoff)}, {4*8192}")

    def initial_dma(G, A):
        for pre, ins in G.initial_dma_ops():
            for x in pre: A.e(x)
            A.e(ins)
        G.init_offsets(A)

    def prologue(G, A, vmcnt=0):
        R = G.R
        A.e(f"s_waitcnt vmcnt({vmcnt})")
        A.e("s_barrier")
        ks = kslot(0)
        for i in range(8):
            kb, ds = i >> 2, i & 3
            A.e(f"ds_read_b128 {R.f(8+i)}, {v(R.KADDR+ds)} offset:{ks*8192+kb*4096}")
        for i in range(4): A.e(f"v_mov_b32 {v(R.ONES+i)}, 0x3f803f80")
        for i in range(4): A.e(f"v_mov_b32 {v(R.L+i)}, 0")
        A.e("s_waitcnt lgkmcnt(0)")
        for i in range(8):
            kb, ds = i >> 2, i & 3
            for qb in range(4):
                c = "0" if ds == 0 else R.s(0, qb, kb)
                A.e(f"{MF} {R.s(0,qb,kb)}, {R.f(8+i)}, {R.q(qb,ds)}, {c}")
        A.e("s_nop 7")
        t0, dl = v(R.TMP), v(R.TMP + 2)
        for qb in range(4):
            S = [R.s(0, qb, kb, r) for kb in range(2) for r in range(4)]
            A.e(f"v_max3_f32 {dl}, {S[0]}, {S[1]}, {S[2]}")
            A.e(f"v_max3_f32 {dl}, {dl}, {S[3]}, {S[4]}")
            A.e(f"v_max3_f32 {dl}, {dl}, {S[5]}, {S[6]}")
            A.e(f"v_max_f32 {dl}, {dl}, {S[7]}")
            G.xlane(A, dl, t0, "v_max_f32")
            for r in range(4): A.e(f"v_sub_f32 {R.negm(qb,r)}, 0, {dl}")
            for x in S: A.e(f"v_sub_f32 {x}, {x}, {dl}")
        for e in range(SHIFT):
            A.e(G.exp_text(0, e))
        A.e("s_nop 1")

    def body(G, A, prefix):
        R = G.R
        G.late = []
        periods = G.schedule()
        lists = G.linearise(periods, 0)
        G.late_report = list(G.late)
        G.lists = lists
        rare = {}
        G.stubs = []
        def emit(p, tagp):
            L = lists[p]
            for k, x in enumerate(L):
                if isinstance(x, tuple):
                    tile = x[1]
                    redo = [y for y in L[:k] if isinstance(y, str) and G.is_next_tile(y, tile)]
                    key = (tile & 1, tuple(redo))
                    if key not in rare: rare[key] = (f"{prefix}_rare{len(rare)}", tile, redo)
                    if G.opt.get("nochk"): continue
                    if G.opt.get("farbranch"):
                        A.e(f"s_cbranch_vccnz {prefix}_stub{tagp}")
                        A.label(f"{prefix}_ok{tagp}")
                        G.stubs.append((f"{prefix}_stub{tagp}", rare[key][0], f"{prefix}_ok{tagp}"))
                        continue
                    A.e(f"s_cbranch_vccz {prefix}_ok{tagp}")
                    A.e(f"s_call_b64 {s(R.sRet,2)}, {rare[key][0]}")
                    A.label(f"{prefix}_ok{tagp}")
                else:
                    A.e(x)
        return lists, rare, emit

    def is_next_tile(G, text, tile):
        for e in range(SHIFT):
            if text == G.exp_text(tile + 1, e): return True
        for e in range(0, SHIFT, 2):
            if text == G.cvt_text(tile + 1, e): return True
        return False


    def emit_all(G, A, prefix, pv_fill=None, gate=None, final=True):
        R = G.R
        lists, rare, emit = G.body(A, prefix)
        G.rare_paths = rare
        txt = lambda p: [x if isinstance(x, str) else ("CHECK",) for x in lists[p]]
        for p in range(2, 50):
            assert txt(p) == txt(p + 8), p
        emit(0, "p0"); emit(1, "p1")
        A.e(f"s_mov_b32 {s(R.sLoop)}, 7")
        A.e(".p2align 6")
        A.label(f"{prefix}_loop")
        for p in range(2, 10): emit(p, f"l{p}")
        A.e(f"s_sub_u32 {s(R.sLoop)}, {s(R.sLoop)}, 1")
        A.e(f"s_cmp_lg_u32 {s(R.sLoop)}, 0")
        A.e(f"s_cbranch_scc1 {prefix}_loop")
        for p in range(58, 64): emit(p, f"t{p}")
        pend = list(G.leftover)
        order = {"cvt": 0, "ladd": 1}
        pend.sort(key=lambda x: order[x.tag[0]])
        for x in pend: A.e(x.text)
        if final: G.final_pv(A, pv_fill, gate)

    def final_pv(G, A, pv_fill=None, gate=None):
        R = G.R
        A.e("s_waitcnt lgkmcnt(0)")
        A.e("s_nop 1")
        if gate: gate(A)
        par = (NSUB - 1) & 1
        for n in range(32):
            qb = ORDER[n >> 3]; db = n & 7
            A.e(f"{MF} {R.o(qb,db)}, {R.f(db)}, {R.p(par,qb)}, {R.o(qb,db)}")
            if pv_fill and (n % 2 == 1 or len(pv_fill) > 16):
                for x in pv_fill.pop(0): A.e(x)
        while pv_fill:
            for x in pv_fill.pop(0): A.e(x)

    def emit_rare(G, A):
        for st, tgt, back in G.stubs:
            A.label(st)
            A.e(f"s_call_b64 {s(G.R.sRet,2)}, {tgt}")
            A.e(f"s_branch {back}")
        for key, (label, tile, redo) in G.rare_paths.items():
            G.rare(A, tile, redo, label)

    def trace(G):
        out = []
        for L in G.lists:
            for x in L:
                out.append(x if isinstance(x, str) else "s_cbranch_vccz x")
        return out

    def epilogue(G, A, srd, voff, soff_reg):
        R = G.R
        t0 = v(R.TMP)
        for qb in range(4):
            l = v(R.L + qb)
            if qb not in MSUM: G.xlane(A, l, t0, "v_add_f32")
            A.e(f"v_rcp_f32 {l}, {l}")
        A.e("s_nop 7")
        buf = [R.S, R.S + 8, R.S + 16, R.S + 24]
        k = 0
        for qb in range(4):
            for sx in range(4):
                b = R.S + (k % 8) * 8; k += 1
                for h in range(2):
                    for r in range(4):
                        A.e(f"v_accvgpr_read_b32 {v(b+4*h+r)}, {R.o(qb,2*sx+h,r)}")
                for j in range(8):
                    A.e(f"v_mul_f32 {v(b+j)}, {v(b+j)}, {v(R.L+qb)}")
                for j in range(4):
                    A.e(f"v_cvt_pk_bf16_f32 {v(b+j)}, {v(b+2*j)}, {v(b+2*j+1)}")
                A.e(f"s_add_u32 {s(R.sTmp)}, {soff_reg}, {sx*16384}")
                A.e(f"buffer_store_dwordx4 {v(b,4)}, {voff}, {srd}, {s(R.sTmp)} offen offset:{qb*1024}{G.opt.get('stmod','')}")

    def linv_groups(G, linv):
        R = G.R
        vq = [q for q in range(4) if q not in MSUM]
        t = [v(R.TMP), v(R.TMP + 1)]
        out = []
        for sw in ("v_permlane32_swap_b32", "v_permlane16_swap_b32"):
            out.append([f"v_mov_b32 {t[i]}, {v(R.L+q)}" for i, q in enumerate(vq)])
            out.append(["s_nop 1"] + [f"{sw} {t[i]}, {v(R.L+q)}" for i, q in enumerate(vq)])
            out.append(["s_nop 1"] + [f"v_add_f32 {v(R.L+q)}, {t[i]}, {v(R.L+q)}" for i, q in enumerate(vq)])
        out.append([f"v_rcp_f32 {v(linv+q)}, {v(R.L+q)}" for q in MSUM])
        out.append([f"v_rcp_f32 {v(linv+q)}, {v(R.L+q)}" for q in vq])
        return out

    def epilogue_pack(G, A, dst, tmp, linv, fill, store=None, linv_done=False):
        R = G.R
        if not linv_done:
            for g_ in G.linv_groups(linv):
                for x in g_: A.e(x)
        A.e("s_nop 7")
        k = 0
        for sx in range(4):
            for qb in ORDER:
                b = tmp + (k % 2) * 8; k += 1
                d = dst + 4 * (4 * sx + qb)
                for h in range(2):
                    for r in range(4):
                        A.e(f"v_accvgpr_read_b32 {v(b+4*h+r)}, {R.o(qb,2*sx+h,r)}")
                lp = linv + (qb & ~1); hi = qb & 1
                for j in range(0, 8, 2):
                    A.e(f"v_pk_mul_f32 {v(b+j,2)}, {v(b+j,2)}, {v(lp,2)} op_sel:[0,{hi}] op_sel_hi:[1,{hi}]")
                for j in range(4):
                    A.e(f"v_cvt_pk_bf16_f32 {v(d+j)}, {v(b+2*j)}, {v(b+2*j+1)}")
                if store: store(sx, qb, d)
                if fill:
                    for x in fill.pop(0): A.e(x)
        while fill:
            for x in fill.pop(0): A.e(x)
```

```python
from asmgen import *
from layout import *
import struct
def f32(x): return struct.unpack("<I", struct.pack("<f", x))[0]

MF = "v_mfma_f32_16x16x32_bf16"
STAGE = 53248
BLK_U = 18432
BLK_Q = 36864
NKS = 18

class RegsA:
    def __init__(R):
        R.QA = 0
        R.GA = 128
        n = 8
        R.U = n; n += 144
        R.GV = n; n += 16
        R.B = n; n += 48
        R.A = n; n += 16
        R.DG = n; n += 4
        R.DX = n; n += 1
        R.DQ = n; n += 4
        R.LG = n; n += 1; R.GA_ADDR = n; n += 1
        R.LQ = n; n += 1; R.QA_ADDR = n; n += 1
        R.QT = n; n += 2
        R.vend = n
        R.sG = 60; R.sU = 64; R.sX = 68; R.sQ = 72
        R.sWS = 16
        R.sM0G = 76; R.sM0X = 77; R.sM0Q = 78
        R.sXoff = 79
        R.sT = 80; R.sT2 = 81; R.sHoff = 82; R.sH8 = 83
    def g(R, t, rb, r=None):
        if t < 8:
            b = R.GA + (t * 4 + rb) * 4
            return a(b, 4) if r is None else a(b + r)
        b = R.GV + rb * 4
        return v(b, 4) if r is None else v(b + r)
    def u(R, t, rb, r=None):
        b = R.U + (t * 4 + rb) * 4
        return v(b, 4) if r is None else v(b + r)
    def qa(R, dt, rb, r=None):
        b = R.QA + (dt * 4 + rb) * 4
        return a(b, 4) if r is None else a(b + r)
    def b(R, ks, rb): return v(R.B + (ks % 3) * 16 + rb * 4, 4)
    def af(R, gi, h=None):
        b = R.A + (gi % 4) * 4
        return v(b, 4) if h is None else v(b + 2 * h, 2)

TILES = [x for t in range(9) for x in (("G", t), ("U", t))] + [("Q", dt) for dt in range(8)]
NT = len(TILES)

class Lin:
    def __init__(L):
        L.out = []; L.ds = []; L.vm = []
    def e(L, t): L.out.append(t)
    def ds_op(L, t, key): L.out.append(t); L.ds.append(key)
    def vm_op(L, t, key): L.out.append(t); L.vm.append(key)
    def need_ds(L, key):
        if key in L.ds:
            last = max(i for i, x in enumerate(L.ds) if x == key)
            cnt = len(L.ds) - 1 - last
            assert cnt <= 15
            L.out.append(f"s_waitcnt lgkmcnt({cnt})")
            L.ds = L.ds[last + 1:]
    def need_vm(L, key):
        if key in L.vm:
            last = max(i for i, x in enumerate(L.vm) if x == key)
            cnt = len(L.vm) - 1 - last
            assert cnt <= 63, cnt
            L.out.append(f"s_waitcnt vmcnt({cnt})")
            L.vm = L.vm[last + 1:]

class PhaseA:
    def __init__(G, R, vm_period=2):
        G.R = R; G.vm_period = vm_period; G.stmod = ''; G.dist = 3; G.ldmod = ''; G.xmod = ''; G.noq = False; G.late_bar = False; G.w0poll = None

    def setup(G, A, lane, wave, head, rt, ptr):
        R = G.R
        t = [v(R.B + i) for i in range(12)]
        for srd, nm, size in ((R.sG, "Wg", 576 * 9216), (R.sU, "Wu", 576 * 9216), (R.sQ, "wq", 576 * 8192)):
            p = ptr(nm)
            A.e(f"s_mov_b32 {s(srd)}, {s(p)}"); A.e(f"s_mov_b32 {s(srd+1)}, {s(p+1)}")
            A.e(f"s_mov_b32 {s(srd+2)}, {size}"); A.e(f"s_mov_b32 {s(srd+3)}, 0x20000")
        A.e(f"s_cmp_lt_u32 {wave}, 2")
        A.e(f"s_cselect_b32 {s(R.sX)}, {s(R.sG)}, {s(R.sU)}")
        A.e(f"s_cselect_b32 {s(R.sX+1)}, {s(R.sG+1)}, {s(R.sU+1)}")
        A.e(f"s_mov_b32 {s(R.sX+2)}, {576*9216}"); A.e(f"s_mov_b32 {s(R.sX+3)}, 0x20000")
        A.e(f"s_lshl_b32 {s(R.sM0G)}, {wave}, 12")
        A.e(f"s_and_b32 {s(R.sT)}, {wave}, 1"); A.e(f"s_add_u32 {s(R.sT)}, {s(R.sT)}, 16"); A.e(f"s_lshl_b32 {s(R.sM0X)}, {s(R.sT)}, 10")
        A.e(f"s_cmp_lt_u32 {wave}, 2")
        A.e(f"s_cselect_b32 {s(R.sT2)}, 0, {BLK_U}")
        A.e(f"s_add_u32 {s(R.sM0X)}, {s(R.sM0X)}, {s(R.sT2)}")
        A.e(f"s_lshl_b32 {s(R.sM0Q)}, {wave}, 12"); A.e(f"s_add_u32 {s(R.sM0Q)}, {s(R.sM0Q)}, {BLK_Q}")
        A.e(f"s_mul_i32 {s(R.sT2)}, {head}, 288")
        A.e(f"s_and_b32 s87, {head}, 1"); A.e("s_lshl_b32 s87, s87, 1")
        def gu(dst, idx_s, idx_c, comp):
            A.e(f"s_lshl_b32 s84, {idx_s}, 6")
            A.e(f"v_add_u32 {t[0]}, s84, {lane}")
            if idx_c: A.e(f"v_add_u32 {t[0]}, {64*idx_c}, {t[0]}")
            A.e(f"v_mul_u32_u24 {t[1]}, 3641, {t[0]}")
            A.e(f"v_lshrrev_b32 {t[1]}, 16, {t[1]}")
            A.e(f"v_mul_u32_u24 {t[2]}, 18, {t[1]}")
            A.e(f"v_sub_u32 {t[2]}, {t[0]}, {t[2]}")
            A.e(f"v_add_u32 {t[2]}, s87, {t[2]}")
            A.e(f"v_subrev_u32 {t[5]}, 18, {t[2]}")
            A.e(f"v_min_u32 {t[2]}, {t[2]}, {t[5]}")
            A.e(f"v_mul_u32_u24 {t[1]}, 9216, {t[1]}")
            A.e(f"v_lshl_add_u32 {t[1]}, {t[2]}, 4, {t[1]}")
            A.e(f"v_add_u32 {dst}, {s(R.sT2)}, {t[1]}")
            if comp: A.e(f"v_subrev_u32 {dst}, {comp}, {dst}")
        A.e(f"s_lshl_b32 s85, {wave}, 2")
        for n in range(4): gu(v(R.DG + n), "s85", n, n * 1024)
        gu(v(R.DX), s(R.sT), 0, 0)
        m, g = t[3], t[4]
        A.e(f"v_and_b32 {m}, 15, {lane}"); A.e(f"v_lshrrev_b32 {g}, 4, {lane}")
        A.e(f"s_lshl_b32 s84, {wave}, 4")
        A.e(f"s_lshl_b32 s85, {head}, 8")
        for n in range(4):
            A.e(f"v_add_u32 {t[0]}, {4*n}, {g}")
            A.e(f"v_and_b32 {t[1]}, 7, {t[0]}")
            A.e(f"v_lshlrev_b32 {t[1]}, 1, {t[1]}")
            A.e(f"v_xor_b32 {t[1]}, {t[1]}, {m}")
            A.e(f"v_add_u32 {t[0]}, s84, {t[0]}")
            A.e(f"v_lshlrev_b32 {t[0]}, 13, {t[0]}")
            A.e(f"v_lshl_add_u32 {t[0]}, {t[1]}, 4, {t[0]}")
            A.e(f"v_add_u32 {v(R.DQ+n)}, s85, {t[0]}")
            if n: A.e(f"v_subrev_u32 {v(R.DQ+n)}, {n*1024}, {v(R.DQ+n)}")
        A.e(f"v_lshrrev_b32 {t[0]}, 2, {m}")
        A.e(f"v_lshl_add_u32 {t[0]}, {g}, 2, {t[0]}")
        A.e(f"v_mul_u32_u24 {t[1]}, 288, {t[0]}")
        A.e(f"v_and_b32 {t[2]}, 3, {m}")
        A.e(f"v_lshl_add_u32 {v(R.LG)}, {t[2]}, 3, {t[1]}")
        A.e(f"v_lshlrev_b32 {t[1]}, 8, {t[0]}")
        A.e(f"v_and_b32 {t[2]}, 7, {t[0]}")
        A.e(f"v_lshl_add_u32 {t[1]}, {t[2]}, 5, {t[1]}")
        A.e(f"v_bfe_u32 {t[2]}, {m}, 1, 1")
        A.e(f"v_lshl_add_u32 {t[1]}, {t[2]}, 4, {t[1]}")
        A.e(f"v_and_b32 {t[2]}, 1, {m}")
        A.e(f"v_lshl_add_u32 {t[1]}, {t[2]}, 3, {t[1]}")
        A.e(f"v_add_u32 {v(R.LQ)}, {BLK_Q}, {t[1]}")
        A.e(f"s_lshl_b32 {s(R.sXoff)}, {rt}, 2"); A.e(f"s_add_u32 {s(R.sXoff)}, {s(R.sXoff)}, {wave}")
        A.e(f"s_mul_i32 {s(R.sXoff)}, {s(R.sXoff)}, {18*4096}")
        if XN_OFF: A.e(f"s_add_u32 {s(R.sXoff)}, {s(R.sXoff)}, {XN_OFF}")
        A.e(f"s_mul_i32 s84, {rt}, 144")
        A.e(f"s_lshr_b32 s85, {head}, 1"); A.e("s_mul_i32 s85, s85, 9"); A.e("s_add_u32 s84, s84, s85")
        A.e("s_lshl_b32 s84, s84, 14")
        A.e(f"s_lshl_b32 s85, {wave}, 12"); A.e("s_add_u32 s84, s84, s85")
        A.e(f"s_add_u32 s84, s84, {H_OFF}")
        A.e(f"s_and_b32 s85, {head}, 1")
        A.e(f"s_mul_i32 {s(R.sT)}, s85, {5*16384}"); A.e(f"s_add_u32 {s(R.sHoff)}, s84, {s(R.sT)}")
        A.e(f"s_lshl_b32 {s(R.sT)}, s85, 9"); A.e(f"s_add_u32 {s(R.sH8)}, s84, {s(R.sT)}"); A.e(f"s_add_u32 {s(R.sH8)}, {s(R.sH8)}, {4*16384}")

    def dma_ops(G, st):
        R = G.R; slot = (st % 3) * STAGE
        so_g = st * 64 * 9216; so_q = st * 64 * 8192
        ops = []
        for n in range(4):
            pre = [f"s_add_u32 m0, {s(R.sM0G)}, {slot}", f"s_mov_b32 {s(R.sT)}, {so_g}"] if n == 0 else []
            ops.append((pre, f"buffer_load_dwordx4 {v(R.DG+n)}, {s(R.sG,4)}, {s(R.sT)} offen offset:{n*1024}{G.ldmod} lds"))
        for n in range(4):
            pre = [f"s_add_u32 m0, {s(R.sM0G)}, {slot + BLK_U}"] if n == 0 else []
            ops.append((pre, f"buffer_load_dwordx4 {v(R.DG+n)}, {s(R.sU,4)}, {s(R.sT)} offen offset:{n*1024}{G.ldmod} lds"))
        ops.append(([f"s_add_u32 m0, {s(R.sM0X)}, {slot}"], f"buffer_load_dwordx4 {v(R.DX)}, {s(R.sX,4)}, {s(R.sT)} offen{G.ldmod} lds"))
        for n in range(4):
            pre = [f"s_add_u32 m0, {s(R.sM0Q)}, {slot}", f"s_mov_b32 {s(R.sT2)}, {so_q}"] if n == 0 else []
            ops.append((pre, f"buffer_load_dwordx4 {v(R.DQ+n)}, {s(R.sQ,4)}, {s(R.sT2)} offen offset:{n*1024}{G.ldmod} lds"))
        return ops

    def x_ops(G, ks, lane16):
        R = G.R
        return [([f"s_add_u32 s86, {s(R.sXoff)}, {ks*4096}"],
                 f"buffer_load_dwordx4 {R.b(ks,rb)}, {lane16}, {s(R.sWS,4)}, s86 offen offset:{rb*1024}{G.xmod}") for rb in range(4)]

    def read_ops(G, gi):
        R = G.R; ks, n = divmod(gi, NT); st, kk = divmod(ks, 2)
        kind, t = TILES[n]; pre = []
        if n == 0 and kk == 0:
            pre.append(f"v_add_u32 {v(R.GA_ADDR)}, {(st%3)*STAGE}, {v(R.LG)}")
            pre.append(f"v_add_u32 {v(R.QA_ADDR)}, {(st%3)*STAGE}, {v(R.LQ)}")
        if kind == "Q":
            tmp = v(R.QT + (t & 1))
            pre.append(f"v_xor_b32 {tmp}, {t*32}, {v(R.QA_ADDR)}")
            rd = [f"ds_read_b64_tr_b16 {R.af(gi,h)}, {tmp} offset:{kk*8192 + h*4096}" for h in range(2)]
        else:
            blk = 0 if kind == "G" else BLK_U
            rd = [f"ds_read_b64_tr_b16 {R.af(gi,h)}, {v(R.GA_ADDR)} offset:{blk + (32*kk + 16*h)*288 + 32*t}" for h in range(2)]
        return pre, rd

    def main(G, L, lane16, fused, stamp=None, extra=None, tail_ops=None):
        R = G.R
        def issue(ops, key):
            for pre, ins in ops:
                for x in pre: L.e(x)
                if pre: L.e("s_nop 0")
                L.vm_op(ins, key)
        for st in range(G.pre_w): issue(G.dma_ops(st), ("W", st))
        fused[0](L)
        L.vm = []
        if G.w0poll:
            w0poll, lab = G.w0poll
            L.e("s_cmp_eq_u32 s12, 0"); L.e(f"s_cbranch_scc1 {lab}_w0")
            issue(G.dma_ops(1), ("W", 1)); L.vm = []
            L.e("s_barrier")
            issue(G.x_ops(0, lane16), ("X", 0)); issue(G.x_ops(1, lane16), ("X", 1)); L.vm = []
            L.e("s_waitcnt vmcnt(4)")
            L.e(f"s_branch {lab}_join")
            L.e(f"{lab}_w0:")
            w0poll(L)
            L.e("s_barrier")
            issue(G.x_ops(0, lane16), ("X", 0)); issue(G.x_ops(1, lane16), ("X", 1))
            issue(G.dma_ops(1), ("W", 1)); L.vm = []
            L.e("s_waitcnt vmcnt(17)")
            L.e(f"{lab}_join:")
            L.vm = [("W", 1)] * 13 + [("X", 1)] * 4
        else:
            for st in range(G.pre_w, G.pre_w + G.mid_w): issue(G.dma_ops(st), ("W", st))
            fused[1](L)
            L.vm = []
            issue(G.x_ops(0, lane16), ("X", 0))
            issue(G.x_ops(1, lane16), ("X", 1))
        late_w = [(p, i, ("W", st)) for st in range(G.pre_w + G.mid_w, 3) for p, i in G.dma_ops(st)]
        if stamp: stamp(L)
        L.need_vm(("X", 0))
        DIST = G.dist
        total = NKS * NT
        for gi in range(DIST):
            pre, rd = G.read_ops(gi)
            for x in pre: L.e(x)
            for x in rd: L.ds_op(x, ("A", gi))
        vmq = list(late_w); staged = None
        for ks in range(NKS):
            if stamp and ks > 0: stamp(L)
            if ks + 2 < NKS: vmq = [(p, i, ("X", ks + 2)) for p, i in G.x_ops(ks + 2, lane16)] + vmq
            if extra and ks in extra: vmq += extra[ks]
            for n in range(NT):
                gi = ks * NT + n
                nx = gi + DIST
                rd = None
                if nx < total:
                    pre, rd = G.read_ops(nx)
                    newstage = (nx % (2 * NT) == 0)
                kind, t = TILES[n]
                for rb in range(4):
                    if rb == 0:
                        L.need_ds(("A", gi))
                        if n == 0:
                            assert not [x for x in vmq if x[2] == ("X", ks)] and not (staged and staged[1] == ("X", ks)), ("X not issued", ks)
                            L.need_vm(("X", ks))
                    acc = R.g(t, rb) if kind == "G" else (R.u(t, rb) if kind == "U" else R.qa(t, rb))
                    c = "0" if ks == 0 else acc
                    L.e(f"{MF} {acc}, {R.af(gi)}, {R.b(ks,rb)}, {c}")
                    if rd:
                        late = newstage and G.late_bar
                        if rb == (1 if late else 0):
                            if newstage:
                                ns = nx // (2 * NT)
                                assert not [x for x in vmq if x[2] == ("W", ns)] and not (staged and staged[1] == ("W", ns)), ("W not issued", ns)
                                L.need_vm(("W", ns))
                                L.e("s_waitcnt lgkmcnt(0)"); L.ds = []
                                L.e("s_barrier")
                                if ns + 2 <= 8: vmq += [(p, i, ("W", ns + 2)) for p, i in G.dma_ops(ns + 2)]
                                if ns == 8 and tail_ops: vmq += [(p, i, ("T", 0)) for p, i in tail_ops]
                            for x in pre: L.e(x)
                        if rb == (2 if late else 1): L.ds_op(rd[0], ("A", nx))
                        if rb == (3 if late else 2): L.ds_op(rd[1], ("A", nx))
                    if rb == 0 and staged is not None:
                        L.vm_op(*staged); staged = None
                    period = G.vm_period
                    if rb == 3 and vmq and (n >= 1 or vmq[0][2][0] != "X") and (n % period == period - 1 or ks >= NKS - 2 or ks < 2) and gi + 1 < total:
                        p, i, key = vmq.pop(0)
                        for x in p: L.e(x)
                        staged = (i, key)
            assert not [x for x in vmq if x[2][0] == "X" and x[2][1] <= ks + 1], ks
        assert not vmq and staged is None

    def h_unit(G, A, sx, rb, dst=None):
        R = G.R
        def hvals(t, d):
            x = R.DG
            for r in range(4):
                if t < 8:
                    A.e(f"v_accvgpr_read_b32 {v(x+r)}, {R.g(t,rb,r)}")
            for r in range(4):
                A.e(f"v_max_f32 {v(x+r)}, 0, {v(x+r) if t < 8 else R.g(t,rb,r)}")
            ub = R.U + (t * 4 + rb) * 4
            for r in (0, 2):
                A.e(f"v_pk_mul_f32 {v(ub+r,2)}, {v(x+r,2)}, {v(ub+r,2)}")
            A.e(f"v_cvt_pk_bf16_f32 {v(d)}, {R.u(t,rb,0)}, {R.u(t,rb,1)}")
            A.e(f"v_cvt_pk_bf16_f32 {v(d+1)}, {R.u(t,rb,2)}, {R.u(t,rb,3)}")
        d = dst if dst is not None else R.U + (2 * sx * 4 + rb) * 4
        hvals(2 * sx, d)
        if sx < 4: hvals(2 * sx + 1, d + 2)
        return d
    def h_store(G, A, sx, rb, d):
        R = G.R
        if sx < 4:
            A.e(f"s_add_u32 {s(R.sT)}, {s(R.sHoff)}, {sx*16384}")
            A.e(f"buffer_store_dwordx4 {v(d,4)}, v3, {s(R.sWS,4)}, {s(R.sT)} offen offset:{rb*1024}{G.stmod}")
        else:
            A.e(f"buffer_store_dwordx2 {v(d,2)}, v1, {s(R.sWS,4)}, {s(R.sH8)} offen offset:{rb*1024}{G.stmod}")

    def epilogue_q(G, A, qfrag, tmp):
        R = G.R
        c = f32(128 ** -0.5 * 1.4426950408889634)
        A.e(f"s_mov_b32 s86, {hex(c)}"); A.e(f"s_mov_b32 s87, {hex(c)}")
        for sx in range(4):
            for rb in range(4):
                b = tmp
                for h in range(2):
                    for r in range(4):
                        A.e(f"v_accvgpr_read_b32 {v(b+4*h+r)}, {R.qa(2*sx+h,rb,r)}")
                for j in range(0, 8, 2): A.e(f"v_pk_mul_f32 {v(b+j,2)}, {v(b+j,2)}, s[86:87]")
                for j in range(4): A.e(f"v_cvt_pk_bf16_f32 {v(b+8+j)}, {v(b+2*j)}, {v(b+2*j+1)}")
                b += 8
                A.e("s_nop 0")
                A.e(f"v_permlane32_swap_b32 {v(b)}, {v(b+2)}")
                A.e(f"v_permlane32_swap_b32 {v(b+1)}, {v(b+3)}")
                A.e("s_nop 0")
                A.e(f"v_permlane16_swap_b32 {v(b)}, {v(b+2)}")
                A.e(f"v_permlane16_swap_b32 {v(b+1)}, {v(b+3)}")
                for j in range(4): A.e(f"v_accvgpr_write_b32 {a(qfrag(rb,sx)+j)}, {v(b+j)}")
```

```python
from asmgen import *
from layout import *

def xlane(A, reg, t0, op):
    for sw in ("v_permlane32_swap_b32", "v_permlane16_swap_b32"):
        A.e(f"v_mov_b32 {t0}, {reg}")
        A.e("s_nop 1")
        A.e(f"{sw} {t0}, {reg}")
        A.e("s_nop 1")
        A.e(f"{op} {reg}, {t0}, {reg}")

def gen_ln(name, warm=None):
    A = Asm()
    A(kernel_head(name))
    A.e("s_cmp_ge_u32 s2, 128")
    A.e(f"s_cbranch_scc1 {name}_done")
    A.e("s_load_dwordx2 s[4:5], s[0:1], 0")
    A.e("s_load_dwordx2 s[6:7], s[0:1], 88")
    A.e("v_and_b32 v1, 63, v0")
    A.e("v_lshrrev_b32 v2, 6, v0")
    A.e("v_and_b32 v3, 15, v1")
    A.e("v_lshrrev_b32 v4, 4, v1")
    A.e("v_readfirstlane_b32 s12, v2")
    A.e("s_lshl_b32 s13, s2, 4")
    A.e("v_add_u32 v5, s13, v3")
    A.e("v_mul_u32_u24 v5, 1152, v5")
    A.e("v_lshl_add_u32 v5, v4, 3, v5")
    A.e("s_mul_i32 s14, s12, 384")
    A.e("s_waitcnt lgkmcnt(0)")
    A.e("s_mov_b32 s8, s4"); A.e("s_mov_b32 s9, s5"); A.e(f"s_mov_b32 s10, {2048*1152}"); A.e("s_mov_b32 s11, 0x20000")
    A.e("s_mov_b32 s16, s6"); A.e("s_mov_b32 s17, s7"); A.e(f"s_mov_b32 s18, {XN_OFF + XN_SIZE}"); A.e("s_mov_b32 s19, 0x20000")
    if warm:
        A.e("v_lshlrev_b32 v92, 4, v1"); A.e("v_min_u32 v93, 7, v1"); A.e("v_lshlrev_b32 v93, 4, v93")
    RAW = 8
    for k in range(6):
        A.e(f"buffer_load_dwordx2 {v(RAW+4*k,2)}, v5, s[8:11], s14 offen offset:{k*64}")
        A.e(f"buffer_load_dwordx2 {v(RAW+4*k+2,2)}, v5, s[8:11], s14 offen offset:{k*64+32}")
    if warm:
        A.e("s_load_dwordx2 s[22:23], s[0:1], 24"); A.e("s_load_dwordx4 s[24:27], s[0:1], 48")
        A.e("s_waitcnt lgkmcnt(0)")
        A.e("s_and_b32 s28, s2, 7"); A.e("s_lshr_b32 s29, s2, 3")
        for k_, (p_, stride, width) in enumerate(((24, 9216, 1152), (26, 9216, 1152), (22, 8192, 1024))):
            A.e(f"s_mov_b32 s36, s{p_}"); A.e(f"s_mov_b32 s37, s{p_+1}"); A.e(f"s_mov_b32 s38, {576*stride}"); A.e("s_mov_b32 s39, 0x20000")
            for j in range(3):
                A.e(f"s_lshl_b32 s30, s29, 3"); A.e("s_add_u32 s30, s30, s12"); A.e(f"s_add_u32 s30, s30, {3*j}")
                A.e(f"s_mul_i32 s30, s30, {stride}"); A.e(f"s_mul_i32 s31, s28, {width}"); A.e("s_add_u32 s30, s30, s31")
                A.e(f"buffer_load_dwordx4 v[88:91], v92, s[36:39], s30 offen")
                if width > 1024: A.e(f"buffer_load_dwordx4 v[88:91], v93, s[36:39], s30 offen offset:1024")
        A.e("s_getpc_b64 s[30:31]")
        A.label(f"{name}_pc")
        A.e("s_lshr_b32 s28, s2, 3"); A.e("s_mul_i32 s28, s28, 3"); A.e("s_add_u32 s28, s28, s12"); A.e("s_lshl_b32 s28, s28, 11")
        for j in range(2):
            A.e(f"v_add_u32 v94, s28, v92")
            if j: A.e("v_add_u32 v94, 1024, v94")
            A.e(f"v_min_u32 v94, {warm}_end-{name}_pc-16, v94")
            A.e("v_mov_b32 v95, s31"); A.e("v_add_co_u32 v94, vcc, s30, v94"); A.e("s_nop 1"); A.e("v_addc_co_u32 v95, vcc, 0, v95, vcc")
            A.e(f"global_load_dwordx4 v[88:91], v[94:95], off")
    F = 32
    A.e("v_mov_b32 v6, 0")
    for k in range(24):
        if k % 4 == 0: A.e(f"s_waitcnt vmcnt({10 - 2*(k//4) + (17 if warm else 0)})")
        A.e(f"v_lshlrev_b32 {v(F+2*k)}, 16, {v(RAW+k)}")
        A.e(f"v_and_b32 {v(F+2*k+1)}, 0xffff0000, {v(RAW+k)}")
        A.e(f"v_add_f32 v6, v6, {v(F+2*k)}")
        A.e(f"v_add_f32 v6, v6, {v(F+2*k+1)}")
    xlane(A, "v6", "v7", "v_add_f32")
    A.e("v_lshlrev_b32 v80, 2, v3")
    A.e("s_lshl_b32 s15, s12, 6")
    A.e("v_add_u32 v81, s15, v80")
    A.e("ds_write_b32 v81, v6")
    A.e("s_waitcnt lgkmcnt(0)")
    A.e("s_barrier")
    A.e("ds_read_b32 v82, v80")
    A.e("ds_read_b32 v83, v80 offset:64")
    A.e("ds_read_b32 v84, v80 offset:128")
    A.e("s_waitcnt lgkmcnt(0)")
    A.e("v_add_f32 v82, v82, v83")
    A.e("v_add_f32 v82, v82, v84")
    A.e(f"v_mul_f32 v82, {hex(f32(1.0/576))}, v82")
    A.e("v_mov_b32 v6, 0")
    for k in range(48):
        A.e(f"v_sub_f32 {v(F+k)}, {v(F+k)}, v82")
        A.e(f"v_fmac_f32 v6, {v(F+k)}, {v(F+k)}")
    xlane(A, "v6", "v7", "v_add_f32")
    A.e("ds_write_b32 v81, v6 offset:256")
    A.e("s_waitcnt lgkmcnt(0)")
    A.e("s_barrier")
    A.e("ds_read_b32 v82, v80 offset:256")
    A.e("ds_read_b32 v83, v80 offset:320")
    A.e("ds_read_b32 v84, v80 offset:384")
    A.e("s_waitcnt lgkmcnt(0)")
    A.e("v_add_f32 v82, v82, v83")
    A.e("v_add_f32 v82, v82, v84")
    A.e(f"v_mov_b32 v83, {hex(f32(1e-5))}")
    A.e(f"v_fmac_f32 v83, {hex(f32(1.0/576))}, v82")
    A.e("v_rsq_f32 v83, v83")
    A.e("s_nop 0")
    for k in range(48):
        A.e(f"v_mul_f32 {v(F+k)}, {v(F+k)}, v83")
    for k in range(24):
        A.e(f"v_cvt_pk_bf16_f32 {v(RAW+k)}, {v(F+2*k)}, {v(F+2*k+1)}")
    A.e("s_lshr_b32 s20, s2, 2"); A.e("s_mul_i32 s20, s20, 18"); A.e("s_mul_i32 s21, s12, 6"); A.e("s_add_u32 s20, s20, s21")
    A.e("s_lshl_b32 s20, s20, 2"); A.e("s_and_b32 s21, s2, 3"); A.e("s_add_u32 s20, s20, s21"); A.e("s_lshl_b32 s20, s20, 10")
    if XN_OFF: A.e(f"s_add_u32 s20, s20, {XN_OFF}")
    A.e("v_lshlrev_b32 v5, 4, v1")
    for k in range(6):
        A.e(f"buffer_store_dwordx4 {v(RAW+4*k,4)}, v5, s[16:19], s20 offen")
        A.e("s_add_u32 s20, s20, 4096")
    A.label(f"{name}_done")
    A.e("s_endpgm")
    A(kernel_desc(name, 96, 48, 96))
    return A

import struct
def f32(x):
    return struct.unpack("<I", struct.pack("<f", x))[0]
```

```python
from asmgen import *
from layout import *
import attn, phasea, k2, checker, lnfuse
import tail as tail_roles, tail_seq
tail = tail_seq if SEQ else tail_roles
from phasea import Lin, f32

SPIN_LIMIT = 200000

def gen_mega(name, opt=None, stamps=False):
    opt = {**dict(wld=" nt", kvld=" nt", cpf2=59, osleep=0, dsleep=0, hpf=None, kA=2, kBd=8, kBs=5, kL=8, kC=10), **(opt or {})}
    SC = " sc1"
    RA = phasea.RegsA(); PA = phasea.PhaseA(RA); PA.pre_w = opt.get('pre_w', 1); PA.mid_w = opt.get('mid_w', 1); PA.late_bar = opt.get('late_bar', False); PA.vm_period = opt.get('vm_period', 2); PA.stmod = opt.get('hst', SC); PA.dist = opt.get('distA', 3); PA.ldmod = opt.get('wld', '')
    R = attn.Regs(vbase=8)
    G = attn.AttnEmit(R, {**dict(farbranch=1, brdelay=2, barpos=1, stmod=SC, kvmod=opt.get('kvld', '')), **opt.get("attn", {})})
    PAR = opt.get("par")
    tail_roles.NATURAL[0] = bool(PAR)
    P = tail.Tail(opt.get("tail", {}))
    assert RA.vend <= R.KDMA and R.vend <= P.DV and R.L >= 152
    A = Asm()
    A(kernel_head(name))
    sX, sOut, sWo, sDbg, sWd = 26, 28, 30, 32, 96
    sPart, sI, sCt, sHF, sOF, sPF, sPoll = 53, 54, 55, 56, 57, 58, 59
    ONE, ZERO, DBGV, PFV = 254, 255, 246, 240
    nst = [0]
    def stamp(dst=None):
        if not stamps: return
        o = dst or A
        o.e("s_memrealtime s[88:89]" if opt.get("rt") else "s_memtime s[88:89]"); o.e("s_waitcnt lgkmcnt(0)")
        if isinstance(o, Lin): o.ds = []
        o.e("s_sub_u32 s88, s88, s92" if opt.get("rt") else "s_sub_u32 s88, s88, s90")
        o.e(f"v_writelane_b32 v253, s88, {nst[0]}"); nst[0] += 1

    A.e("s_cmp_ge_u32 s2, 256")
    A.e(f"s_cbranch_scc0 {name}_go")
    A.e("s_endpgm")
    A.label(f"{name}_go")
    if opt.get("perm"):
        A.e("s_mul_i32 s2, s2, 37"); A.e("s_add_u32 s2, s2, 11"); A.e("s_and_b32 s2, s2, 255")
        A.e("s_lshr_b32 s3, s2, 3"); A.e("s_and_b32 s3, s3, 7"); A.e("s_xor_b32 s2, s2, s3")
    A.e("s_load_dwordx4 s[4:7], s[0:1], 8")
    A.e("s_load_dwordx2 s[8:9], s[0:1], 24")
    A.e("s_load_dwordx4 s[20:23], s[0:1], 48")
    A.e("s_load_dwordx2 s[10:11], s[0:1], 88")
    A.e(f"s_load_dwordx2 {s(sX,2)}, s[0:1], 0")
    A.e(f"s_load_dwordx2 {s(sOut,2)}, s[0:1], 72")
    A.e(f"s_load_dwordx2 {s(sWo,2)}, s[0:1], 32")
    A.e(f"s_load_dwordx2 {s(sWd,2)}, s[0:1], 64")
    A.e(f"s_load_dwordx2 {s(sDbg,2)}, s[0:1], 80")
    if stamps or opt.get("span"):
        A.e("s_memtime s[90:91]"); A.e("s_memrealtime s[92:93]")
    A.e("v_lshrrev_b32 v1, 6, v0")
    A.e("v_and_b32 v2, 63, v0")
    A.e("v_readfirstlane_b32 s12, v1")
    A.e(f"s_and_b32 {s(sPart)}, s2, 7")
    A.e(f"s_lshr_b32 {s(sI)}, s2, 3")
    A.e(f"s_and_b32 {s(sCt)}, {s(sI)}, 3")
    A.e(f"s_lshl_b32 s13, {s(sPart)}, 2")
    A.e(f"s_add_u32 s13, s13, {s(sCt)}")
    A.e(f"s_lshr_b32 s14, {s(sI)}, 2")
    A.e("s_lshr_b32 s15, s13, 1")
    A.e("s_lshl_b32 s15, s15, 19")
    A.e("v_lshlrev_b32 v3, 4, v2")
    A.e(f"v_mov_b32 v{ONE}, 1"); A.e(f"v_mov_b32 v{ZERO}, 0")
    A.e("s_waitcnt lgkmcnt(0)")
    A.e("s_lshl_b32 s98, s14, 5")
    RAW, LT, LF = 8, 20, 28
    A.e(f"s_mov_b32 s84, {s(sX)}"); A.e(f"s_mov_b32 s85, {s(sX+1)}"); A.e(f"s_mov_b32 s86, {2048*1152}"); A.e("s_mov_b32 s87, 0x20000")
    K0 = opt.get("k0")
    if not K0: lnfuse.ln_loads(A, "v2", "s12", "s13", "s14", "s[84:87]", RAW, LT, 99, opt.get('xld', ''))
    A.e(f"s_add_u32 {s(R.sK)}, s4, s15"); A.e(f"s_addc_u32 {s(R.sK+1)}, s5, 0")
    A.e(f"s_mov_b32 {s(R.sK+2)}, 524288"); A.e(f"s_mov_b32 {s(R.sK+3)}, 0x20000")
    A.e(f"s_add_u32 {s(R.sV)}, s6, s15"); A.e(f"s_addc_u32 {s(R.sV+1)}, s7, 0")
    A.e(f"s_mov_b32 {s(R.sV+2)}, 524288"); A.e(f"s_mov_b32 {s(R.sV+3)}, 0x20000")
    A.e("s_mov_b32 s16, s10"); A.e("s_mov_b32 s17, s11"); A.e(f"s_mov_b32 s18, {WS_RANGE}"); A.e("s_mov_b32 s19, 0x20000")
    A.e(f"s_mov_b32 {s(sDbg+2)}, 256"); A.e(f"s_mov_b32 {s(sDbg+3)}, 0x20000")
    PFO = 65536 if SEQ else 32768
    if SEQ:
        A.e("s_lshl_b32 s24, s14, 3"); A.e(f"s_add_u32 s24, s24, {s(sPart)}"); A.e("s_lshl_b32 s24, s24, 2"); A.e("s_add_u32 s24, s24, s12")
        A.e("s_lshl_b32 s24, s24, 7"); A.e(f"s_add_u32 {s(sPoll)}, s24, {FLAG_OFF}")
        A.e(f"s_lshl_b32 s25, {s(sCt)}, 2"); A.e(f"s_add_u32 {s(sHF)}, {s(sPoll)}, s25"); A.e(f"s_add_u32 {s(sOF)}, {s(sHF)}, 32768")
        A.e(f"s_lshl_b32 s24, {s(sI)}, 2"); A.e("s_add_u32 s24, s24, s12"); A.e("s_lshl_b32 s24, s24, 7")
        A.e(f"s_lshl_b32 s25, {s(sPart)}, 2"); A.e("s_add_u32 s24, s24, s25")
        A.e(f"s_add_u32 {s(sPF)}, s24, {FLAG_OFF + PFO}")
    else:
        A.e("s_lshl_b32 s24, s14, 2"); A.e("s_lshr_b32 s25, s13, 3"); A.e("s_add_u32 s24, s24, s25")
        A.e("s_lshl_b32 s24, s24, 2"); A.e("s_add_u32 s24, s24, s12"); A.e("s_lshl_b32 s24, s24, 7")
        A.e("s_and_b32 s25, s13, 7"); A.e("s_lshl_b32 s25, s25, 2"); A.e("s_add_u32 s24, s24, s25")
        A.e(f"s_add_u32 {s(sHF)}, s24, {FLAG_OFF}"); A.e(f"s_add_u32 {s(sOF)}, {s(sHF)}, 16384")
        if PAR:
            A.e(f"s_lshr_b32 s24, {s(sPart)}, 1"); A.e("s_lshl_b32 s25, s14, 2"); A.e("s_add_u32 s24, s24, s25")
            A.e("s_lshl_b32 s24, s24, 2"); A.e("s_add_u32 s24, s24, s12"); A.e("s_lshl_b32 s24, s24, 7")
            A.e(f"s_and_b32 s25, {s(sPart)}, 1"); A.e("s_lshl_b32 s25, s25, 14"); A.e("s_add_u32 s24, s24, s25")
        else:
            A.e(f"s_and_b32 s24, {s(sPart)}, 3"); A.e("s_lshl_b32 s25, s14, 2"); A.e("s_add_u32 s24, s24, s25")
            A.e("s_lshl_b32 s24, s24, 2"); A.e("s_add_u32 s24, s24, s12"); A.e("s_lshl_b32 s24, s24, 7")
            A.e(f"s_cmp_lt_u32 {s(sPart)}, 4"); A.e("s_cselect_b32 s25, 16384, 0"); A.e("s_add_u32 s24, s24, s25")
        A.e(f"s_add_u32 {s(sPoll)}, s24, {FLAG_OFF}")
        A.e(f"s_lshl_b32 s24, {s(sI)}, 2"); A.e("s_add_u32 s24, s24, s12"); A.e("s_lshl_b32 s24, s24, 7")
        A.e(f"s_lshl_b32 s25, {s(sPart)}, 2"); A.e("s_add_u32 s24, s24, s25")
        A.e(f"s_add_u32 {s(sPF)}, s24, {FLAG_OFF + 32768}")
    def code_address(lab, dst):
        A.e("s_getpc_b64 s[84:85]")
        A.label(lab)
        A.e(f"s_lshl_b32 s15, {s(sI)}, 2"); A.e("s_add_u32 s15, s15, s12"); A.e("s_lshl_b32 s15, s15, 10")
        A.e(f"v_add_u32 {v(dst)}, s15, v3")
        A.e(f"v_min_u32 {v(dst)}, {name}_end-{lab}-16, {v(dst)}")
        A.e(f"v_mov_b32 {v(dst+1)}, s85")
        A.e(f"v_add_co_u32 {v(dst)}, vcc, s84, {v(dst)}")
        A.e("s_nop 1")
        A.e(f"v_addc_co_u32 {v(dst+1)}, vcc, 0, {v(dst+1)}, vcc")
    def code_prefetch(dst, nk):
        lab = f"{name}_pc{dst}"
        A.e("s_getpc_b64 s[24:25]")
        A.label(lab)
        A.e(f"s_lshl_b32 s15, {s(sI)}, 2"); A.e("s_add_u32 s15, s15, s12"); A.e("s_lshl_b32 s15, s15, 10")
        for k in range(nk):
            A.e(f"v_add_u32 v4, s15, v3")
            if k: A.e(f"v_add_u32 v4, {k*131072}, v4")
            A.e(f"v_min_u32 v4, {name}_end-{lab}-16, v4")
            A.e("v_mov_b32 v5, s25")
            A.e("v_add_co_u32 v4, vcc, s24, v4")
            A.e("s_nop 1")
            A.e("v_addc_co_u32 v5, vcc, 0, v5, vcc")
            A.e(f"global_load_dwordx4 {v(dst+4*k,4)}, v[4:5], off")
    if opt.get("xccdbg"):
        A.e("s_getreg_b32 s25, hwreg(HW_REG_XCC_ID)"); A.e("s_and_b32 s25, s25, 15"); A.e("s_add_u32 s25, s25, 100")
        A.e("v_mov_b32 v4, s25")
        A.e("s_cmp_lt_u32 s2, 7"); A.e(f"s_cbranch_scc0 {name}_nox")
        A.e("s_lshl_b32 s25, s2, 2"); A.e("s_add_u32 s25, s25, 4")
        A.e(f"buffer_store_dword v4, off, {s(sDbg,4)}, s25")
        A.label(f"{name}_nox")
    if not opt.get("nocpf"): code_prefetch(64, 1)
    for f in (sHF, sOF, sPF):
        A.e(f"buffer_store_dword v{ZERO}, off, s[16:19], {s(f)}{SC}")
    A.e(f"s_add_u32 s25, {s(sOF)}, 32768")
    A.e(f"buffer_store_dword v{ZERO}, off, s[16:19], s25{SC}")
    ptr = {"wq": 8, "Wg": 20, "Wu": 22}
    PA.setup(A, "v2", "s12", "s13", "s14", lambda n: ptr[n])
    G.setup_dma(A, "v2", "s12", 4)
    A.e("s_lshl_b32 s24, s14, 7"); A.e("s_lshl_b32 s25, s13, 2"); A.e("s_add_u32 s24, s24, s25")
    A.e("s_lshl_b32 s24, s24, 14"); A.e("s_lshl_b32 s25, s12, 12"); A.e("s_add_u32 s24, s24, s25")
    A.e(f"s_add_u32 s24, s24, {O_OFF}")

    stamp()
    L = Lin()
    def after_w0(L_):
        T_ = Asm()
        lnfuse.ln_compute(T_, "v2", "s12", "s13", "s14", "s[16:19]", RAW, LT, LF, 4, PA.pre_w * 13 + 4 + (0 if opt.get("nocpf") else 1))
        for x in T_.lines: L_.e(x.strip())
        L_.e("s_waitcnt vmcnt(0)")
        L_.e("s_barrier")
        L_.e("s_cmp_eq_u32 s12, 0"); L_.e(f"s_cbranch_scc0 {name}_noann")
        L_.e("s_mov_b64 exec, 1")
        L_.e(f"buffer_atomic_add v{ONE}, off, {s(sDbg,4)}, s98")
        L_.e("s_mov_b64 exec, -1")
        L_.e(f"{name}_noann:")
        if stamps: stamp(L_)
    def wait_xn(L_):
        L_.e("s_mov_b32 s15, 0")
        L_.e(f"{name}_xn_spin:")
        L_.e(f"buffer_load_dword v{DBGV}, off, {s(sDbg,4)}, s98{SC}")
        L_.e("s_waitcnt vmcnt(0)")
        L_.e(f"v_readfirstlane_b32 s25, v{DBGV}")
        L_.e("s_add_u32 s15, s15, 1")
        L_.e(f"s_cmp_ge_u32 s15, {SPIN_LIMIT}"); L_.e(f"s_cbranch_scc1 {name}_xn_ok")
        if opt.get("xsleep"): L_.e(f"s_sleep {opt['xsleep']}")
        L_.e("s_cmp_ge_u32 s25, 32"); L_.e(f"s_cbranch_scc0 {name}_xn_spin")
        L_.e(f"{name}_xn_ok:")
        if stamps: stamp(L_)
    PA.xmod = SC
    if opt.get('w0poll'): PA.w0poll = (wait_xn, name + '_xs')
    if K0:
        PA.xmod = ""
        def announce(L_):
            L_.e("s_cmp_eq_u32 s12, 0"); L_.e(f"s_cbranch_scc0 {name}_noann")
            L_.e("s_mov_b64 exec, 1")
            L_.e(f"buffer_atomic_add v{ONE}, off, {s(sDbg,4)}, s98")
            L_.e("s_mov_b64 exec, -1")
            L_.e(f"{name}_noann:")
            if stamps: stamp(L_); stamp(L_)
        PA.k0 = announce
    kvpf = None
    if not opt.get("nokvpf"):
        kvpf = {opt.get("kvpf_ks", 8): [
            (["s_lshl_b32 s25, s14, 1", "s_and_b32 s15, s13, 1", "s_add_u32 s25, s25, s15", "s_mul_i32 s15, s25, 3072",
              "s_lshl_b32 s3, s12, 10", "s_add_u32 s15, s15, s3"],
             f"buffer_load_dwordx4 v[4:7], v3, {s(R.sK,4)}, s15 offen", ("PF", 0)),
            (["s_lshl_b32 s25, s25, 11", "s_and_b32 s3, s12, 1", "s_lshl_b32 s3, s3, 10", "s_add_u32 s25, s25, s3"],
             f"buffer_load_dwordx4 v[4:7], v3, {s(R.sV,4)}, s25 offen", ("PF", 1))]}
    PA.main(L, "v3", (after_w0, wait_xn), (lambda L_: stamp(L_)) if opt.get('afine') else None, kvpf, G.initial_dma_ops())
    for x in L.out:
        if x.endswith(":"): A.label(x[:-1])
        else: A.e(x)
    stamp()
    A.e("v_lshlrev_b32 v1, 3, v2")
    A.e("s_nop 7")
    for sx in (0, 1):
        for rb in range(4):
            d = PA.h_unit(A, sx, rb); PA.h_store(A, sx, rb, d)
    if opt.get("estamp"): stamp()
    HB3 = 208
    h2 = []
    for sx in (2, 3):
        for rb in range(4):
            h2.append((sx, rb, PA.h_unit(A, sx, rb)))
    h3 = [(4, rb, PA.h_unit(A, 4, rb, HB3 + 2 * rb)) for rb in range(4)]
    if opt.get("estamp"): stamp()
    PA.epilogue_q(A, R.qi, RA.A)
    if opt.get("estamp"): stamp()
    for sx, rb, d in h2: PA.h_store(A, sx, rb, d)
    stamp()
    G.setup_reads(A, "v2")
    G.init_offsets(A)
    if PAR:
        A.e(f"s_lshr_b32 s21, {s(sPart)}, 1"); A.e("s_add_u32 s22, s21, 4"); A.e(f"s_bitcmp1_b32 {s(sPart)}, 0"); A.e("s_cselect_b32 s21, s21, s22")
        P.setup(A, "s12", "s21", s(sCt), "s14", sWo, sWd, 10)
    else:
        P.setup(A, "s12", s(sPart), s(sCt), "s14", sWo, sWd, 10)
    A.e(f"s_lshl_b32 s22, {s(sI)}, 2"); A.e("s_add_u32 s22, s22, s12")
    if SEQ:
        A.e(f"s_mul_i32 s20, s22, {tail.ND*32*1152//128}"); A.e(f"s_mul_i32 s21, s22, {tail.NS*32*1152//128}")
    else:
        A.e(f"s_mul_i32 s20, {s(P.sNk)}, {32*1152//128}"); A.e("s_mul_i32 s20, s20, s22")
    NH = 16
    G.vm_init = [("H", 0)] * 18 + [("KV", -1)] + [("H", 0)] * (0 if opt.get("nopf") else 1)
    if opt.get("estamp"):
        stamp(); A.e(f"s_waitcnt vmcnt({NH})"); stamp(); A.e("s_barrier"); stamp()
    G.prologue(A, NH)
    if opt.get("estamp"): stamp()
    for sx, rb, d in h3: PA.h_store(A, sx, rb, d)
    stamp()
    flag_h = f"buffer_store_dword v{ONE}, off, s[16:19], {s(sHF)}{SC}"
    def pf(srd, off):
        return ([], f"buffer_load_dwordx4 {v(PFV,4)}, v3, {s(srd,4)}, {off} offen{opt.get('pfld','')}", ("PF", 0), [f"s_add_u32 {off}, {off}, 1024"])
    G.after_bar = {p: {3: [flag_h]} for p in range(4, 58, 8)}
    if not opt.get("nopf"):
        for p in range(2, 58):
            if SEQ:
                if p % 8 == 3: G.extra_vm[p] = [pf(P.sWd, "s20")]
                if p % 8 == 7: G.extra_vm[p] = [pf(P.sWo, "s21")]
            elif p % 4 == 3: G.extra_vm[p] = [pf(P.sW, "s20")]
    w0 = [(pre, ins, ("W", 0), []) for pre, ins in (P.dma(0, "s12") if SEQ else P.dma(0, "d"))]
    G.extra_vm[63] = w0
    if K0: G.extra_vm[60] = [([], f"buffer_load_dword v{DBGV}, off, {s(sDbg,4)}, s98{SC}", ("X", 0), [])]
    if opt.get("cpf2"):
        code_address(f"{name}_pc2", 206)
        G.extra_vm[opt["cpf2"]] = [([], f"global_load_dwordx4 {v(PFV,4)}, v[206:207], off", ("X", 0), [])]
    G.extra_bar = {63}
    vlane = "v231"
    cap = [f"v_min_u32 {vlane}, {3 if SEQ else 7}, v2"]
    if PAR: cap = [f"s_bitcmp1_b32 {s(sPart)}, 0", "s_cselect_b32 s25, 3, 7", f"v_min_u32 {vlane}, s25, v2"]
    fl_load = (cap + [f"v_lshlrev_b32 {vlane}, 2, {vlane}"],
               f"buffer_load_dword {v(P.FL)}, {vlane}, s[16:19], {s(sPoll)} offen{SC}", ("X", 0), [])
    if not opt.get("hpf"):
        flp = opt.get("flp", 61)
        G.extra_vm[flp] = [fl_load] + list(G.extra_vm.get(flp, []))
    else:
        G.extra_vm[58] = list(G.extra_vm.get(58, [])) + [fl_load]
        sa = P.sH if SEQ else P.sAct
        chk = ["s_waitcnt vmcnt(4)", f"v_cmp_ne_u32 vcc, 1, {v(P.FL)}", "s_nop 1", f"s_mov_b32 s4, {s(sa)}", f"s_mov_b32 s5, {s(sa+1)}",
               "s_cmp_eq_u64 vcc, 0", f"s_cselect_b32 s6, {s(sa+2)}, 0"]
        if not SEQ: chk += [f"s_cmp_lt_u32 {s(sPart)}, 4", "s_cselect_b32 s6, 0, s6"]
        chk += ["s_mov_b32 s7, 0x20000", f"s_add_u32 s25, {s(sCt)}, {6 if SEQ else 4}", "s_lshl_b32 s25, s25, 14", f"s_add_u32 s25, s25, {s(P.sBoff)}"]
        n_pf = opt["hpf"]
        items = []
        for n in range(n_pf):
            kk, rb = divmod(n, 4)
            pre = chk if n == 0 else ([f"s_add_u32 s25, s25, 65536"] if rb == 0 else [])
            items.append((pre, f"buffer_load_dwordx4 {v(PFV,4)}, v3, s[4:7], s25 offen offset:{rb*1024}{SC}", ("X", 0), []))
        per = [60, 61, 62]
        k_ = (n_pf + 2) // 3
        for a_, p_ in enumerate(per): G.extra_vm[p_] = list(G.extra_vm.get(p_, [])) + items[a_*k_:(a_+1)*k_]
        G.fill_periods = {60, 61, 62}
    grp = lambda ops: [pre + (["s_nop 0"] if pre else []) + [ins] for pre, ins in ops]
    def spin(load, test, lab):
        A.e("s_mov_b32 s15, 0")
        A.label(f"{name}_{lab}")
        A.e(load)
        A.e("s_waitcnt vmcnt(0)")
        for x in test: A.e(x)
        A.e("s_add_u32 s15, s15, 1")
        A.e(f"s_cmp_ge_u32 s15, {SPIN_LIMIT}"); A.e(f"s_cbranch_scc1 {name}_{lab}_ok")
        A.e("s_sleep 2")
        A.e(f"s_branch {name}_{lab}")
    def tail_roles_code():
        G.emit_all(A, name, final=False)
        if K0:
            A.e("s_waitcnt vmcnt(9)")
            A.e(f"v_readfirstlane_b32 s25, v{DBGV}")
            A.e("s_cmp_ge_u32 s25, 32"); A.e(f"s_cbranch_scc0 {name}_slowc")
            A.label(f"{name}_c_ok")
        def ostore_ops(sxs):
            return [([f"s_add_u32 s25, s24, {sx*16384}"],
                     f"buffer_store_dwordx4 {v(P.OS + 4*(4*sx+qb),4)}, v3, s[16:19], s25 offen offset:{qb*1024}{SC}") for sx in sxs for qb in attn.ORDER]
        def ostore(sx, qb, d):
            if sx < 2:
                A.e(f"s_add_u32 s25, s24, {sx*16384}")
                A.e(f"buffer_store_dwordx4 {v(d,4)}, v3, s[16:19], s25 offen offset:{qb*1024}{SC}")
        flagA = f"buffer_store_dword v{ONE}, off, s[16:19], {s(sOF)}{SC}"
        flagB = f"buffer_store_dword v{ONE}, off, s[16:19], s23{SC}"
        A.e(f"s_add_u32 s23, {s(sOF)}, 32768"); A.e(f"s_add_u32 s22, {s(sPoll)}, 32768")
        o2 = [(p, i, ("O", 2)) for p, i in ostore_ops((2, 3))]
        def emit(L_):
            for x in L_.out:
                if x.endswith(":"): A.label(x[:-1])
                else: A.e(x)
        def issue(ops):
            for g_ in grp(ops):
                for x in g_: A.e(x)
        cst = (lambda L_: stamp(L_)) if opt.get("cstamp") else None
        def raise_flag(ins, key):
            def f(L_, q):
                assert key in L_.vm and not [x_ for x_ in q if x_[2] == key]
                L_.need_vm(key); L_.vm_op(ins, ("F", 0))
            return f
        A.e(f"s_cmp_lt_u32 {s(sPart)}, 4"); A.e(f"s_cbranch_scc1 {name}_role_s")
        n0 = nst[0]
        def gate_h(A_):
            if not opt.get("hpf"): A_.e("s_waitcnt vmcnt(9)")
            A_.e(f"v_cmp_ne_u32 vcc, 1, {v(P.FL)}")
            A_.e("s_nop 0")
            A_.e(f"s_cbranch_vccnz {name}_slowh")
            A_.label(f"{name}_h_ok")
        pv_fill = []
        for k in range(4): pv_fill += grp(P.bload(k, "d"))
        G.final_pv(A, pv_fill, gate_h)
        stamp()
        A.e("s_barrier")
        issue(P.dma(1, "d"))
        G.epilogue_pack(A, P.OS, P.AF, 4, [], ostore)
        A.e("s_waitcnt vmcnt(33)")
        stamp()
        L = Lin()
        L.vm = [("B", k) for k in range(4) for _ in range(4)] + [("W", 1)] * 9 + [("O", 1)] * 8
        q = P.addb(4, "d") + P.addb(5, "d") + P.addw(2, "d") + P.addb(6, "d") + P.addb(7, "d") + P.addw(3, "d")
        def first_half_done(L_, q_):
            L_.need_vm(("O", 1)); L_.vm_op(flagA, ("F", 0))
            last = max([i_ for i_, x_ in enumerate(q_) if x_[2][0] == "B"], default=-1)
            q_[last + 1:last + 1] = o2
        P.main(L, "d", q, {opt.get("kA", 4): first_half_done, opt.get("kBd", 10): raise_flag(flagB, ("O", 2))}, stamp=cst)
        L.e("s_nop 7")
        emit(L)
        A.e(f"s_branch {name}_join")
        n1 = nst[0]; nst[0] = n0
        A.label(f"{name}_role_s")
        G.final_pv(A)
        stamp()
        A.e("s_barrier")
        issue(P.dma(1, "s")); issue(P.dma(2, "s"))
        G.epilogue_pack(A, P.OS, P.AF, 4, [], ostore)
        A.e("s_waitcnt vmcnt(0)")
        A.e(flagA)
        A.e("s_mov_b32 s15, 0")
        A.label(f"{name}_pollo")
        A.e(f"buffer_load_dword {v(P.FL)}, {vlane}, s[16:19], {s(sPoll)} offen{SC}")
        A.e("s_waitcnt vmcnt(0)")
        A.e(f"v_cmp_ne_u32 vcc, 1, {v(P.FL)}")
        A.e("s_nop 0")
        A.e(f"s_cbranch_vccz {name}_pollo_ok")
        A.e("s_add_u32 s15, s15, 1")
        A.e(f"s_cmp_ge_u32 s15, {SPIN_LIMIT}"); A.e(f"s_cbranch_scc1 {name}_pollo_ok")
        if opt.get('osleep'): A.e(f"s_sleep {opt['osleep']}")
        A.e(f"s_branch {name}_pollo")
        A.label(f"{name}_pollo_ok")
        stamp()
        L = Lin()
        for k in range(4):
            for pre, ins in P.bload(k, "s"):
                for x in pre: L.e(x)
                L.vm_op(ins, ("B", k))
        q = P.addb(4, "s") + P.addb(5, "s") + P.addb(6, "s") + P.addb(7, "s") + o2 + P.addw(3, "s")
        kL, kC = opt.get("kL", 9), opt.get("kC", 11)
        def load_b(L_, q_): q_.insert(0, ([], f"buffer_load_dword {v(P.FL)}, {vlane}, s[16:19], s22 offen{SC}", ("FL", 0)))
        def check_b(L_, q_):
            L_.need_vm(("FL", 0))
            L_.e(f"v_cmp_ne_u32 vcc, 1, {v(P.FL)}")
            L_.e("s_nop 0")
            L_.e(f"s_cbranch_vccnz {name}_slowo")
            L_.e(f"{name}_o_ok:")
        P.main(L, "s", q, {opt.get("kBs", 7): raise_flag(flagB, ("O", 2))}, {kL: load_b, kC: check_b}, 16, kC, stamp=cst)
        L.e("s_nop 7")
        emit(L)
        if opt.get("cstamp"):
            assert nst[0] == n1 - 1
            stamp()
        nst[0] = max(nst[0], n1)
        A.label(f"{name}_join")
        stamp()
        L = Lin()
        L.e("s_waitcnt vmcnt(20) lgkmcnt(0)")
        P.store_partials(L)
        emit(L)
        nerr = 0
    def tail_par_code():
        G.emit_all(A, name, final=False)
        def ostore_ops(sxs):
            return [([f"s_add_u32 s25, s24, {sx*16384}"],
                     f"buffer_store_dwordx4 {v(P.OS + 4*(4*sx+qb),4)}, v3, s[16:19], s25 offen offset:{qb*1024}{SC}") for sx in sxs for qb in attn.ORDER]
        def ostore(lim):
            def f(sx, qb, d):
                if sx < lim:
                    A.e(f"s_add_u32 s25, s24, {sx*16384}")
                    A.e(f"buffer_store_dwordx4 {v(d,4)}, v3, s[16:19], s25 offen offset:{qb*1024}{SC}")
            return f
        oflag = f"buffer_store_dword v{ONE}, off, s[16:19], {s(sOF)}{SC}"
        A.e(f"s_add_u32 s22, {s(sPoll)}, 16")
        def emit(L_):
            for x in L_.out:
                if x.endswith(":"): A.label(x[:-1])
                else: A.e(x)
        def issue(ops):
            for g_ in grp(ops):
                for x in g_: A.e(x)
        cst = (lambda L_: stamp(L_)) if opt.get("cstamp") else None
        def raise_flag(key):
            def f(L_, q):
                assert not [x_ for x_ in q if x_[2] == key]
                L_.need_vm(key); L_.vm_op(oflag, ("F", 0))
            return f
        def gate(slow, ok):
            def f(A_):
                A_.e("s_waitcnt vmcnt(9)")
                A_.e(f"v_cmp_ne_u32 vcc, 1, {v(P.FL)}")
                A_.e("s_nop 0")
                A_.e(f"s_cbranch_vccnz {name}_{slow}")
                A_.label(f"{name}_{ok}")
            return f
        A.e(f"s_bitcmp1_b32 {s(sPart)}, 0"); A.e(f"s_cbranch_scc1 {name}_role_s")
        n0 = nst[0]
        pv_fill = []
        for k in range(4): pv_fill += grp(P.bload(k, "d"))
        G.final_pv(A, pv_fill, gate("slowh", "h_ok"))
        stamp()
        A.e("s_barrier")
        issue(P.dma(1, "d"))
        G.epilogue_pack(A, P.OS, P.AF, 4, [], ostore(4))
        A.e("s_waitcnt vmcnt(41)")
        stamp()
        L = Lin()
        L.vm = [("B", k) for k in range(4) for _ in range(4)] + [("W", 1)] * 9 + [("O", 1)] * 16
        q = P.addb(4, "d") + P.addb(5, "d") + P.addw(2, "d") + P.addb(6, "d") + P.addb(7, "d") + P.addw(3, "d")
        P.main(L, "d", q, {opt.get("kFd", 2): raise_flag(("O", 1))}, stamp=cst)
        L.e("s_nop 7")
        emit(L)
        A.e(f"s_branch {name}_join")
        n1 = nst[0]; nst[0] = n0
        A.label(f"{name}_role_s")
        pv_fill = []
        for k in range(4): pv_fill += grp(P.bload(k, "s"))
        G.final_pv(A, pv_fill, gate("slowa", "a_ok"))
        stamp()
        A.e("s_barrier")
        issue(P.dma(1, "s"))
        G.epilogue_pack(A, P.OS, P.AF, 4, [], ostore(2))
        A.e("s_waitcnt vmcnt(33)")
        stamp()
        L = Lin()
        L.vm = [("B", k) for k in range(4) for _ in range(4)] + [("W", 1)] * 9 + [("O", 1)] * 8
        o2 = [(p, i, ("O", 2)) for p, i in ostore_ops((2, 3))]
        q = P.addb(4, "s") + P.addb(5, "s") + P.addw(2, "s") + P.addb(6, "s") + P.addb(7, "s") + o2 + P.addw(3, "s")
        kL, kC = opt.get("kLs", 9), opt.get("kCs", 11)
        def load_b(L_, q_): q_.insert(0, ([], f"buffer_load_dword {v(P.FL)}, {vlane}, s[16:19], s22 offen{SC}", ("FL", 0)))
        def check_b(L_, q_):
            L_.need_vm(("FL", 0))
            L_.e(f"v_cmp_ne_u32 vcc, 1, {v(P.FL)}")
            L_.e("s_nop 0")
            L_.e(f"s_cbranch_vccnz {name}_slowo")
            L_.e(f"{name}_o_ok:")
        P.main(L, "s", q, {opt.get("kFs", 7): raise_flag(("O", 2))}, {kL: load_b, kC: check_b}, 16, kC, stamp=cst)
        L.e("s_nop 7")
        emit(L)
        if opt.get("cstamp"):
            assert nst[0] == n1 - 1
            stamp()
        nst[0] = max(nst[0], n1)
        A.label(f"{name}_join")
        stamp()
        L = Lin()
        L.e("s_waitcnt vmcnt(20) lgkmcnt(0)")
        P.store_partials(L)
        emit(L)
    def tail_seq_code():
        def gate_h(A_):
            A_.e("s_waitcnt vmcnt(9)")
            A_.e(f"v_cmp_ne_u32 vcc, 1, {v(P.FL)}")
            A_.e("s_nop 0")
            A_.e(f"s_cbranch_vccnz {name}_slowh")
            A_.label(f"{name}_h_ok")
        pv_fill = []
        for k in range(4): pv_fill += grp(P.bload(k))
        G.emit_all(A, name, pv_fill, gate_h)
        stamp()
        A.e("s_barrier")
        fill = grp(P.dma(1, "s12")) + grp(P.bload(4)) + grp(P.bload(5)) + grp(P.dma(2, "s12"))
        nfill = len(fill)
        fill = [sum(fill[i:i + 2], []) for i in range(0, len(fill), 2)]
        G.epilogue_pack(A, P.OS, P.AF, 4, fill)
        A.e(f"s_waitcnt vmcnt({16 + nfill})")
        for sx in range(4):
            A.e(f"s_add_u32 s25, s24, {sx*16384}")
            for qb in range(4):
                A.e(f"buffer_store_dwordx4 {v(P.OS + 4*(4*sx+qb),4)}, v3, s[16:19], s25 offen offset:{qb*1024}{SC}")
        stamp()
        L = Lin()
        L.vm = [("B", k) for k in range(4) for _ in range(4)] + [("W", 1)] * 9 + [("B", 4)] * 8 + [("B", 5)] * 4 + [("W", 2)] * 9 + [("O", 0)] * 16
        assert len(L.vm) == 16 + nfill + 16
        def flagcheck(L_):
            L_.e(f"v_cmp_ne_u32 vcc, 1, {v(P.FL)}")
            L_.e("s_nop 0")
            L_.e(f"s_cbranch_vccnz {name}_slowo")
            L_.e(f"{name}_o_ok:")
        hooks = dict(oflag=[f"buffer_store_dword v{ONE}, off, s[16:19], {s(sOF)}{SC}"],
                     flagload=f"buffer_load_dword {v(P.FL)}, {vlane}, s[16:19], s23 offen{SC}", flagcheck=flagcheck,
                     stamp=(lambda L_: stamp(L_)) if opt.get("cstamp") else None)
        A.e(f"s_add_u32 s23, {s(sPoll)}, 32768")
        P.main(L, hooks, "s12")
        L.e("s_nop 7")
        if stamps: stamp(L)
        L.e("s_waitcnt vmcnt(24)"); L.vm = L.vm[-24:]
        P.final_partials(L)
        for x in L.out:
            if x.endswith(":"): A.label(x[:-1])
            else: A.e(x)
    (tail_seq_code if SEQ else (tail_par_code if PAR else tail_roles_code))()
    nerr = 0
    def poll(base, lab, last):
        A.e(f"v_min_u32 v4, {last}, v2"); A.e("v_lshlrev_b32 v4, 2, v4")
        A.e("s_mov_b32 s15, 0")
        A.label(f"{name}_{lab}")
        A.e(f"buffer_load_dword v5, v4, s[16:19], {base} offen{SC}")
        A.e("s_waitcnt vmcnt(0)")
        A.e("v_cmp_ne_u32 vcc, 1, v5")
        A.e(f"s_cbranch_vccz {name}_{lab}_ok")
        A.e("s_add_u32 s15, s15, 1")
        A.e(f"s_cmp_ge_u32 s15, {SPIN_LIMIT}"); A.e(f"s_cbranch_scc1 {name}_{lab}_ok")
        if opt.get('dsleep'): A.e(f"s_sleep {opt['dsleep']}")
        A.e(f"s_branch {name}_{lab}")
        A.label(f"{name}_{lab}_ok")
    A.e(f"s_lshl_b32 s78, s14, 4"); A.e(f"s_lshl_b32 s79, {s(sPart)}, 1"); A.e("s_add_u32 s78, s78, s79")
    A.e("s_lshr_b32 s79, s12, 1"); A.e("s_add_u32 s80, s78, s79")
    A.e("s_and_b32 s79, s12, 1"); A.e("s_add_u32 s81, s78, s79")
    A.e("s_lshl_b32 s82, s79, 1")
    A.e("v_and_b32 v4, 15, v2"); A.e("v_lshrrev_b32 v5, 4, v2")
    A.e("v_mul_u32_u24 v4, 1152, v4"); A.e("v_lshl_add_u32 v4, v5, 3, v4")
    A.e(f"s_mul_i32 s74, {s(sCt)}, 288")
    A.e(f"s_mul_i32 s75, s80, {16*1152}"); A.e("s_add_u32 s75, s75, s74"); A.e("s_lshl_b32 s76, s82, 6"); A.e("s_add_u32 s75, s75, s76")
    A.e(f"s_mul_i32 s76, s81, {16*1152}"); A.e("s_add_u32 s76, s76, s74"); A.e("s_add_u32 s76, s76, 256")
    A.e(f"s_mov_b32 s60, {s(sX)}"); A.e(f"s_mov_b32 s61, {s(sX+1)}"); A.e(f"s_mov_b32 s62, {2048*1152}"); A.e("s_mov_b32 s63, 0x20000")
    A.e(f"s_mov_b32 s64, {s(sOut)}"); A.e(f"s_mov_b32 s65, {s(sOut+1)}"); A.e(f"s_mov_b32 s66, {2048*1152}"); A.e("s_mov_b32 s67, 0x20000")
    XR = 220
    for k in range(4): A.e(f"buffer_load_dwordx2 {v(XR+2*k,2)}, v4, s[60:63], s75 offen offset:{32*k}")
    A.e(f"buffer_load_dwordx2 {v(XR+8,2)}, v4, s[60:63], s76 offen")
    A.e("s_waitcnt vmcnt(5)")
    A.e(f"buffer_store_dword v{ONE}, off, s[16:19], {s(sPF)}{SC}")
    A.e("v_mov_b32 v6, v4")
    A.e(f"s_lshl_b32 s77, {s(sI)}, 2"); A.e(f"s_lshr_b32 s79, {s(sPart)}, 1"); A.e("s_add_u32 s77, s77, s79")
    A.e("s_lshl_b32 s77, s77, 7"); A.e(f"s_add_u32 s77, s77, {FLAG_OFF + PFO}")
    poll("s77", "polld", 7)
    stamp()
    A.e(f"s_lshl_b32 s78, s80, 2"); A.e(f"s_add_u32 s78, s78, {s(sCt)}"); A.e(f"s_mul_i32 s78, s78, {PART_UNIT}")
    A.e(f"s_add_u32 s78, s78, {PART_OFF}"); A.e("s_lshl_b32 s79, s82, 10"); A.e("s_add_u32 s78, s78, s79")
    A.e(f"s_lshl_b32 s79, s81, 2"); A.e(f"s_add_u32 s79, s79, {s(sCt)}"); A.e(f"s_mul_i32 s79, s79, {PART_UNIT}")
    A.e(f"s_add_u32 s79, s79, {PART_OFF + NPART*4096}")
    A.e("v_lshlrev_b32 v7, 3, v2")
    PA_, PB_, PS_ = 8, 72, 136
    for p in range(NPART):
        A.e(f"buffer_load_dwordx4 {v(PA_+4*p,4)}, v3, s[16:19], s78 offen{SC}")
        A.e(f"buffer_load_dwordx4 {v(PB_+4*p,4)}, v3, s[16:19], s78 offen offset:1024{SC}")
        if p < NPART - 1: A.e("s_add_u32 s78, s78, 4096")
    for p in range(NPART):
        if p == 8: A.e("s_add_u32 s79, s79, 4096")
        A.e(f"buffer_load_dwordx2 {v(PS_+2*p,2)}, v7, s[16:19], s79 offen offset:{(p%8)*512}{SC}")
    A.e(f"s_mov_b32 s23, {hex(f32(-1.4426950408889634))}")
    def unpack_sum(dst, srcs, nreg, t, waits=None):
        for n, sr in enumerate(srcs):
            if waits: A.e(f"s_waitcnt vmcnt({waits[n]})")
            for j in range(nreg):
                lo, hi = v(dst + 2 * j), v(dst + 2 * j + 1)
                if n == 0:
                    A.e(f"v_lshlrev_b32 {lo}, 16, {v(sr+j)}"); A.e(f"v_and_b32 {hi}, 0xffff0000, {v(sr+j)}")
                else:
                    A.e(f"v_lshlrev_b32 {v(t)}, 16, {v(sr+j)}"); A.e(f"v_and_b32 {v(t+1)}, 0xffff0000, {v(sr+j)}")
                    A.e(f"v_pk_add_f32 {v(dst+2*j,2)}, {v(dst+2*j,2)}, {v(t,2)}")
    S0, D0, T0 = 170, 190, 210
    tot = 2 * NPART + NPART
    for half, dst in ((0, S0), (1, D0)):
        for p in range(NPART // 2):
            pp = NPART // 2 * half + p
            A.e(f"s_waitcnt vmcnt({tot - 2*(pp+1)})")
            for q, base in ((0, PA_), (1, PB_)):
                for j in range(4):
                    sr = base + 4 * pp + j
                    d2 = dst + 8 * q + 2 * j
                    if p == 0:
                        A.e(f"v_lshlrev_b32 {v(d2)}, 16, {v(sr)}"); A.e(f"v_and_b32 {v(d2+1)}, 0xffff0000, {v(sr)}")
                    else:
                        tt = 216 + 2 * (j & 1)
                        A.e(f"v_lshlrev_b32 {v(tt)}, 16, {v(sr)}"); A.e(f"v_and_b32 {v(tt+1)}, 0xffff0000, {v(sr)}")
                        A.e(f"v_pk_add_f32 {v(d2,2)}, {v(d2,2)}, {v(tt,2)}")
    for q in range(4):
        k2.final_math(A, S0 + 4 * q, D0 + 4 * q, XR + 2 * q, T0, "s23")
        A.e(f"buffer_store_dwordx2 {v(XR+2*q,2)}, v6, s[64:67], s75 offen offset:{32*q}{opt.get('outmod','')}")
    A.e("s_waitcnt vmcnt(4)")
    unpack_sum(S0 + 16, [PS_ + 2 * p for p in range(NPART // 2)], 2, 216)
    unpack_sum(D0 + 16, [PS_ + NPART + 2 * p for p in range(NPART // 2)], 2, 216)
    k2.final_math(A, S0 + 16, D0 + 16, XR + 8, T0, "s23")
    A.e(f"buffer_store_dwordx2 {v(XR+8,2)}, v6, s[64:67], s76 offen{opt.get('outmod','')}")
    if stamps or opt.get("span"):
        A.e("s_waitcnt vmcnt(0)")
        stamp()
        A.e("s_memrealtime s[94:95]"); A.e("s_waitcnt lgkmcnt(0)")
        A.e("s_sub_u32 s94, s94, s92")
        A.e(f"v_writelane_b32 v253, s94, 30"); A.e("v_writelane_b32 v253, s92, 31")
        A.e("s_lshl_b32 s21, s2, 2"); A.e("s_add_u32 s21, s21, s12"); A.e("s_lshl_b32 s21, s21, 8")
        A.e(f"s_add_u32 s21, s21, {STAMP_OFF}")
        A.e("v_lshlrev_b32 v1, 2, v2")
        A.e("buffer_store_dword v253, v1, s[16:19], s21 offen")
        if opt.get("dbgout"):
            A.e("s_cmp_eq_u32 s2, 0"); A.e(f"s_cbranch_scc0 {name}_nodbg")
            A.e("s_cmp_eq_u32 s12, 0"); A.e(f"s_cbranch_scc0 {name}_nodbg")
            lanes = [30, 1, 2, 3, 5, 6, 8, 9, 10, 11, 30, 30, 30, 30]
            words = [1, 2, 3, 4, 5, 6, 7, 9, 10, 11]
            A.e("s_mov_b64 exec, 1")
            for ln_, wd in zip(lanes, words):
                A.e(f"v_readlane_b32 s25, v253, {ln_}")
                A.e("s_nop 3")
                A.e("v_mov_b32 v4, s25")
                A.e(f"buffer_store_dword v4, off, {s(sDbg,4)}, 0 offset:{wd*4}")
            A.e("s_mov_b64 exec, -1")
            A.label(f"{name}_nodbg")
    A.e("s_endpgm")
    A.label(f"{name}_slowh")
    spin(f"buffer_load_dword {v(P.FL)}, {vlane}, s[16:19], {s(sPoll)} offen{SC}",
         [f"v_cmp_ne_u32 vcc, 1, {v(P.FL)}", "s_nop 0", f"s_cbranch_vccz {name}_slowh2_ok"], "slowh2")
    A.label(f"{name}_slowh2_ok")
    A.e(f"s_branch {name}_h_ok")
    if PAR:
        A.label(f"{name}_slowa")
        spin(f"buffer_load_dword {v(P.FL)}, {vlane}, s[16:19], {s(sPoll)} offen{SC}",
             [f"v_cmp_ne_u32 vcc, 1, {v(P.FL)}", "s_nop 0", f"s_cbranch_vccz {name}_slowa2_ok"], "slowa2")
        A.label(f"{name}_slowa2_ok")
        A.e(f"s_branch {name}_a_ok")
    if K0:
        A.label(f"{name}_slowc")
        spin(f"buffer_load_dword v{DBGV}, off, {s(sDbg,4)}, s98{SC}",
             [f"v_readfirstlane_b32 s25, v{DBGV}", "s_cmp_ge_u32 s25, 32", f"s_cbranch_scc1 {name}_slowc1_ok"], "slowc1")
        A.label(f"{name}_slowc1_ok")
        A.e(f"buffer_load_dword {v(P.FL)}, {vlane}, s[16:19], {s(sPoll)} offen{SC}")
        A.e("s_waitcnt vmcnt(0)")
        A.e(f"s_branch {name}_c_ok")
    if True:
        A.label(f"{name}_slowo")
        spin(f"buffer_load_dword {v(P.FL)}, {vlane}, s[16:19], {'s23' if SEQ else 's22'} offen{SC}",
             [f"v_cmp_ne_u32 vcc, 1, {v(P.FL)}", "s_nop 0", f"s_cbranch_vccz {name}_slowo2_ok"], "slowo2")
        A.label(f"{name}_slowo2_ok")
        A.e(f"s_branch {name}_o_ok")
    G.emit_rare(A)
    A.label(f"{name}_end")
    A.e("s_endpgm")
    A(kernel_desc(name, 512, 102, 256))
    errs = checker.check([l for l in A.lines if not l.startswith(";")], name)
    errs = [e for e in errs if not ("buffer_load_dwordx4 v[240:243]" in e.split("<-")[0] or "global_load_dwordx4 v[240:243]" in e.split("<-")[0]
                                    or "buffer_load_dwordx4 v[4:7]" in e.split("<-")[0])]
    for e in errs[:opt.get("nerr", 10)]: print(e[:200])
    print(name, "lines", len(A.lines), "hazard errors", len(errs), nerr)
    return A
```

```python
from asmgen import *
from layout import *
import struct
def f32(x): return struct.unpack("<I", struct.pack("<f", x))[0]

MF = "v_mfma_f32_16x16x32_bf16"
STAGE = 53248
BLK_U = 18432
BLK_Q = 36864
NKS = 18

class RegsA:
    def __init__(R):
        R.QA = 0
        R.GA = 128
        n = 8
        R.U = n; n += 144
        R.GV = n; n += 16
        R.B = n; n += 48
        R.A = n; n += 16
        R.DG = n; n += 4
        R.DX = n; n += 1
        R.DQ = n; n += 4
        R.LG = n; n += 1; R.GA_ADDR = n; n += 1
        R.LQ = n; n += 1; R.QA_ADDR = n; n += 1
        R.QT = n; n += 2
        R.vend = n
        R.sG = 60; R.sU = 64; R.sX = 68; R.sQ = 72
        R.sWS = 16
        R.sM0G = 76; R.sM0X = 77; R.sM0Q = 78
        R.sXoff = 79
        R.sT = 80; R.sT2 = 81; R.sHoff = 82; R.sH8 = 83
    def g(R, t, rb, r=None):
        if t < 8:
            b = R.GA + (t * 4 + rb) * 4
            return a(b, 4) if r is None else a(b + r)
        b = R.GV + rb * 4
        return v(b, 4) if r is None else v(b + r)
    def u(R, t, rb, r=None):
        b = R.U + (t * 4 + rb) * 4
        return v(b, 4) if r is None else v(b + r)
    def qa(R, dt, rb, r=None):
        b = R.QA + (dt * 4 + rb) * 4
        return a(b, 4) if r is None else a(b + r)
    def b(R, ks, rb): return v(R.B + (ks % 3) * 16 + rb * 4, 4)
    def af(R, gi, h=None):
        b = R.A + (gi % 4) * 4
        return v(b, 4) if h is None else v(b + 2 * h, 2)

TILES = [x for t in range(9) for x in (("G", t), ("U", t))] + [("Q", dt) for dt in range(8)]
NT = len(TILES)

class Lin:
    def __init__(L):
        L.out = []; L.ds = []; L.vm = []
    def e(L, t): L.out.append(t)
    def ds_op(L, t, key): L.out.append(t); L.ds.append(key)
    def vm_op(L, t, key): L.out.append(t); L.vm.append(key)
    def need_ds(L, key):
        if key in L.ds:
            last = max(i for i, x in enumerate(L.ds) if x == key)
            cnt = len(L.ds) - 1 - last
            assert cnt <= 15
            L.out.append(f"s_waitcnt lgkmcnt({cnt})")
            L.ds = L.ds[last + 1:]
    def need_vm(L, key):
        if key in L.vm:
            last = max(i for i, x in enumerate(L.vm) if x == key)
            cnt = len(L.vm) - 1 - last
            assert cnt <= 63, cnt
            L.out.append(f"s_waitcnt vmcnt({cnt})")
            L.vm = L.vm[last + 1:]

class PhaseA:
    def __init__(G, R, vm_period=2):
        G.R = R; G.vm_period = vm_period; G.stmod = ''; G.dist = 3; G.ldmod = ''; G.xmod = ''; G.noq = False; G.late_bar = False; G.w0poll = None; G.k0 = None

    def setup(G, A, lane, wave, head, rt, ptr):
        R = G.R
        t = [v(R.B + i) for i in range(12)]
        for srd, nm, size in ((R.sG, "Wg", 576 * 9216), (R.sU, "Wu", 576 * 9216), (R.sQ, "wq", 576 * 8192)):
            p = ptr(nm)
            A.e(f"s_mov_b32 {s(srd)}, {s(p)}"); A.e(f"s_mov_b32 {s(srd+1)}, {s(p+1)}")
            A.e(f"s_mov_b32 {s(srd+2)}, {size}"); A.e(f"s_mov_b32 {s(srd+3)}, 0x20000")
        A.e(f"s_cmp_lt_u32 {wave}, 2")
        A.e(f"s_cselect_b32 {s(R.sX)}, {s(R.sG)}, {s(R.sU)}")
        A.e(f"s_cselect_b32 {s(R.sX+1)}, {s(R.sG+1)}, {s(R.sU+1)}")
        A.e(f"s_mov_b32 {s(R.sX+2)}, {576*9216}"); A.e(f"s_mov_b32 {s(R.sX+3)}, 0x20000")
        A.e(f"s_lshl_b32 {s(R.sM0G)}, {wave}, 12")
        A.e(f"s_and_b32 {s(R.sT)}, {wave}, 1"); A.e(f"s_add_u32 {s(R.sT)}, {s(R.sT)}, 16"); A.e(f"s_lshl_b32 {s(R.sM0X)}, {s(R.sT)}, 10")
        A.e(f"s_cmp_lt_u32 {wave}, 2")
        A.e(f"s_cselect_b32 {s(R.sT2)}, 0, {BLK_U}")
        A.e(f"s_add_u32 {s(R.sM0X)}, {s(R.sM0X)}, {s(R.sT2)}")
        A.e(f"s_lshl_b32 {s(R.sM0Q)}, {wave}, 12"); A.e(f"s_add_u32 {s(R.sM0Q)}, {s(R.sM0Q)}, {BLK_Q}")
        A.e(f"s_mul_i32 {s(R.sT2)}, {head}, 288")
        A.e(f"s_and_b32 s87, {head}, 1"); A.e("s_lshl_b32 s87, s87, 1")
        def gu(dst, idx_s, idx_c, comp):
            A.e(f"s_lshl_b32 s84, {idx_s}, 6")
            A.e(f"v_add_u32 {t[0]}, s84, {lane}")
            if idx_c: A.e(f"v_add_u32 {t[0]}, {64*idx_c}, {t[0]}")
            A.e(f"v_mul_u32_u24 {t[1]}, 3641, {t[0]}")
            A.e(f"v_lshrrev_b32 {t[1]}, 16, {t[1]}")
            A.e(f"v_mul_u32_u24 {t[2]}, 18, {t[1]}")
            A.e(f"v_sub_u32 {t[2]}, {t[0]}, {t[2]}")
            A.e(f"v_add_u32 {t[2]}, s87, {t[2]}")
            A.e(f"v_subrev_u32 {t[5]}, 18, {t[2]}")
            A.e(f"v_min_u32 {t[2]}, {t[2]}, {t[5]}")
            A.e(f"v_mul_u32_u24 {t[1]}, 9216, {t[1]}")
            A.e(f"v_lshl_add_u32 {t[1]}, {t[2]}, 4, {t[1]}")
            A.e(f"v_add_u32 {dst}, {s(R.sT2)}, {t[1]}")
            if comp: A.e(f"v_subrev_u32 {dst}, {comp}, {dst}")
        A.e(f"s_lshl_b32 s85, {wave}, 2")
        for n in range(4): gu(v(R.DG + n), "s85", n, n * 1024)
        gu(v(R.DX), s(R.sT), 0, 0)
        m, g = t[3], t[4]
        A.e(f"v_and_b32 {m}, 15, {lane}"); A.e(f"v_lshrrev_b32 {g}, 4, {lane}")
        A.e(f"s_lshl_b32 s84, {wave}, 4")
        A.e(f"s_lshl_b32 s85, {head}, 8")
        for n in range(4):
            A.e(f"v_add_u32 {t[0]}, {4*n}, {g}")
            A.e(f"v_and_b32 {t[1]}, 7, {t[0]}")
            A.e(f"v_lshlrev_b32 {t[1]}, 1, {t[1]}")
            A.e(f"v_xor_b32 {t[1]}, {t[1]}, {m}")
            A.e(f"v_add_u32 {t[0]}, s84, {t[0]}")
            A.e(f"v_lshlrev_b32 {t[0]}, 13, {t[0]}")
            A.e(f"v_lshl_add_u32 {t[0]}, {t[1]}, 4, {t[0]}")
            A.e(f"v_add_u32 {v(R.DQ+n)}, s85, {t[0]}")
            if n: A.e(f"v_subrev_u32 {v(R.DQ+n)}, {n*1024}, {v(R.DQ+n)}")
        A.e(f"v_lshrrev_b32 {t[0]}, 2, {m}")
        A.e(f"v_lshl_add_u32 {t[0]}, {g}, 2, {t[0]}")
        A.e(f"v_mul_u32_u24 {t[1]}, 288, {t[0]}")
        A.e(f"v_and_b32 {t[2]}, 3, {m}")
        A.e(f"v_lshl_add_u32 {v(R.LG)}, {t[2]}, 3, {t[1]}")
        A.e(f"v_lshlrev_b32 {t[1]}, 8, {t[0]}")
        A.e(f"v_and_b32 {t[2]}, 7, {t[0]}")
        A.e(f"v_lshl_add_u32 {t[1]}, {t[2]}, 5, {t[1]}")
        A.e(f"v_bfe_u32 {t[2]}, {m}, 1, 1")
        A.e(f"v_lshl_add_u32 {t[1]}, {t[2]}, 4, {t[1]}")
        A.e(f"v_and_b32 {t[2]}, 1, {m}")
        A.e(f"v_lshl_add_u32 {t[1]}, {t[2]}, 3, {t[1]}")
        A.e(f"v_add_u32 {v(R.LQ)}, {BLK_Q}, {t[1]}")
        A.e(f"s_lshl_b32 {s(R.sXoff)}, {rt}, 2"); A.e(f"s_add_u32 {s(R.sXoff)}, {s(R.sXoff)}, {wave}")
        A.e(f"s_mul_i32 {s(R.sXoff)}, {s(R.sXoff)}, {18*4096}")
        if XN_OFF: A.e(f"s_add_u32 {s(R.sXoff)}, {s(R.sXoff)}, {XN_OFF}")
        A.e(f"s_mul_i32 s84, {rt}, 144")
        A.e(f"s_lshr_b32 s85, {head}, 1"); A.e("s_mul_i32 s85, s85, 9"); A.e("s_add_u32 s84, s84, s85")
        A.e("s_lshl_b32 s84, s84, 14")
        A.e(f"s_lshl_b32 s85, {wave}, 12"); A.e("s_add_u32 s84, s84, s85")
        A.e(f"s_add_u32 s84, s84, {H_OFF}")
        A.e(f"s_and_b32 s85, {head}, 1")
        A.e(f"s_mul_i32 {s(R.sT)}, s85, {5*16384}"); A.e(f"s_add_u32 {s(R.sHoff)}, s84, {s(R.sT)}")
        A.e(f"s_lshl_b32 {s(R.sT)}, s85, 9"); A.e(f"s_add_u32 {s(R.sH8)}, s84, {s(R.sT)}"); A.e(f"s_add_u32 {s(R.sH8)}, {s(R.sH8)}, {4*16384}")

    def dma_ops(G, st):
        R = G.R; slot = (st % 3) * STAGE
        so_g = st * 64 * 9216; so_q = st * 64 * 8192
        ops = []
        for n in range(4):
            pre = [f"s_add_u32 m0, {s(R.sM0G)}, {slot}", f"s_mov_b32 {s(R.sT)}, {so_g}"] if n == 0 else []
            ops.append((pre, f"buffer_load_dwordx4 {v(R.DG+n)}, {s(R.sG,4)}, {s(R.sT)} offen offset:{n*1024}{G.ldmod} lds"))
        for n in range(4):
            pre = [f"s_add_u32 m0, {s(R.sM0G)}, {slot + BLK_U}"] if n == 0 else []
            ops.append((pre, f"buffer_load_dwordx4 {v(R.DG+n)}, {s(R.sU,4)}, {s(R.sT)} offen offset:{n*1024}{G.ldmod} lds"))
        ops.append(([f"s_add_u32 m0, {s(R.sM0X)}, {slot}"], f"buffer_load_dwordx4 {v(R.DX)}, {s(R.sX,4)}, {s(R.sT)} offen{G.ldmod} lds"))
        for n in range(4):
            pre = [f"s_add_u32 m0, {s(R.sM0Q)}, {slot}", f"s_mov_b32 {s(R.sT2)}, {so_q}"] if n == 0 else []
            ops.append((pre, f"buffer_load_dwordx4 {v(R.DQ+n)}, {s(R.sQ,4)}, {s(R.sT2)} offen offset:{n*1024}{G.ldmod} lds"))
        return ops

    def x_ops(G, ks, lane16):
        R = G.R
        return [([f"s_add_u32 s86, {s(R.sXoff)}, {ks*4096}"],
                 f"buffer_load_dwordx4 {R.b(ks,rb)}, {lane16}, {s(R.sWS,4)}, s86 offen offset:{rb*1024}{G.xmod}") for rb in range(4)]

    def read_ops(G, gi):
        R = G.R; ks, n = divmod(gi, NT); st, kk = divmod(ks, 2)
        kind, t = TILES[n]; pre = []
        if n == 0 and kk == 0:
            pre.append(f"v_add_u32 {v(R.GA_ADDR)}, {(st%3)*STAGE}, {v(R.LG)}")
            pre.append(f"v_add_u32 {v(R.QA_ADDR)}, {(st%3)*STAGE}, {v(R.LQ)}")
        if kind == "Q":
            tmp = v(R.QT + (t & 1))
            pre.append(f"v_xor_b32 {tmp}, {t*32}, {v(R.QA_ADDR)}")
            rd = [f"ds_read_b64_tr_b16 {R.af(gi,h)}, {tmp} offset:{kk*8192 + h*4096}" for h in range(2)]
        else:
            blk = 0 if kind == "G" else BLK_U
            rd = [f"ds_read_b64_tr_b16 {R.af(gi,h)}, {v(R.GA_ADDR)} offset:{blk + (32*kk + 16*h)*288 + 32*t}" for h in range(2)]
        return pre, rd

    def main(G, L, lane16, fused, stamp=None, extra=None, tail_ops=None):
        R = G.R
        def issue(ops, key):
            for pre, ins in ops:
                for x in pre: L.e(x)
                if pre: L.e("s_nop 0")
                L.vm_op(ins, key)
        if G.k0:
            issue(G.dma_ops(0), ("W", 0))
            issue(G.x_ops(0, lane16), ("X", 0))
            issue(G.x_ops(1, lane16), ("X", 1))
            L.need_vm(("X", 0))
            L.e("s_barrier")
            G.k0(L)
        else:
            for st in range(G.pre_w): issue(G.dma_ops(st), ("W", st))
            fused[0](L)
            L.vm = []
        if G.k0:
            pass
        elif G.w0poll:
            w0poll, lab = G.w0poll
            L.e("s_cmp_eq_u32 s12, 0"); L.e(f"s_cbranch_scc1 {lab}_w0")
            issue(G.dma_ops(1), ("W", 1)); L.vm = []
            L.e("s_barrier")
            issue(G.x_ops(0, lane16), ("X", 0)); issue(G.x_ops(1, lane16), ("X", 1)); L.vm = []
            L.e("s_waitcnt vmcnt(4)")
            L.e(f"s_branch {lab}_join")
            L.e(f"{lab}_w0:")
            w0poll(L)
            L.e("s_barrier")
            issue(G.x_ops(0, lane16), ("X", 0)); issue(G.x_ops(1, lane16), ("X", 1))
            issue(G.dma_ops(1), ("W", 1)); L.vm = []
            L.e("s_waitcnt vmcnt(17)")
            L.e(f"{lab}_join:")
            L.vm = [("W", 1)] * 13 + [("X", 1)] * 4
        else:
            for st in range(G.pre_w, G.pre_w + G.mid_w): issue(G.dma_ops(st), ("W", st))
            fused[1](L)
            L.vm = []
            issue(G.x_ops(0, lane16), ("X", 0))
            issue(G.x_ops(1, lane16), ("X", 1))
        late_w = [(p, i, ("W", st)) for st in range(1 if G.k0 else G.pre_w + G.mid_w, 3) for p, i in G.dma_ops(st)]
        if stamp: stamp(L)
        L.need_vm(("X", 0))
        DIST = G.dist
        total = NKS * NT
        for gi in range(DIST):
            pre, rd = G.read_ops(gi)
            for x in pre: L.e(x)
            for x in rd: L.ds_op(x, ("A", gi))
        vmq = list(late_w); staged = None
        for ks in range(NKS):
            if stamp and ks > 0: stamp(L)
            if ks + 2 < NKS: vmq = [(p, i, ("X", ks + 2)) for p, i in G.x_ops(ks + 2, lane16)] + vmq
            if extra and ks in extra: vmq += extra[ks]
            for n in range(NT):
                gi = ks * NT + n
                nx = gi + DIST
                rd = None
                if nx < total:
                    pre, rd = G.read_ops(nx)
                    newstage = (nx % (2 * NT) == 0)
                kind, t = TILES[n]
                for rb in range(4):
                    if rb == 0:
                        L.need_ds(("A", gi))
                        if n == 0:
                            assert not [x for x in vmq if x[2] == ("X", ks)] and not (staged and staged[1] == ("X", ks)), ("X not issued", ks)
                            L.need_vm(("X", ks))
                    acc = R.g(t, rb) if kind == "G" else (R.u(t, rb) if kind == "U" else R.qa(t, rb))
                    c = "0" if ks == 0 else acc
                    L.e(f"{MF} {acc}, {R.af(gi)}, {R.b(ks,rb)}, {c}")
                    if rd:
                        late = newstage and G.late_bar
                        if rb == (1 if late else 0):
                            if newstage:
                                ns = nx // (2 * NT)
                                assert not [x for x in vmq if x[2] == ("W", ns)] and not (staged and staged[1] == ("W", ns)), ("W not issued", ns)
                                L.need_vm(("W", ns))
                                L.e("s_waitcnt lgkmcnt(0)"); L.ds = []
                                L.e("s_barrier")
                                if ns + 2 <= 8: vmq += [(p, i, ("W", ns + 2)) for p, i in G.dma_ops(ns + 2)]
                                if ns == 8 and tail_ops: vmq += [(p, i, ("T", 0)) for p, i in tail_ops]
                            for x in pre: L.e(x)
                        if rb == (2 if late else 1): L.ds_op(rd[0], ("A", nx))
                        if rb == (3 if late else 2): L.ds_op(rd[1], ("A", nx))
                    if rb == 0 and staged is not None:
                        L.vm_op(*staged); staged = None
                    period = G.vm_period
                    if rb == 3 and vmq and (n >= 1 or vmq[0][2][0] != "X") and (n % period == period - 1 or ks >= NKS - 2 or ks < 2) and gi + 1 < total:
                        p, i, key = vmq.pop(0)
                        for x in p: L.e(x)
                        staged = (i, key)
            assert not [x for x in vmq if x[2][0] == "X" and x[2][1] <= ks + 1], ks
        assert not vmq and staged is None

    def h_unit(G, A, sx, rb, dst=None):
        R = G.R
        def hvals(t, d):
            x = R.DG
            for r in range(4):
                if t < 8:
                    A.e(f"v_accvgpr_read_b32 {v(x+r)}, {R.g(t,rb,r)}")
            for r in range(4):
                A.e(f"v_max_f32 {v(x+r)}, 0, {v(x+r) if t < 8 else R.g(t,rb,r)}")
            ub = R.U + (t * 4 + rb) * 4
            for r in (0, 2):
                A.e(f"v_pk_mul_f32 {v(ub+r,2)}, {v(x+r,2)}, {v(ub+r,2)}")
            A.e(f"v_cvt_pk_bf16_f32 {v(d)}, {R.u(t,rb,0)}, {R.u(t,rb,1)}")
            A.e(f"v_cvt_pk_bf16_f32 {v(d+1)}, {R.u(t,rb,2)}, {R.u(t,rb,3)}")
        d = dst if dst is not None else R.U + (2 * sx * 4 + rb) * 4
        hvals(2 * sx, d)
        if sx < 4: hvals(2 * sx + 1, d + 2)
        return d
    def h_store(G, A, sx, rb, d):
        R = G.R
        if sx < 4:
            A.e(f"s_add_u32 {s(R.sT)}, {s(R.sHoff)}, {sx*16384}")
            A.e(f"buffer_store_dwordx4 {v(d,4)}, v3, {s(R.sWS,4)}, {s(R.sT)} offen offset:{rb*1024}{G.stmod}")
        else:
            A.e(f"buffer_store_dwordx2 {v(d,2)}, v1, {s(R.sWS,4)}, {s(R.sH8)} offen offset:{rb*1024}{G.stmod}")

    def epilogue_q(G, A, qfrag, tmp):
        R = G.R
        c = f32(128 ** -0.5 * 1.4426950408889634)
        A.e(f"s_mov_b32 s86, {hex(c)}"); A.e(f"s_mov_b32 s87, {hex(c)}")
        for sx in range(4):
            for rb in range(4):
                b = tmp
                for h in range(2):
                    for r in range(4):
                        A.e(f"v_accvgpr_read_b32 {v(b+4*h+r)}, {R.qa(2*sx+h,rb,r)}")
                for j in range(0, 8, 2): A.e(f"v_pk_mul_f32 {v(b+j,2)}, {v(b+j,2)}, s[86:87]")
                for j in range(4): A.e(f"v_cvt_pk_bf16_f32 {v(b+8+j)}, {v(b+2*j)}, {v(b+2*j+1)}")
                b += 8
                A.e("s_nop 0")
                A.e(f"v_permlane32_swap_b32 {v(b)}, {v(b+2)}")
                A.e(f"v_permlane32_swap_b32 {v(b+1)}, {v(b+3)}")
                A.e("s_nop 0")
                A.e(f"v_permlane16_swap_b32 {v(b)}, {v(b+2)}")
                A.e(f"v_permlane16_swap_b32 {v(b+1)}, {v(b+3)}")
                for j in range(4): A.e(f"v_accvgpr_write_b32 {a(qfrag(rb,sx)+j)}, {v(b+j)}")
```

```python
from asmgen import *
from layout import *
from phasea import Lin, MF

SLOT = 4 * 9216
NSLOT = 4
NB = 8
NKJ = {"s": 32, "d": 36}

NATURAL = [False]
def korder(job, k):
    if job == "d" or NATURAL[0]: return k
    st, w = divmod(k, 4)
    return 8 * (st % 4) + 2 * (st // 4) + 4 * (w >> 1) + (w & 1)

class Tail:
    def __init__(G, opt=None):
        G.opt = opt or {}
        G.dist = G.opt.get("dist", 3)
        G.B = 8
        G.AF = 136
        G.OS = 152
        G.PK = 152
        G.DV = 219
        G.LA = 228; G.RA = 229
        G.FL = 230
        G.L8 = 232
        G.sW, G.sAct = 60, 64
        G.sWoff, G.sBoff, G.sM0, G.sP4, G.sP2 = 68, 69, 70, 71, 72
        G.sNk = 73
        G.sT = 74
        G.sWS = 16
    def acc(G, t, rb, r=None):
        b = (t * 4 + rb) * 4
        return a(b, 4) if r is None else a(b + r)
    def bf(G, k, rb): return v(G.B + (k % NB) * 16 + rb * 4, 4)
    def af(G, gi, h=None):
        b = G.AF + (gi % 4) * 4
        return v(b, 4) if h is None else v(b + 2 * h, 2)

    def setup(G, A, wave, part, ct, rt, pwo, pwd, pws):
        T = G.sT
        A.e(f"s_cmp_lt_u32 {part}, 4")
        A.e(f"s_cselect_b32 {s(G.sW)}, {s(pwo)}, {s(pwd)}"); A.e(f"s_cselect_b32 {s(G.sW+1)}, {s(pwo+1)}, {s(pwd+1)}")
        A.e(f"s_cselect_b32 {s(G.sNk)}, 32, 36")
        A.e(f"s_mov_b32 {s(T+1)}, 144"); A.e(f"s_cselect_b32 {s(T+1)}, 128, {s(T+1)}")
        A.e(f"s_mov_b32 {s(T+2)}, {G.opt.get('dsrc', H_OFF)}"); A.e(f"s_cselect_b32 {s(T+2)}, {G.opt.get('ssrc', O_OFF)}, {s(T+2)}")
        A.e(f"s_and_b32 {s(T+3)}, {part}, 3"); A.e(f"s_mul_i32 {s(T+3)}, {s(T+3)}, {s(G.sNk)}")
        A.e(f"s_mul_i32 {s(T)}, {s(T+3)}, {32*1152}")
        A.e(f"s_add_u32 {s(G.sW)}, {s(G.sW)}, {s(T)}"); A.e(f"s_addc_u32 {s(G.sW+1)}, {s(G.sW+1)}, 0")
        A.e(f"s_mul_i32 {s(G.sW+2)}, {s(G.sNk)}, {32*1152}"); A.e(f"s_mov_b32 {s(G.sW+3)}, 0x20000")
        A.e(f"s_mul_i32 {s(T)}, {rt}, {s(T+1)}"); A.e(f"s_add_u32 {s(T)}, {s(T)}, {s(T+3)}"); A.e(f"s_lshl_b32 {s(T)}, {s(T)}, 14")
        A.e(f"s_add_u32 {s(T)}, {s(T)}, {s(T+2)}")
        A.e(f"s_add_u32 {s(G.sAct)}, {s(pws)}, {s(T)}"); A.e(f"s_addc_u32 {s(G.sAct+1)}, {s(pws+1)}, 0")
        A.e(f"s_lshl_b32 {s(G.sAct+2)}, {s(G.sNk)}, 14"); A.e(f"s_mov_b32 {s(G.sAct+3)}, 0x20000")
        A.e(f"s_lshl_b32 {s(G.sBoff)}, {wave}, 12")
        A.e(f"s_lshr_b32 {s(T)}, {wave}, 1"); A.e(f"s_lshl_b32 {s(T)}, {s(T)}, 1"); A.e(f"s_add_u32 {s(T)}, {s(T)}, {wave}")
        A.e(f"s_cmp_lt_u32 {part}, {0 if NATURAL[0] else 4}"); A.e(f"s_cselect_b32 {s(T)}, {s(T)}, {wave}")
        A.e(f"s_mul_i32 {s(T)}, {s(T)}, {32*1152}")
        A.e(f"s_mul_i32 {s(G.sWoff)}, {ct}, 288"); A.e(f"s_add_u32 {s(G.sWoff)}, {s(G.sWoff)}, {s(T)}")
        for n in range(9):
            A.e(f"v_add_u32 v4, {64*n}, v2")
            A.e("v_mul_u32_u24 v5, 3641, v4"); A.e("v_lshrrev_b32 v5, 16, v5")
            A.e("v_mul_u32_u24 v6, 18, v5"); A.e("v_sub_u32 v6, v4, v6")
            A.e("v_mul_u32_u24 v5, 1152, v5")
            A.e(f"v_lshl_add_u32 {v(G.DV+n)}, v6, 4, v5")
            if n % 4: A.e(f"v_subrev_u32 {v(G.DV+n)}, {(n%4)*1024}, {v(G.DV+n)}")
        A.e(f"s_mul_i32 {s(G.sM0)}, {wave}, {9*1024}")
        A.e(f"v_lshlrev_b32 {v(G.L8)}, 3, v2")
        A.e("v_and_b32 v4, 15, v2"); A.e("v_lshrrev_b32 v5, 4, v2")
        A.e("v_lshrrev_b32 v6, 2, v4"); A.e("v_lshl_add_u32 v6, v5, 2, v6")
        A.e("v_mul_u32_u24 v6, 288, v6"); A.e("v_and_b32 v4, 3, v4")
        A.e(f"v_lshl_add_u32 {v(G.LA)}, v4, 3, v6")
        A.e(f"s_lshl_b32 {s(T)}, {rt}, 4"); A.e(f"s_lshl_b32 {s(T+1)}, {wave}, 2"); A.e(f"s_add_u32 {s(T)}, {s(T)}, {s(T+1)}")
        A.e(f"s_lshl_b32 {s(T)}, {s(T)}, 2"); A.e(f"s_add_u32 {s(T)}, {s(T)}, {ct}")
        A.e(f"s_mul_i32 {s(T)}, {s(T)}, {PART_UNIT}"); A.e(f"s_add_u32 {s(T)}, {s(T)}, {PART_OFF}")
        A.e(f"s_lshl_b32 {s(T+1)}, {part}, 12"); A.e(f"s_add_u32 {s(G.sP4)}, {s(T)}, {s(T+1)}")
        A.e(f"s_lshl_b32 {s(T+1)}, {part}, 9"); A.e(f"s_add_u32 {s(G.sP2)}, {s(T)}, {s(T+1)}"); A.e(f"s_add_u32 {s(G.sP2)}, {s(G.sP2)}, {NPART*4096}")

    def dma(G, st, job=None):
        k0 = korder(job, 4 * st) if st else 0
        ops = []
        for n in range(9):
            pre = [f"s_add_u32 s99, {s(G.sWoff)}, {k0*32*1152}"] if n == 0 else []
            if n % 4 == 0: pre.append(f"s_add_u32 m0, {s(G.sM0)}, {(st % NSLOT) * SLOT + (n//4)*4096}")
            ops.append((pre, f"buffer_load_dwordx4 {v(G.DV+n)}, {s(G.sW,4)}, s99 offen offset:{(n%4)*1024} lds"))
        return ops
    def bload(G, k, job):
        m = G.opt.get('bmod', ' sc1')
        pre = [f"s_add_u32 s100, {s(G.sBoff)}, {korder(job, k)*16384}"]
        if job == "d" and k % 9 == 4:
            return [(pre, f"buffer_load_dwordx2 {v(G.B + (k % NB) * 16 + rb * 4 + 2*h, 2)}, {v(G.L8)}, {s(G.sAct,4)}, s100 offen offset:{rb*1024 + h*512}{m}")
                    for rb in range(4) for h in range(2)]
        return [(pre, f"buffer_load_dwordx4 {G.bf(k,rb)}, v3, {s(G.sAct,4)}, s100 offen offset:{rb*1024}{m}") for rb in range(4)]
    def rd(G, gi):
        st, r = divmod(gi, 36); k, t = divmod(r, 9)
        return [f"ds_read_b64_tr_b16 {G.af(gi,h)}, {v(G.RA)} offset:{k*9216 + 16*h*288 + 32*t}" for h in range(2)]

    def store_partials(G, L):
        k = 0
        for rb in range(4):
            for pr in range(5):
                b = G.PK + (k % 8) * 8; k += 1
                n = 8 if pr < 4 else 4
                for j in range(n): L.e(f"v_accvgpr_read_b32 {v(b+j)}, {G.acc(2*pr + j//4, rb, j%4)}")
                for j in range(n // 2): L.e(f"v_cvt_pk_bf16_f32 {v(b+j)}, {v(b+2*j)}, {v(b+2*j+1)}")
                if pr < 4:
                    L.e(f"s_add_u32 s101, {s(G.sP4)}, {rb*4*PART_UNIT}")
                    L.vm_op(f"buffer_store_dwordx4 {v(b,4)}, v3, {s(G.sWS,4)}, s101 offen offset:{pr*1024} sc1", ("P", 0))
                else:
                    L.e(f"s_add_u32 s101, {s(G.sP2)}, {rb*4*PART_UNIT}")
                    L.vm_op(f"buffer_store_dwordx2 {v(b,2)}, v4, {s(G.sWS,4)}, s101 offen sc1", ("P", 0))

    def addb(G, k, job): return [(p, i, ("B", k)) for p, i in G.bload(k, job)]
    def addw(G, st, job): return [(p, i, ("W", st)) for p, i in G.dma(st, job)]

    def main(G, L, job, vmq, at_start=None, at_end=None, hold_from=None, release_at=None, stamp=None):
        NK = NKJ[job]; NST = NK // 4
        total = NK * 9
        at_start = at_start or {}; at_end = at_end or {}
        L.e(f"v_mov_b32 {v(G.RA)}, {v(G.LA)}")
        L.e("v_lshlrev_b32 v4, 3, v2")
        L.e("s_barrier")
        for gi in range(G.dist):
            for x in G.rd(gi): L.ds_op(x, ("A", gi))
        staged = None; held = []; released = hold_from is None
        for kg in range(NK):
            for t in range(9):
                gi = kg * 9 + t
                nx = gi + G.dist
                rd = G.rd(nx) if nx < total else None
                for rb in range(4):
                    if rb == 0:
                        L.need_ds(("A", gi))
                        if t == 0:
                            assert not [x for x in vmq + held if x[2] == ("B", kg)] and not (staged and staged[1] == ("B", kg)), (job, kg)
                            L.need_vm(("B", kg))
                            if kg in at_start: at_start[kg](L, vmq)
                    ac = G.acc(t, rb)
                    L.e(f"{MF} {ac}, {G.af(gi)}, {G.bf(kg,rb)}, {'0' if kg == 0 else ac}")
                    if rb == 0 and rd and nx % 36 == 0:
                        ns = nx // 36
                        assert not [x for x in vmq if x[2] == ("W", ns)] and not (staged and staged[1] == ("W", ns)), (job, ns)
                        L.need_vm(("W", ns))
                        L.e("s_waitcnt lgkmcnt(0)"); L.ds = []
                        L.e("s_barrier")
                        L.e(f"v_add_u32 {v(G.RA)}, {(ns % NSLOT) * SLOT}, {v(G.LA)}")
                        if 4 <= ns + 3 < NST: vmq += G.addw(ns + 3, job)
                        if stamp: stamp(L)
                    if rd and rb == 1: L.ds_op(rd[0], ("A", nx))
                    if rd and rb == 2: L.ds_op(rd[1], ("A", nx))
                    if rb == 3 and t == 8:
                        if kg + NB < NK:
                            if not released and kg + NB >= hold_from: held += G.addb(kg + NB, job)
                            else: vmq[:0] = G.addb(kg + NB, job)
                        if kg in at_end: at_end[kg](L, vmq)
                        if not released and kg == release_at:
                            released = True; vmq[:0] = held; held = []
                    if rb == 0 and staged is not None:
                        L.vm_op(*staged); staged = None
                    if rb == 3 and vmq and len(L.vm) < 60:
                        p, i, key = vmq.pop(0)
                        for x in p: L.e(x)
                        staged = (i, key)
        assert staged is None and not held
        assert not vmq, vmq
```

```python
import sys, mega
opt = eval(sys.argv[2]) if len(sys.argv) > 2 else {}
NAME = "recurrent_scan__gqa_block_cached__glu_gated_reglu__prompt_kernel"
short = opt.get("aslist") or opt.get("k0")
kname = "mega_kernel" if short else NAME
a1 = mega.gen_mega("mk", opt=opt, stamps=opt.get("stamps", False))
body = a1.text()
body = body.replace(".globl mk\n", f".globl {kname}\n").replace(".type mk,@function\nmk:\n", f".type {kname},@function\n{kname}:\n")
body = body.replace(".amdhsa_kernel mk\n", f".amdhsa_kernel {kname}\n")
hdr = open("header.txt").read()
hdr += """;
"""
pre = ""
if opt.get("k0"):
    import ln
    hdr += "; @launch kernel=ln_kernel grid=(128,1,1) block=(192,1,1) lds=1024\n"
    pre = ln.gen_ln("ln_kernel", "mk" if opt["k0"] == "warm" else None).text()
if short: hdr += "; @launch kernel=mega_kernel grid=(256,1,1) block=(256,1,1) lds=163840\n"
else: hdr += "; @launch grid=(256,1,1) block=(256,1,1) lds=163840\n"
txt = hdr + '.amdgcn_target "amdgcn-amd-amdhsa--gfx950"\n' + pre + body
open(sys.argv[1], "w").write(txt)
print("bytes:", len(txt))
```
